```python
import torch

def _softmax(x, axis=-1):
    return torch.softmax(x, dim=axis)
def _gelu(x):
    return torch.nn.functional.gelu(x, approximate="tanh")
def _silu(x):
    return torch.nn.functional.silu(x)
def _sigmoid(x):
    return torch.sigmoid(x)
def _layernorm(x, axis=-1, eps=1e-5):
    m = x.mean(dim=axis, keepdim=True)
    v = x.var(dim=axis, keepdim=True, unbiased=False)
    return (x - m) / torch.sqrt(v + eps)
def _scatter_add(tgt, idx, src, axis=0):
    return tgt.clone().index_add_(axis, idx, src)
def _segment_sum(src, seg, n):
    out = torch.zeros((n,) + src.shape[1:], dtype=src.dtype)
    return out.index_add_(0, seg, src)
def _pad(x, pw):
    flat = tuple(v for pair in reversed(pw) for v in pair)
    return torch.nn.functional.pad(x, flat)

kernel_name = 'sequential_preLN__sliding_block_cached__geglu_ffn__decode'

def setup_inputs():

    _w = (lambda a: (lambda t: t.to(torch.bfloat16) if t.is_floating_point() else t)(torch.as_tensor(a)))
    def _A_setup():
        B, Sq, D = 1, 1, 448
        Hq, Hkv, Sk, Dh = 16, 8, 16384, 256
        assert Hq % Hkv == 0, (Hq, Hkv)
        return {
            "x": _w((lambda *s: torch.randn(*s, dtype=torch.bfloat16) * 0.05)(B, Sq, D)),
            "k_cache": _w((lambda *s: torch.randn(*s, dtype=torch.bfloat16) * 3.2)(B, Hkv, Sk, Dh)),
            "v_cache": _w((lambda *s: torch.randn(*s, dtype=torch.bfloat16) * 0.4)(B, Hkv, Sk, Dh)),
            "wq": _w((lambda *s: torch.randn(*s, dtype=torch.bfloat16) * 3.2)(D, Hq * Dh) * (D ** -0.5)),
            "wo": _w((lambda *s: torch.randn(*s, dtype=torch.bfloat16) * 0.4)(Hq * Dh, D) * ((Hq * Dh) ** -0.5)),
        }
    _A_in = _A_setup()

    def _B_setup():
        B, S, D, F = 1, 1, 448, 1792
        return {
            "x": _w((lambda *s: torch.randn(*s, dtype=torch.bfloat16) * 0.05)(B, S, D)),
            "w_gate": _w((lambda *s: torch.randn(*s, dtype=torch.bfloat16) * 0.05)(D, F)),
            "w_up": _w((lambda *s: torch.randn(*s, dtype=torch.bfloat16) * 0.05)(D, F)),
            "w_down": _w((lambda *s: torch.randn(*s, dtype=torch.bfloat16) * 0.05)(F, D)),
        }
    _B_in = _B_setup()

    return {
        "A_x": _A_in["x"],
        "A_k_cache": _A_in["k_cache"],
        "A_v_cache": _A_in["v_cache"],
        "A_wq": _A_in["wq"],
        "A_wo": _A_in["wo"],
        "B_x": _B_in["x"],
        "B_w_gate": _B_in["w_gate"],
        "B_w_up": _B_in["w_up"],
        "B_w_down": _B_in["w_down"],
    }

def reference(A_x, A_k_cache, A_v_cache, A_wq, A_wo, B_x, B_w_gate, B_w_up, B_w_down):
    def _A_ref(x, k_cache, v_cache, wq, wo):
        B, Sq, D = x.shape
        Hq, Dh = 16, 256
        Hkv, Sk = k_cache.shape[1], k_cache.shape[2]
        W = min(4096, max(256, Sk // 4))
        rep = Hq // Hkv
        q = (lambda x, *d: x.permute(*d))((x @ wq).reshape(B, Sq, Hq, Dh), 0, 2, 1, 3)
        k = (lambda x, n, axis: torch.repeat_interleave(x, n, dim=axis))(k_cache[:, :, Sk - W:, :], rep, axis=1)
        v = (lambda x, n, axis: torch.repeat_interleave(x, n, dim=axis))(v_cache[:, :, Sk - W:, :], rep, axis=1)
        scores = torch.einsum("bhqd,bhkd->bhqk", q, k) * (Dh ** -0.5)
        p = _softmax(scores, axis=-1)
        o = torch.einsum("bhqk,bhkd->bhqd", p, v)
        return (lambda x, *d: x.permute(*d))(o, 0, 2, 1, 3).reshape(B, Sq, Hq * Dh) @ wo

    def _B_ref(x, w_gate, w_up, w_down):
        return (_gelu(x @ w_gate) * (x @ w_up)) @ w_down

    x = A_x
    h = x + _A_ref(_layernorm(x, axis=-1), A_k_cache, A_v_cache, A_wq, A_wo)
    h2 = h + _B_ref(_layernorm(h, axis=-1), B_w_gate, B_w_up, B_w_down)
    return h2
```

```python
import re

TRANS = ('v_exp_f32', 'v_log_f32', 'v_rcp_f32', 'v_rsq_f32', 'v_sqrt_f32')

def regs(tok):
    tok = tok.strip().lstrip('-')
    tok = re.sub(r'^abs\((.*)\)$', r'\1', tok)
    tok = tok.strip('|')
    m = re.fullmatch(r'([vsa])(\d+)', tok)
    if m: return {(m.group(1), int(m.group(2)))}
    m = re.fullmatch(r'([vsa])\[(\d+):(\d+)\]', tok)
    if m: return {(m.group(1), i) for i in range(int(m.group(2)), int(m.group(3)) + 1)}
    if tok == 'vcc': return {('s', 'vcc')}
    if tok == 'm0': return {('s', 'm0')}
    if tok == 'exec': return {('s', 'exec')}
    return set()

class Ins:
    def __init__(self, text):
        self.text = text
        body = text.split(';')[0].strip()
        self.op = body.split()[0]
        rest = body[len(self.op):].strip()
        parts = re.split(r',\s*(?![^\[]*\])', rest) if rest else []
        if parts:
            last = parts[-1].split()
            self.mods = ' '.join(last[1:])
            parts[-1] = last[0]
        else:
            self.mods = ''
        self.ops = parts
        op = self.op
        self.valu = op.startswith('v_')
        self.mfma = op.startswith('v_mfma')
        self.dot = op.startswith('v_dot')
        self.trans = any(op.startswith(t) for t in TRANS)
        self.dpp = '_dpp' in op
        self.swap = op.startswith('v_permlane')
        self.lane = op.startswith('v_readlane') or op.startswith('v_readfirstlane')
        self.vmem = op.startswith('buffer_') or op.startswith('global_')
        self.ds = op.startswith('ds_')
        self.salu = op.startswith('s_')
        self.dma = self.vmem and (' lds' in ' ' + self.mods or 'load_lds' in op)
        R = [regs(p) for p in parts]
        U = lambda l: set().union(*l) if l else set()
        self.srcc = set()
        self.data = set()
        if self.mfma:
            self.w, self.r, self.srcc = R[0], R[1] | R[2], R[3]
        elif self.swap:
            self.w = self.r = R[0] | R[1]
        elif self.valu:
            self.w, self.r = R[0], U(R[1:])
            if op.startswith(('v_fmac', 'v_dot2c')) or self.dpp: self.r = self.r | R[0]
            if op.startswith('v_cndmask') and len(parts) == 3: self.r = self.r | {('s', 'vcc')}
        elif self.vmem:
            if 'store' in op:
                self.w, self.r = set(), U(R)
                if 'x3' in op or 'x4' in op: self.data = R[0]
            elif self.dma:
                self.w, self.r = set(), U(R) | {('s', 'm0')}
            else:
                self.w, self.r = R[0], U(R[1:])
        elif self.ds:
            if op.startswith('ds_read'): self.w, self.r = R[0], U(R[1:])
            else: self.w, self.r = set(), U(R)
        else:
            self.w, self.r = (R[0] if R else set()), U(R[1:])
        self.states = 1
        if op == 's_nop': self.states = int(parts[0], 0) + 1

def need(p, c):
    n = 0
    vw = {x for x in p.w if x[0] in 'va'}
    sw = {x for x in p.w if x[0] == 's'}
    if p.mfma:
        if c.mfma:
            if vw & c.r: n = max(n, 8)
            if vw & c.srcc and vw != c.srcc: n = max(n, 6)
        elif c.valu and vw & (c.r | c.w): n = max(n, 8)
        elif (c.vmem or c.ds) and vw & (c.r | c.w): n = max(n, 8)
        if c.valu and not c.mfma and p.srcc & c.w: n = max(n, 3)
    elif p.valu:
        if p.dot and c.op != p.op and vw & (c.r | c.w | c.srcc): n = max(n, 3)
        if c.mfma and vw & (c.r | c.srcc): n = max(n, 2)
        if (c.dpp or c.swap) and vw & c.r: n = max(n, 2)
        if c.lane and vw & c.r: n = max(n, 1)
        if p.trans and c.valu and vw & c.r: n = max(n, 1)
        if c.valu and sw & c.r: n = max(n, 2)
        if c.vmem and sw & c.r: n = max(n, 5)
    elif p.vmem and p.data:
        if c.valu and p.data & c.w: n = max(n, 2)
        elif p.data & c.w: n = max(n, 1)
    elif p.salu:
        if ('s', 'm0') in p.w and c.dma: n = max(n, 1)
    return n

class Asm:
    def __init__(self):
        self.lines = []
        self.hist = []
        self.nops = 0
    def raw(self, text):
        self.lines.append(text)
    def label(self, name):
        self.lines.append(name + ':')
    def cmt(self, text):
        self.lines.append('    ; ' + text)
    def __call__(self, text):
        for t in text.split('\n'):
            t = t.strip()
            if not t: continue
            if t.startswith(';'):
                self.lines.append('    ' + t); continue
            c = Ins(t)
            dist, pad = 0, 0
            for p in reversed(self.hist):
                pad = max(pad, need(p, c) - dist)
                dist += p.states
                if dist >= 12: break
            if pad > 0:
                self.lines.append('    s_nop %d' % (pad - 1))
                self.hist.append(Ins('s_nop %d' % (pad - 1)))
                self.nops += pad
            self.lines.append('    ' + t)
            self.hist.append(c)
            if c.op in ('s_branch', 's_endpgm'): self.hist = []
    def text(self):
        return '\n'.join(self.lines) + '\n'
```

```python
import sys, os, struct, math
sys.path.insert(0, os.path.dirname(os.path.abspath(__file__)))
from emit import Asm

NAME = 'sequential_preLN__sliding_block_cached__geglu_ffn__decode'

WS_E = 0
WS_Q = 0x4000
WS_H0 = 0x20000
H0G = 32 * 2176
WS_HP = 0xC0000
HPG = 112 * 640
WS_H1 = 0x160000
WS_H2 = 0x170000
WS_ST = 0x200000

L_QL = 0
L_S = 1024
L_P = 2048
L_XN = 6400
L_GU = 8448
L_STAT = 10752
L_H = 11776
L_T = 13824
LDS_BYTES = L_T + 7 * 4096

OOB = 0x40000000
SPIN = 20000

def f32(x):
    return '0x%08x' % struct.unpack('<I', struct.pack('<f', x))[0]

def vr(a, n=4):
    return 'v[%d:%d]' % (a, a + n - 1)

DEF = dict(depth=6, va=4, vb=10, stamps=None, rs=1, rg=0, gunt='', rot=True, rotbar=True, pf=True,
           wnt='nt', dnt='nt', inst='sc1')

def gen(**kw):
    c = dict(DEF); c.update(kw)
    a = Asm()
    D = c['depth']
    def stamp(k):
        if c['stamps']: a('%s s[%d:%d]' % (c['stamps'], 64 + 2 * k, 65 + 2 * k))
    def srd(base, size):
        a('s_mov_b32 s%d, 0x%x' % (base + 2, size))
        a('s_mov_b32 s%d, 0x20000' % (base + 3))
    def mktag():
        a('s_mul_i32 s6, s6, 0x9e3779b1')
        a('s_add_u32 s6, s6, 0x7f4a7c15')
    def rnd(d, s):
        a('v_cvt_pk_bf16_f32 v%d, 0, v%d' % (d, s))
    QP1, QP2 = 'quad_perm:[1,0,3,2]', 'quad_perm:[2,3,0,1]'
    FULL = 'row_mask:0xf bank_mask:0xf'
    def dpp(op, d, s0, s1, ctl, mask=FULL):
        a('%s_dpp v%d, v%d, v%d %s %s' % (op, d, s0, s1, ctl, mask))
    def masks():
        a('v_and_b32 v10, 1, v1')
        a('v_lshlrev_b32 v10, 4, v10')
        a('s_mov_b32 s7, 0xffff')
        a('v_lshlrev_b32_e64 v10, v10, s7')
        a('v_bfe_u32 v11, v1, 1, 2')
        for r in range(4):
            a('v_cmp_eq_u32 vcc, %d, v11' % r)
            a('v_cndmask_b32 v%d, 0, v10, vcc' % (vM + r))
    def colvoff(d):
        a('v_lshrrev_b32 v10, 4, v1')
        a('v_mul_u32_u24 v10, 896, v10')
        a('v_and_b32 v11, 15, v1')
        a('s_and_b32 s7, s5, 3')
        a('s_lshl_b32 s7, s7, 4')
        a('v_add_u32 v11, s7, v11')
        a('v_lshl_add_u32 v%d, v11, 4, v10' % d)
        a('v_cmp_gt_u32 vcc, 56, v11')
        a('v_cndmask_b32 v%d, 2.0, v%d, vcc' % (d, d))
    def pack24(d, s):
        for k in range(3):
            a('v_perm_b32 v%d, v%d, v%d, s%d' % (d + k, s + k, s + 3, sPK + k))
    def unpack24(d, s):
        a('v_perm_b32 v%d, v%d, v%d, s%d' % (d, s + 1, s, sUP))
        a('v_perm_b32 v%d, v%d, v%d, s%d' % (d, s + 2, d, sUP + 1))
    def packsel():
        for k in range(3):
            a('s_mov_b32 s%d, 0x0706050%d' % (sPK + k, 1 + k))
        a('s_mov_b32 s%d, 0x0c04000c' % sUP)
        a('s_mov_b32 s%d, 0x04020100' % (sUP + 1))
    def poll(name, loads, tags, lanemask=None, first_wait='vmcnt(0)', between=None):
        a('s_mov_b32 s7, 0')
        for t in loads: a(t)
        if between: between()
        a('s_waitcnt ' + first_wait)
        a.label(name + '_chk')
        a('v_cmp_ne_u32 vcc, s6, v%d' % tags[0])
        if len(tags) > 1:
            a('v_cmp_ne_u32_e64 s[46:47], s6, v%d' % tags[1])
            if lanemask: a('s_and_b64 s[46:47], s[46:47], %s' % lanemask)
            a('s_or_b64 vcc, vcc, s[46:47]')
            a('s_cbranch_scc1 %s_retry' % name)
        else:
            a('s_cbranch_vccnz %s_retry' % name)
        a.label(name + '_ok')
        retry.append((name, loads))
    retry = []
    def fptrs(x=True):
        if x:
            a('s_load_dwordx2 s[36:37], s[0:1], 0')
            srd(36, 896)
        a('s_load_dwordx2 s[24:25], s[0:1], 48')
        a('s_load_dwordx2 s[28:29], s[0:1], 56')
        a('s_load_dwordx2 s[32:33], s[0:1], 64')
        a('s_load_dwordx2 s[40:41], s[0:1], 72')
        srd(20, 1 << 28)
        srd(24, 448 * 3584)
        srd(28, 448 * 3584)
        srd(32, 1792 * 896)
        srd(40, 896)
        packsel()

    vM = 4
    vKO = 2
    vK, vV, vQ, vW = 16, 80, 144, 176
    vA = 192
    vP = 16
    vT = 48
    vC0, vC1 = 64, 68
    sPK, sUP = 48, 52

    if c['stamps']:
        for k in range(1, 16): a('s_mov_b32 s%d, 0' % (64 + 2 * k))
    stamp(0)
    a('s_cmp_ge_u32 s2, 256')
    a('s_cbranch_scc1 L_end')
    a('s_load_dwordx2 s[8:9], s[0:1], 8')
    a('s_load_dwordx2 s[12:13], s[0:1], 16')
    a('s_load_dwordx2 s[20:21], s[0:1], 88')
    a('v_lshrrev_b32 v3, 6, v0')
    a('v_and_b32 v1, 63, v0')
    a('s_and_b32 s3, s2, 7')
    a('v_readfirstlane_b32 s5, v3')
    a('s_lshr_b32 s4, s2, 3')
    srd(16, 448 * 8192)
    a('s_cmp_ge_u32 s4, 16')
    a('s_cbranch_scc1 L_q0')

    a('s_load_dwordx2 s[16:17], s[0:1], 32')
    colvoff(3)
    a('s_lshr_b32 s7, s5, 2')
    a('s_lshl1_add_u32 s54, s4, s7')
    a('s_lshl_b32 s7, s3, 5')
    a('s_add_u32 s7, s7, s54')
    a('s_mul_i32 s45, s7, %d' % (16 * 896))
    a('s_add_u32 s46, s45, 7168')
    a('s_waitcnt lgkmcnt(0)')
    a('s_load_dword s6, s[20:21], 0')
    for t in range(4):
        a('buffer_load_dwordx4 %s, v3, s[16:19], s%d offen offset:%d %s' % (vr(vW + 4 * t), 45 + (t & 1), 3584 * (t >> 1), c['wnt']))
    a.label('L_go')
    a('s_cmp_ge_u32 s5, 4')
    a('s_cbranch_scc0 L_aux')

    a('v_and_b32 v10, 7, v1')
    a('v_lshrrev_b32 v11, 3, v1')
    a('v_lshlrev_b32 v10, 4, v10')
    a('v_lshl_add_u32 v%d, v11, 9, v10' % vKO)
    srd(8, 1 << 26)
    a('s_lshl_b32 s7, s3, 7')
    a('s_add_u32 s7, s7, s4')
    a('s_add_u32 s7, s7, 96')
    a('s_lshl_b32 s44, s7, 4')
    a('s_mul_i32 s7, s4, %d' % c['rs'])
    if c['rg']:
        a('s_mul_i32 s45, s3, %d' % c['rg'])
        a('s_add_u32 s7, s7, s45')
    a('s_and_b32 s7, s7, 15')
    a('s_or_b32 s44, s44, s7')
    a('s_sub_u32 s55, s5, 4')
    a('s_xor_b32 s45, s44, s55')
    a('s_lshl_b32 s45, s45, 12')
    stamp(1)
    nk = [0]
    def throttle():
        if nk[0] >= D: a('s_waitcnt vmcnt(%d)' % (D - 1))
        nk[0] += 1
    for idx in range(16):
        i, t = idx >> 2, idx & 3
        if t == 0 and i > 0: a('s_xor_b32 s45, s45, 0x%x' % ((i ^ (i - 1)) << 14))
        throttle()
        a('buffer_load_dwordx4 %s, v%d, s[8:11], s45 offen offset:%d nt' % (vr(vK + 4 * idx), vKO, 128 * t))
        if idx == D - 1:
            srd(12, 1 << 26)
            fptrs()
            a('s_lshl_b32 s44, s44, 12')
            a('s_lshl_b32 s7, s55, 7')
            a('s_add_u32 s44, s44, s7')
            masks()
            a('v_lshlrev_b32 v8, 4, v1')
            a('s_lshl_b32 s7, s3, 2')
            a('s_add_u32 s7, s7, s55')
            a('s_lshl_b32 s56, s7, 11')
            a('s_add_u32 s56, s56, 0x%x' % WS_Q)
            for k in range(8): a('v_mov_b32 v%d, 0' % (vA + 8 + k))
            a('s_waitcnt lgkmcnt(0)')
            mktag()
    stamp(2)
    nv = [0]
    def vload(thr):
        n = nv[0]; nv[0] += 1
        if n > 0: a('s_xor_b32 s44, s44, 0x%x' % ((n ^ (n - 1)) << 12))
        if thr: throttle()
        a('buffer_load_dwordx4 %s, v%d, s[12:15], s44 offen nt' % (vr(vV + 4 * n), vKO))
    def first_v():
        for _ in range(c['va']): vload(True)
    throttle()
    poll('L_pq', ['buffer_load_dwordx4 %s, v8, s[20:23], s56 offen sc1' % vr(vA),
                  'buffer_load_dwordx4 %s, v8, s[20:23], s56 offen offset:1024 sc1' % vr(vA + 4)],
         [vA + 3, vA + 7], first_wait='vmcnt(%d)' % c['va'], between=first_v)
    stamp(3)
    a('v_add_f32 v%d, v%d, v%d' % (vA, vA, vA + 4))
    a('v_add_f32 v%d, v%d, v%d' % (vA + 1, vA + 1, vA + 5))
    a('v_and_b32 v10, 255, v0')
    a('v_lshlrev_b32 v10, 2, v10')
    a('v_cvt_pk_bf16_f32 v%d, v%d, v%d' % (vA, vA, vA + 1))
    a('v_and_b32 v11, 0x70, v%d' % vKO)
    a('ds_write_b32 v10, v%d offset:%d' % (vA, L_QL))
    while nv[0] < c['vb']: vload(False)
    a('s_waitcnt lgkmcnt(0)')
    a('s_barrier')
    for h in range(2):
        for t in range(4):
            a('ds_read_b128 %s, v11 offset:%d' % (vr(vQ + 16 * h + 4 * t), L_QL + 512 * h + 128 * t))
    a('v_bfe_u32 v10, v1, 2, 1')
    a('v_lshlrev_b32 v10, 9, v10')
    a('v_lshrrev_b32 v12, 4, v1')
    a('v_lshl_add_u32 v10, v12, 7, v10')
    a('v_and_b32 v13, 3, v1')
    a('v_lshl_add_u32 v10, v13, 5, v10')
    a('v_bfe_u32 v13, v1, 3, 1')
    a('v_lshl_add_u32 v10, v13, 2, v10')
    a('s_lshl_b32 s7, s55, 3')
    a('v_add_u32 v10, s7, v10')
    a('s_mul_i32 s7, s55, 1056')
    a('v_lshrrev_b32 v14, 5, v1')
    a('v_lshl_add_u32 v14, v14, 4, v8')
    a('v_add_u32 v14, s7, v14')
    a('v_mul_u32_u24 v15, 528, v13')
    a('v_lshl_add_u32 v15, v12, 7, v15')
    a('v_add_u32 v15, s7, v15')
    a('s_mov_b32 s58, 0xaaaaaaaa'); a('s_mov_b32 s59, 0xaaaaaaaa')
    a('s_mov_b32 s60, 0xcccccccc'); a('s_mov_b32 s61, 0xcccccccc')
    a('s_waitcnt lgkmcnt(0)')
    stamp(4)
    acc = lambda i, h: vA + 8 + 4 * h + i
    for i in range(4):
        for t in range(4):
            for d in range(4):
                for h in range(2):
                    a('v_dot2c_f32_bf16 v%d, v%d, v%d' % (acc(i, h), vK + 16 * i + 4 * t + d, vQ + 16 * h + 4 * t + d))
        rem = 16 - nv[0]
        for _ in range(-(-rem // (4 - i))): vload(False)
    X = acc(0, 0)
    for i in range(4): dpp('v_add_f32', X + i, X + i, X + i, 'row_half_mirror', 'row_mask:0xf bank_mask:0x5')
    for i in range(4): dpp('v_add_f32', X + i, X + 4 + i, X + 4 + i, 'row_half_mirror', 'row_mask:0xf bank_mask:0xa')
    for i in range(4): dpp('v_add_f32', X + i, X + i, X + i, QP1)
    a('v_cndmask_b32_e64 v%d, v%d, v%d, s[58:59]' % (X, X, X + 1))
    a('v_cndmask_b32_e64 v%d, v%d, v%d, s[58:59]' % (X + 2, X + 2, X + 3))
    dpp('v_add_f32', X, X, X, QP2)
    dpp('v_add_f32', X + 2, X + 2, X + 2, QP2)
    a('v_cndmask_b32_e64 v%d, v%d, v%d, s[60:61]' % (X, X, X + 2))
    rnd(X, X)
    a('ds_write_b32 v10, v%d offset:%d' % (X, L_S))
    a('s_waitcnt lgkmcnt(0)')
    a('s_barrier')
    a('ds_read_b128 %s, v8 offset:%d' % (vr(vA), L_S))
    a('v_lshrrev_b32 v10, 5, v1')
    a('v_bfe_u32 v11, v1, 1, 2')
    a('v_lshl_add_u32 v10, v10, 4, v11')
    a('v_mul_u32_u24 v10, 2176, v10')
    a('v_and_b32 v11, 1, v1')
    a('v_lshl_add_u32 v10, v11, 4, v10')
    a('v_bfe_u32 v11, v1, 4, 1')
    a('v_lshl_add_u32 v9, v11, 5, v10')
    a('s_lshl_b32 s7, s3, 3')
    a('s_add_u32 s7, s7, s55')
    a('s_mul_i32 s57, s7, %d' % (4 * 2176))
    a('s_lshl_b32 s7, s4, 6')
    a('s_add_u32 s57, s57, s7')
    a('s_add_u32 s57, s57, 0x%x' % WS_H0)
    a('s_mov_b32 s62, %s' % f32(math.log2(math.e) / 16))
    a('s_waitcnt lgkmcnt(0)')
    stamp(5)
    mx, t1 = vA + 4, vA + 5
    def allred32(op, r):
        for ctl in (QP1, QP2, 'row_half_mirror', 'row_mirror'): dpp(op, r, r, r, ctl)
        a('v_mov_b32 v%d, v%d' % (t1, r))
        a('v_permlane16_swap_b32 v%d, v%d' % (r, t1))
        a('%s v%d, v%d, v%d' % (op, r, r, t1))
    a('v_max3_f32 v%d, v%d, v%d, v%d' % (mx, vA, vA + 1, vA + 2))
    a('v_max_f32 v%d, v%d, v%d' % (mx, mx, vA + 3))
    allred32('v_max_f32', mx)
    a('v_mul_f32 v%d, s62, v%d' % (mx, mx))
    for k in range(4): a('v_fma_f32 v%d, v%d, s62, -v%d' % (vA + k, vA + k, mx))
    for k in range(4): a('v_exp_f32 v%d, v%d' % (vA + k, vA + k))
    ls = vA + 6
    a('v_add_f32 v%d, v%d, v%d' % (ls, vA, vA + 1))
    a('v_add_f32 v%d, v%d, v%d' % (t1, vA + 2, vA + 3))
    a('v_add_f32 v%d, v%d, v%d' % (ls, ls, t1))
    allred32('v_add_f32', ls)
    a('v_rcp_f32 v%d, v%d' % (t1, ls))
    a('v_log_f32 v%d, v%d' % (ls, ls))
    for k in range(4): a('v_mul_f32 v%d, v%d, v%d' % (vA + k, vA + k, t1))
    for k in range(4): a('v_cvt_pk_bf16_f32 v%d, v%d, v%d' % (vA + k, vA + k, vA + k))
    a('ds_write_b128 v14, %s offset:%d' % (vr(vA), L_P))
    vG = vA + 8
    a('v_add_f32 v%d, v%d, v%d' % (vG + 2, ls, mx))
    a('v_mov_b32 v%d, s6' % (vG + 3))
    for k in range(8): a('v_mov_b32 v%d, 0' % (vC0 + k))
    a('s_waitcnt lgkmcnt(0)')
    for z in range(8): a('ds_read_b128 %s, v15 offset:%d' % (vr(vP + 4 * z), L_P + 16 * z))
    a('s_mov_b32 s58, 0x00ff00ff'); a('s_mov_b32 s59, 0x00ff00ff')
    a('s_waitcnt lgkmcnt(0)')
    stamp(6)
    for n in range(16):
        tb = vT + 8 * (n & 1)
        for kl in range(2):
            for r in range(4):
                a('v_and_b32 v%d, v%d, v%d' % (tb + 4 * kl + r, vP + 2 * n + kl, vM + r))
        a('s_waitcnt vmcnt(%d)' % (15 - n))
        a('v_mfma_f32_16x16x32_bf16 %s, %s, %s, %s' % (vr(vC0), vr(tb), vr(vV + 4 * n), vr(vC0)))
        a('v_mfma_f32_16x16x32_bf16 %s, %s, %s, %s' % (vr(vC1), vr(tb + 4), vr(vV + 4 * n), vr(vC1)))
    stamp(7)
    for r in range(4): dpp('v_add_f32', vC0 + r, vC1 + r, vC0 + r, 'row_ror:8')
    a('v_cvt_pk_bf16_f32 v%d, v%d, v%d' % (vG, vC0, vC0 + 1))
    a('v_cvt_pk_bf16_f32 v%d, v%d, v%d' % (vG + 1, vC0 + 2, vC0 + 3))
    a('s_mov_b64 exec, s[58:59]')
    a('buffer_store_dwordx4 %s, v9, s[20:23], s57 offen %s' % (vr(vG), c['inst']))
    a('s_mov_b64 exec, -1')
    a.label('L_tail')
    a('s_cmp_ge_u32 s4, 16')
    a('s_cbranch_scc1 L_ft')

    a('s_lshl_b32 s7, s3, 5')
    a('s_add_u32 s7, s7, s54')
    a('s_mul_i32 s56, s7, 2176')
    a('s_add_u32 s56, s56, 0x%x' % WS_H0)
    a('s_barrier')
    stamp(8)
    G0, G1 = 16, 20
    def wsetup():
        a('v_and_b32 v10, 15, v1')
        a('v_bfe_u32 v11, v1, 4, 1')
        a('v_lshl_add_u32 v10, v10, 1, v11')
        a('v_mul_u32_u24 v9, 640, v10')
        a('s_and_b32 s45, s5, 3')
        a('s_mul_i32 s57, s45, %d' % (32 * 640))
        a('s_mul_i32 s44, s3, %d' % HPG)
        a('s_add_u32 s44, s44, 0x%x' % WS_HP)
        a('s_add_u32 s57, s57, s44')
        a('s_lshl4_add_u32 s57, s54, s57')
        a('s_cmp_eq_u32 s45, 3')
        a('s_cselect_b32 s58, 0x00ff00ff, -1')
        a('s_mov_b32 s59, 0')
        a('v_mov_b32 v%d, s6' % 75)
        a('s_lshl2_add_u32 s45, s4, s5')
        a('s_mul_i32 s63, s45, 1280')
        a('s_add_u32 s44, s44, s63')
        a('s_mul_i32 s63, s3, 60')
        a('s_add_u32 s45, s45, s63')
        a('s_lshl_b32 s45, s45, 5')
        a('s_add_u32 s45, s45, 0x%x' % WS_H1)
        a('v_lshrrev_b32 v12, 5, v1')
        a('v_lshl_add_u32 v13, v12, 7, v8')
        a('v_lshlrev_b32 v12, 4, v12')
    poll('L_p0', ['buffer_load_dwordx4 %s, v8, s[20:23], s56 offen sc1' % vr(G0),
                  'buffer_load_dwordx4 %s, v8, s[20:23], s56 offen offset:1024 sc1' % vr(G1)],
         [G0 + 3, G1 + 3], between=wsetup)
    stamp(9)
    M, T, Y, Z, WS_, W0, W1 = 24, 25, 28, 32, 26, 36, 37
    a('v_max_f32 v%d, v%d, v%d' % (M, G0 + 2, G1 + 2))
    a('v_lshlrev_b32 v%d, 16, v%d' % (Y, G0))
    a('v_and_b32 v%d, 0xffff0000, v%d' % (Y + 1, G0))
    dpp('v_max_f32', M, M, M, 'row_ror:4')
    a('v_lshlrev_b32 v%d, 16, v%d' % (Y + 2, G0 + 1))
    a('v_and_b32 v%d, 0xffff0000, v%d' % (Y + 3, G0 + 1))
    dpp('v_max_f32', M, M, M, 'row_ror:8')
    a('v_mov_b32 v%d, v%d' % (T, M))
    a('v_lshlrev_b32 v%d, 16, v%d' % (Z, G1))
    a('v_and_b32 v%d, 0xffff0000, v%d' % (Z + 1, G1))
    a('v_permlane16_swap_b32 v%d, v%d' % (M, T))
    a('v_max_f32 v%d, v%d, v%d' % (M, M, T))
    a('v_mov_b32 v%d, v%d' % (T, M))
    a('v_lshlrev_b32 v%d, 16, v%d' % (Z + 2, G1 + 1))
    a('v_and_b32 v%d, 0xffff0000, v%d' % (Z + 3, G1 + 1))
    a('v_permlane32_swap_b32 v%d, v%d' % (M, T))
    a('v_max_f32 v%d, v%d, v%d' % (M, M, T))
    a('v_sub_f32 v%d, v%d, v%d' % (W0, G0 + 2, M))
    a('v_sub_f32 v%d, v%d, v%d' % (W1, G1 + 2, M))
    a('v_exp_f32 v%d, v%d' % (W0, W0))
    a('v_exp_f32 v%d, v%d' % (W1, W1))
    for k in range(4): a('v_mul_f32 v%d, v%d, v%d' % (Y + k, Y + k, W0))
    a('v_add_f32 v%d, v%d, v%d' % (WS_, W0, W1))
    a('v_fmac_f32 v%d, v%d, v%d' % (Y, Z, W1))
    a('v_fmac_f32 v%d, v%d, v%d' % (Y + 2, Z + 2, W1))
    dpp('v_add_f32', WS_, WS_, WS_, 'row_ror:4')
    a('v_fmac_f32 v%d, v%d, v%d' % (Y + 1, Z + 1, W1))
    a('v_fmac_f32 v%d, v%d, v%d' % (Y + 3, Z + 3, W1))
    dpp('v_add_f32', WS_, WS_, WS_, 'row_ror:8')
    a('v_permlane32_swap_b32 v%d, v%d' % (Y, Y + 2))
    a('v_mov_b32 v%d, v%d' % (T, WS_))
    a('v_permlane32_swap_b32 v%d, v%d' % (Y + 1, Y + 3))
    a('v_add_f32 v%d, v%d, v%d' % (Y, Y, Y + 2))
    a('v_permlane16_swap_b32 v%d, v%d' % (WS_, T))
    a('v_add_f32 v%d, v%d, v%d' % (Y + 1, Y + 1, Y + 3))
    a('v_add_f32 v%d, v%d, v%d' % (WS_, WS_, T))
    a('v_mov_b32 v%d, v%d' % (T, WS_))
    a('v_permlane16_swap_b32 v%d, v%d' % (Y, Y + 1))
    a('v_add_f32 v%d, v%d, v%d' % (Y, Y, Y + 1))
    a('v_permlane32_swap_b32 v%d, v%d' % (WS_, T))
    a('v_add_f32 v%d, v%d, v%d' % (WS_, WS_, T))
    dpp('v_add_f32', Y, Y, Y, 'row_ror:4')
    a('v_rcp_f32 v%d, v%d' % (WS_, WS_))
    dpp('v_add_f32', Y, Y, Y, 'row_ror:8')
    a('v_mul_f32 v%d, v%d, v%d' % (Y, Y, WS_))
    a('v_cvt_pk_bf16_f32 v%d, v%d, v%d' % (Y, Y, Y))
    def rowmm(src):
        for t in range(4):
            for r in range(4):
                dpp('v_and_b32', vT + 4 * t + r, src, vM + r, 'quad_perm:[%d,%d,%d,%d]' % (t, t, t, t))
            if t > 0:
                a('v_mfma_f32_16x16x32_bf16 %s, %s, %s, %s' % (vr(vC0), vr(vT + 4 * t - 4), vr(vW + 4 * t - 4), vr(vC0) if t > 1 else '0'))
        a('v_mfma_f32_16x16x32_bf16 %s, %s, %s, %s' % (vr(vC0), vr(vT + 12), vr(vW + 12), vr(vC0)))
        a('s_mov_b64 exec, s[58:59]')
        pack24(72, vC0)
    rowmm(Y)
    a('buffer_store_dwordx4 v[72:75], v9, s[20:23], s57 offen %s' % c['inst'])
    a('s_mov_b64 exec, -1')
    stamp(10)
    a('s_barrier')
    a('s_cmp_ge_u32 s5, 4')
    a('s_cbranch_scc1 L_exit')
    a('s_cmp_ge_u32 s4, 14')
    a('s_cbranch_scc1 L_exit')
    def rsetup():
        a('s_mov_b32 s58, 0x10000'); a('s_mov_b32 s59, 0x10000')
    poll('L_pp', ['buffer_load_dwordx4 %s, v13, s[20:23], s44 offen sc1' % vr(G0)], [G0 + 3], between=rsetup)
    stamp(11)
    unpack24(G0 + 3, G0)
    for ctl in (QP1, QP2, 'row_half_mirror', 'row_mirror'):
        for k in range(4): dpp('v_add_f32', G0 + k, G0 + k, G0 + k, ctl)
    for k in range(4): dpp('v_add_f32', G0 + k, G0 + k, G0 + k, 'row_bcast:15', 'row_mask:0xa bank_mask:0xf')
    a('s_mov_b64 exec, s[58:59]')
    pack24(72, G0)
    a('buffer_store_dwordx4 v[72:75], v12, s[20:23], s45 offen sc1')
    stamp(12)
    a('s_branch L_exit')

    a.label('L_aux')
    fptrs()
    masks()
    a('v_lshlrev_b32 v8, 4, v1')
    if c['pf']:
        a('s_cmp_eq_u32 s5, 1')
        a('s_cbranch_scc0 L_nopf')
        a('s_getpc_b64 s[46:47]')
        a.label('L_pc')
        a('s_sub_u32 s46, s46, L_pc-%s_kernel' % NAME)
        a('s_subb_u32 s47, s47, 0')
        a('v_and_b32 v10, 3, v1')
        a('v_lshl_add_u32 v10, s4, 2, v10')
        a('v_lshlrev_b32 v10, 7, v10')
        a('v_mov_b32 v11, s47')
        a('v_cmp_gt_u32 vcc, L_last-%s_kernel, v10' % NAME)
        a('v_cndmask_b32 v10, 0, v10, vcc')
        a('v_add_co_u32 v10, vcc, s46, v10')
        a('s_nop 1')
        a('v_addc_co_u32 v11, vcc, 0, v11, vcc')
        a('global_load_dword v12, v[10:11], off')
        a.label('L_nopf')
    a('s_waitcnt lgkmcnt(0)')
    mktag()
    a.label('L_aux1')
    a('s_barrier')
    a('s_barrier')
    a('s_branch L_tail')

    a.label('L_q0')
    a('s_cmp_eq_u32 s5, 0')
    a('s_cbranch_scc1 L_qw')
    a('s_waitcnt lgkmcnt(0)')
    a('s_load_dword s6, s[20:21], 0')
    a('s_barrier')
    a('s_branch L_go')

    a.label('L_qw')
    vWQ, vXN = 16, 128
    a('s_load_dwordx2 s[36:37], s[0:1], 0')
    a('s_load_dwordx2 s[16:17], s[0:1], 24')
    srd(36, 896)
    a('v_lshlrev_b32 v8, 4, v1')
    a('v_lshrrev_b32 v12, 3, v1')
    a('v_mul_u32_u24 v3, %d, v12' % (28 * 8192))
    a('v_and_b32 v10, 0x70, v8')
    a('v_add_u32 v3, v3, v10')
    a('s_and_b32 s44, s4, 1')
    a('s_bfe_u32 s55, s4, 0x30001')
    a('s_mul_i32 s45, s44, %d' % (224 * 8192))
    a('s_lshl3_add_u32 s7, s3, s55')
    a('s_lshl_b32 s7, s7, 7')
    a('s_add_u32 s45, s45, s7')
    a('s_movk_i32 s46, 0x2000')
    a('s_waitcnt lgkmcnt(0)')
    stamp(1)
    a('buffer_load_dwordx4 %s, v8, s[36:39], 0 offen' % vr(vA))
    a('s_load_dword s6, s[20:21], 0')
    for n in range(28):
        a('buffer_load_dwordx4 %s, v3, s[16:19], s45 offen %s' % (vr(vWQ + 4 * n), c['wnt']))
        if n < 27: a('s_add_u32 s45, s45, s46')
    a('s_barrier')
    stamp(2)
    fptrs(False)
    masks()
    a('s_mov_b32 s58, -1'); a('s_mov_b32 s59, 0x00ffffff')
    a('s_mov_b32 s62, %s' % f32(1.0 / 448))
    x = vA + 8
    def wavesum(r):
        for ctl in (QP1, QP2, 'row_half_mirror', 'row_mirror'): dpp('v_add_f32', r, r, r, ctl)
        dpp('v_add_f32', r, r, r, 'row_bcast:15', 'row_mask:0xa bank_mask:0xf')
        dpp('v_add_f32', r, r, r, 'row_bcast:31', 'row_mask:0xc bank_mask:0xf')
        a('v_readlane_b32 s7, v%d, 63' % r)
        a('v_mov_b32 v%d, s62' % r)
        a('v_mul_f32 v%d, s7, v%d' % (r, r))
    a('s_waitcnt vmcnt(28)')
    for k in range(4):
        a('v_lshlrev_b32 v%d, 16, v%d' % (x + 2 * k, vA + k))
        a('v_and_b32 v%d, 0xffff0000, v%d' % (x + 2 * k + 1, vA + k))
    for k in range(4): a('v_add_f32 v%d, v%d, v%d' % (vA + k, x + 2 * k, x + 2 * k + 1))
    a('v_add_f32 v%d, v%d, v%d' % (vA, vA, vA + 1))
    a('v_add_f32 v%d, v%d, v%d' % (vA + 2, vA + 2, vA + 3))
    a('v_add_f32 v%d, v%d, v%d' % (vA, vA, vA + 2))
    wavesum(vA)
    a('v_mov_b32 v%d, 0' % (vA + 1))
    for k in range(8):
        a('v_sub_f32 v%d, v%d, v%d' % (vA + 2, x + k, vA))
        a('v_fmac_f32 v%d, v%d, v%d' % (vA + 1, vA + 2, vA + 2))
    a('v_cndmask_b32_e64 v%d, 0, v%d, s[58:59]' % (vA + 1, vA + 1))
    rnd(vA, vA)
    wavesum(vA + 1)
    rnd(vA + 1, vA + 1)
    a('v_add_f32 v%d, %s, v%d' % (vA + 1, f32(1e-5), vA + 1))
    rnd(vA + 1, vA + 1)
    a('v_sqrt_f32 v%d, v%d' % (vA + 1, vA + 1))
    rnd(vA + 1, vA + 1)
    a('v_rcp_f32 v%d, v%d' % (vA + 1, vA + 1))
    for k in range(8): a('v_sub_f32 v%d, v%d, v%d' % (x + k, x + k, vA))
    for k in range(8): rnd(x + k, x + k)
    for k in range(8): a('v_mul_f32 v%d, v%d, v%d' % (x + k, x + k, vA + 1))
    for k in range(8): a('v_cvt_pk_bf16_f32 v%d, v%d, v%d' % (x + k, x + k, x + k))
    a('v_lshlrev_b32 v10, 5, v1')
    a('ds_write_b128 v10, %s offset:%d' % (vr(x), L_XN))
    a('ds_write_b128 v10, %s offset:%d' % (vr(x + 4), L_XN + 16))
    a('v_mul_u32_u24 v11, 112, v12')
    a('s_mul_i32 s7, s44, 896')
    a('v_add_u32 v11, s7, v11')
    a('s_waitcnt lgkmcnt(0)')
    for z in range(7): a('ds_read_b128 %s, v11 offset:%d' % (vr(vXN + 4 * z), L_XN + 16 * z))
    mktag()
    a('v_and_b32 v10, 7, v1')
    a('v_lshlrev_b32 v10, 6, v10')
    a('v_bfe_u32 v11, v1, 4, 1')
    a('v_lshl_add_u32 v10, v11, 5, v10')
    a('v_lshrrev_b32 v11, 5, v1')
    a('v_lshl_add_u32 v9, v11, 4, v10')
    a('s_lshr_b32 s7, s55, 1')
    a('s_lshl2_add_u32 s7, s3, s7')
    a('s_lshl1_add_u32 s7, s7, s44')
    a('s_and_b32 s45, s55, 1')
    a('s_lshl1_add_u32 s7, s7, s45')
    a('s_lshl_b32 s57, s7, 9')
    a('s_add_u32 s57, s57, 0x%x' % WS_Q)
    a('s_mov_b32 s58, 0x00ff00ff'); a('s_mov_b32 s59, 0x00ff00ff')
    qc = vA + 16
    a('v_mov_b32 v%d, s6' % (vA + 22))
    a('v_mov_b32 v%d, s6' % (vA + 23))
    a('s_waitcnt lgkmcnt(0)')
    stamp(3)
    for n in range(28):
        tb = vA + 4 * (n & 1)
        for r in range(4): a('v_and_b32 v%d, v%d, v%d' % (tb + r, vXN + n, vM + r))
        a('s_waitcnt vmcnt(%d)' % (27 - n))
        a('v_mfma_f32_16x16x32_bf16 %s, %s, %s, %s' % (vr(qc), vr(tb), vr(vWQ + 4 * n), vr(qc) if n else '0'))
    stamp(4)
    for r in range(4): a('v_mov_b32_dpp v%d, v%d row_ror:8 row_mask:0xc bank_mask:0xf' % (qc + r, qc + r))
    a('v_permlane32_swap_b32 v%d, v%d' % (qc, qc + 2))
    a('v_permlane32_swap_b32 v%d, v%d' % (qc + 1, qc + 3))
    a('v_add_f32 v%d, v%d, v%d' % (vA + 20, qc, qc + 2))
    a('v_add_f32 v%d, v%d, v%d' % (vA + 21, qc + 1, qc + 3))
    a('s_mov_b64 exec, s[58:59]')
    a('buffer_store_dwordx4 %s, v9, s[20:23], s57 offen sc1' % vr(vA + 20))
    a('s_mov_b64 exec, -1')
    if c['stamps']:
        a('s_waitcnt vmcnt(0)')
        stamp(5)
    a('s_branch L_aux1')

    a.label('L_ft')
    a('s_cmp_eq_u32 s3, 7')
    a('s_cbranch_scc1 L_exit')
    a('s_sub_u32 s54, s4, 16')
    a('s_lshl4_add_u32 s54, s3, s54')
    a('s_cmp_eq_u32 s5, 7')
    a('s_cbranch_scc1 L_fin')
    a('v_bfe_u32 v10, v1, 1, 3')
    a('v_lshrrev_b32 v12, 4, v1')
    a('v_lshl_add_u32 v10, v10, 2, v12')
    a('v_mul_u32_u24 v10, 3584, v10')
    a('v_and_b32 v11, 1, v1')
    a('v_lshl_add_u32 v2, v11, 4, v10')
    a('s_mul_i32 s44, s5, %d' % (64 * 3584))
    a('s_lshl_b32 s7, s54, 5')
    a('s_add_u32 s44, s44, s7')
    a('s_add_u32 s45, s44, %d' % (32 * 3584))
    a('s_lshl_b32 s55, s5, 12')
    a('s_add_u32 s55, s55, %d' % L_T)
    a('s_mov_b32 s56, s55')
    if c['rot']:
        a('s_bitcmp1_b32 s4, 0')
        a('s_cselect_b32 s7, s45, s44')
        a('s_cselect_b32 s45, s44, s45')
        a('s_mov_b32 s44, s7')
        a('s_bitcmp1_b32 s4, 1')
        a('s_cselect_b64 s[46:47], s[28:29], s[24:25]')
        a('s_cselect_b64 s[28:29], s[24:25], s[28:29]')
        a('s_mov_b64 s[24:25], s[46:47]')
        a('s_and_b32 s63, s4, 3')
        a('s_lshl_b32 s63, s63, 10')
    else:
        a('s_mov_b32 s63, 0')
    a('v_and_b32 v13, 15, v1')
    a('v_lshl_add_u32 v14, v13, 2, v12')
    a('v_lshlrev_b32 v10, 1, v14')
    a('s_lshl_b32 s7, s5, 7')
    a('s_add_u32 m0, s55, s63')
    a('s_barrier')
    stamp(8)
    vX = 15
    a('buffer_load_ushort v%d, v10, s[36:39], s7 offen' % vX)
    for k in range(4):
        if k:
            a('s_xor_b32 s63, s63, 0x%x' % ((k ^ (k - 1)) << 10))
            a('s_add_u32 m0, s55, s63')
        a('buffer_load_dwordx4 v2, s[%d:%d], s%d offen %s lds' % (24 + 4 * (k >> 1), 27 + 4 * (k >> 1), 44 + (k & 1), c['gunt']))
        if k == 0 and c['rotbar']: a('s_barrier')
    a('s_cmp_ge_u32 s5, 4')
    a('s_cbranch_scc1 L_nodown')
    colvoff(3)
    a('s_mul_i32 s45, s54, %d' % (16 * 896))
    a('s_add_u32 s46, s45, 7168')
    for t in range(4):
        a('buffer_load_dwordx4 %s, v3, s[32:35], s%d offen offset:%d %s' % (vr(vW + 4 * t), 45 + (t >> 1), 3584 * (t & 1), c['dnt']))
    a.label('L_nodown')
    a('v_mul_u32_u24 v9, 1920, v12')
    a('v_lshl_add_u32 v9, v13, 4, v9')
    a('s_lshl_b32 s44, s5, 8')
    a('s_add_u32 s44, s44, 0x%x' % WS_H1)
    a('s_add_u32 s45, s44, 7680')
    vB, vAX = 80, 96
    def fsetup():
        a('v_lshlrev_b32 v10, 3, v13')
        a('v_lshl_add_u32 v10, v12, 8, v10')
        a('v_add_u32 v10, s55, v10')
        for k in range(8): a('v_mov_b32 v%d, 0x3f803f80' % (vAX + k))
        a('s_lshl_b32 s63, s5, 8')
        a('v_lshl_add_u32 v14, v14, 2, s63')
        a('v_lshrrev_b32 v11, 5, v1')
        a('s_lshl_b32 s63, s5, 1')
        a('v_add_u32 v11, s63, v11')
        a('v_mul_u32_u24 v28, 144, v13')
        a('v_lshl_add_u32 v28, v11, 3, v28')
        a('v_add_u32 v28, %d, v28' % L_GU)
        a('v_lshlrev_b32 v29, 6, v13')
        a('v_lshl_add_u32 v29, v11, 2, v29')
        a('v_and_b32 v11, 3, v1')
        a('v_lshl_add_u32 v11, v11, 2, v12')
        a('v_mul_u32_u24 v30, 144, v11')
        a('v_bfe_u32 v31, v1, 2, 2')
        a('v_lshl_add_u32 v30, v31, 5, v30')
        a('v_lshlrev_b32 v31, 4, v31')
        a('s_mov_b32 s60, 0xffff'); a('s_mov_b32 s61, 0xffff')
        a('s_cmp_eq_u32 s5, 3')
        a('s_cselect_b32 s58, 0x00ff00ff, -1')
        a('s_mov_b32 s59, 0')
        a('s_mul_i32 s57, s54, 1920')
        a('s_lshl_b32 s63, s5, 9')
        a('s_add_u32 s57, s57, s63')
        a('s_add_u32 s57, s57, 0x%x' % WS_H2)
        a('s_mov_b32 s62, %s' % f32(1.0 / 448))
        a('v_mov_b32 v75, s6')
        a('s_waitcnt vmcnt(2)')
        stamp(9)
        for k in range(4):
            for u in range(2):
                a('ds_read_b64_tr_b16 %s, v10 offset:%d' % (vr(vB + 4 * k + 2 * u, 2), 1024 * k + 128 * u))
        a('v_lshlrev_b32 v%d, 16, v%d' % (vX, vX))
    poll('L_p1', ['buffer_load_dwordx4 %s, v9, s[20:23], s44 offen sc1' % vr(G0),
                  'buffer_load_dwordx4 %s, v9, s[20:23], s45 offen sc1' % vr(G1)],
         [G0 + 3, G1 + 3], between=fsetup)
    stamp(10)
    def sum2scatter():
        a('v_perm_b32 v%d, v%d, v%d, s%d' % (G0 + 3, G0 + 1, G0, sUP))
        a('v_perm_b32 v%d, v%d, v%d, s%d' % (G1 + 3, G1 + 1, G1, sUP))
        a('v_perm_b32 v%d, v%d, v%d, s%d' % (G0 + 3, G0 + 2, G0 + 3, sUP + 1))
        a('v_perm_b32 v%d, v%d, v%d, s%d' % (G1 + 3, G1 + 2, G1 + 3, sUP + 1))
        for k in (0, 2, 1, 3): a('v_add_f32 v%d, v%d, v%d' % (G0 + k, G0 + k, G1 + k))
        a('v_permlane32_swap_b32 v%d, v%d' % (G0, G0 + 2))
        a('v_add_f32 v%d, v%d, v%d' % (G0, G0, G0 + 2))
        a('v_permlane32_swap_b32 v%d, v%d' % (G0 + 1, G0 + 3))
        a('v_add_f32 v%d, v%d, v%d' % (G0 + 1, G0 + 1, G0 + 3))
        a('v_permlane16_swap_b32 v%d, v%d' % (G0, G0 + 1))
        a('v_add_f32 v%d, v%d, v%d' % (G0, G0, G0 + 1))
    sum2scatter()
    rnd(G0, G0)
    a('v_add_f32 v%d, v%d, v%d' % (G0, G0, vX))
    rnd(G0 + 1, G0)
    a('v_cvt_pk_bf16_f32 v%d, v%d, 0' % (G0, G0))
    a('ds_write_b32 v14, v%d offset:%d' % (G0 + 1, L_H))
    dpp('v_or_b32', G0, G0 + 1, G0, 'quad_perm:[1,1,3,3]')
    DG, DU, DS = 104, 108, 112
    mm = lambda d, aa, bb, cc: a('v_mfma_f32_16x16x32_bf16 %s, %s, %s, %s' % (vr(d), vr(aa), vr(bb), vr(d) if cc else '0'))
    for k in range(8):
        a('v_mov_b32_dpp v%d, v%d row_newbcast:%d row_mask:0xf bank_mask:0x3' % (vAX + k, G0, 2 * k))
    a('s_waitcnt lgkmcnt(0)')
    mm(DS, vAX, vAX, 0); mm(DG, vAX, vB, 0); mm(DU, vAX, vB + 8, 0)
    mm(DS, vAX + 4, vAX + 4, 1); mm(DG, vAX + 4, vB + 4, 1); mm(DU, vAX + 4, vB + 12, 1)
    a('s_mov_b64 exec, s[60:61]')
    a('ds_write_b32 v29, v%d offset:%d' % (DS, L_STAT))
    a('ds_write2_b32 v28, v%d, v%d offset0:0 offset1:1' % (DG, DU))
    a('s_mov_b64 exec, -1')
    a('s_waitcnt lgkmcnt(0)')
    a('s_barrier')
    a('s_cmp_ge_u32 s5, 4')
    a('s_cbranch_scc1 L_exit')
    R0, R1, R2 = 16, 20, 24
    a('ds_read_b128 %s, v31 offset:%d' % (vr(R2), L_STAT))
    a('ds_read_b128 %s, v30 offset:%d' % (vr(R0), L_GU))
    a('ds_read_b128 %s, v30 offset:%d' % (vr(R1), L_GU + 16))
    k0 = 2 * math.sqrt(2 / math.pi) * math.log2(math.e)
    a('v_mov_b32 v32, %s' % f32(-k0))
    a('s_mov_b32 s63, %s' % f32(-k0 * 0.044715))
    a('s_waitcnt lgkmcnt(0)')
    stamp(11)
    S2, S1 = R2, R2 + 1
    a('v_add_f32 v%d, v%d, v%d' % (S1, S1, S1 + 2))
    a('v_add_f32 v%d, v%d, v%d' % (S2, S2, S2 + 2))
    a('v_add_f32 v%d, v%d, v%d' % (R0, R0, R1))
    dpp('v_add_f32', S1, S1, S1, 'row_ror:4')
    dpp('v_add_f32', S2, S2, S2, 'row_ror:4')
    a('v_add_f32 v%d, v%d, v%d' % (R0 + 1, R0 + 1, R1 + 1))
    dpp('v_add_f32', S1, S1, S1, 'row_ror:8')
    dpp('v_add_f32', S2, S2, S2, 'row_ror:8')
    a('v_mul_f32 v%d, s62, v%d' % (S1, S1))
    a('v_mul_f32 v%d, s62, v%d' % (S2, S2))
    a('v_fma_f32 v%d, -v%d, v%d, v%d' % (S2, S1, S1, S2))
    a('v_add_f32 v%d, v%d, v%d' % (R0 + 2, R0 + 2, R1 + 2))
    a('v_max_f32 v%d, 0, v%d' % (S2, S2))
    a('v_add_f32 v%d, v%d, v%d' % (R0 + 3, R0 + 3, R1 + 3))
    rnd(S2, S2)
    rnd(S1, S1)
    a('v_add_f32 v%d, %s, v%d' % (S2, f32(1e-5), S2))
    a('v_fma_f32 v%d, -v%d, v%d, v%d' % (R0, S1, R0 + 2, R0))
    rnd(S2, S2)
    a('v_fma_f32 v%d, -v%d, v%d, v%d' % (R0 + 1, S1, R0 + 3, R0 + 1))
    a('v_sqrt_f32 v%d, v%d' % (S2, S2))
    dpp('v_add_f32', R0, R0, R0, 'row_ror:4')
    dpp('v_add_f32', R0 + 1, R0 + 1, R0 + 1, 'row_ror:4')
    rnd(S2, S2)
    dpp('v_add_f32', R0, R0, R0, 'row_ror:8')
    a('v_rcp_f32 v%d, v%d' % (S2, S2))
    dpp('v_add_f32', R0 + 1, R0 + 1, R0 + 1, 'row_ror:8')
    a('v_mul_f32 v%d, v%d, v%d' % (R0, R0, S2))
    a('v_mul_f32 v%d, v%d, v%d' % (R0 + 1, R0 + 1, S2))
    rnd(R0, R0)
    rnd(R0 + 1, R0 + 1)
    a('v_mul_f32 v%d, v%d, v%d' % (R1, R0, R0))
    a('v_fmac_f32 v32, s63, v%d' % R1)
    a('v_mul_f32 v%d, v32, v%d' % (R1, R0))
    a('v_exp_f32 v%d, v%d' % (R1, R1))
    a('v_add_f32 v%d, 1.0, v%d' % (R1, R1))
    a('v_rcp_f32 v%d, v%d' % (R1, R1))
    a('v_mul_f32 v%d, v%d, v%d' % (R0, R0, R1))
    rnd(R0, R0)
    a('v_mul_f32 v%d, v%d, v%d' % (R0, R0, R0 + 1))
    a('v_cvt_pk_bf16_f32 v%d, v%d, v%d' % (R0, R0, R0))
    rowmm(R0)
    a('buffer_store_dwordx4 v[72:75], v8, s[20:23], s57 offen sc1')
    stamp(12)
    a('s_barrier')
    a('s_branch L_exit')

    a.label('L_fin')
    for k in range(4): a('v_mov_b32 v%d, 0' % (G0 + k))
    a('v_and_b32 v13, 15, v1')
    a('v_mul_u32_u24 v10, 144, v13')
    a('ds_write_b128 v10, %s offset:%d' % (vr(G0), L_GU + 112))
    a('ds_write_b64 v%d, %s offset:%d' % (G0, vr(G0, 2), L_STAT + 56))
    a('v_mul_u32_u24 v9, 1920, v1')
    a('v_add_u32 v11, %d, v9' % (64 * 1920))
    a('s_mov_b32 s60, -1'); a('s_mov_b32 s61, 0xffff')
    a('v_cndmask_b32_e64 v11, 2.0, v11, s[60:61]')
    a('s_and_b32 s44, s54, 0x60')
    a('s_bfe_u32 s7, s54, 0x40001')
    a('s_add_u32 s44, s44, s7')
    a('s_and_b32 s7, s54, 1')
    a('s_lshl4_add_u32 s44, s7, s44')
    a('s_lshl_b32 s44, s44, 4')
    a('s_add_u32 s44, s44, 0x%x' % WS_H2)
    a('v_lshrrev_b32 v12, 4, v1')
    a('s_lshl_b32 s7, s54, 2')
    a('v_add_u32 v12, s7, v12')
    a('v_lshlrev_b32 v14, 2, v12')
    a('v_lshlrev_b32 v12, 1, v12')
    a('s_mov_b32 s58, 0x10001'); a('s_mov_b32 s59, 0x10001')
    a('s_waitcnt lgkmcnt(0)')
    a('s_barrier')
    if c['rotbar']: a('s_barrier')
    a('s_barrier')
    a('ds_read_b32 v15, v14 offset:%d' % L_H)
    a('s_barrier')
    stamp(12)
    poll('L_p2', ['buffer_load_dwordx4 %s, v9, s[20:23], s44 offen sc1' % vr(G0),
                  'buffer_load_dwordx4 %s, v11, s[20:23], s44 offen sc1' % vr(G1)],
         [G0 + 3, G1 + 3], lanemask='s[60:61]', first_wait='vmcnt(0) lgkmcnt(0)')
    stamp(13)
    sum2scatter()
    for ctl in (QP1, QP2, 'row_half_mirror', 'row_mirror'): dpp('v_add_f32', G0, G0, G0, ctl)
    rnd(G0, G0)
    a('v_add_f32 v%d, v%d, v15' % (G0, G0))
    a('v_cvt_pk_bf16_f32 v%d, v%d, v%d' % (G0, G0, G0))
    a('s_mov_b64 exec, s[58:59]')
    a('buffer_store_short v%d, v12, s[40:43], 0 offen' % G0)
    a('s_cmp_lg_u32 s54, 0')
    a('s_cbranch_scc1 L_exit')
    a('v_mov_b32 v10, s6')
    a('s_mov_b64 exec, 1')
    a('buffer_store_dword v10, off, s[20:23], 0 sc1')
    a.label('L_exit')
    if c['stamps']:
        stamp(14)
        a('s_waitcnt vmcnt(0)')
        stamp(15)
        a('s_mov_b64 exec, 1')
        a('s_lshl3_add_u32 s7, s2, s5')
        a('s_lshl_b32 s7, s7, 6')
        a('s_add_u32 s7, s7, 0x%x' % WS_ST)
        a('s_waitcnt lgkmcnt(0)')
        for k in range(16): a('v_mov_b32 v%d, s%d' % (16 + k, 64 + 2 * k))
        for k in range(4): a('buffer_store_dwordx4 %s, off, s[20:23], s7 offset:%d' % (vr(16 + 4 * k), 16 * k))
    a.label('L_end')
    a('s_endpgm')
    for name, loads in retry:
        a.label(name + '_retry')
        a('s_add_u32 s7, s7, 1')
        a('s_cmp_ge_u32 s7, %d' % SPIN)
        a('s_cbranch_scc1 %s_ok' % name)
        for t in loads: a(t)
        a('s_waitcnt vmcnt(0)')
        a('s_branch %s_chk' % name)
    a.label('L_last')
    a('s_endpgm')

    ref = open(os.path.join(os.path.dirname(os.path.abspath(__file__)), 'header.txt')).read()
    head = ref + '; @launch grid=(256,1,1) block=(512,1,1) lds=%d\n' % LDS_BYTES
    head += '.amdgcn_target "amdgcn-amd-amdhsa--gfx950"\n.text\n.globl {N}_kernel\n.p2align 8\n.type {N}_kernel,@function\n{N}_kernel:\n'.replace('{N}', NAME)
    foot = """.section .rodata,"a"
.p2align 6
.amdhsa_kernel {N}_kernel
  .amdhsa_next_free_vgpr 224
  .amdhsa_next_free_sgpr 102
  .amdhsa_accum_offset 224
  .amdhsa_group_segment_fixed_size 0
  .amdhsa_kernarg_size 96
  .amdhsa_float_denorm_mode_32 3
  .amdhsa_user_sgpr_count 2
  .amdhsa_user_sgpr_kernarg_segment_ptr 1
  .amdhsa_system_sgpr_workgroup_id_x 1
.end_amdhsa_kernel
""".replace('{N}', NAME)
    return head + a.text() + foot

if __name__ == '__main__':
    out = sys.argv[1] if len(sys.argv) > 1 else 'cdna_kernels/%s.s' % NAME
    kw = eval('dict(%s)' % sys.argv[2]) if len(sys.argv) > 2 else {}
    open(out, 'w').write(gen(**kw))
```

```python
import sys, os, struct, math
sys.path.insert(0, os.path.dirname(os.path.abspath(__file__)))
from emit import Asm

NAME = 'sequential_preLN__sliding_block_cached__geglu_ffn__decode'

WS_E = 0
WS_X = 0x1000
WS_Q = 0x4000
BLK = 4096 + 128
WS_H0 = 0x20000
WS_HP = 0xC0000
WS_H1 = 0x160000
WS_H2 = 0x170000
WS_ST = 0x200000

L_QL = 0
L_S = 1024
L_P = 2048
L_XN = 6400
L_GU = 8448
L_STAT = 10752
L_FR = 11776
L_FLAG = 13568
L_T = 13824
LDS_BYTES = L_T + 7 * 4096

OOB = 0x40000000
SPIN = 20000

def f32(x):
    return '0x%08x' % struct.unpack('<I', struct.pack('<f', x))[0]

def vr(a, n=4):
    return 'v[%d:%d]' % (a, a + n - 1)

DEF = dict(depth=6, va=4, vb=10, stamps=None, rs=1, rg=0, gunt='nt', rot=0, pf=True,
           wnt='nt', dnt='nt', touch='r', force_sc1=False, fake=0)

def gen(**kw):
    c = dict(DEF); c.update(kw)
    a = Asm()
    D = c['depth']
    def stamp(k):
        if c['stamps']: a('%s s[%d:%d]' % (c['stamps'], 64 + 2 * k, 65 + 2 * k))
    def srd(base, size):
        a('s_mov_b32 s%d, 0x%x' % (base + 2, size))
        a('s_mov_b32 s%d, 0x20000' % (base + 3))
    def mktag():
        a('s_mul_i32 s6, s6, 0x9e3779b1')
        a('s_add_u32 s6, s6, 0x7f4a7c15')
    def rnd(d, s):
        a('v_cvt_pk_bf16_f32 v%d, 0, v%d' % (d, s))
    QP1, QP2 = 'quad_perm:[1,0,3,2]', 'quad_perm:[2,3,0,1]'
    FULL = 'row_mask:0xf bank_mask:0xf'
    def dpp(op, d, s0, s1, ctl, mask=FULL):
        a('%s_dpp v%d, v%d, v%d %s %s' % (op, d, s0, s1, ctl, mask))
    def masks():
        a('v_and_b32 v10, 1, v1')
        a('v_lshlrev_b32 v10, 4, v10')
        a('s_mov_b32 s7, 0xffff')
        a('v_lshlrev_b32_e64 v10, v10, s7')
        a('v_bfe_u32 v11, v1, 1, 2')
        for r in range(4):
            a('v_cmp_eq_u32 vcc, %d, v11' % r)
            a('v_cndmask_b32 v%d, 0, v10, vcc' % (vM + r))
    def colvoff(d, sblk):
        a('v_lshrrev_b32 v10, 4, v1')
        a('v_mul_u32_u24 v10, 896, v10')
        a('v_and_b32 v11, 15, v1')
        a('v_lshl_add_u32 v11, s%d, 4, v11' % sblk)
        a('v_lshl_add_u32 v%d, v11, 4, v10' % d)
        a('v_cmp_gt_u32 vcc, 56, v11')
        a('v_cndmask_b32 v%d, 2.0, v%d, vcc' % (d, d))
    def pack24(d, s):
        for k in range(3):
            a('v_perm_b32 v%d, v%d, v%d, s%d' % (d + k, s + k, s + 3, sPK + k))
    def unpack24(d, s):
        a('v_perm_b32 v%d, v%d, v%d, s%d' % (d, s + 1, s, sUP))
        a('v_perm_b32 v%d, v%d, v%d, s%d' % (d, s + 2, d, sUP + 1))
    def packsel():
        for k in range(3):
            a('s_mov_b32 s%d, 0x0706050%d' % (sPK + k, 1 + k))
        a('s_mov_b32 s%d, 0x0c04000c' % sUP)
        a('s_mov_b32 s%d, 0x04020100' % (sUP + 1))
    def poll(name, loads, tags, lanemask=None, first_wait='vmcnt(0)', between=None):
        a('s_mov_b32 s7, 0')
        for t in loads: a(t)
        if between: between()
        a('s_waitcnt ' + first_wait)
        a.label(name + '_chk')
        a('v_cmp_ne_u32 vcc, s6, v%d' % tags[0])
        if len(tags) > 1:
            for i, t in enumerate(tags[1:]):
                a('v_cmp_ne_u32_e64 s[%d:%d], s6, v%d' % (96 + 2 * i, 97 + 2 * i, t))
            for i, t in enumerate(tags[1:]):
                a('s_or_b64 vcc, vcc, s[%d:%d]' % (96 + 2 * i, 97 + 2 * i))
            a('s_cbranch_scc1 %s_retry' % name)
        else:
            a('s_cbranch_vccnz %s_retry' % name)
        a.label(name + '_ok')
        retry.append((name, loads))
    retry = []
    def getflag():
        a('v_readfirstlane_b32 s47, v3')
    def store2(data, voff, soff, lo, hi, off=0):
        a('s_mov_b64 exec, s[%d:%d]' % (lo, lo + 1))
        a('buffer_store_dwordx4 %s, v%d, s[20:23], s%d offen offset:%d' % (vr(data), voff, soff, off))
        a('s_mov_b64 exec, s[%d:%d]' % (hi, hi + 1))
        a('buffer_store_dwordx4 %s, v%d, s[20:23], s%d offen offset:%d sc1' % (vr(data), voff, soff, off))
    def fptrs(x=True):
        if x:
            a('s_load_dwordx2 s[36:37], s[0:1], 0')
            srd(36, 896)
        a('s_load_dwordx2 s[24:25], s[0:1], 48')
        a('s_load_dwordx2 s[28:29], s[0:1], 56')
        a('s_load_dwordx2 s[32:33], s[0:1], 64')
        a('s_load_dwordx2 s[40:41], s[0:1], 72')
        srd(20, 1 << 28)
        srd(24, 448 * 3584)
        srd(28, 448 * 3584)
        srd(32, 1792 * 896)
        srd(40, 896)
        packsel()

    vM = 4
    vKO = 2
    vK, vV, vQ, vW = 16, 80, 144, 176
    vA = 192
    vP = 16
    vT = 48
    vC0, vC1 = 64, 68
    sPK, sUP = 48, 52

    if c['stamps']:
        for k in range(1, 16): a('s_mov_b32 s%d, 0' % (64 + 2 * k))
    stamp(0)
    a('s_cmp_ge_u32 s2, 256')
    a('s_cbranch_scc1 L_end')
    a('s_load_dwordx2 s[8:9], s[0:1], 8')
    a('s_load_dwordx2 s[12:13], s[0:1], 16')
    a('s_load_dwordx2 s[20:21], s[0:1], 88')
    a('v_lshrrev_b32 v3, 6, v0')
    a('v_and_b32 v1, 63, v0')
    a('s_and_b32 s3, s2, 7')
    a('v_readfirstlane_b32 s5, v3')
    a('s_lshr_b32 s4, s2, 3')
    srd(16, 448 * 8192)
    a('s_cmp_ge_u32 s4, 16')
    a('s_cbranch_scc1 L_q0')

    a('s_cmp_ge_u32 s5, 4')
    a('s_cbranch_scc0 L_w0')
    a('s_waitcnt lgkmcnt(0)')
    a('s_load_dword s6, s[20:21], 0')
    a.label('L_kv')

    a('v_and_b32 v10, 7, v1')
    a('v_lshrrev_b32 v11, 3, v1')
    a('v_lshlrev_b32 v10, 4, v10')
    a('v_lshl_add_u32 v%d, v11, 9, v10' % vKO)
    srd(8, 1 << 26)
    a('s_lshl_b32 s7, s3, 7')
    a('s_add_u32 s7, s7, s4')
    a('s_add_u32 s7, s7, 96')
    a('s_lshl_b32 s44, s7, 4')
    a('s_mul_i32 s7, s4, %d' % c['rs'])
    if c['rg']:
        a('s_mul_i32 s45, s3, %d' % c['rg'])
        a('s_add_u32 s7, s7, s45')
    a('s_and_b32 s7, s7, 15')
    a('s_or_b32 s44, s44, s7')
    a('s_sub_u32 s55, s5, 4')
    a('s_xor_b32 s45, s44, s55')
    a('s_lshl_b32 s45, s45, 12')
    stamp(1)
    def h0addr():
        a('v_lshrrev_b32 v10, 5, v1')
        a('v_bfe_u32 v11, v1, 2, 1')
        a('v_lshl_add_u32 v10, v10, 3, v11')
        a('v_mul_u32_u24 v10, %d, v10' % BLK)
        a('v_and_b32 v11, 3, v1')
        a('v_lshl_add_u32 v10, v11, 4, v10')
        a('v_bfe_u32 v11, v1, 4, 1')
        a('v_lshl_add_u32 v9, v11, 6, v10')
        a('s_lshl3_add_u32 s7, s3, s55')
        a('s_mul_i32 s57, s7, %d' % (2 * BLK))
        a('s_lshl_b32 s7, s4, 7')
        a('s_add_u32 s57, s57, s7')
        a('s_add_u32 s57, s57, 0x%x' % WS_H0)
    nk = [0]
    def throttle():
        if nk[0] >= D: a('s_waitcnt vmcnt(%d)' % (D - 1))
        nk[0] += 1
    for idx in range(16):
        i, t = idx >> 2, idx & 3
        if t == 0 and i > 0: a('s_xor_b32 s45, s45, 0x%x' % ((i ^ (i - 1)) << 14))
        throttle()
        a('buffer_load_dwordx4 %s, v%d, s[8:11], s45 offen offset:%d nt' % (vr(vK + 4 * idx), vKO, 128 * t))
        if idx == D - 1:
            srd(12, 1 << 26)
            fptrs()
            a('s_lshl_b32 s44, s44, 12')
            a('s_lshl_b32 s7, s55, 7')
            a('s_add_u32 s44, s44, s7')
            masks()
            a('v_lshlrev_b32 v8, 4, v1')
            a('s_lshl_b32 s7, s3, 2')
            a('s_add_u32 s7, s7, s55')
            a('s_lshl_b32 s56, s7, 11')
            a('s_add_u32 s56, s56, 0x%x' % WS_Q)
            for k in range(8): a('v_mov_b32 v%d, 0' % (vA + 8 + k))
            a('s_waitcnt lgkmcnt(0)')
            mktag()
            if c['touch'] == 'w':
                h0addr()
                a('s_mov_b32 exec_lo, 0x00ff00ff'); a('s_mov_b32 exec_hi, 0x00ff00ff')
                a('buffer_store_dwordx4 %s, v9, s[20:23], s57 offen' % vr(vA + 8))
                a('s_mov_b64 exec, -1')
    stamp(2)
    nv = [0]
    def vload(thr):
        n = nv[0]; nv[0] += 1
        if n > 0: a('s_xor_b32 s44, s44, 0x%x' % ((n ^ (n - 1)) << 12))
        if thr: throttle()
        a('buffer_load_dwordx4 %s, v%d, s[12:15], s44 offen nt' % (vr(vV + 4 * n), vKO))
    def first_v():
        for _ in range(c['va']): vload(True)
    throttle()
    poll('L_pq', ['buffer_load_dwordx4 %s, v8, s[20:23], s56 offen sc1' % vr(vA),
                  'buffer_load_dwordx4 %s, v8, s[20:23], s56 offen offset:1024 sc1' % vr(vA + 4)],
         [vA + 3, vA + 7], first_wait='vmcnt(%d)' % c['va'], between=first_v)
    stamp(3)
    a('v_add_f32 v%d, v%d, v%d' % (vA, vA, vA + 4))
    a('v_add_f32 v%d, v%d, v%d' % (vA + 1, vA + 1, vA + 5))
    a('v_and_b32 v10, 255, v0')
    a('v_lshlrev_b32 v10, 2, v10')
    a('v_cvt_pk_bf16_f32 v%d, v%d, v%d' % (vA, vA, vA + 1))
    a('v_and_b32 v11, 0x70, v%d' % vKO)
    a('ds_write_b32 v10, v%d offset:%d' % (vA, L_QL))
    while nv[0] < c['vb']: vload(False)
    a('s_waitcnt lgkmcnt(0)')
    a('s_barrier')
    for h in range(2):
        for t in range(4):
            a('ds_read_b128 %s, v11 offset:%d' % (vr(vQ + 16 * h + 4 * t), L_QL + 512 * h + 128 * t))
    a('v_bfe_u32 v10, v1, 2, 1')
    a('v_lshlrev_b32 v10, 9, v10')
    a('v_lshrrev_b32 v12, 4, v1')
    a('v_lshl_add_u32 v10, v12, 7, v10')
    a('v_and_b32 v13, 3, v1')
    a('v_lshl_add_u32 v10, v13, 5, v10')
    a('v_bfe_u32 v13, v1, 3, 1')
    a('v_lshl_add_u32 v10, v13, 2, v10')
    a('s_lshl_b32 s7, s55, 3')
    a('v_add_u32 v10, s7, v10')
    a('s_mul_i32 s7, s55, 1056')
    a('v_lshrrev_b32 v14, 5, v1')
    a('v_lshl_add_u32 v14, v14, 4, v8')
    a('v_add_u32 v14, s7, v14')
    a('v_mul_u32_u24 v15, 528, v13')
    a('v_lshl_add_u32 v15, v12, 7, v15')
    a('v_add_u32 v15, s7, v15')
    a('s_mov_b32 s58, 0xaaaaaaaa'); a('s_mov_b32 s59, 0xaaaaaaaa')
    a('s_mov_b32 s60, 0xcccccccc'); a('s_mov_b32 s61, 0xcccccccc')
    a('s_waitcnt lgkmcnt(0)')
    stamp(4)
    acc = lambda i, h: vA + 8 + 4 * h + i
    for i in range(4):
        for t in range(4):
            for d in range(4):
                for h in range(2):
                    a('v_dot2c_f32_bf16 v%d, v%d, v%d' % (acc(i, h), vK + 16 * i + 4 * t + d, vQ + 16 * h + 4 * t + d))
        rem = 16 - nv[0]
        for _ in range(-(-rem // (4 - i))): vload(False)
    X = acc(0, 0)
    for i in range(4): dpp('v_add_f32', X + i, X + i, X + i, 'row_half_mirror', 'row_mask:0xf bank_mask:0x5')
    for i in range(4): dpp('v_add_f32', X + i, X + 4 + i, X + 4 + i, 'row_half_mirror', 'row_mask:0xf bank_mask:0xa')
    for i in range(4): dpp('v_add_f32', X + i, X + i, X + i, QP1)
    a('v_cndmask_b32_e64 v%d, v%d, v%d, s[58:59]' % (X, X, X + 1))
    a('v_cndmask_b32_e64 v%d, v%d, v%d, s[58:59]' % (X + 2, X + 2, X + 3))
    dpp('v_add_f32', X, X, X, QP2)
    dpp('v_add_f32', X + 2, X + 2, X + 2, QP2)
    a('v_cndmask_b32_e64 v%d, v%d, v%d, s[60:61]' % (X, X, X + 2))
    rnd(X, X)
    a('ds_write_b32 v10, v%d offset:%d' % (X, L_S))
    a('s_waitcnt lgkmcnt(0)')
    a('s_barrier')
    a('ds_read_b128 %s, v8 offset:%d' % (vr(vA), L_S))
    a('v_mov_b32 v3, 0')
    a('ds_read_b32 v3, v3 offset:%d' % L_FLAG)
    if c['touch'] != 'w': h0addr()
    a('s_mov_b32 s62, %s' % f32(math.log2(math.e) / 16))
    a('s_waitcnt lgkmcnt(0)')
    stamp(5)
    mx, t1 = vA + 4, vA + 5
    def allred32(op, r):
        for ctl in (QP1, QP2, 'row_half_mirror', 'row_mirror'): dpp(op, r, r, r, ctl)
        a('v_mov_b32 v%d, v%d' % (t1, r))
        a('v_permlane16_swap_b32 v%d, v%d' % (r, t1))
        a('%s v%d, v%d, v%d' % (op, r, r, t1))
    a('v_max3_f32 v%d, v%d, v%d, v%d' % (mx, vA, vA + 1, vA + 2))
    a('v_max_f32 v%d, v%d, v%d' % (mx, mx, vA + 3))
    allred32('v_max_f32', mx)
    a('v_mul_f32 v%d, s62, v%d' % (mx, mx))
    for k in range(4): a('v_fma_f32 v%d, v%d, s62, -v%d' % (vA + k, vA + k, mx))
    for k in range(4): a('v_exp_f32 v%d, v%d' % (vA + k, vA + k))
    ls = vA + 6
    a('v_add_f32 v%d, v%d, v%d' % (ls, vA, vA + 1))
    a('v_add_f32 v%d, v%d, v%d' % (t1, vA + 2, vA + 3))
    a('v_add_f32 v%d, v%d, v%d' % (ls, ls, t1))
    allred32('v_add_f32', ls)
    a('v_rcp_f32 v%d, v%d' % (t1, ls))
    a('v_log_f32 v%d, v%d' % (ls, ls))
    for k in range(4): a('v_mul_f32 v%d, v%d, v%d' % (vA + k, vA + k, t1))
    for k in range(4): a('v_cvt_pk_bf16_f32 v%d, v%d, v%d' % (vA + k, vA + k, vA + k))
    a('ds_write_b128 v14, %s offset:%d' % (vr(vA), L_P))
    vG = vA + 8
    a('v_add_f32 v%d, v%d, v%d' % (vG + 2, ls, mx))
    a('v_mov_b32 v%d, s6' % (vG + 3))
    for k in range(8): a('v_mov_b32 v%d, 0' % (vC0 + k))
    a('s_waitcnt lgkmcnt(0)')
    for z in range(8): a('ds_read_b128 %s, v15 offset:%d' % (vr(vP + 4 * z), L_P + 16 * z))
    getflag()
    a('s_and_b32 s58, s47, 0x00ff00ff'); a('s_mov_b32 s59, s58')
    a('s_andn2_b32 s60, 0x00ff00ff, s47'); a('s_mov_b32 s61, s60')
    a('s_waitcnt lgkmcnt(0)')
    stamp(6)
    for n in range(16):
        tb = vT + 8 * (n & 1)
        for kl in range(2):
            for r in range(4):
                a('v_and_b32 v%d, v%d, v%d' % (tb + 4 * kl + r, vP + 2 * n + kl, vM + r))
        a('s_waitcnt vmcnt(%d)' % (15 - n))
        a('v_mfma_f32_16x16x32_bf16 %s, %s, %s, %s' % (vr(vC0), vr(tb), vr(vV + 4 * n), vr(vC0)))
        a('v_mfma_f32_16x16x32_bf16 %s, %s, %s, %s' % (vr(vC1), vr(tb + 4), vr(vV + 4 * n), vr(vC1)))
    stamp(7)
    for r in range(4): dpp('v_add_f32', vC0 + r, vC1 + r, vC0 + r, 'row_ror:8')
    a('v_cvt_pk_bf16_f32 v%d, v%d, v%d' % (vG, vC0, vC0 + 1))
    a('v_cvt_pk_bf16_f32 v%d, v%d, v%d' % (vG + 1, vC0 + 2, vC0 + 3))
    store2(vG, 9, 57, 58, 60)
    a('s_mov_b64 exec, -1')
    a('s_barrier')
    stamp(8)
    a('s_cmp_ge_u32 s4, 16')
    a('s_cbranch_scc1 L_fkv')
    a('s_cmp_ge_u32 s4, 14')
    a('s_cbranch_scc1 L_fin')
    a('s_cmp_eq_u32 s5, 4')
    a('s_cbranch_scc0 L_exit')

    G0, G1, G2, G3 = 16, 20, 24, 28
    def scatter4(g):
        a('v_permlane32_swap_b32 v%d, v%d' % (g, g + 2))
        a('v_add_f32 v%d, v%d, v%d' % (g, g, g + 2))
        a('v_permlane32_swap_b32 v%d, v%d' % (g + 1, g + 3))
        a('v_add_f32 v%d, v%d, v%d' % (g + 1, g + 1, g + 3))
        a('v_permlane16_swap_b32 v%d, v%d' % (g, g + 1))
        a('v_add_f32 v%d, v%d, v%d' % (g, g, g + 1))
    def unpackn(gs):
        for g in gs: a('v_perm_b32 v%d, v%d, v%d, s%d' % (g + 3, g + 1, g, sUP))
        for g in gs: a('v_perm_b32 v%d, v%d, v%d, s%d' % (g + 3, g + 2, g + 3, sUP + 1))
    def pkadd(d, x, y):
        a('v_pk_add_f32 %s, %s, %s' % (vr(d, 2), vr(x, 2), vr(y, 2)))
    def sum2scatter():
        unpackn([G0, G1])
        pkadd(G0, G0, G1); pkadd(G0 + 2, G0 + 2, G1 + 2)
        scatter4(G0)
    a('s_lshl4_add_u32 s7, s3, s4')
    a('s_mul_i32 s44, s7, %d' % BLK)
    a('s_add_u32 s44, s44, 0x%x' % WS_HP)
    a('s_mul_i32 s45, s3, 15')
    a('s_add_u32 s45, s45, s4')
    a('s_lshl_b32 s45, s45, 7')
    a('s_add_u32 s45, s45, 0x%x' % WS_H1)
    a('v_mov_b32 v75, s6')
    a('s_barrier')
    poll('L_pp', ['buffer_load_dwordx4 %s, v8, s[20:23], s44 offen offset:%d sc1' % (vr(G0 + 4 * k), 1024 * k) for k in range(4)],
         [G0 + 3, G1 + 3, G2 + 3, G3 + 3])
    stamp(11)
    unpackn([G0, G1, G2, G3])
    pkadd(G0, G0, G1); pkadd(G2, G2, G3); pkadd(G0 + 2, G0 + 2, G1 + 2); pkadd(G2 + 2, G2 + 2, G3 + 2)
    pkadd(G0, G0, G2); pkadd(G0 + 2, G0 + 2, G2 + 2)
    scatter4(G0)
    dpp('v_add_f32', G1, G0, G0, 'row_ror:8')
    dpp('v_add_f32', G1 + 1, G0, G0, 'row_ror:8')
    a('v_permlane16_swap_b32 v%d, v%d' % (G1, G1 + 1))
    a('v_mov_b32 v%d, v%d' % (G1 + 2, G1))
    a('v_mov_b32 v%d, v%d' % (G1 + 3, G1 + 1))
    a('v_permlane32_swap_b32 v%d, v%d' % (G1, G1 + 2))
    a('v_permlane32_swap_b32 v%d, v%d' % (G1 + 1, G1 + 3))
    a('s_mov_b64 exec, 0xff')
    pack24(72, G1)
    a('buffer_store_dwordx4 v[72:75], v8, s[20:23], s45 offen sc1')
    stamp(12)
    a('s_branch L_exit')

    vW2 = 80
    a.label('L_w0')
    a('s_load_dwordx2 s[16:17], s[0:1], 32')
    a('s_and_b32 s55, s5, 1')
    a('s_lshl1_add_u32 s44, s55, 1')
    colvoff(3, 44)
    a('v_lshl_add_u32 v2, v11, 4, v10')
    a('v_subrev_u32 v2, 256, v2')
    a('s_lshr_b32 s7, s5, 1')
    a('s_lshl1_add_u32 s54, s4, s7')
    a('s_lshl_b32 s7, s3, 5')
    a('s_add_u32 s7, s7, s54')
    a('s_mul_i32 s45, s7, %d' % (16 * 896))
    a('s_add_u32 s46, s45, 7168')
    a('s_waitcnt lgkmcnt(0)')
    a('s_load_dword s6, s[20:21], 0')
    for t in range(4):
        for k in range(2):
            a('buffer_load_dwordx4 %s, v%d, s[16:19], s%d offen offset:%d %s' % (vr(vW2 + 16 * k + 4 * t), 2 + k, 45 + (t & 1), 3584 * (t >> 1), c['wnt']))
    a('s_branch L_aux')
    a.label('L_wt')
    a('v_lshrrev_b32 v10, 2, v1')
    a('v_bfe_u32 v11, v1, 1, 1')
    a('v_lshl_add_u32 v10, v10, 1, v11')
    a('v_and_b32 v11, 1, v1')
    a('v_lshlrev_b32 v11, 4, v11')
    a('v_lshl_add_u32 v12, v10, 6, v11')
    a('s_lshl4_add_u32 s7, s3, s4')
    a('s_mul_i32 s56, s7, %d' % BLK)
    a('s_add_u32 s44, s56, 0x%x' % WS_HP)
    a('s_add_u32 s45, s56, 0x%x' % WS_H0)
    a('s_and_b32 s7, s54, 1')
    a('s_lshl_b32 s7, s7, 5')
    a('s_add_u32 s56, s45, s7')
    a('v_bfe_u32 v10, v1, 3, 1')
    a('v_bfe_u32 v11, v1, 4, 1')
    a('v_lshl_add_u32 v10, v10, 1, v11')
    a('v_mul_u32_u24 v10, %d, v10' % BLK)
    a('v_and_b32 v11, 0x70, v8')
    a('v_add_u32 v9, v10, v11')
    a('s_lshl1_add_u32 s7, s3, s55')
    a('s_mul_i32 s57, s7, %d' % (8 * BLK))
    a('s_lshl_b32 s7, s54, 7')
    a('s_add_u32 s57, s57, s7')
    a('s_add_u32 s57, s57, 0x%x' % WS_HP)
    a('s_add_u32 s46, s57, %d' % (4 * BLK))
    a('s_cmp_eq_u32 s55, 1')
    a('s_cselect_b32 s7, 0x00ff00ff, -1')
    a('s_mov_b32 s58, s47'); a('s_mov_b32 s59, 0')
    a('s_not_b32 s60, s47'); a('s_mov_b32 s61, 0')
    a('s_and_b32 s62, s7, s47'); a('s_mov_b32 s63, 0')
    a('s_andn2_b32 s100, s7, s47'); a('s_mov_b32 s101, 0')
    if c['touch'] in ('r', 'rnt'):
        a('s_cmp_eq_u32 s5, 0')
        a('s_cbranch_scc0 L_notouch')
        a('v_and_b32 v10, 31, v1')
        a('v_lshlrev_b32 v10, 7, v10')
        a('v_lshrrev_b32 v11, 5, v1')
        a('v_mul_u32_u24 v11, 0x%x, v11' % (WS_HP - WS_H0))
        a('v_add_u32 v10, v10, v11')
        a('buffer_load_dword v13, v10, s[20:23], s45 offen %s' % ('sc1' if c['touch'] == 'r' else 'nt'))
        a.label('L_notouch')
    if c['touch'] == 'w':
        for k in range(4): a('v_mov_b32 v%d, 0' % (72 + k))
        a('s_mov_b64 exec, s[58:59]')
        a('buffer_store_dwordx4 v[72:75], v9, s[20:23], s57 offen')
        a('s_mov_b64 exec, s[62:63]')
        a('buffer_store_dwordx4 v[72:75], v9, s[20:23], s46 offen')
        a('s_mov_b64 exec, -1')
    a('v_mov_b32 v75, s6')
    a('v_mov_b32 v79, s6')
    a('s_barrier')
    a('s_barrier')
    stamp(8)
    poll('L_p0', ['buffer_load_dwordx4 %s, v12, s[20:23], s56 offen sc1' % vr(G0),
                  'buffer_load_dwordx4 %s, v12, s[20:23], s56 offen offset:2048 sc1' % vr(G1)],
         [G0 + 3, G1 + 3])
    stamp(9)
    M, T, Y, Z, WS_, W0, W1 = 24, 25, 28, 32, 26, 36, 37
    a('v_max_f32 v%d, v%d, v%d' % (M, G0 + 2, G1 + 2))
    a('v_lshlrev_b32 v%d, 16, v%d' % (Y, G0))
    a('v_and_b32 v%d, 0xffff0000, v%d' % (Y + 1, G0))
    dpp('v_max_f32', M, M, M, 'row_ror:4')
    a('v_lshlrev_b32 v%d, 16, v%d' % (Y + 2, G0 + 1))
    a('v_and_b32 v%d, 0xffff0000, v%d' % (Y + 3, G0 + 1))
    dpp('v_max_f32', M, M, M, 'row_ror:8')
    a('v_mov_b32 v%d, v%d' % (T, M))
    a('v_lshlrev_b32 v%d, 16, v%d' % (Z, G1))
    a('v_and_b32 v%d, 0xffff0000, v%d' % (Z + 1, G1))
    a('v_permlane16_swap_b32 v%d, v%d' % (M, T))
    a('v_max_f32 v%d, v%d, v%d' % (M, M, T))
    a('v_mov_b32 v%d, v%d' % (T, M))
    a('v_lshlrev_b32 v%d, 16, v%d' % (Z + 2, G1 + 1))
    a('v_and_b32 v%d, 0xffff0000, v%d' % (Z + 3, G1 + 1))
    a('v_permlane32_swap_b32 v%d, v%d' % (M, T))
    a('v_max_f32 v%d, v%d, v%d' % (M, M, T))
    a('v_sub_f32 v%d, v%d, v%d' % (W0, G0 + 2, M))
    a('v_sub_f32 v%d, v%d, v%d' % (W1, G1 + 2, M))
    a('v_exp_f32 v%d, v%d' % (W0, W0))
    a('v_exp_f32 v%d, v%d' % (W1, W1))
    for k in range(4): a('v_mul_f32 v%d, v%d, v%d' % (Y + k, Y + k, W0))
    a('v_add_f32 v%d, v%d, v%d' % (WS_, W0, W1))
    a('v_fmac_f32 v%d, v%d, v%d' % (Y, Z, W1))
    a('v_fmac_f32 v%d, v%d, v%d' % (Y + 2, Z + 2, W1))
    dpp('v_add_f32', WS_, WS_, WS_, 'row_ror:4')
    a('v_fmac_f32 v%d, v%d, v%d' % (Y + 1, Z + 1, W1))
    a('v_fmac_f32 v%d, v%d, v%d' % (Y + 3, Z + 3, W1))
    dpp('v_add_f32', WS_, WS_, WS_, 'row_ror:8')
    a('v_permlane32_swap_b32 v%d, v%d' % (Y, Y + 2))
    a('v_mov_b32 v%d, v%d' % (T, WS_))
    a('v_permlane32_swap_b32 v%d, v%d' % (Y + 1, Y + 3))
    a('v_add_f32 v%d, v%d, v%d' % (Y, Y, Y + 2))
    a('v_permlane16_swap_b32 v%d, v%d' % (WS_, T))
    a('v_add_f32 v%d, v%d, v%d' % (Y + 1, Y + 1, Y + 3))
    a('v_add_f32 v%d, v%d, v%d' % (WS_, WS_, T))
    a('v_mov_b32 v%d, v%d' % (T, WS_))
    a('v_permlane16_swap_b32 v%d, v%d' % (Y, Y + 1))
    a('v_add_f32 v%d, v%d, v%d' % (Y, Y, Y + 1))
    a('v_permlane32_swap_b32 v%d, v%d' % (WS_, T))
    a('v_add_f32 v%d, v%d, v%d' % (WS_, WS_, T))
    dpp('v_add_f32', Y, Y, Y, 'row_ror:4')
    a('v_rcp_f32 v%d, v%d' % (WS_, WS_))
    dpp('v_add_f32', Y, Y, Y, 'row_ror:8')
    a('v_mul_f32 v%d, v%d, v%d' % (Y, Y, WS_))
    a('v_cvt_pk_bf16_f32 v%d, v%d, v%d' % (Y, Y, Y))
    def rowmm(src, tiles):
        def mms(t):
            for d, w in tiles:
                a('v_mfma_f32_16x16x32_bf16 %s, %s, %s, %s' % (vr(d), vr(vT + 4 * t), vr(w + 4 * t), vr(d) if t else '0'))
        for t in range(4):
            for r in range(4):
                dpp('v_and_b32', vT + 4 * t + r, src, vM + r, 'quad_perm:[%d,%d,%d,%d]' % (t, t, t, t))
                if t > 0 and r == 1: mms(t - 1)
        mms(3)
    rowmm(Y, [(vC0, vW2), (vC1, vW2 + 16)])
    pack24(72, vC0)
    a('s_mov_b64 exec, s[58:59]')
    a('buffer_store_dwordx4 v[72:75], v9, s[20:23], s57 offen')
    a('s_mov_b64 exec, -1')
    pack24(76, vC1)
    store2(76, 9, 46, 62, 100)
    a('s_mov_b64 exec, s[60:61]')
    a('buffer_store_dwordx4 v[72:75], v9, s[20:23], s57 offen sc1')
    a('s_mov_b64 exec, -1')
    stamp(10)
    a('s_cmp_ge_u32 s4, 14')
    a('s_cbranch_scc0 L_bexit')

    a.label('L_fin')
    a('s_cmp_eq_u32 s3, 7')
    a('s_cbranch_scc1 L_exit')
    a('s_sub_u32 s54, s4, 14')
    a('s_lshl1_add_u32 s54, s3, s54')
    a('v_lshrrev_b32 v10, 3, v1')
    a('v_mul_u32_u24 v10, 1920, v10')
    a('v_and_b32 v11, 0x70, v8')
    a('v_add_u32 v9, v10, v11')
    a('v_lshrrev_b32 v12, 4, v1')
    a('v_and_b32 v13, 7, v1')
    a('v_lshl_add_u32 v14, v12, 3, v13')
    a('v_mul_u32_u24 v14, 48, v14')
    a('v_lshl_add_u32 v10, s5, 2, v14')
    a('s_lshl_b32 s44, s54, 7')
    a('s_cmp_eq_u32 s5, 7')
    a('s_cbranch_scc1 L_fin7')
    a('s_mul_i32 s7, s5, %d' % (16 * 1920))
    a('s_add_u32 s44, s44, s7')
    a('s_add_u32 s44, s44, 0x%x' % WS_H2)
    a('s_add_u32 s45, s44, %d' % (8 * 1920))
    a('s_barrier')
    poll('L_p2', ['buffer_load_dwordx4 %s, v9, s[20:23], s44 offen sc1' % vr(G0),
                  'buffer_load_dwordx4 %s, v9, s[20:23], s45 offen sc1' % vr(G1)],
         [G0 + 3, G1 + 3])
    stamp(13)
    sum2scatter()
    dpp('v_add_f32', G0, G0, G0, 'row_ror:8')
    a('ds_write_b32 v10, v%d offset:%d' % (G0, L_FR))
    a('s_waitcnt lgkmcnt(0)')
    a.label('L_bexit')
    a('s_barrier')
    a('s_branch L_exit')

    a.label('L_fin7')
    a('v_mov_b32 v11, 0')
    a('ds_write_b32 v10, v11 offset:%d' % L_FR)
    a('v_lshl_add_u32 v12, v13, 3, v12')
    a('v_lshlrev_b32 v12, 1, v12')
    a('s_lshr_b32 s45, s54, 1')
    a('s_lshl_b32 s45, s45, 7')
    a('s_and_b32 s7, s54, 1')
    a('s_lshl3_add_u32 s45, s7, s45')
    a('s_add_u32 s44, s44, 0x%x' % WS_H1)
    a('v_bfe_u32 v11, v1, 3, 1')
    a('v_lshl_add_u32 v14, v11, 4, v14')
    a('s_mov_b32 s58, 0x00ff00ff'); a('s_mov_b32 s59, 0x00ff00ff')
    a('s_barrier')
    a('buffer_load_ushort v15, v12, s[36:39], s45 offen')
    poll('L_p3', ['buffer_load_dwordx4 %s, v9, s[20:23], s44 offen sc1' % vr(G0)], [G0 + 3])
    stamp(10)
    unpackn([G0])
    scatter4(G0)
    a('v_lshlrev_b32 v15, 16, v15')
    dpp('v_add_f32', G0, G0, G0, 'row_ror:8')
    rnd(G0, G0)
    a('v_add_f32 v15, v%d, v15' % G0)
    rnd(15, 15)
    a('s_waitcnt lgkmcnt(0)')
    a('s_barrier')
    a('ds_read_b128 %s, v14 offset:%d' % (vr(G0), L_FR))
    a('s_waitcnt lgkmcnt(0)')
    stamp(13)
    pkadd(G0, G0, G0 + 2)
    a('v_add_f32 v%d, v%d, v%d' % (G0, G0, G0 + 1))
    dpp('v_add_f32', G0, G0, G0, 'row_ror:8')
    rnd(G0, G0)
    a('v_add_f32 v%d, v%d, v15' % (G0, G0))
    a('v_cvt_pk_bf16_f32 v%d, v%d, v%d' % (G0, G0, G0))
    a('s_mov_b64 exec, s[58:59]')
    a('buffer_store_short v%d, v12, s[40:43], s45 offen' % G0)
    a('s_cmp_lg_u32 s54, 0')
    a('s_cbranch_scc1 L_exit')
    a('v_mov_b32 v10, s6')
    a('s_mov_b64 exec, 1')
    a('buffer_store_dword v10, off, s[20:23], 0 sc1')
    a('s_branch L_exit')

    a.label('L_aux')
    fptrs()
    masks()
    a('v_lshlrev_b32 v8, 4, v1')
    if c['pf']:
        a('s_cmp_eq_u32 s5, 1')
        a('s_cbranch_scc0 L_nopf')
        a('s_getpc_b64 s[46:47]')
        a.label('L_pc')
        a('s_sub_u32 s46, s46, L_pc-%s_kernel' % NAME)
        a('s_subb_u32 s47, s47, 0')
        a('v_and_b32 v10, 3, v1')
        a('v_lshl_add_u32 v10, s4, 2, v10')
        a('v_lshlrev_b32 v10, 7, v10')
        a('v_mov_b32 v11, s47')
        a('v_cmp_gt_u32 vcc, L_last-%s_kernel, v10' % NAME)
        a('v_cndmask_b32 v10, 0, v10, vcc')
        a('v_add_co_u32 v10, vcc, s46, v10')
        a('s_nop 1')
        a('v_addc_co_u32 v11, vcc, 0, v11, vcc')
        a('global_load_dword v12, v[10:11], off')
        a.label('L_nopf')
    a('s_waitcnt lgkmcnt(0)')
    mktag()
    a('s_cmp_eq_u32 s5, 2')
    a('s_cbranch_scc0 L_aux1')
    a('s_getreg_b32 s44, hwreg(HW_REG_XCC_ID, 0, 4)')
    a('s_lshl_b32 s45, s3, 8')
    a('s_add_u32 s45, s45, 0x%x' % WS_X)
    a('s_lshl3_add_u32 s46, s4, s45')
    a('v_mov_b32 v12, s44')
    a('v_mov_b32 v13, s6')
    a('v_and_b32 v10, 31, v1')
    a('v_lshlrev_b32 v10, 3, v10')
    a('s_mov_b64 exec, 1')
    a('buffer_store_dwordx2 v[12:13], off, s[20:23], s46 sc1')
    a('s_mov_b64 exec, -1')
    a('s_waitcnt vmcnt(0)')
    poll('L_px', ['buffer_load_dwordx2 v[14:15], v10, s[20:23], s45 offen sc1'], [15])
    a('v_cmp_ne_u32_e64 s[96:97], s44, v14')
    a('s_or_b64 vcc, vcc, s[96:97]')
    a('s_cselect_b32 s7, 0, %d' % (0 if c['force_sc1'] else -1))
    a('v_mov_b32 v12, s7')
    a('v_mov_b32 v13, 0')
    a('ds_write_b32 v13, v12 offset:%d' % L_FLAG)
    a('s_waitcnt lgkmcnt(0)')
    a.label('L_aux1')
    a('s_barrier')
    a('v_mov_b32 v3, 0')
    a('ds_read_b32 v3, v3 offset:%d' % L_FLAG)
    a('s_waitcnt lgkmcnt(0)')
    getflag()
    a('s_cmp_ge_u32 s4, 16')
    a('s_cbranch_scc0 L_wt')
    a('s_branch L_ft')

    a.label('L_q0')
    a('s_cmp_eq_u32 s5, 0')
    a('s_cbranch_scc1 L_qw')
    a('s_waitcnt lgkmcnt(0)')
    a('s_load_dword s6, s[20:21], 0')
    a('s_barrier')
    a('s_cmp_ge_u32 s5, 4')
    a('s_cbranch_scc1 L_kv')
    a('s_branch L_aux')

    a.label('L_qw')
    vWQ, vXN = 16, 128
    a('s_load_dwordx2 s[36:37], s[0:1], 0')
    a('s_load_dwordx2 s[16:17], s[0:1], 24')
    srd(36, 896)
    a('v_lshlrev_b32 v8, 4, v1')
    a('v_lshrrev_b32 v12, 3, v1')
    a('v_mul_u32_u24 v3, %d, v12' % (28 * 8192))
    a('v_and_b32 v10, 0x70, v8')
    a('v_add_u32 v3, v3, v10')
    a('s_and_b32 s44, s4, 1')
    a('s_bfe_u32 s55, s4, 0x30001')
    a('s_mul_i32 s45, s44, %d' % (224 * 8192))
    a('s_lshl3_add_u32 s7, s3, s55')
    a('s_lshl_b32 s7, s7, 7')
    a('s_add_u32 s45, s45, s7')
    a('s_movk_i32 s46, 0x2000')
    a('s_waitcnt lgkmcnt(0)')
    stamp(1)
    a('buffer_load_dwordx4 %s, v8, s[36:39], 0 offen' % vr(vA))
    a('s_load_dword s6, s[20:21], 0')
    for n in range(28):
        a('buffer_load_dwordx4 %s, v3, s[16:19], s45 offen %s' % (vr(vWQ + 4 * n), c['wnt']))
        if n < 27: a('s_add_u32 s45, s45, s46')
    a('s_barrier')
    stamp(2)
    fptrs(False)
    masks()
    a('s_mov_b32 s58, -1'); a('s_mov_b32 s59, 0x00ffffff')
    a('s_mov_b32 s62, %s' % f32(1.0 / 448))
    x = vA + 8
    def wavesum(r):
        for ctl in (QP1, QP2, 'row_half_mirror', 'row_mirror'): dpp('v_add_f32', r, r, r, ctl)
        dpp('v_add_f32', r, r, r, 'row_bcast:15', 'row_mask:0xa bank_mask:0xf')
        dpp('v_add_f32', r, r, r, 'row_bcast:31', 'row_mask:0xc bank_mask:0xf')
        a('v_readlane_b32 s7, v%d, 63' % r)
        a('v_mov_b32 v%d, s62' % r)
        a('v_mul_f32 v%d, s7, v%d' % (r, r))
    a('s_waitcnt vmcnt(28)')
    for k in range(4):
        a('v_lshlrev_b32 v%d, 16, v%d' % (x + 2 * k, vA + k))
        a('v_and_b32 v%d, 0xffff0000, v%d' % (x + 2 * k + 1, vA + k))
    for k in range(4): a('v_add_f32 v%d, v%d, v%d' % (vA + k, x + 2 * k, x + 2 * k + 1))
    a('v_add_f32 v%d, v%d, v%d' % (vA, vA, vA + 1))
    a('v_add_f32 v%d, v%d, v%d' % (vA + 2, vA + 2, vA + 3))
    a('v_add_f32 v%d, v%d, v%d' % (vA, vA, vA + 2))
    wavesum(vA)
    a('v_mov_b32 v%d, 0' % (vA + 1))
    for k in range(8):
        a('v_sub_f32 v%d, v%d, v%d' % (vA + 2, x + k, vA))
        a('v_fmac_f32 v%d, v%d, v%d' % (vA + 1, vA + 2, vA + 2))
    a('v_cndmask_b32_e64 v%d, 0, v%d, s[58:59]' % (vA + 1, vA + 1))
    rnd(vA, vA)
    wavesum(vA + 1)
    rnd(vA + 1, vA + 1)
    a('v_add_f32 v%d, %s, v%d' % (vA + 1, f32(1e-5), vA + 1))
    rnd(vA + 1, vA + 1)
    a('v_sqrt_f32 v%d, v%d' % (vA + 1, vA + 1))
    rnd(vA + 1, vA + 1)
    a('v_rcp_f32 v%d, v%d' % (vA + 1, vA + 1))
    for k in range(8): a('v_sub_f32 v%d, v%d, v%d' % (x + k, x + k, vA))
    for k in range(8): rnd(x + k, x + k)
    for k in range(8): a('v_mul_f32 v%d, v%d, v%d' % (x + k, x + k, vA + 1))
    for k in range(8): a('v_cvt_pk_bf16_f32 v%d, v%d, v%d' % (x + k, x + k, x + k))
    a('v_lshlrev_b32 v10, 5, v1')
    a('ds_write_b128 v10, %s offset:%d' % (vr(x), L_XN))
    a('ds_write_b128 v10, %s offset:%d' % (vr(x + 4), L_XN + 16))
    a('v_mul_u32_u24 v11, 112, v12')
    a('s_mul_i32 s7, s44, 896')
    a('v_add_u32 v11, s7, v11')
    a('s_waitcnt lgkmcnt(0)')
    for z in range(7): a('ds_read_b128 %s, v11 offset:%d' % (vr(vXN + 4 * z), L_XN + 16 * z))
    mktag()
    a('v_and_b32 v10, 7, v1')
    a('v_lshlrev_b32 v10, 6, v10')
    a('v_bfe_u32 v11, v1, 4, 1')
    a('v_lshl_add_u32 v10, v11, 5, v10')
    a('v_lshrrev_b32 v11, 5, v1')
    a('v_lshl_add_u32 v9, v11, 4, v10')
    a('s_lshr_b32 s7, s55, 1')
    a('s_lshl2_add_u32 s7, s3, s7')
    a('s_lshl1_add_u32 s7, s7, s44')
    a('s_and_b32 s45, s55, 1')
    a('s_lshl1_add_u32 s7, s7, s45')
    a('s_lshl_b32 s57, s7, 9')
    a('s_add_u32 s57, s57, 0x%x' % WS_Q)
    a('s_mov_b32 s58, 0x00ff00ff'); a('s_mov_b32 s59, 0x00ff00ff')
    qc = vA + 16
    a('v_mov_b32 v%d, s6' % (vA + 22))
    a('v_mov_b32 v%d, s6' % (vA + 23))
    a('s_waitcnt lgkmcnt(0)')
    stamp(3)
    for n in range(28):
        tb = vA + 4 * (n & 1)
        for r in range(4): a('v_and_b32 v%d, v%d, v%d' % (tb + r, vXN + n, vM + r))
        a('s_waitcnt vmcnt(%d)' % (27 - n))
        a('v_mfma_f32_16x16x32_bf16 %s, %s, %s, %s' % (vr(qc), vr(tb), vr(vWQ + 4 * n), vr(qc) if n else '0'))
    stamp(4)
    for r in range(4): a('v_mov_b32_dpp v%d, v%d row_ror:8 row_mask:0xc bank_mask:0xf' % (qc + r, qc + r))
    a('v_permlane32_swap_b32 v%d, v%d' % (qc, qc + 2))
    a('v_permlane32_swap_b32 v%d, v%d' % (qc + 1, qc + 3))
    a('v_add_f32 v%d, v%d, v%d' % (vA + 20, qc, qc + 2))
    a('v_add_f32 v%d, v%d, v%d' % (vA + 21, qc + 1, qc + 3))
    a('s_mov_b64 exec, s[58:59]')
    a('buffer_store_dwordx4 %s, v9, s[20:23], s57 offen sc1' % vr(vA + 20))
    a('s_mov_b64 exec, -1')
    if c['stamps']:
        a('s_waitcnt vmcnt(0)')
        stamp(5)
    a('s_branch L_aux1')

    a.label('L_fkv')
    a('s_cmp_eq_u32 s3, 7')
    a('s_cbranch_scc1 L_exit')
    a('s_cmp_eq_u32 s5, 7')
    a('s_cbranch_scc0 L_fall')
    for k in range(4): a('v_mov_b32 v%d, 0' % (G0 + k))
    a('v_and_b32 v13, 15, v1')
    a('v_mul_u32_u24 v10, 144, v13')
    a('ds_write_b128 v10, %s offset:%d' % (vr(G0), L_GU + 112))
    a('ds_write_b64 v%d, %s offset:%d' % (G0, vr(G0, 2), L_STAT + 56))
    a('s_waitcnt lgkmcnt(0)')
    a('s_branch L_exit')

    a.label('L_ft')
    a('s_cmp_eq_u32 s3, 7')
    a('s_cbranch_scc1 L_exit')
    a('s_sub_u32 s54, s4, 16')
    a('s_lshl4_add_u32 s54, s3, s54')
    a('v_bfe_u32 v10, v1, 1, 3')
    a('v_lshrrev_b32 v12, 4, v1')
    a('v_lshl_add_u32 v10, v10, 3, v12')
    a('v_mul_u32_u24 v10, 3584, v10')
    a('v_and_b32 v11, 1, v1')
    a('v_lshl_add_u32 v2, v11, 4, v10')
    a('s_and_b32 s7, s5, 1')
    a('s_mul_i32 s44, s7, %d' % (4 * 3584))
    a('s_lshl_b32 s7, s54, 5')
    a('s_add_u32 s44, s44, s7')
    a('s_cmp_ge_u32 s5, 2')
    a('s_cselect_b64 s[24:25], s[28:29], s[24:25]')
    a('s_lshl_b32 s55, s5, 10')
    a('s_add_u32 s55, s55, %d' % L_T)
    colvoff(3, 5)
    a('s_mul_i32 s45, s54, %d' % (16 * 896))
    a('s_add_u32 s46, s45, 7168')
    if c['rot']:
        a('s_and_b32 s7, s4, 3')
        a('s_lshl_b32 s7, s7, 1')
        for i in range(7):
            a('s_mul_i32 s%d, s7, %d' % (56 + i, 64 * 3584))
            a('s_add_u32 s%d, s%d, s44' % (56 + i, 56 + i))
            a('s_lshl_b32 s%d, s7, 12' % (8 + i))
            a('s_add_u32 s%d, s%d, s55' % (8 + i, 8 + i))
            a('s_add_u32 s7, s7, 1')
            a('s_cmp_eq_u32 s7, 7')
            a('s_cselect_b32 s7, 0, s7')
    else:
        for i in range(7):
            a('s_add_u32 s%d, s44, %d' % (56 + i, i * 64 * 3584))
            a('s_add_u32 s%d, s55, %d' % (8 + i, i * 4096))
    if c['fake']:
        a('v_lshrrev_b32 v10, 3, v1')
        a('v_mul_u32_u24 v10, 3584, v10')
        a('v_and_b32 v11, 0x70, v8')
        a('v_add_u32 v2, v10, v11')
        a('s_and_b32 s7, s54, 3')
        a('s_lshl1_add_u32 s7, s7, s5')
        a('s_and_b32 s7, s7, 7')
        a('s_mul_i32 s44, s7, %d' % (56 * 3584))
        a('s_lshr_b32 s7, s54, 2')
        a('s_lshl_b32 s7, s7, 7')
        a('s_add_u32 s44, s44, s7')
        for i in range(7): a('s_add_u32 s%d, s44, %d' % (56 + i, i * 8 * 3584))
    a('s_mov_b32 m0, s8')
    if c['fake'] != 2: a('s_barrier')
    if c['fake'] < 2: a('s_barrier')
    stamp(8)
    for i in range(7):
        a('buffer_load_dwordx4 v2, s[24:27], s%d offen %s lds' % (56 + i, c['gunt']))
        if i < 6: a('s_mov_b32 m0, s%d' % (9 + i))
    for t in range(4):
        a('buffer_load_dwordx4 %s, v3, s[32:35], s%d offen offset:%d %s' % (vr(vW + 4 * t), 45 + (t >> 1), 3584 * (t & 1), c['dnt']))
    if c['fake'] == 2: a('s_barrier')
    if c['fake'] >= 2: a('s_barrier')
    a.label('L_fall')
    vX = 15
    a('v_lshrrev_b32 v12, 4, v1')
    a('v_and_b32 v13, 15, v1')
    a('v_and_b32 v10, 0x70, v8')
    a('v_and_b32 v11, 8, v1')
    a('v_add_u32 v10, v10, v11')
    a('v_lshl_add_u32 v10, v12, 1, v10')
    a('s_lshl_b32 s7, s5, 7')
    a('buffer_load_ushort v%d, v10, s[36:39], s7 offen' % vX)
    a('v_mul_u32_u24 v9, 1920, v12')
    a('v_lshl_add_u32 v9, v13, 4, v9')
    a('s_lshl_b32 s44, s5, 8')
    a('s_add_u32 s44, s44, 0x%x' % WS_H1)
    a('s_add_u32 s45, s44, 7680')
    a('s_lshl_b32 s55, s5, 12')
    a('s_add_u32 s55, s55, %d' % L_T)
    vB, vAX = 80, 96
    if True:
        a('v_lshlrev_b32 v10, 3, v13')
        a('v_lshl_add_u32 v10, v12, 8, v10')
        a('v_add_u32 v10, s55, v10')
        for k in range(8): a('v_mov_b32 v%d, 0x3f803f80' % (vAX + k))
        a('v_and_b32 v14, 0x70, v8')
        a('v_bfe_u32 v11, v1, 3, 1')
        a('v_lshl_add_u32 v14, v11, 8, v14')
        a('v_lshl_add_u32 v14, v12, 7, v14')
        a('v_lshrrev_b32 v11, 5, v1')
        a('s_lshl_b32 s63, s5, 1')
        a('v_add_u32 v11, s63, v11')
        a('v_mul_u32_u24 v28, 144, v13')
        a('v_lshl_add_u32 v28, v11, 3, v28')
        a('v_add_u32 v28, %d, v28' % L_GU)
        a('v_lshlrev_b32 v29, 6, v13')
        a('v_lshl_add_u32 v29, v11, 2, v29')
        a('v_and_b32 v11, 3, v1')
        a('v_lshl_add_u32 v11, v11, 2, v12')
        a('v_mul_u32_u24 v30, 144, v11')
        a('v_bfe_u32 v31, v1, 2, 2')
        a('v_lshl_add_u32 v30, v31, 5, v30')
        a('v_lshlrev_b32 v31, 4, v31')
        a('s_mov_b32 s60, 0xffff'); a('s_mov_b32 s61, 0xffff')
        a('s_cmp_eq_u32 s5, 3')
        a('s_cselect_b32 s58, 0x00ff00ff, -1')
        a('s_mov_b32 s59, 0')
        a('s_mul_i32 s57, s54, 1920')
        a('s_lshl_b32 s63, s5, 9')
        a('s_add_u32 s57, s57, s63')
        a('s_add_u32 s57, s57, 0x%x' % WS_H2)
        a('s_mov_b32 s62, %s' % f32(1.0 / 448))
        a('v_mov_b32 v75, s6')
        a('s_waitcnt vmcnt(0)')
        a('s_barrier')
        stamp(9)
    def fsetup():
        for k in range(4):
            for u in range(2):
                a('ds_read_b64_tr_b16 %s, v10 offset:%d' % (vr(vB + 4 * k + 2 * u, 2), 1024 * k + 128 * u))
        a('v_lshlrev_b32 v%d, 16, v%d' % (vX, vX))
    poll('L_p1', ['buffer_load_dwordx4 %s, v9, s[20:23], s44 offen sc1' % vr(G0),
                  'buffer_load_dwordx4 %s, v9, s[20:23], s45 offen sc1' % vr(G1)],
         [G0 + 3, G1 + 3], between=fsetup)
    stamp(10)
    sum2scatter()
    rnd(G0, G0)
    a('v_add_f32 v%d, v%d, v%d' % (G0, G0, vX))
    rnd(G0 + 1, G0)
    a('v_cvt_pk_bf16_f32 v%d, v%d, 0' % (G0, G0))
    dpp('v_or_b32', G0, G0 + 1, G0, 'quad_perm:[1,1,3,3]')
    DG, DU, DS = 104, 108, 112
    mm = lambda d, aa, bb, cc: a('v_mfma_f32_16x16x32_bf16 %s, %s, %s, %s' % (vr(d), vr(aa), vr(bb), vr(d) if cc else '0'))
    for k in range(8):
        a('v_mov_b32_dpp v%d, v%d row_newbcast:%d row_mask:0xf bank_mask:0x3' % (vAX + k, G0, 2 * k))
    a('s_waitcnt lgkmcnt(0)')
    mm(DS, vAX, vAX, 0); mm(DG, vAX, vB, 0); mm(DU, vAX, vB + 8, 0)
    mm(DS, vAX + 4, vAX + 4, 1); mm(DG, vAX + 4, vB + 4, 1); mm(DU, vAX + 4, vB + 12, 1)
    a('s_mov_b64 exec, s[60:61]')
    a('ds_write_b32 v29, v%d offset:%d' % (DS, L_STAT))
    a('ds_write2_b32 v28, v%d, v%d offset0:0 offset1:1' % (DG, DU))
    a('s_mov_b64 exec, -1')
    a('s_waitcnt lgkmcnt(0)')
    a('s_barrier')
    a('s_cmp_ge_u32 s5, 4')
    a('s_cbranch_scc1 L_exit')
    R0, R1, R2 = 16, 20, 24
    a('ds_read_b128 %s, v31 offset:%d' % (vr(R2), L_STAT))
    a('ds_read_b128 %s, v30 offset:%d' % (vr(R0), L_GU))
    a('ds_read_b128 %s, v30 offset:%d' % (vr(R1), L_GU + 16))
    k0 = 2 * math.sqrt(2 / math.pi) * math.log2(math.e)
    a('v_mov_b32 v32, %s' % f32(-k0))
    a('s_mov_b32 s63, %s' % f32(-k0 * 0.044715))
    a('s_waitcnt lgkmcnt(0)')
    stamp(11)
    S2, S1 = R2, R2 + 1
    a('v_add_f32 v%d, v%d, v%d' % (S1, S1, S1 + 2))
    a('v_add_f32 v%d, v%d, v%d' % (S2, S2, S2 + 2))
    a('v_add_f32 v%d, v%d, v%d' % (R0, R0, R1))
    dpp('v_add_f32', S1, S1, S1, 'row_ror:4')
    dpp('v_add_f32', S2, S2, S2, 'row_ror:4')
    a('v_add_f32 v%d, v%d, v%d' % (R0 + 1, R0 + 1, R1 + 1))
    dpp('v_add_f32', S1, S1, S1, 'row_ror:8')
    dpp('v_add_f32', S2, S2, S2, 'row_ror:8')
    a('v_mul_f32 v%d, s62, v%d' % (S1, S1))
    a('v_mul_f32 v%d, s62, v%d' % (S2, S2))
    a('v_fma_f32 v%d, -v%d, v%d, v%d' % (S2, S1, S1, S2))
    a('v_add_f32 v%d, v%d, v%d' % (R0 + 2, R0 + 2, R1 + 2))
    a('v_max_f32 v%d, 0, v%d' % (S2, S2))
    a('v_add_f32 v%d, v%d, v%d' % (R0 + 3, R0 + 3, R1 + 3))
    rnd(S2, S2)
    rnd(S1, S1)
    a('v_add_f32 v%d, %s, v%d' % (S2, f32(1e-5), S2))
    a('v_fma_f32 v%d, -v%d, v%d, v%d' % (R0, S1, R0 + 2, R0))
    rnd(S2, S2)
    a('v_fma_f32 v%d, -v%d, v%d, v%d' % (R0 + 1, S1, R0 + 3, R0 + 1))
    a('v_sqrt_f32 v%d, v%d' % (S2, S2))
    dpp('v_add_f32', R0, R0, R0, 'row_ror:4')
    dpp('v_add_f32', R0 + 1, R0 + 1, R0 + 1, 'row_ror:4')
    rnd(S2, S2)
    dpp('v_add_f32', R0, R0, R0, 'row_ror:8')
    a('v_rcp_f32 v%d, v%d' % (S2, S2))
    dpp('v_add_f32', R0 + 1, R0 + 1, R0 + 1, 'row_ror:8')
    a('v_mul_f32 v%d, v%d, v%d' % (R0, R0, S2))
    a('v_mul_f32 v%d, v%d, v%d' % (R0 + 1, R0 + 1, S2))
    rnd(R0, R0)
    rnd(R0 + 1, R0 + 1)
    a('v_mul_f32 v%d, v%d, v%d' % (R1, R0, R0))
    a('v_fmac_f32 v32, s63, v%d' % R1)
    a('v_mul_f32 v%d, v32, v%d' % (R1, R0))
    a('v_exp_f32 v%d, v%d' % (R1, R1))
    a('v_add_f32 v%d, 1.0, v%d' % (R1, R1))
    a('v_rcp_f32 v%d, v%d' % (R1, R1))
    a('v_mul_f32 v%d, v%d, v%d' % (R0, R0, R1))
    rnd(R0, R0)
    a('v_mul_f32 v%d, v%d, v%d' % (R0, R0, R0 + 1))
    a('v_cvt_pk_bf16_f32 v%d, v%d, v%d' % (R0, R0, R0))
    rowmm(R0, [(vC0, vW)])
    a('s_mov_b64 exec, s[58:59]')
    pack24(72, vC0)
    a('buffer_store_dwordx4 v[72:75], v14, s[20:23], s57 offen sc1')
    stamp(12)
    a.label('L_exit')
    if c['stamps']:
        stamp(14)
        a('s_waitcnt vmcnt(0)')
        stamp(15)
        a('s_mov_b64 exec, 1')
        a('s_lshl3_add_u32 s7, s2, s5')
        a('s_lshl_b32 s7, s7, 6')
        a('s_add_u32 s7, s7, 0x%x' % WS_ST)
        a('s_waitcnt lgkmcnt(0)')
        for k in range(16): a('v_mov_b32 v%d, s%d' % (16 + k, 64 + 2 * k))
        for k in range(4): a('buffer_store_dwordx4 %s, off, s[20:23], s7 offset:%d' % (vr(16 + 4 * k), 16 * k))
    a.label('L_end')
    a('s_endpgm')
    for name, loads in retry:
        a.label(name + '_retry')
        a('s_add_u32 s7, s7, 1')
        a('s_cmp_ge_u32 s7, %d' % SPIN)
        a('s_cbranch_scc1 %s_ok' % name)
        for t in loads: a(t)
        a('s_waitcnt vmcnt(0)')
        a('s_branch %s_chk' % name)
    a.label('L_last')
    a('s_endpgm')

    ref = open(os.path.join(os.path.dirname(os.path.abspath(__file__)), 'header.txt')).read()
    head = ref + '; @launch grid=(256,1,1) block=(512,1,1) lds=%d\n' % LDS_BYTES
    head += '.amdgcn_target "amdgcn-amd-amdhsa--gfx950"\n.text\n.globl {N}_kernel\n.p2align 8\n.type {N}_kernel,@function\n{N}_kernel:\n'.replace('{N}', NAME)
    foot = """.section .rodata,"a"
.p2align 6
.amdhsa_kernel {N}_kernel
  .amdhsa_next_free_vgpr 224
  .amdhsa_next_free_sgpr 102
  .amdhsa_accum_offset 224
  .amdhsa_group_segment_fixed_size 0
  .amdhsa_kernarg_size 96
  .amdhsa_float_denorm_mode_32 3
  .amdhsa_user_sgpr_count 2
  .amdhsa_user_sgpr_kernarg_segment_ptr 1
  .amdhsa_system_sgpr_workgroup_id_x 1
.end_amdhsa_kernel
""".replace('{N}', NAME)
    return head + a.text() + foot

if __name__ == '__main__':
    out = sys.argv[1] if len(sys.argv) > 1 else 'cdna_kernels/%s.s' % NAME
    kw = eval('dict(%s)' % sys.argv[2]) if len(sys.argv) > 2 else {}
    open(out, 'w').write(gen(**kw))
```

```python
import sys, os, struct, math
sys.path.insert(0, os.path.dirname(os.path.abspath(__file__)))
from emit import Asm

NAME = 'sequential_preLN__sliding_block_cached__geglu_ffn__decode'

WS_X = 0x1000
WS_L = 0x2000
WS_Q = 0x4000
BLK = 4096 + 128
WS_H0 = 0x20000
GXS = 1024 + 128
WS_GX = 0xC0000
HS = 1920
WS_H1 = 0x100000
WS_H2 = 0x110000
WS_ST = 0x200000

L_QL = 0
L_S = 1024
L_P = 2048
L_XN = 6400
L_WT = 8448
L_FLAG = 8576
L_GATE = 8592
L_STAT = 8704
L_RED = 9728
L_T = 14848
LDS_BYTES = L_T + 8 * 4096

SPIN = 20000

def f32(x):
    return '0x%08x' % struct.unpack('<I', struct.pack('<f', x))[0]

def vr(a, n=4):
    return 'v[%d:%d]' % (a, a + n - 1)

DEF = dict(depth=6, va=8, vq=(2, 2, 1, 1), vs=(1, 1), pvd=6, qhold=0, stamps=None, rs=1, rg=0, pf=True,
           touch=True, force_sc1=False, probe=None, gq=16, gl=4)

def gen(**kw):
    c = dict(DEF); c.update(kw)
    a = Asm()
    D = c['depth']
    diag = bool(c['stamps'])
    def stamp(k):
        if diag: a('%s s[%d:%d]' % (c['stamps'], 64 + 2 * k, 65 + 2 * k))
    def leave():
        a('s_branch L_exit' if diag else 's_endpgm')
    nlab = [0]
    def leave_if(cond):
        if diag:
            a('s_cbranch_%s L_exit' % cond)
        else:
            nlab[0] += 1
            a('s_cbranch_%s L_stay%d' % ('scc1' if cond == 'scc0' else 'scc0', nlab[0]))
            h = list(a.hist)
            a('s_endpgm')
            a.hist = h
            a.label('L_stay%d' % nlab[0])
    def srd(base, size):
        a('s_mov_b32 s%d, 0x%x' % (base + 2, size))
        a('s_mov_b32 s%d, 0x20000' % (base + 3))
    def mktag():
        a('s_mul_i32 s6, s6, 0x9e3779b1')
        a('s_add_u32 s6, s6, 0x7f4a7c15')
    def rnd(d, s):
        a('v_cvt_pk_bf16_f32 v%d, 0, v%d' % (d, s))
    QP1, QP2 = 'quad_perm:[1,0,3,2]', 'quad_perm:[2,3,0,1]'
    FULL = 'row_mask:0xf bank_mask:0xf'
    def dpp(op, d, s0, s1, ctl, mask=FULL):
        a('%s_dpp v%d, v%d, v%d %s %s' % (op, d, s0, s1, ctl, mask))
    def mfma(d, x, y, acc):
        a('v_mfma_f32_16x16x32_bf16 %s, %s, %s, %s' % (vr(d), vr(x), vr(y), vr(d) if acc else '0'))
    def pkadd(d, x, y):
        a('v_pk_add_f32 %s, %s, %s' % (vr(d, 2), vr(x, 2), vr(y, 2)))
    def masks():
        a('v_and_b32 v10, 1, v1')
        a('v_lshlrev_b32 v10, 4, v10')
        a('s_mov_b32 s7, 0xffff')
        a('v_lshlrev_b32_e64 v10, v10, s7')
        a('v_bfe_u32 v11, v1, 1, 2')
        for r in range(4):
            a('v_cmp_eq_u32 vcc, %d, v11' % r)
            a('v_cndmask_b32 v%d, 0, v10, vcc' % (vM + r))
    def pack24(d, s):
        for k in range(3):
            a('v_perm_b32 v%d, v%d, v%d, s%d' % (d + k, s + k, s + 3, sPK + k))
    def unpackn(gs):
        for g in gs: a('v_perm_b32 v%d, v%d, v%d, s%d' % (g + 3, g + 1, g, sUP))
        for g in gs: a('v_perm_b32 v%d, v%d, v%d, s%d' % (g + 3, g + 2, g + 3, sUP + 1))
    def scatter4(g):
        a('v_permlane32_swap_b32 v%d, v%d' % (g, g + 2))
        a('v_permlane32_swap_b32 v%d, v%d' % (g + 1, g + 3))
        pkadd(g, g, g + 2)
        a('v_permlane16_swap_b32 v%d, v%d' % (g, g + 1))
        a('v_add_f32 v%d, v%d, v%d' % (g, g, g + 1))
        dpp('v_add_f32', g, g, g, 'row_ror:8')
    def sum2scatter():
        unpackn([G0, G1])
        pkadd(G0, G0, G1); pkadd(G0 + 2, G0 + 2, G1 + 2)
        scatter4(G0)
    def vec32(d, s, banks):
        rnd(s + 1, s)
        a('v_cvt_pk_bf16_f32 v%d, v%d, 0' % (s, s))
        dpp('v_or_b32', s, s + 1, s, 'quad_perm:[1,1,3,3]')
        for k in range(4):
            a('v_mov_b32_dpp v%d, v%d row_newbcast:%d row_mask:0xf bank_mask:0x%x' % (d + k, s, 2 * k, banks))
    retry = []
    def poll(name, loads, tags, between=None, wait='vmcnt(0)'):
        a('s_mov_b32 s7, 0')
        for t in loads: a(t)
        if between: between()
        a('s_waitcnt ' + wait)
        a.label(name + '_chk')
        a('v_cmp_ne_u32 vcc, s6, v%d' % tags[0])
        if len(tags) > 1:
            for i, t in enumerate(tags[1:]):
                a('v_cmp_ne_u32_e64 s[%d:%d], s6, v%d' % (96 + 2 * i, 97 + 2 * i, t))
            for i, t in enumerate(tags[1:]):
                a('s_or_b64 s[62:63], %s, s[%d:%d]' % ('s[62:63]' if i else 'vcc', 96 + 2 * i, 97 + 2 * i))
            a('s_cbranch_scc1 %s_retry' % name)
        else:
            a('s_cbranch_vccnz %s_retry' % name)
        a.label(name + '_ok')
        retry.append((name, loads))
    def flush_retry():
        for name, loads in retry:
            a.label(name + '_retry')
            for i, t in enumerate(loads):
                a('s_mov_b64 exec, %s' % ('s[%d:%d]' % (94 + 2 * i, 95 + 2 * i) if i else 'vcc'))
                a(t)
            a('s_mov_b64 exec, -1')
            a('s_add_u32 s7, s7, 1')
            a('s_cmp_ge_u32 s7, %d' % SPIN)
            a('s_waitcnt vmcnt(0)')
            a('s_cbranch_scc0 %s_chk' % name)
            a('s_branch %s_ok' % name)
        del retry[:]
    def common(x=True):
        if x:
            a('s_load_dwordx2 s[36:37], s[0:1], 0')
            srd(36, 896)
        a('s_load_dwordx2 s[24:25], s[0:1], 48')
        a('s_load_dwordx2 s[28:29], s[0:1], 56')
        a('s_load_dwordx2 s[32:33], s[0:1], 64')
        a('s_load_dwordx2 s[40:41], s[0:1], 72')
        srd(20, 1 << 28)
        srd(24, 448 * 3584)
        srd(32, 1792 * 896)
        srd(40, 896)
        for k in range(3):
            a('s_mov_b32 s%d, 0x0706050%d' % (sPK + k, 1 + k))
        a('s_mov_b32 s%d, 0x0c04000c' % sUP)
        a('s_mov_b32 s%d, 0x04020100' % (sUP + 1))
        masks()
        a('v_lshlrev_b32 v8, 4, v1')
    def readflag():
        a('v_mov_b32 v3, 0')
        a('ds_read_b32 v3, v3 offset:%d' % L_FLAG)
    def gate_open(k):
        a('ds_write_b32 v221, v220 offset:%d' % (L_GATE + 16 * k))
    def gate_wait(k):
        a('s_lshl_b32 s7, s5, 2')
        a('v_mov_b32 v45, s7')
        a.label('L_gate%d' % k)
        a('ds_read_b32 v46, v45 offset:%d' % (L_GATE + 16 * k))
        a('s_waitcnt lgkmcnt(0)')
        a('v_cmp_ne_u32 vcc, s6, v46')
        a('s_cbranch_vccnz L_gate%d' % k)
    def store2(data, voff, soff):
        a('s_mov_b64 exec, s[58:59]')
        a('buffer_store_dwordx4 %s, v%d, s[20:23], s%d offen' % (vr(data), voff, soff))
        a('s_mov_b64 exec, s[60:61]')
        a('buffer_store_dwordx4 %s, v%d, s[20:23], s%d offen sc1' % (vr(data), voff, soff))
        a('s_mov_b64 exec, -1')
    def dma_voff(rowexpr_pitch):
        a('v_bfe_u32 v11, v1, 3, 2')
        a('v_lshlrev_b32 v11, 1, v11')
        a('v_xor_b32 v11, v11, v1')
        a('v_and_b32 v11, 7, v11')
        a('v_mul_u32_u24 v10, %d, v10' % rowexpr_pitch)
        a('v_lshl_add_u32 v2, v11, 4, v10')
    def tr_addr():
        a('v_bfe_u32 v10, v1, 2, 2')
        a('v_mul_u32_u24 v10, 160, v10')
        a('v_and_b32 v11, 3, v1')
        a('v_lshl_add_u32 v10, v11, 3, v10')
        a('v_lshrrev_b32 v11, 4, v1')
        a('v_lshl_add_u32 v10, v11, 10, v10')
        a('v_lshl_add_u32 v32, s5, 12, v10')
        for t in range(1, 4): a('v_xor_b32 v%d, %d, v32' % (32 + t, 32 * t))
    def tr_read():
        for t in range(4):
            for u in range(2):
                a('ds_read_b64_tr_b16 %s, v%d offset:%d' % (vr(vB + 4 * t + 2 * u, 2), 32 + t, L_T + 512 * u))
    def line_voff():
        a('v_lshrrev_b32 v10, 3, v1')
        a('v_mul_u32_u24 v10, %d, v10' % HS)
        a('v_and_b32 v11, 0x70, v8')
        a('v_add_u32 v9, v10, v11')
        a('v_lshrrev_b32 v10, 4, v1')
        a('v_lshl_add_u32 v12, v10, 1, v11')
    def line_soff(sl):
        a('s_lshl_b32 s44, s%d, 7' % sl)
        a('s_add_u32 s44, s44, 0x%x' % WS_H1)
        a('s_add_u32 s45, s44, %d' % (8 * HS))
        a('s_lshr_b32 s46, s%d, 1' % sl)
        a('s_lshl_b32 s46, s46, 7')
        a('s_and_b32 s7, s%d, 1' % sl)
        a('s_lshl3_add_u32 s46, s7, s46')
    def softmax_head(r):
        mx, t1, ls = r + 4, r + 5, r + 6
        a('v_max3_f32 v%d, v%d, v%d, v%d' % (mx, r, r + 1, r + 2))
        a('v_max_f32 v%d, v%d, v%d' % (mx, mx, r + 3))
        allred32('v_max_f32', mx, t1)
        a('v_mul_f32 v%d, s53, v%d' % (mx, mx))
        for k in range(4): a('v_fma_f32 v%d, v%d, s53, -v%d' % (r + k, r + k, mx))
        for k in range(4): a('v_exp_f32 v%d, v%d' % (r + k, r + k))
        a('v_add_f32 v%d, v%d, v%d' % (ls, r, r + 1))
        a('v_add_f32 v%d, v%d, v%d' % (t1, r + 2, r + 3))
        a('v_add_f32 v%d, v%d, v%d' % (ls, ls, t1))
        allred32('v_add_f32', ls, t1)
    def allred32(op, r, t1):
        for ctl in (QP1, QP2, 'row_half_mirror', 'row_mirror'): dpp(op, r, r, r, ctl)
        a('v_mov_b32 v%d, v%d' % (t1, r))
        a('v_permlane16_swap_b32 v%d, v%d' % (r, t1))
        a('%s v%d, v%d, v%d' % (op, r, r, t1))

    vM = 4
    vKO = 2
    vK, vV, vQ, vW = 16, 80, 144, 176
    vA = 192
    vP = 16
    vT = 48
    vC0, vC1 = 64, 68
    G0, G1, G2, G3 = 16, 20, 24, 28
    vB, vAX, vD = 80, 96, 100
    sPK, sUP = 48, 51
    SC = f32(math.log2(math.e) / 16)

    if diag:
        for k in range(1, 15): a('s_mov_b32 s%d, 0' % (64 + 2 * k))
    stamp(0)
    a('s_cmp_ge_u32 s2, 256')
    a('s_cbranch_scc1 L_end')
    a('s_load_dwordx2 s[8:9], s[0:1], 8')
    a('s_load_dwordx2 s[20:21], s[0:1], 88')
    a('v_lshrrev_b32 v3, 6, v0')
    a('v_and_b32 v1, 63, v0')
    a('s_and_b32 s3, s2, 7')
    a('v_readfirstlane_b32 s5, v3')
    a('s_lshr_b32 s4, s2, 3')
    a('s_cmp_ge_u32 s5, 4')
    a('s_cbranch_scc0 L_aux0')

    a('s_load_dwordx2 s[12:13], s[0:1], 16')
    a('v_and_b32 v10, 7, v1')
    a('v_lshrrev_b32 v11, 3, v1')
    a('v_lshlrev_b32 v10, 4, v10')
    a('v_lshl_add_u32 v%d, v11, 9, v10' % vKO)
    srd(8, 1 << 26)
    a('s_lshl_b32 s7, s3, 7')
    a('s_add_u32 s7, s7, s4')
    a('s_add_u32 s7, s7, 96')
    a('s_lshl_b32 s44, s7, 4')
    if c['rs'] == 1 and not c['rg']:
        a('s_and_b32 s7, s4, 15')
    else:
        a('s_mul_i32 s7, s4, %d' % c['rs'])
        a('s_mul_i32 s45, s3, %d' % c['rg'])
        a('s_add_u32 s7, s7, s45')
        a('s_and_b32 s7, s7, 15')
    a('s_or_b32 s44, s44, s7')
    a('s_sub_u32 s55, s5, 4')
    a('s_xor_b32 s45, s44, s55')
    a('s_lshl_b32 s45, s45, 12')
    a('s_cmp_ge_u32 s4, 16')
    a('s_cbranch_scc0 L_kv1')
    a('s_barrier')
    a.label('L_kv1')
    a('s_waitcnt lgkmcnt(0)')
    stamp(1)
    nk = [0]
    def throttle():
        if nk[0] >= D: a('s_waitcnt vmcnt(%d)' % (D - 1))
        nk[0] += 1
    for idx in range(16):
        i, t = idx >> 2, idx & 3
        if t == 0 and i > 0: a('s_xor_b32 s45, s45, 0x%x' % ((i ^ (i - 1)) << 14))
        throttle()
        a('buffer_load_dwordx4 %s, v%d, s[8:11], s45 offen offset:%d nt' % (vr(vK + 4 * idx), vKO, 128 * t))
        if c['qhold'] and idx == c['qhold'] - 1:
            a('s_cmp_ge_u32 s4, 16')
            a('s_cbranch_scc0 L_kv2')
            a('s_barrier')
            a.label('L_kv2')
        if idx == D - 1:
            a('s_load_dword s6, s[20:21], 0')
            srd(12, 1 << 26)
            common()
            a('s_lshl_b32 s44, s44, 12')
            a('s_lshl_b32 s7, s55, 7')
            a('s_add_u32 s44, s44, s7')
            for k in range(8): a('v_mov_b32 v%d, 0' % (vA + 8 + k))
            a('v_bfe_u32 v10, v1, 2, 1')
            a('v_lshlrev_b32 v10, 9, v10')
            a('v_lshrrev_b32 v12, 4, v1')
            a('v_lshl_add_u32 v10, v12, 7, v10')
            a('v_and_b32 v11, 3, v1')
            a('v_lshl_add_u32 v10, v11, 5, v10')
            a('v_bfe_u32 v11, v1, 3, 1')
            a('v_lshl_add_u32 v10, v11, 2, v10')
            a('v_lshl_add_u32 v13, s55, 3, v10')
            a('s_mul_i32 s7, s55, 1056')
            a('v_lshrrev_b32 v14, 5, v1')
            a('v_lshl_add_u32 v14, v14, 4, v8')
            a('v_add_u32 v14, s7, v14')
            a('v_mul_u32_u24 v15, 528, v11')
            a('v_lshl_add_u32 v15, v12, 7, v15')
            a('v_add_u32 v15, s7, v15')
            a('v_lshrrev_b32 v10, 5, v1')
            a('v_bfe_u32 v11, v1, 2, 1')
            a('v_lshl_add_u32 v10, v10, 3, v11')
            a('v_mul_u32_u24 v10, %d, v10' % BLK)
            a('v_and_b32 v11, 3, v1')
            a('v_lshl_add_u32 v10, v11, 4, v10')
            a('v_bfe_u32 v11, v1, 4, 1')
            a('v_lshl_add_u32 v9, v11, 6, v10')
            a('s_lshl3_add_u32 s7, s3, s55')
            a('s_mul_i32 s57, s7, %d' % (2 * BLK))
            a('s_lshl_b32 s7, s4, 7')
            a('s_add_u32 s57, s57, s7')
            a('s_add_u32 s57, s57, 0x%x' % WS_H0)
            a('v_and_b32 v11, 0x70, v8')
            a('s_mov_b32 s58, 0xaaaaaaaa'); a('s_mov_b32 s59, 0xaaaaaaaa')
            a('s_mov_b32 s60, 0xcccccccc'); a('s_mov_b32 s61, 0xcccccccc')
            a('s_mov_b32 s53, %s' % SC)
            a('v_lshlrev_b32_e64 v221, 2, s55')
            a('s_waitcnt lgkmcnt(0)')
            mktag()
            a('v_mov_b32 v220, s6')
        if c['gq'] == idx + 1: gate_open(0)
    stamp(2)
    nv = [0]
    def vload(thr=False):
        if nv[0] >= 16: return
        n = nv[0]; nv[0] += 1
        if n > 0: a('s_xor_b32 s44, s44, 0x%x' % ((n ^ (n - 1)) << 12))
        if thr: throttle()
        a('buffer_load_dwordx4 %s, v%d, s[12:15], s44 offen nt' % (vr(vV + 4 * n), vKO))
        if c['gq'] == n + 17: gate_open(0)
    assert c['gq'] == 0 or D <= c['gq'] <= 16 + c['va']
    for _ in range(c['va']): vload(True)
    stamp(3)
    a('s_barrier')
    for h in range(2):
        for t in range(4):
            a('ds_read_b128 %s, v11 offset:%d' % (vr(vQ + 16 * h + 4 * t), L_QL + 512 * h + 128 * t))
    readflag()
    a('s_waitcnt lgkmcnt(0)')
    stamp(4)
    a('v_readfirstlane_b32 s47, v3')
    acc = lambda i, h: vA + 8 + 4 * h + i
    for i in range(4):
        need = nv[0] + 12 - 4 * i
        if need < D + nv[0] - c['va']: a('s_waitcnt vmcnt(%d)' % need)
        for t in range(4):
            for d in range(4):
                for h in range(2):
                    a('v_dot2c_f32_bf16 v%d, v%d, v%d' % (acc(i, h), vK + 16 * i + 4 * t + d, vQ + 16 * h + 4 * t + d))
        for _ in range(c['vq'][i]): vload()
    X = acc(0, 0)
    for i in range(4): dpp('v_add_f32', X + i, X + i, X + i, 'row_half_mirror', 'row_mask:0xf bank_mask:0x5')
    for i in range(4): dpp('v_add_f32', X + i, X + 4 + i, X + 4 + i, 'row_half_mirror', 'row_mask:0xf bank_mask:0xa')
    for i in range(4): dpp('v_add_f32', X + i, X + i, X + i, QP1)
    a('v_cndmask_b32_e64 v%d, v%d, v%d, s[58:59]' % (X, X, X + 1))
    a('v_cndmask_b32_e64 v%d, v%d, v%d, s[58:59]' % (X + 2, X + 2, X + 3))
    dpp('v_add_f32', X, X, X, QP2)
    dpp('v_add_f32', X + 2, X + 2, X + 2, QP2)
    a('v_cndmask_b32_e64 v%d, v%d, v%d, s[60:61]' % (X, X, X + 2))
    rnd(X, X)
    a('ds_write_b32 v13, v%d offset:%d' % (X, L_S))
    a('s_waitcnt lgkmcnt(0)')
    a('s_barrier')
    a('ds_read_b128 %s, v8 offset:%d' % (vr(vA), L_S))
    for _ in range(c['vs'][0]): vload()
    a('s_and_b32 s58, s47, 0x00ff00ff'); a('s_mov_b32 s59, s58')
    a('s_andn2_b32 s60, 0x00ff00ff, s47'); a('s_mov_b32 s61, s60')
    for k in range(8): a('v_mov_b32 v%d, 0' % (vC0 + k))
    a('v_mov_b32 v75, s6')
    a('s_waitcnt lgkmcnt(0)')
    stamp(5)
    softmax_head(vA)
    a('v_rcp_f32 v%d, v%d' % (vA + 5, vA + 6))
    for k in range(4): a('v_mul_f32 v%d, v%d, v%d' % (vA + k, vA + k, vA + 5))
    for k in range(4): a('v_cvt_pk_bf16_f32 v%d, v%d, v%d' % (vA + k, vA + k, vA + k))
    a('ds_write_b128 v14, %s offset:%d' % (vr(vA), L_P))
    for _ in range(c['vs'][1]): vload()
    a('s_waitcnt lgkmcnt(0)')
    for z in range(8): a('ds_read_b128 %s, v15 offset:%d' % (vr(vP + 4 * z), L_P + 16 * z))
    a('s_cmp_ge_u32 s4, 7')
    a('s_cselect_b32 s54, 1, 0')
    a('s_lshl1_add_u32 s7, s3, s54')
    a('s_lshl3_add_u32 s7, s7, s5')
    a('s_mul_i32 s56, s7, %d' % BLK)
    a('s_add_u32 s56, s56, 0x%x' % WS_H0)
    a('s_waitcnt lgkmcnt(0)')
    stamp(6)
    for n in range(16):
        tb = vT + 8 * (n & 1)
        for kl in range(2):
            for r in range(4):
                a('v_and_b32 v%d, v%d, v%d' % (tb + 4 * kl + r, vP + 2 * n + kl, vM + r))
        a('s_waitcnt vmcnt(%d)' % (nv[0] - 1 - n))
        while nv[0] < 16 and nv[0] - 1 - n < c['pvd']: vload()
        mfma(vC0, tb, vV + 4 * n, 1)
        mfma(vC1, tb + 4, vV + 4 * n, 1)
        if c['gl'] == n + 1: gate_open(1)
    stamp(7)
    for r in (3, 0, 1, 2): dpp('v_add_f32', vC0 + r, vC1 + r, vC0 + r, 'row_ror:8')
    pack24(72, vC0)
    store2(72, 9, 57)
    a('s_cmp_ge_u32 s4, 14')
    a('s_cbranch_scc1 L_ft0')

    a.label('L_wt')
    a('s_barrier')
    stamp(8)
    WT = 36
    def wsetup():
        a('v_lshrrev_b32 v10, 3, v1')
        a('v_lshlrev_b32 v10, 4, v10')
        a('ds_read_b128 %s, v10 offset:%d' % (vr(WT), L_WT))
        tr_addr()
        tr_read()
        a('v_mul_u32_u24 v13, 144, v11')
        a('v_lshl_add_u32 v13, s5, 4, v13')
        a('v_lshrrev_b32 v10, 2, v1')
        a('v_mul_u32_u24 v14, 144, v10')
        a('v_and_b32 v11, 3, v1')
        a('v_lshl_add_u32 v14, v11, 5, v14')
        a('v_and_b32 v11, 1, v10')
        a('v_lshrrev_b32 v10, 1, v10')
        a('v_lshlrev_b32 v10, 4, v10')
        a('v_lshl_add_u32 v12, v11, 7, v10')
        a('s_lshl1_add_u32 s44, s3, s54')
        a('s_mul_i32 s44, s44, %d' % HS)
        a('s_mul_i32 s45, s54, 7')
        a('s_sub_u32 s45, s4, s45')
        a('s_lshl_b32 s45, s45, 8')
        a('s_add_u32 s44, s44, s45')
        a('s_add_u32 s44, s44, 0x%x' % WS_H1)
        a('s_mov_b32 s58, 0x00010001'); a('s_mov_b32 s59, 0x00010001')
        a('s_mov_b32 s60, 0x11111111'); a('s_mov_b32 s61, 0x11111111')
        a('v_mov_b32 v75, s6')
    poll('L_p0', ['buffer_load_dwordx4 %s, v8, s[20:23], s56 offen offset:%d sc1' % (vr(G0 + 4 * k), 1024 * k) for k in range(4)],
         [G0 + 3, G1 + 3, G2 + 3, G3 + 3], between=wsetup, wait='vmcnt(0) lgkmcnt(0)')
    stamp(9)
    unpackn([G0, G1, G2, G3])
    for k in range(4):
        w, hi = WT + (k & 2), k & 1
        for p in (0, 2):
            if k == 0:
                a('v_pk_mul_f32 %s, %s, %s op_sel:[0,0] op_sel_hi:[1,0]' % (vr(G0 + p, 2), vr(G0 + p, 2), vr(w, 2)))
            else:
                a('v_pk_fma_f32 %s, %s, %s, %s op_sel:[0,%d,0] op_sel_hi:[1,%d,1]' % (vr(G0 + p, 2), vr(G0 + 4 * k + p, 2), vr(w, 2), vr(G0 + p, 2), hi, hi))
    scatter4(G0)
    vec32(vAX, G0, 0xf)
    for t in range(4): mfma(vD + 4 * t, vB + 4 * t, vAX, 0)
    a('s_mov_b64 exec, s[58:59]')
    for t in range(4): a('ds_write_b128 v13, %s offset:%d' % (vr(vD + 4 * t), L_RED + 576 * t))
    a('s_mov_b64 exec, -1')
    a('s_cmp_eq_u32 s5, 0')
    a('s_waitcnt lgkmcnt(0)')
    stamp(10)
    a('s_barrier')
    leave_if('scc0')
    a('ds_read_b128 %s, v14 offset:%d' % (vr(G0), L_RED))
    a('ds_read_b128 %s, v14 offset:%d' % (vr(G1), L_RED + 16))
    a('s_waitcnt lgkmcnt(0)')
    pkadd(G0, G0, G1); pkadd(G0 + 2, G0 + 2, G1 + 2)
    for ctl in (QP1, QP2):
        for k in range(4): dpp('v_add_f32', G0 + k, G0 + k, G0 + k, ctl)
    a('s_mov_b64 exec, s[60:61]')
    pack24(72, G0)
    a('buffer_store_dwordx4 v[72:75], v12, s[20:23], s44 offen sc1')
    stamp(12)
    leave()
    flush_retry()

    a.label('L_ft0')
    a('s_cmp_eq_u32 s3, 7')
    leave_if('scc1')
    a('s_cmp_ge_u32 s4, 16')
    a('s_cbranch_scc1 L_fkv')
    a.label('L_fin')
    a('s_barrier')
    a('s_sub_u32 s54, s4, 14')
    a('s_lshl1_add_u32 s54, s3, s54')
    line_voff()
    a('v_and_b32 v13, 7, v1')
    a('v_lshl_add_u32 v14, v10, 3, v13')
    a('v_mul_u32_u24 v14, 48, v14')
    a('v_lshl_add_u32 v10, s5, 2, v14')
    a('s_cmp_eq_u32 s5, 7')
    a('s_cbranch_scc1 L_fin7')
    a('s_lshl_b32 s44, s54, 7')
    a('s_mul_i32 s7, s5, %d' % (16 * HS))
    a('s_add_u32 s44, s44, s7')
    a('s_add_u32 s44, s44, 0x%x' % WS_H2)
    a('s_add_u32 s45, s44, %d' % (8 * HS))
    two = ['buffer_load_dwordx4 %s, v9, s[20:23], s44 offen sc1' % vr(G0),
           'buffer_load_dwordx4 %s, v9, s[20:23], s45 offen sc1' % vr(G1)]
    poll('L_p2', two, [G0 + 3, G1 + 3])
    stamp(13)
    sum2scatter()
    a('ds_write_b32 v10, v%d offset:%d' % (G0, L_RED))
    a('s_waitcnt lgkmcnt(0)')
    a('s_barrier')
    leave()
    flush_retry()

    a.label('L_fin7')
    a('v_mov_b32 v11, 0')
    a('ds_write_b32 v10, v11 offset:%d' % L_RED)
    line_soff(54)
    a('v_bfe_u32 v11, v1, 3, 1')
    a('v_lshl_add_u32 v14, v11, 4, v14')
    a('s_mov_b32 s58, 0x00ff00ff'); a('s_mov_b32 s59, 0x00ff00ff')
    a('buffer_load_ushort v15, v12, s[36:39], s46 offen')
    poll('L_p3', two, [G0 + 3, G1 + 3])
    stamp(10)
    sum2scatter()
    a('v_lshlrev_b32 v15, 16, v15')
    rnd(G0, G0)
    a('v_add_f32 v15, v%d, v15' % G0)
    rnd(15, 15)
    a('v_mov_b32 v10, s6')
    a('s_cmp_eq_u32 s54, 0')
    a('s_cselect_b64 s[60:61], 1, 0')
    a('s_waitcnt lgkmcnt(0)')
    a('s_barrier')
    a('ds_read_b128 %s, v14 offset:%d' % (vr(G0), L_RED))
    a('s_waitcnt lgkmcnt(0)')
    stamp(13)
    pkadd(G0, G0, G0 + 2)
    a('v_add_f32 v%d, v%d, v%d' % (G0, G0, G0 + 1))
    dpp('v_add_f32', G0, G0, G0, 'row_ror:8')
    rnd(G0, G0)
    a('v_add_f32 v%d, v%d, v15' % (G0, G0))
    a('v_cvt_pk_bf16_f32 v%d, v%d, v%d' % (G0, G0, G0))
    a('s_mov_b64 exec, s[58:59]')
    a('buffer_store_short v%d, v12, s[40:43], s46 offen' % G0)
    a('s_mov_b64 exec, s[60:61]')
    a('buffer_store_dword v10, off, s[20:23], 0 sc1')
    leave()
    flush_retry()

    a.label('L_fkv')
    a('s_barrier')
    stamp(8)
    a('s_cmp_eq_u32 s5, 7')
    a('s_cbranch_scc0 L_fall')
    for k in range(2): a('v_mov_b32 v%d, 0' % (G0 + k))
    a('v_mul_u32_u24 v14, 80, v1')
    a('ds_write_b64 v14, %s offset:%d' % (vr(G0, 2), L_RED + 56))
    a('ds_write_b32 v%d, v%d offset:%d' % (G0, G0, L_STAT + 28))
    a('ds_write_b32 v%d, v%d offset:%d' % (G0, G0, L_STAT + 60))
    a('s_and_b32 s7, s4, 1')
    a('s_xor_b32 s7, s7, 1')
    a('s_lshl_b32 s7, s7, 5')
    a('v_mov_b32 v13, s7')
    a('v_lshrrev_b32 v10, 4, v1')
    a('v_mul_u32_u24 v10, %d, v10' % GXS)
    a('v_and_b32 v11, 3, v1')
    a('v_lshl_add_u32 v10, v11, 6, v10')
    a('v_bfe_u32 v11, v1, 2, 2')
    a('v_lshl_add_u32 v9, v11, 4, v10')
    a('s_and_b32 s7, s4, 12')
    a('s_lshl4_add_u32 s7, s3, s7')
    a('s_mul_i32 s57, s7, %d' % GXS)
    a('s_and_b32 s7, s4, 3')
    a('s_lshl_b32 s7, s7, 8')
    a('s_add_u32 s57, s57, s7')
    a('s_add_u32 s57, s57, 0x%x' % WS_GX)
    a('s_mov_b32 s58, s47'); a('s_mov_b32 s59, s47')
    a('s_not_b64 s[60:61], s[58:59]')
    a('s_waitcnt lgkmcnt(0)')
    a('s_barrier')
    a('s_barrier')
    for k in range(4): a('ds_read_b128 %s, v14 offset:%d' % (vr(G0 + 4 * k), L_RED + 16 * k))
    for k in range(2): a('ds_read_b128 %s, v13 offset:%d' % (vr(32 + 4 * k), L_STAT + 16 * k))
    a('s_waitcnt lgkmcnt(%d)' % (0 if diag else 4))
    pkadd(G0, G0, G0 + 2); pkadd(G1, G1, G1 + 2)
    if not diag: a('s_waitcnt lgkmcnt(2)')
    pkadd(G2, G2, G2 + 2); pkadd(G3, G3, G3 + 2)
    pkadd(G0, G0, G1); pkadd(G2, G2, G3)
    if not diag: a('s_waitcnt lgkmcnt(0)')
    pkadd(32, 32, 34); pkadd(36, 36, 38)
    pkadd(72, G0, G2)
    pkadd(32, 32, 36)
    a('v_add_f32 v74, v32, v33')
    store2(72, 9, 57)
    stamp(11)
    a('s_barrier')
    leave()

    a.label('L_ft')
    a('s_barrier')
    stamp(8)
    for i in range(7):
        a('buffer_load_dwordx4 v2, s[24:27], s%d offen nt lds' % (8 + i))
        if i < 6: a('s_add_u32 m0, m0, 0x1000')
    a.label('L_fall')
    line_voff()
    a('s_bfe_u32 s7, s4, 0x10001')
    a('s_mul_i32 s7, s7, 7')
    a('s_add_u32 s55, s7, s5')
    line_soff(55)
    a('buffer_load_ushort v15, v12, s[36:39], s46 offen')
    a('s_cmp_ge_u32 s5, 4')
    a('s_cbranch_scc1 L_nodown')
    for t in range(4):
        a('buffer_load_dwordx4 %s, v3, s[32:35], s%d offen offset:%d nt' % (vr(vW + 4 * t), 16 + (t >> 1), 3584 * (t & 1)))
    a.label('L_nodown')
    tr_addr()
    for k in range(4): a('v_mov_b32 v%d, 0x3f803f80' % (vAX + k))
    a('v_and_b32 v10, 15, v1')
    a('v_lshrrev_b32 v11, 5, v1')
    a('v_mul_u32_u24 v13, 80, v10')
    a('v_lshl_add_u32 v13, v11, 2, v13')
    a('v_lshl_add_u32 v13, s5, 3, v13')
    a('v_add_u32 v13, %d, v13' % L_RED)
    a('v_lshl_add_u32 v14, v10, 1, v11')
    a('v_lshlrev_b32 v14, 5, v14')
    a('v_lshl_add_u32 v14, s5, 2, v14')
    a('s_mov_b32 s60, 0xffff'); a('s_mov_b32 s61, 0xffff')
    a('s_waitcnt vmcnt(4)')
    a('s_barrier')
    stamp(9)
    poll('L_p1', two, [G0 + 3, G1 + 3], between=tr_read, wait='vmcnt(0) lgkmcnt(0)')
    stamp(10)
    a('v_lshlrev_b32 v15, 16, v15')
    sum2scatter()
    rnd(G0, G0)
    a('v_add_f32 v%d, v%d, v15' % (G0, G0))
    vec32(vAX, G0, 0x3)
    for t in range(4): mfma(vD + 4 * t, vAX, vB + 4 * t, 0)
    mfma(vD + 16, vAX, vAX, 0)
    a('s_mov_b64 exec, s[60:61]')
    a('s_cmp_ge_u32 s5, 4')
    a('ds_write2st64_b32 v13, v%d, v%d offset0:0 offset1:5' % (vD, vD + 4))
    a('ds_write2st64_b32 v13, v%d, v%d offset0:10 offset1:15' % (vD + 8, vD + 12))
    a('ds_write_b32 v14, v%d offset:%d' % (vD + 16, L_STAT))
    a('s_mov_b64 exec, -1')
    a('s_waitcnt lgkmcnt(0)')
    a('s_barrier')
    a('s_barrier')
    leave_if('scc1')
    poll('L_pg', ['buffer_load_dwordx4 %s, v40, s[20:23], s56 offen sc1' % vr(G0)], [G0 + 3])
    stamp(11)
    V, CS, ST, MU, E2, T = G0, G0 + 1, G0 + 2, G1, G1 + 1, G1 + 2
    dpp('v_add_f32', ST, ST, ST, 'row_ror:8')
    dpp('v_add_f32', V, V, V, 'row_ror:8')
    a('v_mul_f32 v%d, s18, v%d' % (MU, ST))
    a('v_mul_f32 v%d, s18, v%d' % (E2, ST))
    dpp('v_mul_f32', MU, ST, 43, 'row_ror:4', 'row_mask:0xf bank_mask:0xa')
    dpp('v_mul_f32', E2, ST, 43, 'row_ror:4', 'row_mask:0xf bank_mask:0x5')
    dpp('v_add_f32', CS, CS, CS, 'row_ror:8')
    a('v_fma_f32 v%d, -v%d, v%d, v%d' % (E2, MU, MU, E2))
    rnd(MU, MU)
    a('v_max_f32 v%d, 0, v%d' % (E2, E2))
    rnd(E2, E2)
    a('v_add_f32 v%d, %s, v%d' % (E2, f32(1e-5), E2))
    rnd(E2, E2)
    a('v_sqrt_f32 v%d, v%d' % (E2, E2))
    a('v_fma_f32 v%d, -v%d, v%d, v%d' % (V, MU, CS, V))
    rnd(E2, E2)
    a('v_rcp_f32 v%d, v%d' % (E2, E2))
    a('v_mul_f32 v%d, v%d, v%d' % (V, V, E2))
    rnd(V, V)
    a('v_mul_f32 v%d, v%d, v%d' % (T, V, V))
    a('v_fmac_f32 v42, s19, v%d' % T)
    a('v_mul_f32 v%d, v42, v%d' % (T, V))
    a('v_exp_f32 v%d, v%d' % (T, T))
    a('v_add_f32 v%d, 1.0, v%d' % (T, T))
    a('v_rcp_f32 v%d, v%d' % (T, T))
    a('v_mul_f32 v%d, v%d, v%d' % (T, V, T))
    rnd(T, T)
    dpp('v_mul_f32', T, V, T, 'row_ror:4')
    a('v_cvt_pk_bf16_f32 v%d, v%d, v%d' % (T, T, T))
    for t in range(4):
        for r in range(4):
            dpp('v_and_b32', vT + 4 * t + r, T, vM + r, 'row_newbcast:%d' % t)
            if t > 0 and r == 1: mfma(vC0, vT + 4 * t - 4, vW + 4 * t - 4, t > 1)
    mfma(vC0, vT + 12, vW + 12, 1)
    a('s_mov_b64 exec, s[58:59]')
    pack24(72, vC0)
    a('buffer_store_dwordx4 v[72:75], v41, s[20:23], s57 offen sc1')
    stamp(12)
    leave()
    flush_retry()

    a.label('L_aux0')
    srd(16, 448 * 8192)
    a('s_cmp_ge_u32 s4, 16')
    a('s_cbranch_scc1 L_q0')
    a('s_cmp_ge_u32 s4, 14')
    a('s_cbranch_scc1 L_aux')
    a('s_load_dwordx2 s[16:17], s[0:1], 32')
    a('v_bfe_u32 v10, v1, 3, 2')
    a('v_lshrrev_b32 v11, 5, v1')
    a('v_lshl_add_u32 v10, v10, 1, v11')
    dma_voff(4 * 896)
    a('s_cmp_ge_u32 s4, 7')
    a('s_cselect_b32 s54, 1, 0')
    a('s_lshl1_add_u32 s7, s3, s54')
    a('s_lshl_b32 s7, s7, 8')
    a('s_add_u32 s7, s7, s5')
    a('s_sub_u32 s7, s7, s54')
    a('s_mul_i32 s7, s7, 7')
    a('s_add_u32 s7, s7, s4')
    a('s_lshl_b32 s45, s7, 7')
    a('s_lshl_b32 s7, s5, 10')
    a('s_add_u32 m0, s7, %d' % L_T)
    a('s_movk_i32 s46, %d' % (32 * 896))
    a('s_waitcnt lgkmcnt(0)')
    for i in range(8):
        a('buffer_load_dwordx4 v2, s[16:19], s45 offen nt lds')
        if i < 7:
            a('s_add_u32 m0, m0, 0x1000')
            a('s_add_u32 s45, s45, s46')
    a.label('L_aux')
    a('s_waitcnt lgkmcnt(0)')
    a('s_load_dword s6, s[20:21], 0')
    common()
    a('s_cmp_eq_u32 s5, 1')
    a('s_cbranch_scc0 L_aux2')
    if c['pf']:
        a('s_getpc_b64 s[46:47]')
        a.label('L_pc')
        a('s_sub_u32 s46, s46, L_pc-%s_kernel' % NAME)
        a('s_subb_u32 s47, s47, 0')
        a('v_and_b32 v10, 3, v1')
        a('v_lshl_add_u32 v10, s4, 2, v10')
        a('v_lshlrev_b32 v10, 7, v10')
        a('v_mov_b32 v11, s47')
        a('v_cmp_gt_u32 vcc, L_last-%s_kernel, v10' % NAME)
        a('v_cndmask_b32 v10, 0, v10, vcc')
        a('v_add_co_u32 v10, vcc, s46, v10')
        a('s_nop 1')
        a('v_addc_co_u32 v11, vcc, 0, v11, vcc')
        a('global_load_dword v12, v[10:11], off')
    if c['touch']:
        a('v_and_b32 v10, 15, v1')
        a('v_lshl_add_u32 v10, s3, 4, v10')
        a('v_mul_u32_u24 v10, %d, v10' % BLK)
        a('s_lshl_b32 s7, s4, 7')
        a('s_add_u32 s7, s7, 0x%x' % WS_H0)
        a('buffer_load_dword v13, v10, s[20:23], s7 offen sc1')
        a('v_and_b32 v10, 3, v1')
        a('v_lshlrev_b32 v10, 7, v10')
        a('s_lshr_b32 s7, s4, 1')
        a('s_lshl4_add_u32 s7, s3, s7')
        a('s_mul_i32 s7, s7, %d' % GXS)
        a('s_and_b32 s44, s4, 1')
        a('s_lshl_b32 s44, s44, 9')
        a('s_add_u32 s7, s7, s44')
        a('s_add_u32 s7, s7, 0x%x' % WS_GX)
        a('buffer_load_dword v14, v10, s[20:23], s7 offen sc1')
        a('s_cmp_eq_u32 s4, 0')
        a('s_cbranch_scc0 L_aux2')
        a('s_lshl_b32 s7, s3, 9')
        a('s_add_u32 s7, s7, 0x%x' % WS_L)
        a('buffer_load_dword v15, v10, s[20:23], s7 offen sc1')
    a.label('L_aux2')
    a('s_waitcnt lgkmcnt(0)')
    mktag()
    a.label('L_aux3')
    a('s_getreg_b32 s44, hwreg(HW_REG_XCC_ID, 0, 4)')
    a('s_lshl_b32 s45, s3, 8')
    a('s_add_u32 s45, s45, 0x%x' % WS_X)
    a('s_cmp_eq_u32 s5, 2')
    a('s_cbranch_scc0 L_aux4')
    a('s_lshl3_add_u32 s46, s4, s45')
    a('v_mov_b32 v12, s44')
    a('v_mov_b32 v13, s6')
    a('s_mov_b64 exec, 1')
    a('buffer_store_dwordx2 v[12:13], off, s[20:23], s46 sc1')
    a('s_mov_b64 exec, -1')
    a.label('L_aux4')
    if c['qhold']:
        a('s_cmp_ge_u32 s4, 16')
        a('s_cbranch_scc0 L_aux5')
        a('s_barrier')
        a.label('L_aux5')
    a('s_lshl2_add_u32 s7, s3, s5')
    a('s_lshl_b32 s56, s7, 11')
    a('s_add_u32 s56, s56, 0x%x' % WS_Q)
    a('v_and_b32 v10, 31, v1')
    a('v_lshlrev_b32 v44, 3, v10')
    if c['gq']: gate_wait(0)
    else: a('s_waitcnt vmcnt(0)')
    stamp(5)
    a('s_cmp_eq_u32 s5, 2')
    a('s_cbranch_scc1 L_auxx')
    qloads = ['buffer_load_dwordx4 %s, v8, s[20:23], s56 offen sc1' % vr(G0),
              'buffer_load_dwordx4 %s, v8, s[20:23], s56 offen offset:1024 sc1' % vr(G1)]
    poll('L_pq', qloads, [G0 + 3, G1 + 3])
    a('s_branch L_auxy')
    a.label('L_auxx')
    poll('L_px', qloads + ['buffer_load_dwordx2 v[14:15], v44, s[20:23], s45 offen sc1'], [G0 + 3, G1 + 3, 15])
    a('v_cmp_ne_u32 vcc, s6, v15')
    a('v_cmp_ne_u32_e64 s[96:97], s44, v14')
    a('s_or_b64 vcc, vcc, s[96:97]')
    a('s_cselect_b32 s7, 0, %d' % (0 if c['force_sc1'] else -1))
    a('v_mov_b32 v12, s7')
    a('v_mov_b32 v13, 0')
    a('ds_write_b32 v13, v12 offset:%d' % L_FLAG)
    a.label('L_auxy')
    stamp(6)
    pkadd(G0, G0, G1)
    a('v_lshlrev_b32 v10, 2, v0')
    a('v_cvt_pk_bf16_f32 v%d, v%d, v%d' % (G0, G0, G0 + 1))
    a('ds_write_b32 v10, v%d offset:%d' % (G0, L_QL))
    a('s_waitcnt lgkmcnt(0)')
    a('s_barrier')
    a('s_mov_b32 s53, %s' % SC)
    a('s_cmp_ge_u32 s4, 7')
    a('s_cselect_b32 s54, 1, 0')
    a('s_lshl1_add_u32 s7, s3, s54')
    a('s_lshl_b32 s45, s7, 8')
    a('s_add_u32 s45, s45, 0x%x' % WS_L)
    a('s_lshl3_add_u32 s7, s7, s5')
    a('s_mul_i32 s56, s7, %d' % BLK)
    a('s_add_u32 s56, s56, 0x%x' % WS_H0)
    a('s_cmp_eq_u32 s5, 3')
    a('s_barrier')
    a('s_cbranch_scc0 L_aux6')
    a('ds_read_b128 %s, v8 offset:%d' % (vr(G0), L_S))
    readflag()
    a('v_lshrrev_b32 v10, 5, v1')
    a('v_lshlrev_b32 v10, 8, v10')
    a('s_lshl_b32 s7, s3, 6')
    a('s_add_u32 s7, s7, s4')
    a('s_lshl_b32 s46, s7, 3')
    a('s_add_u32 s46, s46, 0x%x' % WS_L)
    a('v_mov_b32 v13, s6')
    a('s_waitcnt lgkmcnt(0)')
    a('v_readfirstlane_b32 s47, v3')
    softmax_head(G0)
    a('v_log_f32 v12, v%d' % (G0 + 6))
    a('v_add_f32 v12, v12, v%d' % (G0 + 4))
    a('s_and_b32 exec_lo, s47, 1'); a('s_mov_b32 exec_hi, exec_lo')
    a('buffer_store_dwordx2 v[12:13], v10, s[20:23], s46 offen')
    a('s_andn2_b32 exec_lo, 1, s47'); a('s_mov_b32 exec_hi, exec_lo')
    a('buffer_store_dwordx2 v[12:13], v10, s[20:23], s46 offen sc1')
    a('s_mov_b64 exec, -1')
    a('s_cmp_ge_u32 s4, 14')
    a('s_cbranch_scc1 L_aux6')
    if c['gl']: gate_wait(1)
    else: a('s_waitcnt vmcnt(0)')
    poll('L_pl', ['buffer_load_dwordx2 v[14:15], v44, s[20:23], s45 offen sc1'], [15])
    stamp(7)
    a('v_mov_b32 v16, v14')
    allred32('v_max_f32', 16, 17)
    a('v_sub_f32 v14, v14, v16')
    a('v_exp_f32 v14, v14')
    a('v_and_b32 v10, 0x70, v8')
    a('v_mov_b32 v16, v14')
    allred32('v_add_f32', 16, 17)
    a('v_rcp_f32 v16, v16')
    a('v_bfe_u32 v11, v1, 3, 2')
    a('v_lshl_add_u32 v10, v11, 2, v10')
    a('v_mul_f32 v14, v14, v16')
    a('ds_write_b32 v10, v14 offset:%d' % L_WT)
    a('s_waitcnt lgkmcnt(0)')
    a.label('L_aux6')
    a('s_cmp_ge_u32 s4, 14')
    a('s_cbranch_scc0 L_wt')
    a('s_cmp_eq_u32 s3, 7')
    leave_if('scc1')
    a('s_cmp_ge_u32 s4, 16')
    a('s_cbranch_scc0 L_fin')
    a('s_sub_u32 s54, s4, 16')
    a('s_lshl4_add_u32 s54, s3, s54')
    a('v_lshrrev_b32 v10, 3, v1')
    dma_voff(8 * 3584)
    a('s_bitcmp1_b32 s4, 0')
    a('s_cselect_b64 s[24:25], s[28:29], s[24:25]')
    a('s_mul_i32 s44, s5, 3584')
    a('s_lshr_b32 s7, s54, 2')
    a('s_lshl_b32 s7, s7, 7')
    a('s_add_u32 s44, s44, s7')
    a('s_bitcmp1_b32 s4, 1')
    for i in range(7):
        r0, r1 = [64 * (x >> 1) + 4 * (x & 1) for x in (i, 7 + i)]
        a('s_mov_b32 s7, %d' % (r0 * 3584))
        a('s_cselect_b32 s%d, %d, s7' % (8 + i, r1 * 3584))
    for i in range(7): a('s_add_u32 s%d, s%d, s44' % (8 + i, 8 + i))
    a('s_lshl_b32 s7, s5, 10')
    a('s_add_u32 m0, s7, %d' % L_T)
    a('v_lshrrev_b32 v12, 4, v1')
    a('v_mul_u32_u24 v10, 896, v12')
    a('v_and_b32 v11, 15, v1')
    a('v_lshl_add_u32 v11, s5, 4, v11')
    a('v_lshl_add_u32 v3, v11, 4, v10')
    a('v_cmp_gt_u32 vcc, 56, v11')
    a('v_cndmask_b32 v3, 2.0, v3, vcc')
    a('s_mul_i32 s16, s54, %d' % (16 * 896))
    a('s_add_u32 s17, s16, 7168')
    a('v_bfe_u32 v10, v1, 2, 2')
    a('v_lshl_add_u32 v10, v10, 2, v12')
    a('v_and_b32 v11, 0x30, v8')
    a('v_lshl_add_u32 v40, v10, 6, v11')
    a('s_mul_i32 s56, s54, %d' % GXS)
    a('s_add_u32 s56, s56, 0x%x' % WS_GX)
    a('v_and_b32 v10, 0x70, v8')
    a('v_bfe_u32 v11, v1, 3, 1')
    a('v_lshl_add_u32 v10, v11, 8, v10')
    a('v_lshl_add_u32 v41, v12, 7, v10')
    a('s_mul_i32 s57, s54, %d' % HS)
    a('s_lshl_b32 s7, s5, 9')
    a('s_add_u32 s57, s57, s7')
    a('s_add_u32 s57, s57, 0x%x' % WS_H2)
    a('s_cmp_eq_u32 s5, 3')
    a('s_cselect_b32 s58, 0x00ff00ff, -1')
    a('s_mov_b32 s59, 0')
    k0 = 2 * math.sqrt(2 / math.pi) * math.log2(math.e)
    a('v_mov_b32 v42, %s' % f32(-k0))
    a('v_mov_b32 v43, %s' % f32(1.0 / 448))
    a('s_mov_b32 s18, %s' % f32(1.0 / 448))
    a('s_mov_b32 s19, %s' % f32(-k0 * 0.044715))
    a('v_mov_b32 v75, s6')
    a('s_branch L_ft')
    flush_retry()

    a.label('L_q0')
    a('s_cmp_eq_u32 s5, 0')
    a('s_cbranch_scc1 L_qw')
    a('s_barrier')
    a('s_branch L_aux')
    a.label('L_qw')
    vWQ, vXN = 16, 128
    a('s_load_dwordx2 s[36:37], s[0:1], 0')
    a('s_load_dwordx2 s[16:17], s[0:1], 24')
    srd(36, 896)
    a('v_lshlrev_b32 v8, 4, v1')
    a('v_lshrrev_b32 v12, 3, v1')
    a('v_mul_u32_u24 v3, %d, v12' % (28 * 8192))
    a('v_and_b32 v10, 0x70, v8')
    a('v_add_u32 v3, v3, v10')
    a('s_and_b32 s44, s4, 1')
    a('s_bfe_u32 s55, s4, 0x30001')
    a('s_mul_i32 s45, s44, %d' % (224 * 8192))
    a('s_lshl3_add_u32 s7, s3, s55')
    a('s_lshl_b32 s7, s7, 7')
    a('s_add_u32 s45, s45, s7')
    a('s_movk_i32 s46, 0x2000')
    a('s_waitcnt lgkmcnt(0)')
    stamp(1)
    a('buffer_load_dwordx4 %s, v8, s[36:39], 0 offen' % vr(vA))
    a('s_load_dword s6, s[20:21], 0')
    for n in range(28):
        a('buffer_load_dwordx4 %s, v3, s[16:19], s45 offen nt' % vr(vWQ + 4 * n))
        if n < 27: a('s_add_u32 s45, s45, s46')
    a('s_barrier')
    stamp(2)
    common(False)
    x, S1, S2 = vA + 8, vA + 4, vA + 5
    a('v_mov_b32 v%d, 0' % S1)
    a('v_mov_b32 v%d, 0' % S2)
    a('v_mov_b32 v%d, 0x3f803f80' % (vA + 6))
    a('v_mov_b32 v%d, %s' % (vA + 7, f32(1.0 / 448)))
    a('v_lshlrev_b32 v13, 5, v1')
    a('v_mul_u32_u24 v14, 112, v12')
    a('s_mul_i32 s7, s44, 896')
    a('v_add_u32 v14, s7, v14')
    a('v_and_b32 v10, 7, v1')
    a('v_lshlrev_b32 v10, 6, v10')
    a('v_bfe_u32 v11, v1, 4, 1')
    a('v_lshl_add_u32 v10, v11, 5, v10')
    a('v_lshrrev_b32 v11, 5, v1')
    a('v_lshl_add_u32 v9, v11, 4, v10')
    a('s_lshr_b32 s7, s55, 1')
    a('s_lshl2_add_u32 s7, s3, s7')
    a('s_lshl1_add_u32 s7, s7, s44')
    a('s_and_b32 s45, s55, 1')
    a('s_lshl1_add_u32 s7, s7, s45')
    a('s_lshl_b32 s57, s7, 9')
    a('s_add_u32 s57, s57, 0x%x' % WS_Q)
    a('s_mov_b32 s58, 0x00ff00ff'); a('s_mov_b32 s59, 0x00ff00ff')
    a('s_waitcnt vmcnt(28)')
    for k in range(4):
        a('v_dot2c_f32_bf16 v%d, v%d, v%d' % (S1, vA + k, vA + 6))
        a('v_dot2c_f32_bf16 v%d, v%d, v%d' % (S2, vA + k, vA + k))
    unp = []
    for k in range(4):
        unp.append('v_lshlrev_b32 v%d, 16, v%d' % (x + 2 * k, vA + k))
        unp.append('v_and_b32 v%d, 0xffff0000, v%d' % (x + 2 * k + 1, vA + k))
    a(unp.pop()); a(unp.pop())
    for ctl, m in ((QP1, FULL), (QP2, FULL), ('row_half_mirror', FULL), ('row_mirror', FULL),
                   ('row_bcast:15', 'row_mask:0xa bank_mask:0xf'), ('row_bcast:31', 'row_mask:0xc bank_mask:0xf')):
        dpp('v_add_f32', S1, S1, S1, ctl, m)
        dpp('v_add_f32', S2, S2, S2, ctl, m)
        a(unp.pop())
    a('v_readlane_b32 s62, v%d, 63' % S1)
    a('v_readlane_b32 s63, v%d, 63' % S2)
    a('v_mul_f32 v%d, s62, v%d' % (S1, vA + 7))
    a('v_mul_f32 v%d, s63, v%d' % (S2, vA + 7))
    a('v_fma_f32 v%d, -v%d, v%d, v%d' % (S2, S1, S1, S2))
    rnd(S1, S1)
    a('v_max_f32 v%d, 0, v%d' % (S2, S2))
    rnd(S2, S2)
    a('v_add_f32 v%d, %s, v%d' % (S2, f32(1e-5), S2))
    rnd(S2, S2)
    a('v_sqrt_f32 v%d, v%d' % (S2, S2))
    for k in range(8): a('v_sub_f32 v%d, v%d, v%d' % (x + k, x + k, S1))
    rnd(S2, S2)
    a('v_rcp_f32 v%d, v%d' % (S2, S2))
    for k in range(8): rnd(x + k, x + k)
    for k in range(8): a('v_mul_f32 v%d, v%d, v%d' % (x + k, x + k, S2))
    for k in range(8): a('v_cvt_pk_bf16_f32 v%d, v%d, v%d' % (x + k, x + k, x + k))
    a('ds_write_b128 v13, %s offset:%d' % (vr(x), L_XN))
    a('ds_write_b128 v13, %s offset:%d' % (vr(x + 4), L_XN + 16))
    a('s_waitcnt lgkmcnt(0)')
    for z in range(7): a('ds_read_b128 %s, v14 offset:%d' % (vr(vXN + 4 * z), L_XN + 16 * z))
    mktag()
    qc = vA + 16
    a('v_mov_b32 v%d, s6' % (vA + 22))
    a('v_mov_b32 v%d, s6' % (vA + 23))
    a('s_waitcnt lgkmcnt(0)')
    stamp(3)
    def qand(n):
        for r in range(4): a('v_and_b32 v%d, v%d, v%d' % (vA + 4 * (n & 1) + r, vXN + n, vM + r))
    qand(0)
    for n in range(28):
        if n < 27: qand(n + 1)
        a('s_waitcnt vmcnt(%d)' % (27 - n))
        mfma(qc, vA + 4 * (n & 1), vWQ + 4 * n, n)
    stamp(4)
    for r in range(4): a('v_mov_b32_dpp v%d, v%d row_ror:8 row_mask:0xc bank_mask:0xf' % (qc + r, qc + r))
    a('v_permlane32_swap_b32 v%d, v%d' % (qc, qc + 2))
    a('v_permlane32_swap_b32 v%d, v%d' % (qc + 1, qc + 3))
    pkadd(vA + 20, qc, qc + 2)
    a('s_mov_b64 exec, s[58:59]')
    a('buffer_store_dwordx4 %s, v9, s[20:23], s57 offen sc1' % vr(vA + 20))
    a('s_mov_b64 exec, -1')
    a('s_branch L_aux3')

    a.label('L_exit')
    if c['probe']:
        k, base, mult = c['probe']
        stamp(14)
        a('s_waitcnt lgkmcnt(0)')
        a('s_cmp_eq_u32 s%d, 0' % (64 + 2 * k))
        a('s_cbranch_scc1 L_end')
        a('s_sub_u32 s7, s%d, s64' % (64 + 2 * k))
        a('s_min_u32 s7, s7, 10000')
        a('s_mul_i32 s7, s7, %d' % mult)
        a('s_add_u32 s7, s7, %d' % base)
        a.label('L_spin')
        a('s_sleep 4')
        a('s_memrealtime s[94:95]')
        a('s_waitcnt lgkmcnt(0)')
        a('s_sub_u32 s44, s94, s64')
        a('s_cmp_lt_u32 s44, s7')
        a('s_cbranch_scc1 L_spin')
    elif diag:
        stamp(14)
        a('s_sleep 127')
        a('s_mov_b64 exec, 1')
        a('s_lshl3_add_u32 s7, s2, s5')
        a('s_lshl_b32 s7, s7, 6')
        a('s_add_u32 s7, s7, 0x%x' % WS_ST)
        a('s_waitcnt lgkmcnt(0)')
        for k in range(15): a('v_mov_b32 v%d, s%d' % (16 + k, 64 + 2 * k))
        a('v_mov_b32 v31, 0')
        for k in range(4): a('buffer_store_dwordx4 %s, off, s[20:23], s7 offset:%d' % (vr(16 + 4 * k), 16 * k))
    a.label('L_end')
    a.label('L_last')
    a('s_endpgm')

    ref = open(os.path.join(os.path.dirname(os.path.abspath(__file__)), 'header.txt')).read()
    head = ref + '; @launch grid=(256,1,1) block=(512,1,1) lds=%d\n' % LDS_BYTES
    head += '.amdgcn_target "amdgcn-amd-amdhsa--gfx950"\n.text\n.globl {N}_kernel\n.p2align 8\n.type {N}_kernel,@function\n{N}_kernel:\n'.replace('{N}', NAME)
    foot = """.section .rodata,"a"
.p2align 6
.amdhsa_kernel {N}_kernel
  .amdhsa_next_free_vgpr 224
  .amdhsa_next_free_sgpr 102
  .amdhsa_accum_offset 224
  .amdhsa_group_segment_fixed_size 0
  .amdhsa_kernarg_size 96
  .amdhsa_float_denorm_mode_32 3
  .amdhsa_user_sgpr_count 2
  .amdhsa_user_sgpr_kernarg_segment_ptr 1
  .amdhsa_system_sgpr_workgroup_id_x 1
.end_amdhsa_kernel
""".replace('{N}', NAME)
    return head + a.text() + foot

if __name__ == '__main__':
    out = sys.argv[1] if len(sys.argv) > 1 else 'cdna_kernels/%s.s' % NAME
    kw = eval('dict(%s)' % sys.argv[2]) if len(sys.argv) > 2 else {}
    open(out, 'w').write(gen(**kw))
```

```python
import sys, os, struct, math
sys.path.insert(0, os.path.dirname(os.path.abspath(__file__)))
from emit import Asm

NAME = 'sequential_preLN__sliding_block_cached__geglu_ffn__decode'

WS_E = 0
WS_X = 0x1000
WS_Q = 0x4000
BLK = 4096 + 128
WS_H0 = 0x20000
WS_HP = 0xC0000
WS_H1 = 0x160000
WS_H2 = 0x170000
WS_ST = 0x200000

L_QL = 0
L_S = 1024
L_P = 2048
L_XN = 6400
L_GU = 8448
L_STAT = 10752
L_FR = 11776
L_FLAG = 13568
L_T = 13824
LDS_BYTES = L_T + 7 * 4096

OOB = 0x40000000
SPIN = 20000

def f32(x):
    return '0x%08x' % struct.unpack('<I', struct.pack('<f', x))[0]

def vr(a, n=4):
    return 'v[%d:%d]' % (a, a + n - 1)

DEF = dict(depth=6, va=4, vb=10, stamps=None, rs=1, rg=0, gunt='nt', rot=0, pf=True,
           wnt='nt', dnt='nt', touch='r', force_sc1=False, fake=0, probe=None)

def gen(**kw):
    c = dict(DEF); c.update(kw)
    a = Asm()
    D = c['depth']
    def stamp(k):
        if c['stamps']: a('%s s[%d:%d]' % (c['stamps'], 64 + 2 * k, 65 + 2 * k))
    def srd(base, size):
        a('s_mov_b32 s%d, 0x%x' % (base + 2, size))
        a('s_mov_b32 s%d, 0x20000' % (base + 3))
    def mktag():
        a('s_mul_i32 s6, s6, 0x9e3779b1')
        a('s_add_u32 s6, s6, 0x7f4a7c15')
    def rnd(d, s):
        a('v_cvt_pk_bf16_f32 v%d, 0, v%d' % (d, s))
    QP1, QP2 = 'quad_perm:[1,0,3,2]', 'quad_perm:[2,3,0,1]'
    FULL = 'row_mask:0xf bank_mask:0xf'
    def dpp(op, d, s0, s1, ctl, mask=FULL):
        a('%s_dpp v%d, v%d, v%d %s %s' % (op, d, s0, s1, ctl, mask))
    def masks():
        a('v_and_b32 v10, 1, v1')
        a('v_lshlrev_b32 v10, 4, v10')
        a('s_mov_b32 s7, 0xffff')
        a('v_lshlrev_b32_e64 v10, v10, s7')
        a('v_bfe_u32 v11, v1, 1, 2')
        for r in range(4):
            a('v_cmp_eq_u32 vcc, %d, v11' % r)
            a('v_cndmask_b32 v%d, 0, v10, vcc' % (vM + r))
    def colvoff(d, sblk):
        a('v_lshrrev_b32 v10, 4, v1')
        a('v_mul_u32_u24 v10, 896, v10')
        a('v_and_b32 v11, 15, v1')
        a('v_lshl_add_u32 v11, s%d, 4, v11' % sblk)
        a('v_lshl_add_u32 v%d, v11, 4, v10' % d)
        a('v_cmp_gt_u32 vcc, 56, v11')
        a('v_cndmask_b32 v%d, 2.0, v%d, vcc' % (d, d))
    def pack24(d, s):
        for k in range(3):
            a('v_perm_b32 v%d, v%d, v%d, s%d' % (d + k, s + k, s + 3, sPK + k))
    def unpack24(d, s):
        a('v_perm_b32 v%d, v%d, v%d, s%d' % (d, s + 1, s, sUP))
        a('v_perm_b32 v%d, v%d, v%d, s%d' % (d, s + 2, d, sUP + 1))
    def packsel():
        for k in range(3):
            a('s_mov_b32 s%d, 0x0706050%d' % (sPK + k, 1 + k))
        a('s_mov_b32 s%d, 0x0c04000c' % sUP)
        a('s_mov_b32 s%d, 0x04020100' % (sUP + 1))
    def poll(name, loads, tags, lanemask=None, first_wait='vmcnt(0)', between=None):
        a('s_mov_b32 s7, 0')
        for t in loads: a(t)
        if between: between()
        a('s_waitcnt ' + first_wait)
        a.label(name + '_chk')
        a('v_cmp_ne_u32 vcc, s6, v%d' % tags[0])
        if len(tags) > 1:
            for i, t in enumerate(tags[1:]):
                a('v_cmp_ne_u32_e64 s[%d:%d], s6, v%d' % (96 + 2 * i, 97 + 2 * i, t))
            for i, t in enumerate(tags[1:]):
                a('s_or_b64 vcc, vcc, s[%d:%d]' % (96 + 2 * i, 97 + 2 * i))
            a('s_cbranch_scc1 %s_retry' % name)
        else:
            a('s_cbranch_vccnz %s_retry' % name)
        a.label(name + '_ok')
        retry.append((name, loads))
    retry = []
    def getflag():
        a('v_readfirstlane_b32 s47, v3')
    def store2(data, voff, soff, lo, hi, off=0):
        a('s_mov_b64 exec, s[%d:%d]' % (lo, lo + 1))
        a('buffer_store_dwordx4 %s, v%d, s[20:23], s%d offen offset:%d' % (vr(data), voff, soff, off))
        a('s_mov_b64 exec, s[%d:%d]' % (hi, hi + 1))
        a('buffer_store_dwordx4 %s, v%d, s[20:23], s%d offen offset:%d sc1' % (vr(data), voff, soff, off))
    def fptrs(x=True):
        if x:
            a('s_load_dwordx2 s[36:37], s[0:1], 0')
            srd(36, 896)
        a('s_load_dwordx2 s[24:25], s[0:1], 48')
        a('s_load_dwordx2 s[28:29], s[0:1], 56')
        a('s_load_dwordx2 s[32:33], s[0:1], 64')
        a('s_load_dwordx2 s[40:41], s[0:1], 72')
        srd(20, 1 << 28)
        srd(24, 448 * 3584)
        srd(28, 448 * 3584)
        srd(32, 1792 * 896)
        srd(40, 896)
        packsel()

    vM = 4
    vKO = 2
    vK, vV, vQ, vW = 16, 80, 144, 176
    vA = 192
    vP = 16
    vT = 48
    vC0, vC1 = 64, 68
    sPK, sUP = 48, 52

    if c['stamps']:
        for k in range(1, 16): a('s_mov_b32 s%d, 0' % (64 + 2 * k))
    stamp(0)
    a('s_cmp_ge_u32 s2, 256')
    a('s_cbranch_scc1 L_end')
    a('s_load_dwordx2 s[8:9], s[0:1], 8')
    a('s_load_dwordx2 s[12:13], s[0:1], 16')
    a('s_load_dwordx2 s[20:21], s[0:1], 88')
    a('v_lshrrev_b32 v3, 6, v0')
    a('v_and_b32 v1, 63, v0')
    a('s_and_b32 s3, s2, 7')
    a('v_readfirstlane_b32 s5, v3')
    a('s_lshr_b32 s4, s2, 3')
    srd(16, 448 * 8192)
    a('s_cmp_ge_u32 s4, 16')
    a('s_cbranch_scc1 L_q0')

    a('s_cmp_ge_u32 s5, 4')
    a('s_cbranch_scc0 L_w0')
    a('s_waitcnt lgkmcnt(0)')
    a('s_load_dword s6, s[20:21], 0')
    a.label('L_kv')

    a('v_and_b32 v10, 7, v1')
    a('v_lshrrev_b32 v11, 3, v1')
    a('v_lshlrev_b32 v10, 4, v10')
    a('v_lshl_add_u32 v%d, v11, 9, v10' % vKO)
    srd(8, 1 << 26)
    a('s_lshl_b32 s7, s3, 7')
    a('s_add_u32 s7, s7, s4')
    a('s_add_u32 s7, s7, 96')
    a('s_lshl_b32 s44, s7, 4')
    a('s_mul_i32 s7, s4, %d' % c['rs'])
    if c['rg']:
        a('s_mul_i32 s45, s3, %d' % c['rg'])
        a('s_add_u32 s7, s7, s45')
    a('s_and_b32 s7, s7, 15')
    a('s_or_b32 s44, s44, s7')
    a('s_sub_u32 s55, s5, 4')
    a('s_xor_b32 s45, s44, s55')
    a('s_lshl_b32 s45, s45, 12')
    stamp(1)
    def h0addr():
        a('v_lshrrev_b32 v10, 5, v1')
        a('v_bfe_u32 v11, v1, 2, 1')
        a('v_lshl_add_u32 v10, v10, 3, v11')
        a('v_mul_u32_u24 v10, %d, v10' % BLK)
        a('v_and_b32 v11, 3, v1')
        a('v_lshl_add_u32 v10, v11, 4, v10')
        a('v_bfe_u32 v11, v1, 4, 1')
        a('v_lshl_add_u32 v9, v11, 6, v10')
        a('s_lshl3_add_u32 s7, s3, s55')
        a('s_mul_i32 s57, s7, %d' % (2 * BLK))
        a('s_lshl_b32 s7, s4, 7')
        a('s_add_u32 s57, s57, s7')
        a('s_add_u32 s57, s57, 0x%x' % WS_H0)
    nk = [0]
    def throttle():
        if nk[0] >= D: a('s_waitcnt vmcnt(%d)' % (D - 1))
        nk[0] += 1
    for idx in range(16):
        i, t = idx >> 2, idx & 3
        if t == 0 and i > 0: a('s_xor_b32 s45, s45, 0x%x' % ((i ^ (i - 1)) << 14))
        throttle()
        a('buffer_load_dwordx4 %s, v%d, s[8:11], s45 offen offset:%d nt' % (vr(vK + 4 * idx), vKO, 128 * t))
        if idx == D - 1:
            srd(12, 1 << 26)
            fptrs()
            a('s_lshl_b32 s44, s44, 12')
            a('s_lshl_b32 s7, s55, 7')
            a('s_add_u32 s44, s44, s7')
            masks()
            a('v_lshlrev_b32 v8, 4, v1')
            a('s_lshl_b32 s7, s3, 2')
            a('s_add_u32 s7, s7, s55')
            a('s_lshl_b32 s56, s7, 11')
            a('s_add_u32 s56, s56, 0x%x' % WS_Q)
            for k in range(8): a('v_mov_b32 v%d, 0' % (vA + 8 + k))
            a('s_waitcnt lgkmcnt(0)')
            mktag()
            if c['touch'] == 'w':
                h0addr()
                a('s_mov_b32 exec_lo, 0x00ff00ff'); a('s_mov_b32 exec_hi, 0x00ff00ff')
                a('buffer_store_dwordx4 %s, v9, s[20:23], s57 offen' % vr(vA + 8))
                a('s_mov_b64 exec, -1')
    stamp(2)
    nv = [0]
    def vload(thr):
        n = nv[0]; nv[0] += 1
        if n > 0: a('s_xor_b32 s44, s44, 0x%x' % ((n ^ (n - 1)) << 12))
        if thr: throttle()
        a('buffer_load_dwordx4 %s, v%d, s[12:15], s44 offen nt' % (vr(vV + 4 * n), vKO))
    def first_v():
        for _ in range(c['va']): vload(True)
    throttle()
    poll('L_pq', ['buffer_load_dwordx4 %s, v8, s[20:23], s56 offen sc1' % vr(vA),
                  'buffer_load_dwordx4 %s, v8, s[20:23], s56 offen offset:1024 sc1' % vr(vA + 4)],
         [vA + 3, vA + 7], first_wait='vmcnt(%d)' % c['va'], between=first_v)
    stamp(3)
    a('v_add_f32 v%d, v%d, v%d' % (vA, vA, vA + 4))
    a('v_add_f32 v%d, v%d, v%d' % (vA + 1, vA + 1, vA + 5))
    a('v_and_b32 v10, 255, v0')
    a('v_lshlrev_b32 v10, 2, v10')
    a('v_cvt_pk_bf16_f32 v%d, v%d, v%d' % (vA, vA, vA + 1))
    a('v_and_b32 v11, 0x70, v%d' % vKO)
    a('ds_write_b32 v10, v%d offset:%d' % (vA, L_QL))
    while nv[0] < c['vb']: vload(False)
    a('s_waitcnt lgkmcnt(0)')
    a('s_barrier')
    for h in range(2):
        for t in range(4):
            a('ds_read_b128 %s, v11 offset:%d' % (vr(vQ + 16 * h + 4 * t), L_QL + 512 * h + 128 * t))
    a('v_bfe_u32 v10, v1, 2, 1')
    a('v_lshlrev_b32 v10, 9, v10')
    a('v_lshrrev_b32 v12, 4, v1')
    a('v_lshl_add_u32 v10, v12, 7, v10')
    a('v_and_b32 v13, 3, v1')
    a('v_lshl_add_u32 v10, v13, 5, v10')
    a('v_bfe_u32 v13, v1, 3, 1')
    a('v_lshl_add_u32 v10, v13, 2, v10')
    a('s_lshl_b32 s7, s55, 3')
    a('v_add_u32 v10, s7, v10')
    a('s_mul_i32 s7, s55, 1056')
    a('v_lshrrev_b32 v14, 5, v1')
    a('v_lshl_add_u32 v14, v14, 4, v8')
    a('v_add_u32 v14, s7, v14')
    a('v_mul_u32_u24 v15, 528, v13')
    a('v_lshl_add_u32 v15, v12, 7, v15')
    a('v_add_u32 v15, s7, v15')
    a('s_mov_b32 s58, 0xaaaaaaaa'); a('s_mov_b32 s59, 0xaaaaaaaa')
    a('s_mov_b32 s60, 0xcccccccc'); a('s_mov_b32 s61, 0xcccccccc')
    a('s_waitcnt lgkmcnt(0)')
    stamp(4)
    acc = lambda i, h: vA + 8 + 4 * h + i
    for i in range(4):
        for t in range(4):
            for d in range(4):
                for h in range(2):
                    a('v_dot2c_f32_bf16 v%d, v%d, v%d' % (acc(i, h), vK + 16 * i + 4 * t + d, vQ + 16 * h + 4 * t + d))
        rem = 16 - nv[0]
        for _ in range(-(-rem // (4 - i))): vload(False)
    X = acc(0, 0)
    for i in range(4): dpp('v_add_f32', X + i, X + i, X + i, 'row_half_mirror', 'row_mask:0xf bank_mask:0x5')
    for i in range(4): dpp('v_add_f32', X + i, X + 4 + i, X + 4 + i, 'row_half_mirror', 'row_mask:0xf bank_mask:0xa')
    for i in range(4): dpp('v_add_f32', X + i, X + i, X + i, QP1)
    a('v_cndmask_b32_e64 v%d, v%d, v%d, s[58:59]' % (X, X, X + 1))
    a('v_cndmask_b32_e64 v%d, v%d, v%d, s[58:59]' % (X + 2, X + 2, X + 3))
    dpp('v_add_f32', X, X, X, QP2)
    dpp('v_add_f32', X + 2, X + 2, X + 2, QP2)
    a('v_cndmask_b32_e64 v%d, v%d, v%d, s[60:61]' % (X, X, X + 2))
    rnd(X, X)
    a('ds_write_b32 v10, v%d offset:%d' % (X, L_S))
    a('s_waitcnt lgkmcnt(0)')
    a('s_barrier')
    a('ds_read_b128 %s, v8 offset:%d' % (vr(vA), L_S))
    a('v_mov_b32 v3, 0')
    a('ds_read_b32 v3, v3 offset:%d' % L_FLAG)
    if c['touch'] != 'w': h0addr()
    a('s_mov_b32 s62, %s' % f32(math.log2(math.e) / 16))
    a('s_waitcnt lgkmcnt(0)')
    stamp(5)
    mx, t1 = vA + 4, vA + 5
    def allred32(op, r):
        for ctl in (QP1, QP2, 'row_half_mirror', 'row_mirror'): dpp(op, r, r, r, ctl)
        a('v_mov_b32 v%d, v%d' % (t1, r))
        a('v_permlane16_swap_b32 v%d, v%d' % (r, t1))
        a('%s v%d, v%d, v%d' % (op, r, r, t1))
    a('v_max3_f32 v%d, v%d, v%d, v%d' % (mx, vA, vA + 1, vA + 2))
    a('v_max_f32 v%d, v%d, v%d' % (mx, mx, vA + 3))
    allred32('v_max_f32', mx)
    a('v_mul_f32 v%d, s62, v%d' % (mx, mx))
    for k in range(4): a('v_fma_f32 v%d, v%d, s62, -v%d' % (vA + k, vA + k, mx))
    for k in range(4): a('v_exp_f32 v%d, v%d' % (vA + k, vA + k))
    ls = vA + 6
    a('v_add_f32 v%d, v%d, v%d' % (ls, vA, vA + 1))
    a('v_add_f32 v%d, v%d, v%d' % (t1, vA + 2, vA + 3))
    a('v_add_f32 v%d, v%d, v%d' % (ls, ls, t1))
    allred32('v_add_f32', ls)
    a('v_rcp_f32 v%d, v%d' % (t1, ls))
    a('v_log_f32 v%d, v%d' % (ls, ls))
    for k in range(4): a('v_mul_f32 v%d, v%d, v%d' % (vA + k, vA + k, t1))
    for k in range(4): a('v_cvt_pk_bf16_f32 v%d, v%d, v%d' % (vA + k, vA + k, vA + k))
    a('ds_write_b128 v14, %s offset:%d' % (vr(vA), L_P))
    vG = vA + 8
    a('v_add_f32 v%d, v%d, v%d' % (vG + 2, ls, mx))
    a('v_mov_b32 v%d, s6' % (vG + 3))
    for k in range(8): a('v_mov_b32 v%d, 0' % (vC0 + k))
    a('s_waitcnt lgkmcnt(0)')
    for z in range(8): a('ds_read_b128 %s, v15 offset:%d' % (vr(vP + 4 * z), L_P + 16 * z))
    getflag()
    a('s_and_b32 s58, s47, 0x00ff00ff'); a('s_mov_b32 s59, s58')
    a('s_andn2_b32 s60, 0x00ff00ff, s47'); a('s_mov_b32 s61, s60')
    a('s_waitcnt lgkmcnt(0)')
    stamp(6)
    for n in range(16):
        tb = vT + 8 * (n & 1)
        for kl in range(2):
            for r in range(4):
                a('v_and_b32 v%d, v%d, v%d' % (tb + 4 * kl + r, vP + 2 * n + kl, vM + r))
        a('s_waitcnt vmcnt(%d)' % (15 - n))
        a('v_mfma_f32_16x16x32_bf16 %s, %s, %s, %s' % (vr(vC0), vr(tb), vr(vV + 4 * n), vr(vC0)))
        a('v_mfma_f32_16x16x32_bf16 %s, %s, %s, %s' % (vr(vC1), vr(tb + 4), vr(vV + 4 * n), vr(vC1)))
    stamp(7)
    for r in range(4): dpp('v_add_f32', vC0 + r, vC1 + r, vC0 + r, 'row_ror:8')
    a('v_cvt_pk_bf16_f32 v%d, v%d, v%d' % (vG, vC0, vC0 + 1))
    a('v_cvt_pk_bf16_f32 v%d, v%d, v%d' % (vG + 1, vC0 + 2, vC0 + 3))
    store2(vG, 9, 57, 58, 60)
    a('s_mov_b64 exec, -1')
    a('s_barrier')
    stamp(8)
    a('s_cmp_ge_u32 s4, 16')
    a('s_cbranch_scc1 L_fkv')
    a('s_cmp_ge_u32 s4, 14')
    a('s_cbranch_scc1 L_fin')
    a('s_cmp_eq_u32 s5, 4')
    a('s_cbranch_scc0 L_exit')

    G0, G1, G2, G3 = 16, 20, 24, 28
    def scatter4(g):
        a('v_permlane32_swap_b32 v%d, v%d' % (g, g + 2))
        a('v_add_f32 v%d, v%d, v%d' % (g, g, g + 2))
        a('v_permlane32_swap_b32 v%d, v%d' % (g + 1, g + 3))
        a('v_add_f32 v%d, v%d, v%d' % (g + 1, g + 1, g + 3))
        a('v_permlane16_swap_b32 v%d, v%d' % (g, g + 1))
        a('v_add_f32 v%d, v%d, v%d' % (g, g, g + 1))
    def unpackn(gs):
        for g in gs: a('v_perm_b32 v%d, v%d, v%d, s%d' % (g + 3, g + 1, g, sUP))
        for g in gs: a('v_perm_b32 v%d, v%d, v%d, s%d' % (g + 3, g + 2, g + 3, sUP + 1))
    def pkadd(d, x, y):
        a('v_pk_add_f32 %s, %s, %s' % (vr(d, 2), vr(x, 2), vr(y, 2)))
    def sum2scatter():
        unpackn([G0, G1])
        pkadd(G0, G0, G1); pkadd(G0 + 2, G0 + 2, G1 + 2)
        scatter4(G0)
    a('s_lshl4_add_u32 s7, s3, s4')
    a('s_mul_i32 s44, s7, %d' % BLK)
    a('s_add_u32 s44, s44, 0x%x' % WS_HP)
    a('s_mul_i32 s45, s3, 15')
    a('s_add_u32 s45, s45, s4')
    a('s_lshl_b32 s45, s45, 7')
    a('s_add_u32 s45, s45, 0x%x' % WS_H1)
    a('v_mov_b32 v75, s6')
    a('s_barrier')
    poll('L_pp', ['buffer_load_dwordx4 %s, v8, s[20:23], s44 offen offset:%d sc1' % (vr(G0 + 4 * k), 1024 * k) for k in range(4)],
         [G0 + 3, G1 + 3, G2 + 3, G3 + 3])
    stamp(11)
    unpackn([G0, G1, G2, G3])
    pkadd(G0, G0, G1); pkadd(G2, G2, G3); pkadd(G0 + 2, G0 + 2, G1 + 2); pkadd(G2 + 2, G2 + 2, G3 + 2)
    pkadd(G0, G0, G2); pkadd(G0 + 2, G0 + 2, G2 + 2)
    scatter4(G0)
    dpp('v_add_f32', G1, G0, G0, 'row_ror:8')
    dpp('v_add_f32', G1 + 1, G0, G0, 'row_ror:8')
    a('v_permlane16_swap_b32 v%d, v%d' % (G1, G1 + 1))
    a('v_mov_b32 v%d, v%d' % (G1 + 2, G1))
    a('v_mov_b32 v%d, v%d' % (G1 + 3, G1 + 1))
    a('v_permlane32_swap_b32 v%d, v%d' % (G1, G1 + 2))
    a('v_permlane32_swap_b32 v%d, v%d' % (G1 + 1, G1 + 3))
    a('s_mov_b64 exec, 0xff')
    pack24(72, G1)
    a('buffer_store_dwordx4 v[72:75], v8, s[20:23], s45 offen sc1')
    stamp(12)
    a('s_branch L_exit')

    vW2 = 80
    a.label('L_w0')
    a('s_load_dwordx2 s[16:17], s[0:1], 32')
    a('s_and_b32 s55, s5, 1')
    a('s_lshl1_add_u32 s44, s55, 1')
    colvoff(3, 44)
    a('v_lshl_add_u32 v2, v11, 4, v10')
    a('v_subrev_u32 v2, 256, v2')
    a('s_lshr_b32 s7, s5, 1')
    a('s_lshl1_add_u32 s54, s4, s7')
    a('s_lshl_b32 s7, s3, 5')
    a('s_add_u32 s7, s7, s54')
    a('s_mul_i32 s45, s7, %d' % (16 * 896))
    a('s_add_u32 s46, s45, 7168')
    a('s_waitcnt lgkmcnt(0)')
    a('s_load_dword s6, s[20:21], 0')
    for t in range(4):
        for k in range(2):
            a('buffer_load_dwordx4 %s, v%d, s[16:19], s%d offen offset:%d %s' % (vr(vW2 + 16 * k + 4 * t), 2 + k, 45 + (t & 1), 3584 * (t >> 1), c['wnt']))
    a('s_branch L_aux')
    a.label('L_wt')
    a('v_lshrrev_b32 v10, 2, v1')
    a('v_bfe_u32 v11, v1, 1, 1')
    a('v_lshl_add_u32 v10, v10, 1, v11')
    a('v_and_b32 v11, 1, v1')
    a('v_lshlrev_b32 v11, 4, v11')
    a('v_lshl_add_u32 v12, v10, 6, v11')
    a('s_lshl4_add_u32 s7, s3, s4')
    a('s_mul_i32 s56, s7, %d' % BLK)
    a('s_add_u32 s44, s56, 0x%x' % WS_HP)
    a('s_add_u32 s45, s56, 0x%x' % WS_H0)
    a('s_and_b32 s7, s54, 1')
    a('s_lshl_b32 s7, s7, 5')
    a('s_add_u32 s56, s45, s7')
    a('v_bfe_u32 v10, v1, 3, 1')
    a('v_bfe_u32 v11, v1, 4, 1')
    a('v_lshl_add_u32 v10, v10, 1, v11')
    a('v_mul_u32_u24 v10, %d, v10' % BLK)
    a('v_and_b32 v11, 0x70, v8')
    a('v_add_u32 v9, v10, v11')
    a('s_lshl1_add_u32 s7, s3, s55')
    a('s_mul_i32 s57, s7, %d' % (8 * BLK))
    a('s_lshl_b32 s7, s54, 7')
    a('s_add_u32 s57, s57, s7')
    a('s_add_u32 s57, s57, 0x%x' % WS_HP)
    a('s_add_u32 s46, s57, %d' % (4 * BLK))
    a('s_cmp_eq_u32 s55, 1')
    a('s_cselect_b32 s7, 0x00ff00ff, -1')
    a('s_mov_b32 s58, s47'); a('s_mov_b32 s59, 0')
    a('s_not_b32 s60, s47'); a('s_mov_b32 s61, 0')
    a('s_and_b32 s62, s7, s47'); a('s_mov_b32 s63, 0')
    a('s_andn2_b32 s100, s7, s47'); a('s_mov_b32 s101, 0')
    if c['touch'] in ('r', 'rnt'):
        a('s_cmp_eq_u32 s5, 0')
        a('s_cbranch_scc0 L_notouch')
        a('v_and_b32 v10, 31, v1')
        a('v_lshlrev_b32 v10, 7, v10')
        a('v_lshrrev_b32 v11, 5, v1')
        a('v_mul_u32_u24 v11, 0x%x, v11' % (WS_HP - WS_H0))
        a('v_add_u32 v10, v10, v11')
        a('buffer_load_dword v13, v10, s[20:23], s45 offen %s' % ('sc1' if c['touch'] == 'r' else 'nt'))
        a.label('L_notouch')
    if c['touch'] == 'w':
        for k in range(4): a('v_mov_b32 v%d, 0' % (72 + k))
        a('s_mov_b64 exec, s[58:59]')
        a('buffer_store_dwordx4 v[72:75], v9, s[20:23], s57 offen')
        a('s_mov_b64 exec, s[62:63]')
        a('buffer_store_dwordx4 v[72:75], v9, s[20:23], s46 offen')
        a('s_mov_b64 exec, -1')
    a('v_mov_b32 v75, s6')
    a('v_mov_b32 v79, s6')
    a('s_barrier')
    a('s_barrier')
    stamp(8)
    poll('L_p0', ['buffer_load_dwordx4 %s, v12, s[20:23], s56 offen sc1' % vr(G0),
                  'buffer_load_dwordx4 %s, v12, s[20:23], s56 offen offset:2048 sc1' % vr(G1)],
         [G0 + 3, G1 + 3])
    stamp(9)
    M, T, Y, Z, WS_, W0, W1 = 24, 25, 28, 32, 26, 36, 37
    a('v_max_f32 v%d, v%d, v%d' % (M, G0 + 2, G1 + 2))
    a('v_lshlrev_b32 v%d, 16, v%d' % (Y, G0))
    a('v_and_b32 v%d, 0xffff0000, v%d' % (Y + 1, G0))
    dpp('v_max_f32', M, M, M, 'row_ror:4')
    a('v_lshlrev_b32 v%d, 16, v%d' % (Y + 2, G0 + 1))
    a('v_and_b32 v%d, 0xffff0000, v%d' % (Y + 3, G0 + 1))
    dpp('v_max_f32', M, M, M, 'row_ror:8')
    a('v_mov_b32 v%d, v%d' % (T, M))
    a('v_lshlrev_b32 v%d, 16, v%d' % (Z, G1))
    a('v_and_b32 v%d, 0xffff0000, v%d' % (Z + 1, G1))
    a('v_permlane16_swap_b32 v%d, v%d' % (M, T))
    a('v_max_f32 v%d, v%d, v%d' % (M, M, T))
    a('v_mov_b32 v%d, v%d' % (T, M))
    a('v_lshlrev_b32 v%d, 16, v%d' % (Z + 2, G1 + 1))
    a('v_and_b32 v%d, 0xffff0000, v%d' % (Z + 3, G1 + 1))
    a('v_permlane32_swap_b32 v%d, v%d' % (M, T))
    a('v_max_f32 v%d, v%d, v%d' % (M, M, T))
    a('v_sub_f32 v%d, v%d, v%d' % (W0, G0 + 2, M))
    a('v_sub_f32 v%d, v%d, v%d' % (W1, G1 + 2, M))
    a('v_exp_f32 v%d, v%d' % (W0, W0))
    a('v_exp_f32 v%d, v%d' % (W1, W1))
    for k in range(4): a('v_mul_f32 v%d, v%d, v%d' % (Y + k, Y + k, W0))
    a('v_add_f32 v%d, v%d, v%d' % (WS_, W0, W1))
    a('v_fmac_f32 v%d, v%d, v%d' % (Y, Z, W1))
    a('v_fmac_f32 v%d, v%d, v%d' % (Y + 2, Z + 2, W1))
    dpp('v_add_f32', WS_, WS_, WS_, 'row_ror:4')
    a('v_fmac_f32 v%d, v%d, v%d' % (Y + 1, Z + 1, W1))
    a('v_fmac_f32 v%d, v%d, v%d' % (Y + 3, Z + 3, W1))
    dpp('v_add_f32', WS_, WS_, WS_, 'row_ror:8')
    a('v_permlane32_swap_b32 v%d, v%d' % (Y, Y + 2))
    a('v_mov_b32 v%d, v%d' % (T, WS_))
    a('v_permlane32_swap_b32 v%d, v%d' % (Y + 1, Y + 3))
    a('v_add_f32 v%d, v%d, v%d' % (Y, Y, Y + 2))
    a('v_permlane16_swap_b32 v%d, v%d' % (WS_, T))
    a('v_add_f32 v%d, v%d, v%d' % (Y + 1, Y + 1, Y + 3))
    a('v_add_f32 v%d, v%d, v%d' % (WS_, WS_, T))
    a('v_mov_b32 v%d, v%d' % (T, WS_))
    a('v_permlane16_swap_b32 v%d, v%d' % (Y, Y + 1))
    a('v_add_f32 v%d, v%d, v%d' % (Y, Y, Y + 1))
    a('v_permlane32_swap_b32 v%d, v%d' % (WS_, T))
    a('v_add_f32 v%d, v%d, v%d' % (WS_, WS_, T))
    dpp('v_add_f32', Y, Y, Y, 'row_ror:4')
    a('v_rcp_f32 v%d, v%d' % (WS_, WS_))
    dpp('v_add_f32', Y, Y, Y, 'row_ror:8')
    a('v_mul_f32 v%d, v%d, v%d' % (Y, Y, WS_))
    a('v_cvt_pk_bf16_f32 v%d, v%d, v%d' % (Y, Y, Y))
    def rowmm(src, tiles):
        def mms(t):
            for d, w in tiles:
                a('v_mfma_f32_16x16x32_bf16 %s, %s, %s, %s' % (vr(d), vr(vT + 4 * t), vr(w + 4 * t), vr(d) if t else '0'))
        for t in range(4):
            for r in range(4):
                dpp('v_and_b32', vT + 4 * t + r, src, vM + r, 'quad_perm:[%d,%d,%d,%d]' % (t, t, t, t))
                if t > 0 and r == 1: mms(t - 1)
        mms(3)
    rowmm(Y, [(vC0, vW2), (vC1, vW2 + 16)])
    pack24(72, vC0)
    a('s_mov_b64 exec, s[58:59]')
    a('buffer_store_dwordx4 v[72:75], v9, s[20:23], s57 offen')
    a('s_mov_b64 exec, -1')
    pack24(76, vC1)
    store2(76, 9, 46, 62, 100)
    a('s_mov_b64 exec, s[60:61]')
    a('buffer_store_dwordx4 v[72:75], v9, s[20:23], s57 offen sc1')
    a('s_mov_b64 exec, -1')
    stamp(10)
    a('s_cmp_ge_u32 s4, 14')
    a('s_cbranch_scc0 L_bexit')

    a.label('L_fin')
    a('s_cmp_eq_u32 s3, 7')
    a('s_cbranch_scc1 L_exit')
    a('s_sub_u32 s54, s4, 14')
    a('s_lshl1_add_u32 s54, s3, s54')
    a('v_lshrrev_b32 v10, 3, v1')
    a('v_mul_u32_u24 v10, 1920, v10')
    a('v_and_b32 v11, 0x70, v8')
    a('v_add_u32 v9, v10, v11')
    a('v_lshrrev_b32 v12, 4, v1')
    a('v_and_b32 v13, 7, v1')
    a('v_lshl_add_u32 v14, v12, 3, v13')
    a('v_mul_u32_u24 v14, 48, v14')
    a('v_lshl_add_u32 v10, s5, 2, v14')
    a('s_lshl_b32 s44, s54, 7')
    a('s_cmp_eq_u32 s5, 7')
    a('s_cbranch_scc1 L_fin7')
    a('s_mul_i32 s7, s5, %d' % (16 * 1920))
    a('s_add_u32 s44, s44, s7')
    a('s_add_u32 s44, s44, 0x%x' % WS_H2)
    a('s_add_u32 s45, s44, %d' % (8 * 1920))
    a('s_barrier')
    poll('L_p2', ['buffer_load_dwordx4 %s, v9, s[20:23], s44 offen sc1' % vr(G0),
                  'buffer_load_dwordx4 %s, v9, s[20:23], s45 offen sc1' % vr(G1)],
         [G0 + 3, G1 + 3])
    stamp(13)
    sum2scatter()
    dpp('v_add_f32', G0, G0, G0, 'row_ror:8')
    a('ds_write_b32 v10, v%d offset:%d' % (G0, L_FR))
    a('s_waitcnt lgkmcnt(0)')
    a.label('L_bexit')
    a('s_barrier')
    a('s_branch L_exit')

    a.label('L_fin7')
    a('v_mov_b32 v11, 0')
    a('ds_write_b32 v10, v11 offset:%d' % L_FR)
    a('v_lshl_add_u32 v12, v13, 3, v12')
    a('v_lshlrev_b32 v12, 1, v12')
    a('s_lshr_b32 s45, s54, 1')
    a('s_lshl_b32 s45, s45, 7')
    a('s_and_b32 s7, s54, 1')
    a('s_lshl3_add_u32 s45, s7, s45')
    a('s_add_u32 s44, s44, 0x%x' % WS_H1)
    a('v_bfe_u32 v11, v1, 3, 1')
    a('v_lshl_add_u32 v14, v11, 4, v14')
    a('s_mov_b32 s58, 0x00ff00ff'); a('s_mov_b32 s59, 0x00ff00ff')
    a('s_barrier')
    a('buffer_load_ushort v15, v12, s[36:39], s45 offen')
    poll('L_p3', ['buffer_load_dwordx4 %s, v9, s[20:23], s44 offen sc1' % vr(G0)], [G0 + 3])
    stamp(10)
    unpackn([G0])
    scatter4(G0)
    a('v_lshlrev_b32 v15, 16, v15')
    dpp('v_add_f32', G0, G0, G0, 'row_ror:8')
    rnd(G0, G0)
    a('v_add_f32 v15, v%d, v15' % G0)
    rnd(15, 15)
    a('s_waitcnt lgkmcnt(0)')
    a('s_barrier')
    a('ds_read_b128 %s, v14 offset:%d' % (vr(G0), L_FR))
    a('s_waitcnt lgkmcnt(0)')
    stamp(13)
    pkadd(G0, G0, G0 + 2)
    a('v_add_f32 v%d, v%d, v%d' % (G0, G0, G0 + 1))
    dpp('v_add_f32', G0, G0, G0, 'row_ror:8')
    rnd(G0, G0)
    a('v_add_f32 v%d, v%d, v15' % (G0, G0))
    a('v_cvt_pk_bf16_f32 v%d, v%d, v%d' % (G0, G0, G0))
    a('s_mov_b64 exec, s[58:59]')
    a('buffer_store_short v%d, v12, s[40:43], s45 offen' % G0)
    a('s_cmp_lg_u32 s54, 0')
    a('s_cbranch_scc1 L_exit')
    a('v_mov_b32 v10, s6')
    a('s_mov_b64 exec, 1')
    a('buffer_store_dword v10, off, s[20:23], 0 sc1')
    a('s_branch L_exit')

    a.label('L_aux')
    fptrs()
    masks()
    a('v_lshlrev_b32 v8, 4, v1')
    if c['pf']:
        a('s_cmp_eq_u32 s5, 1')
        a('s_cbranch_scc0 L_nopf')
        a('s_getpc_b64 s[46:47]')
        a.label('L_pc')
        a('s_sub_u32 s46, s46, L_pc-%s_kernel' % NAME)
        a('s_subb_u32 s47, s47, 0')
        a('v_and_b32 v10, 3, v1')
        a('v_lshl_add_u32 v10, s4, 2, v10')
        a('v_lshlrev_b32 v10, 7, v10')
        a('v_mov_b32 v11, s47')
        a('v_cmp_gt_u32 vcc, L_last-%s_kernel, v10' % NAME)
        a('v_cndmask_b32 v10, 0, v10, vcc')
        a('v_add_co_u32 v10, vcc, s46, v10')
        a('s_nop 1')
        a('v_addc_co_u32 v11, vcc, 0, v11, vcc')
        a('global_load_dword v12, v[10:11], off')
        a.label('L_nopf')
    a('s_waitcnt lgkmcnt(0)')
    mktag()
    a('s_cmp_eq_u32 s5, 2')
    a('s_cbranch_scc0 L_aux1')
    a('s_getreg_b32 s44, hwreg(HW_REG_XCC_ID, 0, 4)')
    a('s_lshl_b32 s45, s3, 8')
    a('s_add_u32 s45, s45, 0x%x' % WS_X)
    a('s_lshl3_add_u32 s46, s4, s45')
    a('v_mov_b32 v12, s44')
    a('v_mov_b32 v13, s6')
    a('v_and_b32 v10, 31, v1')
    a('v_lshlrev_b32 v10, 3, v10')
    a('s_mov_b64 exec, 1')
    a('buffer_store_dwordx2 v[12:13], off, s[20:23], s46 sc1')
    a('s_mov_b64 exec, -1')
    a('s_waitcnt vmcnt(0)')
    poll('L_px', ['buffer_load_dwordx2 v[14:15], v10, s[20:23], s45 offen sc1'], [15])
    a('v_cmp_ne_u32_e64 s[96:97], s44, v14')
    a('s_or_b64 vcc, vcc, s[96:97]')
    a('s_cselect_b32 s7, 0, %d' % (0 if c['force_sc1'] else -1))
    a('v_mov_b32 v12, s7')
    a('v_mov_b32 v13, 0')
    a('ds_write_b32 v13, v12 offset:%d' % L_FLAG)
    a('s_waitcnt lgkmcnt(0)')
    a.label('L_aux1')
    a('s_barrier')
    a('v_mov_b32 v3, 0')
    a('ds_read_b32 v3, v3 offset:%d' % L_FLAG)
    a('s_waitcnt lgkmcnt(0)')
    getflag()
    a('s_cmp_ge_u32 s4, 16')
    a('s_cbranch_scc0 L_wt')
    a('s_branch L_ft')

    a.label('L_q0')
    a('s_cmp_eq_u32 s5, 0')
    a('s_cbranch_scc1 L_qw')
    a('s_waitcnt lgkmcnt(0)')
    a('s_load_dword s6, s[20:21], 0')
    a('s_barrier')
    a('s_cmp_ge_u32 s5, 4')
    a('s_cbranch_scc1 L_kv')
    a('s_branch L_aux')

    a.label('L_qw')
    vWQ, vXN = 16, 128
    a('s_load_dwordx2 s[36:37], s[0:1], 0')
    a('s_load_dwordx2 s[16:17], s[0:1], 24')
    srd(36, 896)
    a('v_lshlrev_b32 v8, 4, v1')
    a('v_lshrrev_b32 v12, 3, v1')
    a('v_mul_u32_u24 v3, %d, v12' % (28 * 8192))
    a('v_and_b32 v10, 0x70, v8')
    a('v_add_u32 v3, v3, v10')
    a('s_and_b32 s44, s4, 1')
    a('s_bfe_u32 s55, s4, 0x30001')
    a('s_mul_i32 s45, s44, %d' % (224 * 8192))
    a('s_lshl3_add_u32 s7, s3, s55')
    a('s_lshl_b32 s7, s7, 7')
    a('s_add_u32 s45, s45, s7')
    a('s_movk_i32 s46, 0x2000')
    a('s_waitcnt lgkmcnt(0)')
    stamp(1)
    a('buffer_load_dwordx4 %s, v8, s[36:39], 0 offen' % vr(vA))
    a('s_load_dword s6, s[20:21], 0')
    for n in range(28):
        a('buffer_load_dwordx4 %s, v3, s[16:19], s45 offen %s' % (vr(vWQ + 4 * n), c['wnt']))
        if n < 27: a('s_add_u32 s45, s45, s46')
    a('s_barrier')
    stamp(2)
    fptrs(False)
    masks()
    a('s_mov_b32 s58, -1'); a('s_mov_b32 s59, 0x00ffffff')
    a('s_mov_b32 s62, %s' % f32(1.0 / 448))
    x = vA + 8
    def wavesum(r):
        for ctl in (QP1, QP2, 'row_half_mirror', 'row_mirror'): dpp('v_add_f32', r, r, r, ctl)
        dpp('v_add_f32', r, r, r, 'row_bcast:15', 'row_mask:0xa bank_mask:0xf')
        dpp('v_add_f32', r, r, r, 'row_bcast:31', 'row_mask:0xc bank_mask:0xf')
        a('v_readlane_b32 s7, v%d, 63' % r)
        a('v_mov_b32 v%d, s62' % r)
        a('v_mul_f32 v%d, s7, v%d' % (r, r))
    a('s_waitcnt vmcnt(28)')
    for k in range(4):
        a('v_lshlrev_b32 v%d, 16, v%d' % (x + 2 * k, vA + k))
        a('v_and_b32 v%d, 0xffff0000, v%d' % (x + 2 * k + 1, vA + k))
    for k in range(4): a('v_add_f32 v%d, v%d, v%d' % (vA + k, x + 2 * k, x + 2 * k + 1))
    a('v_add_f32 v%d, v%d, v%d' % (vA, vA, vA + 1))
    a('v_add_f32 v%d, v%d, v%d' % (vA + 2, vA + 2, vA + 3))
    a('v_add_f32 v%d, v%d, v%d' % (vA, vA, vA + 2))
    wavesum(vA)
    a('v_mov_b32 v%d, 0' % (vA + 1))
    for k in range(8):
        a('v_sub_f32 v%d, v%d, v%d' % (vA + 2, x + k, vA))
        a('v_fmac_f32 v%d, v%d, v%d' % (vA + 1, vA + 2, vA + 2))
    a('v_cndmask_b32_e64 v%d, 0, v%d, s[58:59]' % (vA + 1, vA + 1))
    rnd(vA, vA)
    wavesum(vA + 1)
    rnd(vA + 1, vA + 1)
    a('v_add_f32 v%d, %s, v%d' % (vA + 1, f32(1e-5), vA + 1))
    rnd(vA + 1, vA + 1)
    a('v_sqrt_f32 v%d, v%d' % (vA + 1, vA + 1))
    rnd(vA + 1, vA + 1)
    a('v_rcp_f32 v%d, v%d' % (vA + 1, vA + 1))
    for k in range(8): a('v_sub_f32 v%d, v%d, v%d' % (x + k, x + k, vA))
    for k in range(8): rnd(x + k, x + k)
    for k in range(8): a('v_mul_f32 v%d, v%d, v%d' % (x + k, x + k, vA + 1))
    for k in range(8): a('v_cvt_pk_bf16_f32 v%d, v%d, v%d' % (x + k, x + k, x + k))
    a('v_lshlrev_b32 v10, 5, v1')
    a('ds_write_b128 v10, %s offset:%d' % (vr(x), L_XN))
    a('ds_write_b128 v10, %s offset:%d' % (vr(x + 4), L_XN + 16))
    a('v_mul_u32_u24 v11, 112, v12')
    a('s_mul_i32 s7, s44, 896')
    a('v_add_u32 v11, s7, v11')
    a('s_waitcnt lgkmcnt(0)')
    for z in range(7): a('ds_read_b128 %s, v11 offset:%d' % (vr(vXN + 4 * z), L_XN + 16 * z))
    mktag()
    a('v_and_b32 v10, 7, v1')
    a('v_lshlrev_b32 v10, 6, v10')
    a('v_bfe_u32 v11, v1, 4, 1')
    a('v_lshl_add_u32 v10, v11, 5, v10')
    a('v_lshrrev_b32 v11, 5, v1')
    a('v_lshl_add_u32 v9, v11, 4, v10')
    a('s_lshr_b32 s7, s55, 1')
    a('s_lshl2_add_u32 s7, s3, s7')
    a('s_lshl1_add_u32 s7, s7, s44')
    a('s_and_b32 s45, s55, 1')
    a('s_lshl1_add_u32 s7, s7, s45')
    a('s_lshl_b32 s57, s7, 9')
    a('s_add_u32 s57, s57, 0x%x' % WS_Q)
    a('s_mov_b32 s58, 0x00ff00ff'); a('s_mov_b32 s59, 0x00ff00ff')
    qc = vA + 16
    a('v_mov_b32 v%d, s6' % (vA + 22))
    a('v_mov_b32 v%d, s6' % (vA + 23))
    a('s_waitcnt lgkmcnt(0)')
    stamp(3)
    for n in range(28):
        tb = vA + 4 * (n & 1)
        for r in range(4): a('v_and_b32 v%d, v%d, v%d' % (tb + r, vXN + n, vM + r))
        a('s_waitcnt vmcnt(%d)' % (27 - n))
        a('v_mfma_f32_16x16x32_bf16 %s, %s, %s, %s' % (vr(qc), vr(tb), vr(vWQ + 4 * n), vr(qc) if n else '0'))
    stamp(4)
    for r in range(4): a('v_mov_b32_dpp v%d, v%d row_ror:8 row_mask:0xc bank_mask:0xf' % (qc + r, qc + r))
    a('v_permlane32_swap_b32 v%d, v%d' % (qc, qc + 2))
    a('v_permlane32_swap_b32 v%d, v%d' % (qc + 1, qc + 3))
    a('v_add_f32 v%d, v%d, v%d' % (vA + 20, qc, qc + 2))
    a('v_add_f32 v%d, v%d, v%d' % (vA + 21, qc + 1, qc + 3))
    a('s_mov_b64 exec, s[58:59]')
    a('buffer_store_dwordx4 %s, v9, s[20:23], s57 offen sc1' % vr(vA + 20))
    a('s_mov_b64 exec, -1')
    if c['stamps']:
        a('s_waitcnt vmcnt(0)')
        stamp(5)
    a('s_branch L_aux1')

    a.label('L_fkv')
    a('s_cmp_eq_u32 s3, 7')
    a('s_cbranch_scc1 L_exit')
    a('s_cmp_eq_u32 s5, 7')
    a('s_cbranch_scc0 L_fall')
    for k in range(4): a('v_mov_b32 v%d, 0' % (G0 + k))
    a('v_and_b32 v13, 15, v1')
    a('v_mul_u32_u24 v10, 144, v13')
    a('ds_write_b128 v10, %s offset:%d' % (vr(G0), L_GU + 112))
    a('ds_write_b64 v%d, %s offset:%d' % (G0, vr(G0, 2), L_STAT + 56))
    a('s_waitcnt lgkmcnt(0)')
    a('s_branch L_exit')

    a.label('L_ft')
    a('s_cmp_eq_u32 s3, 7')
    a('s_cbranch_scc1 L_exit')
    a('s_sub_u32 s54, s4, 16')
    a('s_lshl4_add_u32 s54, s3, s54')
    a('v_bfe_u32 v10, v1, 1, 3')
    a('v_lshrrev_b32 v12, 4, v1')
    a('v_lshl_add_u32 v10, v10, 3, v12')
    a('v_mul_u32_u24 v10, 3584, v10')
    a('v_and_b32 v11, 1, v1')
    a('v_lshl_add_u32 v2, v11, 4, v10')
    a('s_and_b32 s7, s5, 1')
    a('s_mul_i32 s44, s7, %d' % (4 * 3584))
    a('s_lshl_b32 s7, s54, 5')
    a('s_add_u32 s44, s44, s7')
    a('s_cmp_ge_u32 s5, 2')
    a('s_cselect_b64 s[24:25], s[28:29], s[24:25]')
    a('s_lshl_b32 s55, s5, 10')
    a('s_add_u32 s55, s55, %d' % L_T)
    colvoff(3, 5)
    a('s_mul_i32 s45, s54, %d' % (16 * 896))
    a('s_add_u32 s46, s45, 7168')
    if c['rot']:
        a('s_and_b32 s7, s4, 3')
        a('s_lshl_b32 s7, s7, 1')
        for i in range(7):
            a('s_mul_i32 s%d, s7, %d' % (56 + i, 64 * 3584))
            a('s_add_u32 s%d, s%d, s44' % (56 + i, 56 + i))
            a('s_lshl_b32 s%d, s7, 12' % (8 + i))
            a('s_add_u32 s%d, s%d, s55' % (8 + i, 8 + i))
            a('s_add_u32 s7, s7, 1')
            a('s_cmp_eq_u32 s7, 7')
            a('s_cselect_b32 s7, 0, s7')
    else:
        for i in range(7):
            a('s_add_u32 s%d, s44, %d' % (56 + i, i * 64 * 3584))
            a('s_add_u32 s%d, s55, %d' % (8 + i, i * 4096))
    if c['fake']:
        a('v_lshrrev_b32 v10, 3, v1')
        a('v_mul_u32_u24 v10, 3584, v10')
        a('v_and_b32 v11, 0x70, v8')
        a('v_add_u32 v2, v10, v11')
        a('s_and_b32 s7, s54, 3')
        a('s_lshl1_add_u32 s7, s7, s5')
        a('s_and_b32 s7, s7, 7')
        a('s_mul_i32 s44, s7, %d' % (56 * 3584))
        a('s_lshr_b32 s7, s54, 2')
        a('s_lshl_b32 s7, s7, 7')
        a('s_add_u32 s44, s44, s7')
        for i in range(7): a('s_add_u32 s%d, s44, %d' % (56 + i, i * 8 * 3584))
    a('s_mov_b32 m0, s8')
    if c['fake'] != 2: a('s_barrier')
    if c['fake'] < 2: a('s_barrier')
    stamp(8)
    for i in range(7):
        a('buffer_load_dwordx4 v2, s[24:27], s%d offen %s lds' % (56 + i, c['gunt']))
        if i < 6: a('s_mov_b32 m0, s%d' % (9 + i))
    for t in range(4):
        a('buffer_load_dwordx4 %s, v3, s[32:35], s%d offen offset:%d %s' % (vr(vW + 4 * t), 45 + (t >> 1), 3584 * (t & 1), c['dnt']))
    if c['fake'] == 2: a('s_barrier')
    if c['fake'] >= 2: a('s_barrier')
    a.label('L_fall')
    vX = 15
    a('v_lshrrev_b32 v12, 4, v1')
    a('v_and_b32 v13, 15, v1')
    a('v_and_b32 v10, 0x70, v8')
    a('v_and_b32 v11, 8, v1')
    a('v_add_u32 v10, v10, v11')
    a('v_lshl_add_u32 v10, v12, 1, v10')
    a('s_lshl_b32 s7, s5, 7')
    a('buffer_load_ushort v%d, v10, s[36:39], s7 offen' % vX)
    a('v_mul_u32_u24 v9, 1920, v12')
    a('v_lshl_add_u32 v9, v13, 4, v9')
    a('s_lshl_b32 s44, s5, 8')
    a('s_add_u32 s44, s44, 0x%x' % WS_H1)
    a('s_add_u32 s45, s44, 7680')
    a('s_lshl_b32 s55, s5, 12')
    a('s_add_u32 s55, s55, %d' % L_T)
    vB, vAX = 80, 96
    if True:
        a('v_lshlrev_b32 v10, 3, v13')
        a('v_lshl_add_u32 v10, v12, 8, v10')
        a('v_add_u32 v10, s55, v10')
        for k in range(8): a('v_mov_b32 v%d, 0x3f803f80' % (vAX + k))
        a('v_and_b32 v14, 0x70, v8')
        a('v_bfe_u32 v11, v1, 3, 1')
        a('v_lshl_add_u32 v14, v11, 8, v14')
        a('v_lshl_add_u32 v14, v12, 7, v14')
        a('v_lshrrev_b32 v11, 5, v1')
        a('s_lshl_b32 s63, s5, 1')
        a('v_add_u32 v11, s63, v11')
        a('v_mul_u32_u24 v28, 144, v13')
        a('v_lshl_add_u32 v28, v11, 3, v28')
        a('v_add_u32 v28, %d, v28' % L_GU)
        a('v_lshlrev_b32 v29, 6, v13')
        a('v_lshl_add_u32 v29, v11, 2, v29')
        a('v_and_b32 v11, 3, v1')
        a('v_lshl_add_u32 v11, v11, 2, v12')
        a('v_mul_u32_u24 v30, 144, v11')
        a('v_bfe_u32 v31, v1, 2, 2')
        a('v_lshl_add_u32 v30, v31, 5, v30')
        a('v_lshlrev_b32 v31, 4, v31')
        a('s_mov_b32 s60, 0xffff'); a('s_mov_b32 s61, 0xffff')
        a('s_cmp_eq_u32 s5, 3')
        a('s_cselect_b32 s58, 0x00ff00ff, -1')
        a('s_mov_b32 s59, 0')
        a('s_mul_i32 s57, s54, 1920')
        a('s_lshl_b32 s63, s5, 9')
        a('s_add_u32 s57, s57, s63')
        a('s_add_u32 s57, s57, 0x%x' % WS_H2)
        a('s_mov_b32 s62, %s' % f32(1.0 / 448))
        a('v_mov_b32 v75, s6')
        a('s_waitcnt vmcnt(0)')
        a('s_barrier')
        stamp(9)
    def fsetup():
        for k in range(4):
            for u in range(2):
                a('ds_read_b64_tr_b16 %s, v10 offset:%d' % (vr(vB + 4 * k + 2 * u, 2), 1024 * k + 128 * u))
        a('v_lshlrev_b32 v%d, 16, v%d' % (vX, vX))
    poll('L_p1', ['buffer_load_dwordx4 %s, v9, s[20:23], s44 offen sc1' % vr(G0),
                  'buffer_load_dwordx4 %s, v9, s[20:23], s45 offen sc1' % vr(G1)],
         [G0 + 3, G1 + 3], between=fsetup)
    stamp(10)
    sum2scatter()
    rnd(G0, G0)
    a('v_add_f32 v%d, v%d, v%d' % (G0, G0, vX))
    rnd(G0 + 1, G0)
    a('v_cvt_pk_bf16_f32 v%d, v%d, 0' % (G0, G0))
    dpp('v_or_b32', G0, G0 + 1, G0, 'quad_perm:[1,1,3,3]')
    DG, DU, DS = 104, 108, 112
    mm = lambda d, aa, bb, cc: a('v_mfma_f32_16x16x32_bf16 %s, %s, %s, %s' % (vr(d), vr(aa), vr(bb), vr(d) if cc else '0'))
    for k in range(8):
        a('v_mov_b32_dpp v%d, v%d row_newbcast:%d row_mask:0xf bank_mask:0x3' % (vAX + k, G0, 2 * k))
    a('s_waitcnt lgkmcnt(0)')
    mm(DS, vAX, vAX, 0); mm(DG, vAX, vB, 0); mm(DU, vAX, vB + 8, 0)
    mm(DS, vAX + 4, vAX + 4, 1); mm(DG, vAX + 4, vB + 4, 1); mm(DU, vAX + 4, vB + 12, 1)
    a('s_mov_b64 exec, s[60:61]')
    a('ds_write_b32 v29, v%d offset:%d' % (DS, L_STAT))
    a('ds_write2_b32 v28, v%d, v%d offset0:0 offset1:1' % (DG, DU))
    a('s_mov_b64 exec, -1')
    a('s_waitcnt lgkmcnt(0)')
    a('s_barrier')
    a('s_cmp_ge_u32 s5, 4')
    a('s_cbranch_scc1 L_exit')
    R0, R1, R2 = 16, 20, 24
    a('ds_read_b128 %s, v31 offset:%d' % (vr(R2), L_STAT))
    a('ds_read_b128 %s, v30 offset:%d' % (vr(R0), L_GU))
    a('ds_read_b128 %s, v30 offset:%d' % (vr(R1), L_GU + 16))
    k0 = 2 * math.sqrt(2 / math.pi) * math.log2(math.e)
    a('v_mov_b32 v32, %s' % f32(-k0))
    a('s_mov_b32 s63, %s' % f32(-k0 * 0.044715))
    a('s_waitcnt lgkmcnt(0)')
    stamp(11)
    S2, S1 = R2, R2 + 1
    a('v_add_f32 v%d, v%d, v%d' % (S1, S1, S1 + 2))
    a('v_add_f32 v%d, v%d, v%d' % (S2, S2, S2 + 2))
    a('v_add_f32 v%d, v%d, v%d' % (R0, R0, R1))
    dpp('v_add_f32', S1, S1, S1, 'row_ror:4')
    dpp('v_add_f32', S2, S2, S2, 'row_ror:4')
    a('v_add_f32 v%d, v%d, v%d' % (R0 + 1, R0 + 1, R1 + 1))
    dpp('v_add_f32', S1, S1, S1, 'row_ror:8')
    dpp('v_add_f32', S2, S2, S2, 'row_ror:8')
    a('v_mul_f32 v%d, s62, v%d' % (S1, S1))
    a('v_mul_f32 v%d, s62, v%d' % (S2, S2))
    a('v_fma_f32 v%d, -v%d, v%d, v%d' % (S2, S1, S1, S2))
    a('v_add_f32 v%d, v%d, v%d' % (R0 + 2, R0 + 2, R1 + 2))
    a('v_max_f32 v%d, 0, v%d' % (S2, S2))
    a('v_add_f32 v%d, v%d, v%d' % (R0 + 3, R0 + 3, R1 + 3))
    rnd(S2, S2)
    rnd(S1, S1)
    a('v_add_f32 v%d, %s, v%d' % (S2, f32(1e-5), S2))
    a('v_fma_f32 v%d, -v%d, v%d, v%d' % (R0, S1, R0 + 2, R0))
    rnd(S2, S2)
    a('v_fma_f32 v%d, -v%d, v%d, v%d' % (R0 + 1, S1, R0 + 3, R0 + 1))
    a('v_sqrt_f32 v%d, v%d' % (S2, S2))
    dpp('v_add_f32', R0, R0, R0, 'row_ror:4')
    dpp('v_add_f32', R0 + 1, R0 + 1, R0 + 1, 'row_ror:4')
    rnd(S2, S2)
    dpp('v_add_f32', R0, R0, R0, 'row_ror:8')
    a('v_rcp_f32 v%d, v%d' % (S2, S2))
    dpp('v_add_f32', R0 + 1, R0 + 1, R0 + 1, 'row_ror:8')
    a('v_mul_f32 v%d, v%d, v%d' % (R0, R0, S2))
    a('v_mul_f32 v%d, v%d, v%d' % (R0 + 1, R0 + 1, S2))
    rnd(R0, R0)
    rnd(R0 + 1, R0 + 1)
    a('v_mul_f32 v%d, v%d, v%d' % (R1, R0, R0))
    a('v_fmac_f32 v32, s63, v%d' % R1)
    a('v_mul_f32 v%d, v32, v%d' % (R1, R0))
    a('v_exp_f32 v%d, v%d' % (R1, R1))
    a('v_add_f32 v%d, 1.0, v%d' % (R1, R1))
    a('v_rcp_f32 v%d, v%d' % (R1, R1))
    a('v_mul_f32 v%d, v%d, v%d' % (R0, R0, R1))
    rnd(R0, R0)
    a('v_mul_f32 v%d, v%d, v%d' % (R0, R0, R0 + 1))
    a('v_cvt_pk_bf16_f32 v%d, v%d, v%d' % (R0, R0, R0))
    rowmm(R0, [(vC0, vW)])
    a('s_mov_b64 exec, s[58:59]')
    pack24(72, vC0)
    a('buffer_store_dwordx4 v[72:75], v14, s[20:23], s57 offen sc1')
    stamp(12)
    a.label('L_exit')
    if c['probe']:
        k, base, mult = c['probe']
        stamp(14)
        a('s_waitcnt lgkmcnt(0)')
        a('s_cmp_eq_u32 s%d, 0' % (64 + 2 * k))
        a('s_cbranch_scc1 L_end')
        a('s_sub_u32 s7, s%d, s64' % (64 + 2 * k))
        a('s_min_u32 s7, s7, 10000')
        a('s_mul_i32 s7, s7, %d' % mult)
        a('s_add_u32 s7, s7, %d' % base)
        a.label('L_spin')
        a('s_sleep 4')
        a('s_memrealtime s[94:95]')
        a('s_waitcnt lgkmcnt(0)')
        a('s_sub_u32 s44, s94, s64')
        a('s_cmp_lt_u32 s44, s7')
        a('s_cbranch_scc1 L_spin')
    elif c['stamps']:
        stamp(14)
        a('s_waitcnt vmcnt(0)')
        stamp(15)
        a('s_mov_b64 exec, 1')
        a('s_lshl3_add_u32 s7, s2, s5')
        a('s_lshl_b32 s7, s7, 6')
        a('s_add_u32 s7, s7, 0x%x' % WS_ST)
        a('s_waitcnt lgkmcnt(0)')
        for k in range(16): a('v_mov_b32 v%d, s%d' % (16 + k, 64 + 2 * k))
        for k in range(4): a('buffer_store_dwordx4 %s, off, s[20:23], s7 offset:%d' % (vr(16 + 4 * k), 16 * k))
    a.label('L_end')
    a('s_endpgm')
    for name, loads in retry:
        a.label(name + '_retry')
        a('s_add_u32 s7, s7, 1')
        a('s_cmp_ge_u32 s7, %d' % SPIN)
        a('s_cbranch_scc1 %s_ok' % name)
        for t in loads: a(t)
        a('s_waitcnt vmcnt(0)')
        a('s_branch %s_chk' % name)
    a.label('L_last')
    a('s_endpgm')

    ref = open(os.path.join(os.path.dirname(os.path.abspath(__file__)), 'header.txt')).read()
    head = ref + '; @launch grid=(256,1,1) block=(512,1,1) lds=%d\n' % LDS_BYTES
    head += '.amdgcn_target "amdgcn-amd-amdhsa--gfx950"\n.text\n.globl {N}_kernel\n.p2align 8\n.type {N}_kernel,@function\n{N}_kernel:\n'.replace('{N}', NAME)
    foot = """.section .rodata,"a"
.p2align 6
.amdhsa_kernel {N}_kernel
  .amdhsa_next_free_vgpr 224
  .amdhsa_next_free_sgpr 102
  .amdhsa_accum_offset 224
  .amdhsa_group_segment_fixed_size 0
  .amdhsa_kernarg_size 96
  .amdhsa_float_denorm_mode_32 3
  .amdhsa_user_sgpr_count 2
  .amdhsa_user_sgpr_kernarg_segment_ptr 1
  .amdhsa_system_sgpr_workgroup_id_x 1
.end_amdhsa_kernel
""".replace('{N}', NAME)
    return head + a.text() + foot

if __name__ == '__main__':
    out = sys.argv[1] if len(sys.argv) > 1 else 'cdna_kernels/%s.s' % NAME
    kw = eval('dict(%s)' % sys.argv[2]) if len(sys.argv) > 2 else {}
    open(out, 'w').write(gen(**kw))
```

```python
import re

TRANS = ('v_exp_f32', 'v_log_f32', 'v_rcp_f32', 'v_rsq_f32', 'v_sqrt_f32')

def regs(tok):
    tok = tok.strip().lstrip('-')
    tok = re.sub(r'^abs\((.*)\)$', r'\1', tok)
    tok = tok.strip('|')
    m = re.fullmatch(r'([vsa])(\d+)', tok)
    if m: return {(m.group(1), int(m.group(2)))}
    m = re.fullmatch(r'([vsa])\[(\d+):(\d+)\]', tok)
    if m: return {(m.group(1), i) for i in range(int(m.group(2)), int(m.group(3)) + 1)}
    if tok == 'vcc': return {('s', 'vcc')}
    if tok == 'm0': return {('s', 'm0')}
    if tok == 'exec': return {('s', 'exec')}
    return set()

class Ins:
    def __init__(self, text):
        self.text = text
        body = text.split(';')[0].strip()
        self.op = body.split()[0]
        rest = body[len(self.op):].strip()
        parts = re.split(r',\s*(?![^\[]*\])', rest) if rest else []
        if parts:
            last = parts[-1].split()
            self.mods = ' '.join(last[1:])
            parts[-1] = last[0]
        else:
            self.mods = ''
        self.ops = parts
        op = self.op
        self.valu = op.startswith('v_')
        self.mfma = op.startswith('v_mfma')
        self.dot = op.startswith('v_dot')
        self.trans = any(op.startswith(t) for t in TRANS)
        self.dpp = '_dpp' in op
        self.swap = op.startswith('v_permlane')
        self.lane = op.startswith('v_readlane') or op.startswith('v_readfirstlane')
        self.vmem = op.startswith('buffer_') or op.startswith('global_')
        self.ds = op.startswith('ds_')
        self.salu = op.startswith('s_')
        self.dma = self.vmem and (' lds' in ' ' + self.mods or 'load_lds' in op)
        R = [regs(p) for p in parts]
        U = lambda l: set().union(*l) if l else set()
        self.srcc = set()
        self.data = set()
        if self.mfma:
            self.w, self.r, self.srcc = R[0], R[1] | R[2], R[3]
        elif self.swap:
            self.w = self.r = R[0] | R[1]
        elif self.valu:
            self.w, self.r = R[0], U(R[1:])
            if op.startswith(('v_fmac', 'v_dot2c')) or self.dpp: self.r = self.r | R[0]
            if op.startswith('v_cndmask') and len(parts) == 3: self.r = self.r | {('s', 'vcc')}
        elif self.vmem:
            if 'store' in op:
                self.w, self.r = set(), U(R)
                if 'x3' in op or 'x4' in op: self.data = R[0]
            elif self.dma:
                self.w, self.r = set(), U(R) | {('s', 'm0')}
            else:
                self.w, self.r = R[0], U(R[1:])
        elif self.ds:
            if op.startswith('ds_read'): self.w, self.r = R[0], U(R[1:])
            else: self.w, self.r = set(), U(R)
        else:
            self.w, self.r = (R[0] if R else set()), U(R[1:])
        self.states = 1
        if op == 's_nop': self.states = int(parts[0], 0) + 1

def need(p, c):
    n = 0
    vw = {x for x in p.w if x[0] in 'va'}
    sw = {x for x in p.w if x[0] == 's'}
    if p.mfma:
        if c.mfma:
            if vw & c.r: n = max(n, 8)
            if vw & c.srcc and vw != c.srcc: n = max(n, 6)
        elif c.valu and vw & (c.r | c.w): n = max(n, 8)
        elif (c.vmem or c.ds) and vw & (c.r | c.w): n = max(n, 8)
        if c.valu and not c.mfma and p.srcc & c.w: n = max(n, 3)
    elif p.valu:
        if p.dot and c.op != p.op and vw & (c.r | c.w | c.srcc): n = max(n, 3)
        if c.mfma and vw & (c.r | c.srcc): n = max(n, 2)
        if (c.dpp or c.swap) and vw & c.r: n = max(n, 2)
        if c.lane and vw & c.r: n = max(n, 1)
        if p.trans and c.valu and vw & c.r: n = max(n, 1)
        if c.valu and sw & c.r: n = max(n, 2)
        if c.vmem and sw & c.r: n = max(n, 5)
    elif p.vmem and p.data:
        if c.valu and p.data & c.w: n = max(n, 2)
        elif p.data & c.w: n = max(n, 1)
    elif p.salu:
        if ('s', 'm0') in p.w and c.dma: n = max(n, 1)
    return n

class Asm:
    def __init__(self):
        self.lines = []
        self.hist = []
        self.nops = 0
        self.secs = {'main': self.lines}
    def section(self, name):
        self.lines = self.secs.setdefault(name, [])
        self.hist = []
    def raw(self, text):
        self.lines.append(text)
    def label(self, name):
        self.lines.append(name + ':')
    def cmt(self, text):
        self.lines.append('    ; ' + text)
    def __call__(self, text):
        for t in text.split('\n'):
            t = t.strip()
            if not t: continue
            if t.startswith(';'):
                self.lines.append('    ' + t); continue
            c = Ins(t)
            dist, pad = 0, 0
            for p in reversed(self.hist):
                pad = max(pad, need(p, c) - dist)
                dist += p.states
                if dist >= 12: break
            if pad > 0:
                self.lines.append('    s_nop %d' % (pad - 1))
                self.hist.append(Ins('s_nop %d' % (pad - 1)))
                self.nops += pad
            self.lines.append('    ' + t)
            self.hist.append(c)
            if c.op in ('s_branch', 's_endpgm'): self.hist = []
    def text(self, order=('main',)):
        assert sorted(order) == sorted(self.secs)
        return '\n'.join(l for n in order for l in self.secs[n]) + '\n'
```

```python
import sys, os, struct, math
sys.path.insert(0, os.path.dirname(os.path.abspath(__file__)))
from emit import Asm

NAME = 'sequential_preLN__sliding_block_cached__geglu_ffn__decode'

WS_X = 0x14000
WS_Q = 0x4000
BLK = 4096 + 128
WS_H0 = 0x20000
GXS = 1024 + 128
WS_QB = 0xA8000
WS_XB = 0xB8000
WS_GX = 0xC0000
HS = 1920
WS_H1 = 0x100000
WS_H2 = 0x110000
WS_ST = 0x200000

L_QL = 0
L_S = 1024
L_P = 2048
L_XN = 6400
L_WT = 3200
L_GATE = 8448
L_STAT = 8704
L_RED = 9728
L_T = 14848
LDS_BYTES = L_T + 8 * 4096

SPIN = 20000

def f32(x):
    return '0x%08x' % struct.unpack('<I', struct.pack('<f', x))[0]

def vr(a, n=4):
    return 'v[%d:%d]' % (a, a + n - 1)

DEF = dict(depth=6, dv=0, gq=14, ga=16, na=16, nb=16, pvd=6, dx=0, stamps=None, rs=1, rg=0, touch='vv',
           force_sc1=False, probe=None, wo_at=3, qdual=6, ldual=40, gall=1, qh=0, pf=True, tf='', qt='v', prio=0, align=12)

def gen(**kw):
    c = dict(DEF); c.update(kw)
    a = Asm()
    D = c['depth']
    DV = c['dv'] or D
    DX = c['dx']
    diag = bool(c['stamps'])
    def stamp(k):
        if diag: a('%s s[%d:%d]' % (c['stamps'], 64 + 2 * k, 65 + 2 * k))
    def leave():
        a('s_branch L_exit' if diag else 's_endpgm')
    nlab = [0]
    def leave_if(cond):
        if diag:
            a('s_cbranch_%s L_exit' % cond)
        else:
            nlab[0] += 1
            a('s_cbranch_%s L_stay%d' % ('scc1' if cond == 'scc0' else 'scc0', nlab[0]))
            h = list(a.hist)
            a('s_endpgm')
            a.hist = h
            a.label('L_stay%d' % nlab[0])
    def srd(base, size):
        a('s_mov_b32 s%d, 0x%x' % (base + 2, size))
        a('s_mov_b32 s%d, 0x20000' % (base + 3))
    def mktag():
        a('s_mul_i32 s6, s6, 0x9e3779b1')
        a('s_add_u32 s6, s6, 0x7f4a7c15')
    def rnd(d, s):
        a('v_cvt_pk_bf16_f32 v%d, 0, v%d' % (d, s))
    QP1, QP2 = 'quad_perm:[1,0,3,2]', 'quad_perm:[2,3,0,1]'
    FULL = 'row_mask:0xf bank_mask:0xf'
    def dpp(op, d, s0, s1, ctl, mask=FULL):
        a('%s_dpp v%d, v%d, v%d %s %s' % (op, d, s0, s1, ctl, mask))
    def mfma(d, x, y, acc):
        a('v_mfma_f32_16x16x32_bf16 %s, %s, %s, %s' % (vr(d), vr(x), vr(y), vr(d) if acc else '0'))
    def pkadd(d, x, y):
        a('v_pk_add_f32 %s, %s, %s' % (vr(d, 2), vr(x, 2), vr(y, 2)))
    def masks():
        a('v_and_b32 v10, 1, v1')
        a('v_lshlrev_b32 v10, 4, v10')
        a('s_mov_b32 s7, 0xffff')
        a('v_lshlrev_b32_e64 v10, v10, s7')
        a('v_bfe_u32 v11, v1, 1, 2')
        for r in range(4):
            a('v_cmp_eq_u32 vcc, %d, v11' % r)
            a('v_cndmask_b32 v%d, 0, v10, vcc' % (vM + r))
    def pack24(d, s):
        for k in range(3):
            a('v_perm_b32 v%d, v%d, v%d, s%d' % (d + k, s + k, s + 3, sPK + k))
    def unpackn(gs):
        for g in gs: a('v_perm_b32 v%d, v%d, v%d, s%d' % (g + 3, g + 1, g, sUP))
        for g in gs: a('v_perm_b32 v%d, v%d, v%d, s%d' % (g + 3, g + 2, g + 3, sUP + 1))
    def scatter4(g):
        a('v_permlane32_swap_b32 v%d, v%d' % (g, g + 2))
        a('v_permlane32_swap_b32 v%d, v%d' % (g + 1, g + 3))
        pkadd(g, g, g + 2)
        a('v_permlane16_swap_b32 v%d, v%d' % (g, g + 1))
        a('v_add_f32 v%d, v%d, v%d' % (g, g, g + 1))
        dpp('v_add_f32', g, g, g, 'row_ror:8')
    def sum2scatter():
        unpackn([G0, G1])
        pkadd(G0, G0, G1); pkadd(G0 + 2, G0 + 2, G1 + 2)
        scatter4(G0)
    def vec32(d, s, banks):
        rnd(s + 1, s)
        a('v_cvt_pk_bf16_f32 v%d, v%d, 0' % (s, s))
        dpp('v_or_b32', s, s + 1, s, 'quad_perm:[1,1,3,3]')
        for k in range(4):
            a('v_mov_b32_dpp v%d, v%d row_newbcast:%d row_mask:0xf bank_mask:0x%x' % (d + k, s, 2 * k, banks))
    retry = []
    def poll(name, loads, tags, between=None, wait='vmcnt(0)', alt=None, soft=0):
        for t in loads: a(t)
        if between: between()
        a('s_mov_b32 s7, 0')
        if wait: a('s_waitcnt ' + wait)
        a.label(name + '_chk')
        a('v_cmp_ne_u32 vcc, s6, v%d' % tags[0])
        if len(tags) > 1:
            for i, t in enumerate(tags[1:]):
                a('v_cmp_ne_u32_e64 s[%d:%d], s6, v%d' % (96 + 2 * i, 97 + 2 * i, t))
            for i, t in enumerate(tags[1:len(tags) - soft]):
                a('s_or_b64 s[62:63], %s, s[%d:%d]' % ('s[62:63]' if i else 'vcc', 96 + 2 * i, 97 + 2 * i))
            a('s_cbranch_scc1 %s_retry' % name)
        else:
            a('s_cbranch_vccnz %s_retry' % name)
        a.label(name + '_ok')
        retry.append((name, loads, alt))
    def flush_retry():
        for name, loads, alt in retry:
            a.label(name + '_retry')
            if alt:
                a('s_cmp_eq_u32 s7, %d' % alt[0])
                a('s_cselect_b32 s62, 0x%x, 0' % alt[2])
                a('s_add_u32 s%d, s%d, s62' % (alt[1], alt[1]))
            for i, t in enumerate(loads):
                a('s_mov_b64 exec, %s' % ('s[%d:%d]' % (94 + 2 * i, 95 + 2 * i) if i else 'vcc'))
                a(t)
            a('s_mov_b64 exec, -1')
            a('s_add_u32 s7, s7, 1')
            a('s_cmp_ge_u32 s7, %d' % SPIN)
            a('s_waitcnt vmcnt(0)')
            a('s_cbranch_scc0 %s_chk' % name)
            a('s_branch %s_ok' % name)
        del retry[:]
    def common(x=True):
        if x: srd(36, 896)
        a('s_load_dwordx2 s[24:25], s[0:1], 48')
        a('s_load_dwordx2 s[28:29], s[0:1], 56')
        a('s_load_dwordx2 s[32:33], s[0:1], 64')
        a('s_load_dwordx2 s[40:41], s[0:1], 72')
        srd(20, 1 << 28)
        srd(24, 448 * 3584)
        srd(32, 1792 * 896)
        srd(40, 896)
        for k in range(3):
            a('s_mov_b32 s%d, 0x0706050%d' % (sPK + k, 1 + k))
        a('s_mov_b32 s%d, 0x0c04000c' % sUP)
        a('s_mov_b32 s%d, 0x04020100' % (sUP + 1))
        masks()
        a('v_lshlrev_b32 v8, 4, v1')
    def gate_open(k):
        a('ds_write_b32 v221, v220 offset:%d' % (L_GATE + 16 * k))
    def gate_wait(k, vaddr):
        nlab[0] += 1
        if vaddr == 219: a('v_mov_b32 v219, 0')
        a.label('L_gate%d' % nlab[0])
        a('ds_read_b32 v219, v%d offset:%d' % (vaddr, L_GATE + 16 * k))
        a('s_waitcnt lgkmcnt(0)')
        a('v_cmp_ne_u32 vcc, 1, v219')
        a('s_cbranch_vccnz L_gate%d' % nlab[0])
    def store2(data, voff, soff):
        a('s_mov_b64 exec, s[58:59]')
        a('buffer_store_dwordx4 %s, v%d, s[20:23], s%d offen' % (vr(data), voff, soff))
        a('s_mov_b64 exec, s[60:61]')
        a('buffer_store_dwordx4 %s, v%d, s[20:23], s%d offen sc1' % (vr(data), voff, soff))
        a('s_mov_b64 exec, -1')
    def dma_voff(rowexpr_pitch):
        a('v_bfe_u32 v11, v1, 3, 2')
        a('v_lshlrev_b32 v11, 1, v11')
        a('v_xor_b32 v11, v11, v1')
        a('v_and_b32 v11, 7, v11')
        a('v_mul_u32_u24 v10, %d, v10' % rowexpr_pitch)
        a('v_lshl_add_u32 v2, v11, 4, v10')
    def tr_addr():
        a('v_bfe_u32 v10, v1, 2, 2')
        a('v_mul_u32_u24 v10, 160, v10')
        a('v_and_b32 v11, 3, v1')
        a('v_lshl_add_u32 v10, v11, 3, v10')
        a('v_lshrrev_b32 v11, 4, v1')
        a('v_lshl_add_u32 v10, v11, 10, v10')
        a('v_lshl_add_u32 v32, s5, 12, v10')
        for t in range(1, 4): a('v_xor_b32 v%d, %d, v32' % (32 + t, 32 * t))
    def tr_read():
        for t in range(4):
            for u in range(2):
                a('ds_read_b64_tr_b16 %s, v%d offset:%d' % (vr(vB + 4 * t + 2 * u, 2), 32 + t, L_T + 512 * u))
    def line_voff():
        a('v_lshrrev_b32 v10, 3, v1')
        a('v_mul_u32_u24 v10, %d, v10' % HS)
        a('v_and_b32 v11, 0x70, v8')
        a('v_add_u32 v9, v10, v11')
        a('v_lshrrev_b32 v10, 4, v1')
        a('v_lshl_add_u32 v12, v10, 1, v11')
    def line_soff(sl):
        a('s_lshl_b32 s44, s%d, 7' % sl)
        a('s_add_u32 s44, s44, 0x%x' % WS_H1)
        a('s_add_u32 s45, s44, %d' % (8 * HS))
        a('s_lshr_b32 s46, s%d, 1' % sl)
        a('s_lshl_b32 s46, s46, 7')
        a('s_and_b32 s7, s%d, 1' % sl)
        a('s_lshl3_add_u32 s46, s7, s46')
    def softmax_head(r):
        mx, t1, ls = r + 4, r + 5, r + 6
        a('v_max3_f32 v%d, v%d, v%d, v%d' % (mx, r, r + 1, r + 2))
        a('v_max_f32 v%d, v%d, v%d' % (mx, mx, r + 3))
        allred32('v_max_f32', mx, t1)
        a('v_mul_f32 v%d, s53, v%d' % (mx, mx))
        for k in range(4): a('v_fma_f32 v%d, v%d, s53, -v%d' % (r + k, r + k, mx))
        for k in range(4): a('v_exp_f32 v%d, v%d' % (r + k, r + k))
        a('v_add_f32 v%d, v%d, v%d' % (ls, r, r + 1))
        a('v_add_f32 v%d, v%d, v%d' % (t1, r + 2, r + 3))
        a('v_add_f32 v%d, v%d, v%d' % (ls, ls, t1))
        allred32('v_add_f32', ls, t1)
    def allred32(op, r, t1):
        for ctl in (QP1, QP2, 'row_half_mirror', 'row_mirror'): dpp(op, r, r, r, ctl)
        a('v_mov_b32 v%d, v%d' % (t1, r))
        a('v_permlane16_swap_b32 v%d, v%d' % (r, t1))
        a('%s v%d, v%d, v%d' % (op, r, r, t1))

    vM = 4
    vKO = 2
    vK, vV, vQ, vW = 16, 80, 144, 176
    vA = 192
    vP = 16
    vT = 48
    vC0, vC1 = 64, 68
    G0, G1, G2, G3 = 16, 20, 24, 28
    vB, vAX, vD = 80, 96, 100
    sPK, sUP = 48, 51
    SC = f32(math.log2(math.e) / 16)

    def wo_setup():
        a('s_load_dwordx2 s[16:17], s[0:1], 32')
        srd(16, 448 * 8192)
        a('v_bfe_u32 v10, v1, 3, 2')
        a('v_lshrrev_b32 v11, 5, v1')
        a('v_lshl_add_u32 v10, v10, 1, v11')
        dma_voff(4 * 896)
        a('s_cmp_ge_u32 s4, 7')
        a('s_cselect_b32 s54, 1, 0')
        a('s_lshl1_add_u32 s7, s3, s54')
        a('s_lshl_b32 s7, s7, 8')
        a('s_add_u32 s7, s7, s55')
        a('s_sub_u32 s7, s7, s54')
        a('s_mul_i32 s7, s7, 7')
        a('s_add_u32 s7, s7, s4')
        a('s_lshl_b32 s10, s7, 7')
        a('s_lshl_b32 s7, s55, 10')
        a('s_add_u32 m0, s7, %d' % L_T)
        a('s_movk_i32 s11, %d' % (32 * 896))
    def wo_issue():
        for i in range(8):
            a('buffer_load_dwordx4 v2, s[16:19], s10 offen nt lds')
            if i < 7:
                a('s_add_u32 m0, m0, 0x1000')
                a('s_add_u32 s10, s10, s11')
    def wo_issue_if():
        nlab[0] += 1
        a('s_cmp_ge_u32 s4, 14')
        a('s_cbranch_scc1 L_nowo%d' % nlab[0])
        wo_issue()
        a.label('L_nowo%d' % nlab[0])
    def kv_addr():
        a('v_and_b32 v10, 7, v1')
        a('v_lshrrev_b32 v11, 3, v1')
        a('v_lshlrev_b32 v10, 4, v10')
        a('v_lshl_add_u32 v%d, v11, 9, v10' % vKO)
        a('s_lshl_b32 s7, s3, 7')
        a('s_add_u32 s7, s7, s4')
        a('s_add_u32 s7, s7, 96')
        a('s_lshl_b32 s44, s7, 4')
        if c['rs'] == 1 and not c['rg']:
            a('s_and_b32 s7, s4, 15')
        else:
            a('s_mul_i32 s7, s4, %d' % c['rs'])
            a('s_mul_i32 s62, s3, %d' % c['rg'])
            a('s_add_u32 s7, s7, s62')
            a('s_and_b32 s7, s7, 15')
        a('s_or_b32 s44, s44, s7')
    def h0_gather():
        a('s_cmp_ge_u32 s4, 7')
        a('s_cselect_b32 s54, 1, 0')
        a('s_lshl1_add_u32 s7, s3, s54')
        a('s_lshl3_add_u32 s56, s7, s5')
        a('s_mul_i32 s56, s56, %d' % BLK)
        a('s_add_u32 s56, s56, 0x%x' % WS_H0)

    def duties(tag):
        a('s_lshl_b32 s46, s3, 12')
        a('s_add_u32 s46, s46, 0x%x' % WS_X)
        a('s_lshl_b32 s7, s4, 7')
        a('s_add_u32 s47, s46, s7')
        a('s_cmp_eq_u32 s5, 5')
        a('s_cbranch_scc0 L_du1%s' % tag)
        a('s_add_u32 s7, s7, 0x%x' % WS_H0)
        a('v_and_b32 v10, 15, v1')
        a('v_lshl_add_u32 v10, s3, 4, v10')
        a('v_mul_u32_u24 v10, %d, v10' % BLK)
        a('v_add_u32 v3, s7, v10')
        a('s_lshr_b32 s7, s4, 1')
        a('s_lshl4_add_u32 s7, s3, s7')
        a('s_mul_i32 s7, s7, %d' % GXS)
        a('s_and_b32 s56, s4, 1')
        a('s_lshl_b32 s56, s56, 9')
        a('s_add_u32 s7, s7, s56')
        a('s_add_u32 s7, s7, 0x%x' % WS_GX)
        a('v_and_b32 v10, 3, v1')
        a('v_lshl_add_u32 v10, v10, 7, s7')
        a('v_mov_b32 v11, s47')
        a('v_mov_b32_dpp v3, v10 quad_perm:[0,1,2,3] row_mask:0x2 bank_mask:0xf')
        a('v_mov_b32_dpp v3, v11 quad_perm:[0,1,2,3] row_mask:0xc bank_mask:0xf')
        if c['touch'] is True: a('buffer_load_dword v216, v3, s[20:23], 0 offen sc1')
        a.label('L_du1%s' % tag)
        a('s_cmp_eq_u32 s5, 6')
        a('s_cbranch_scc0 L_du2%s' % tag)
        a('s_getreg_b32 s45, hwreg(HW_REG_XCC_ID, 0, 4)')
        a('v_mov_b32 v10, s45')
        a('v_mov_b32 v11, s6')
        a('s_mov_b64 exec, 1')
        a('buffer_store_dwordx2 v[10:11], off, s[20:23], s47')
        a('s_mov_b64 exec, -1')
        a.label('L_du2%s' % tag)

    if diag:
        for k in range(1, 15): a('s_mov_b32 s%d, 0' % (64 + 2 * k))
    stamp(0)
    a('s_load_dwordx2 s[8:9], s[0:1], 8')
    a('s_load_dwordx2 s[36:37], s[0:1], 0')
    a('s_load_dwordx2 s[16:17], s[0:1], 24')
    a('s_load_dwordx2 s[12:13], s[0:1], 16')
    a('s_load_dwordx2 s[20:21], s[0:1], 88')
    a('s_cmp_ge_u32 s2, 256')
    a('s_cbranch_scc1 L_end')
    a('v_lshrrev_b32 v3, 6, v0')
    a('v_and_b32 v1, 63, v0')
    a('s_and_b32 s3, s2, 7')
    a('v_readfirstlane_b32 s5, v3')
    a('s_lshr_b32 s4, s2, 3')
    a('s_and_b32 s55, s5, 3')
    a('s_cmp_ge_u32 s5, 4')
    a('s_cbranch_scc1 L_v0')

    if c['pf']:
        a('s_getpc_b64 s[46:47]')
        a.label('L_pc')
        a('s_lshl2_add_u32 s7, s4, s55')
        a('s_lshl_b32 s7, s7, 7')
        a('s_addk_i32 s7, 0x300')
        a('s_min_u32 s7, s7, L_end-L_pc')
        a('s_add_u32 s46, s46, s7')
        a('s_addc_u32 s47, s47, 0')
        a('v_mov_b32 v10, s46')
        a('v_mov_b32 v11, s47')
        a('global_load_dword v216, v[10:11], off')
    kv_addr()
    srd(8, 1 << 26)
    a('s_xor_b32 s45, s44, s55')
    a('s_lshl_b32 s45, s45, 12')
    a('v_and_b32 v10, 0xfc, v0')
    a('v_mov_b32 v11, 0')
    a('ds_write_b32 v10, v11 offset:%d' % L_GATE)
    a('s_cmp_ge_u32 s4, 16')
    a('s_waitcnt lgkmcnt(0)')
    a('s_load_dword s6, s[20:21], 0')
    a('s_cbranch_scc0 L_k1')
    a('s_barrier')
    a.label('L_k1')
    stamp(1)
    GQ = c['gq']
    assert D <= GQ <= 16 and D <= c['ga'] <= 16
    class Stream:
        def __init__(self): self.seq, self.done = [], 0
        def left(self, n): return len(self.seq) - self.seq.index(n) - 1
        def wait(self, n):
            if self.seq.index(n) >= self.done:
                a('s_waitcnt vmcnt(%d)' % self.left(n))
                self.done = self.seq.index(n) + 1
        def throttle(self, n, d):
            if DX and n >= d and self.seq.index(n - d) >= self.done:
                nlab[0] += 1
                a('s_cmp_ge_u32 s4, 16')
                a('s_cbranch_scc1 L_thr%d' % nlab[0])
                a('s_waitcnt vmcnt(%d)' % self.left(n - d))
                a.label('L_thr%d' % nlab[0])
            if n >= d + DX: self.wait(n - d - DX)
    ks = Stream()
    def kload(idx):
        i, t = idx >> 2, idx & 3
        if t == 0 and i > 0: a('s_xor_b32 s45, s45, 0x%x' % ((i ^ (i - 1)) << 14))
        ks.throttle(idx, D)
        a('buffer_load_dwordx4 %s, v%d, s[8:11], s45 offen offset:%d nt' % (vr(vK + 4 * idx), vKO, 128 * t))
        ks.seq.append(idx)
    for idx in range(D): kload(idx)
    a('s_cmp_ge_u32 s4, 16')
    a('s_cbranch_scc1 L_kb')
    a('s_barrier')
    a('s_branch L_kb')
    a.section('k')
    a.label('L_kb')
    common()
    for k in range(8): a('v_mov_b32 v%d, 0' % (vA + 8 + k))
    a('v_bfe_u32 v10, v1, 2, 1')
    a('v_lshlrev_b32 v10, 9, v10')
    a('v_lshrrev_b32 v12, 4, v1')
    a('v_lshl_add_u32 v10, v12, 7, v10')
    a('v_and_b32 v11, 3, v1')
    a('v_lshlrev_b32 v217, 2, v11')
    a('v_lshl_add_u32 v10, v11, 5, v10')
    a('v_bfe_u32 v11, v1, 3, 1')
    a('v_lshl_add_u32 v10, v11, 2, v10')
    a('v_lshl_add_u32 v13, s55, 3, v10')
    a('v_and_b32 v10, 31, v1')
    a('v_lshlrev_b32 v218, 7, v10')
    a('v_lshlrev_b32_e64 v221, 2, s55')
    a('v_mov_b32 v220, 1')
    a('v_and_b32 v9, 0x70, v8')
    a('v_lshlrev_b32 v12, 2, v0')
    a('s_lshl_b32 s46, s3, 12')
    a('s_add_u32 s46, s46, 0x%x' % WS_X)
    a('s_lshl_b32 s7, s5, 10')
    a('s_add_u32 s47, s46, s7')
    a('s_getreg_b32 s44, hwreg(HW_REG_XCC_ID, 0, 4)')
    a('s_lshl2_add_u32 s7, s3, s5')
    a('s_lshl_b32 s56, s7, 11')
    a('s_add_u32 s56, s56, 0x%x' % WS_Q)
    a('s_mov_b32 s58, 0xaaaaaaaa'); a('s_mov_b32 s59, 0xaaaaaaaa')
    a('s_mov_b32 s60, 0xcccccccc'); a('s_mov_b32 s61, 0xcccccccc')
    a('s_mov_b32 s53, %s' % SC)
    if c['touch'] in ('s', 's1'):
        off, op = (60, 's_buffer_load_dwordx2 s[100:101]') if c['touch'] == 's' else (0, 's_buffer_load_dword s100')
        a('s_lshl2_add_u32 s7, s3, s55')
        a('s_mul_i32 s7, s7, %d' % (4 * BLK // 128))
        a('s_add_u32 s7, s7, s4')
        a('s_lshl_b32 s7, s7, 7')
        for k in range(4): a('%s, s[20:23], s7 offset:0x%x glc' % (op, WS_H0 + off + k * BLK))
        a('s_lshr_b32 s7, s4, 1')
        a('s_lshl4_add_u32 s7, s3, s7')
        a('s_mul_i32 s7, s7, %d' % (GXS // 128))
        a('s_and_b32 s62, s4, 1')
        a('s_lshl2_add_u32 s62, s62, s55')
        a('s_add_u32 s7, s7, s62')
        a('s_lshl_b32 s7, s7, 7')
        a('%s, s[20:23], s7 offset:0x%x glc' % (op, WS_GX + off))
    if c['qt'] == 's':
        a('s_lshl_b32 s7, s3, 5')
        a('s_add_u32 s7, s7, s4')
        a('s_lshl2_add_u32 s7, s7, s5')
        a('s_lshl_b32 s7, s7, 6')
        a('s_buffer_load_dword s100, s[20:23], s7 offset:0x%x glc' % WS_Q)
    if c['ga'] == D: gate_open(0)
    def krange(lo, hi):
        for idx in range(lo, hi):
            if c['qh'] and idx == c['qh']:
                a('s_cmp_ge_u32 s4, 16')
                a('s_cbranch_scc0 L_k2')
                gate_wait(8, 217)
                a.label('L_k2')
            kload(idx)
            if c['ga'] == idx + 1: gate_open(0)
    krange(D, GQ)
    def krest():
        ks.seq += ['q0', 'q1']
        krange(GQ, 16)
        stamp(2)
        a('s_waitcnt lgkmcnt(0)')
        mktag()
        if c['wo_at']: wo_setup()
        ks.wait('q1')
        gate_open(1)
    poll('L_pq', ['buffer_load_dwordx4 %s, v8, s[20:23], s56 offen sc1' % vr(vA),
                  'buffer_load_dwordx4 %s, v8, s[20:23], s56 offen offset:1024 sc1' % vr(vA + 4)], [vA + 3, vA + 7],
         between=krest, wait=None, alt=(c['qdual'], 56, WS_QB - WS_Q))
    stamp(3)
    pkadd(vA, vA, vA + 4)
    a('v_cvt_pk_bf16_f32 v%d, v%d, v%d' % (vA, vA, vA + 1))
    a('ds_write_b32 v12, v%d offset:%d' % (vA, L_QL))
    gate_open(2)
    a('s_mov_b64 exec, 0xff')
    a('buffer_load_dwordx2 v[222:223], v218, s[20:23], s47 offen sc1')
    a('s_mov_b64 exec, -1')
    ks.seq.append('x')
    gate_wait(2, 217)
    for h in range(2):
        for t in range(4):
            a('ds_read_b128 %s, v9 offset:%d' % (vr(vQ + 16 * h + 4 * t), L_QL + 512 * h + 128 * t))
    if c['wo_at'] == 2: wo_issue_if()
    a('s_waitcnt lgkmcnt(0)')
    stamp(4)
    acc = lambda i, h: vA + 8 + 4 * h + i
    for i in range(4):
        assert c['wo_at'] != 2 or GQ == 16
        ks.wait(4 * i + 3)
        for t in range(4):
            for d in range(4):
                for h in range(2):
                    a('v_dot2c_f32_bf16 v%d, v%d, v%d' % (acc(i, h), vK + 16 * i + 4 * t + d, vQ + 16 * h + 4 * t + d))
    X = acc(0, 0)
    for i in range(4): dpp('v_add_f32', X + i, X + i, X + i, 'row_half_mirror', 'row_mask:0xf bank_mask:0x5')
    for i in range(4): dpp('v_add_f32', X + i, X + 4 + i, X + 4 + i, 'row_half_mirror', 'row_mask:0xf bank_mask:0xa')
    for i in range(4): dpp('v_add_f32', X + i, X + i, X + i, QP1)
    a('v_cndmask_b32_e64 v%d, v%d, v%d, s[58:59]' % (X, X, X + 1))
    a('v_cndmask_b32_e64 v%d, v%d, v%d, s[58:59]' % (X + 2, X + 2, X + 3))
    dpp('v_add_f32', X, X, X, QP2)
    dpp('v_add_f32', X + 2, X + 2, X + 2, QP2)
    a('v_cndmask_b32_e64 v%d, v%d, v%d, s[60:61]' % (X, X, X + 2))
    rnd(X, X)
    a('ds_write_b32 v13, v%d offset:%d' % (X, L_S))
    gate_open(3)
    stamp(5)
    h0_gather()
    def xflag(left):
        a('s_waitcnt vmcnt(%d)' % left)
        a('v_cmp_ne_u32 vcc, s6, v223')
        a('v_cmp_ne_u32_e64 s[96:97], s44, v222')
        a('s_or_b32 s7, vcc_lo, s96')
        a('s_and_b32 s7, s7, 0xff')
        a('s_cselect_b32 s7, 2, %d' % (2 if c['force_sc1'] else 1))
        a('v_mov_b32 v219, s7')
        a('ds_write_b32 v221, v219 offset:%d' % (L_GATE + 16 * 7))
    a('s_cmp_eq_u32 s5, 3')
    a('s_cbranch_scc1 L_k3')
    xflag(0)
    a('s_cmp_ge_u32 s4, 14')
    a('s_cbranch_scc1 L_aux6')
    if c['wo_at'] == 4: gate_wait(4, 221)
    if c['wo_at'] >= 3: wo_issue()
    a('s_waitcnt vmcnt(0)')
    a('s_branch L_wt')

    a.label('L_k3')
    a('s_lshl3_add_u32 s45, s54, s46')
    a('v_lshrrev_b32 v10, 5, v1')
    a('v_lshl_add_u32 v14, v10, 4, v8')
    a('v_lshlrev_b32 v10, 3, v10')
    a('s_lshl_b32 s7, s4, 7')
    a('s_add_u32 s46, s46, s7')
    a('v_mov_b32 v13, s6')
    gate_wait(3, 217)
    a('ds_read_b128 %s, v8 offset:%d' % (vr(vA), L_S))
    a('s_waitcnt lgkmcnt(0)')
    softmax_head(vA)
    a('v_rcp_f32 v%d, v%d' % (vA + 5, vA + 6))
    a('v_log_f32 v12, v%d' % (vA + 6))
    for k in range(4): a('v_mul_f32 v%d, v%d, v%d' % (vA + k, vA + k, vA + 5))
    for k in range(4): a('v_cvt_pk_bf16_f32 v%d, v%d, v%d' % (vA + k, vA + k, vA + k))
    a('ds_write_b128 v14, %s offset:%d' % (vr(vA), L_P))
    a('ds_write_b32 v221, v220 offset:%d' % (L_GATE + 16 * 5 - 12))
    a('v_add_f32 v12, v12, v%d' % (vA + 4))
    def lse_store(sc):
        a('s_mov_b32 exec_lo, 1'); a('s_mov_b32 exec_hi, 1')
        a('buffer_store_dwordx2 v[12:13], v10, s[20:23], s46 offen offset:16' + sc)
        a('s_mov_b64 exec, -1')
    lse_store('')
    xflag(1)
    a('s_add_u32 s46, s46, 0x%x' % (WS_XB - WS_X))
    a('s_cmp_ge_u32 s4, 14')
    stamp(6)
    a('s_cbranch_scc0 L_k4')
    lse_store(' sc1')
    a('s_branch L_aux6')
    a.label('L_k4')
    gate_wait(4, 221)
    late = c['wo_at'] >= 3
    def lrest():
        if late: wo_issue()
        lse_store(' sc1')
    poll('L_pl', ['buffer_load_dwordx2 v[14:15], v218, s[20:23], s45 offen offset:16 sc1'], [15],
         between=lrest, wait='vmcnt(%d)' % (9 if late else 1), alt=(c['ldual'], 45, WS_XB - WS_X))
    stamp(7)
    a('v_mov_b32 v16, v14')
    allred32('v_max_f32', 16, 17)
    a('v_sub_f32 v14, v14, v16')
    a('v_exp_f32 v14, v14')
    a('v_and_b32 v10, 0x70, v8')
    a('v_mov_b32 v16, v14')
    allred32('v_add_f32', 16, 17)
    a('v_rcp_f32 v16, v16')
    a('v_bfe_u32 v11, v1, 3, 2')
    a('v_lshl_add_u32 v10, v11, 2, v10')
    a('v_mul_f32 v14, v14, v16')
    a('ds_write_b32 v10, v14 offset:%d' % L_WT)
    a('s_waitcnt vmcnt(1) lgkmcnt(0)')
    a('s_branch L_wt')
    a.label('L_aux6')
    a('s_waitcnt lgkmcnt(0)')
    a('s_cmp_eq_u32 s3, 7')
    leave_if('scc1')
    a('s_cmp_ge_u32 s4, 16')
    a('s_cbranch_scc0 L_fin')
    a('s_sub_u32 s54, s4, 16')
    a('s_lshl4_add_u32 s54, s3, s54')
    a('v_lshrrev_b32 v10, 3, v1')
    dma_voff(8 * 3584)
    a('s_bitcmp1_b32 s4, 0')
    a('s_cselect_b64 s[24:25], s[28:29], s[24:25]')
    a('s_mul_i32 s44, s5, 3584')
    a('s_lshr_b32 s7, s54, 2')
    a('s_lshl_b32 s7, s7, 7')
    a('s_add_u32 s44, s44, s7')
    a('s_bitcmp1_b32 s4, 1')
    for i in range(7):
        r0, r1 = [64 * (x >> 1) + 4 * (x & 1) for x in (i, 7 + i)]
        a('s_mov_b32 s7, %d' % (r0 * 3584))
        a('s_cselect_b32 s%d, %d, s7' % (8 + i, r1 * 3584))
    for i in range(7): a('s_add_u32 s%d, s%d, s44' % (8 + i, 8 + i))
    a('s_lshl_b32 s7, s5, 10')
    a('s_add_u32 m0, s7, %d' % L_T)
    a('v_lshrrev_b32 v12, 4, v1')
    a('v_mul_u32_u24 v10, 896, v12')
    a('v_and_b32 v11, 15, v1')
    a('v_lshl_add_u32 v11, s5, 4, v11')
    a('v_lshl_add_u32 v3, v11, 4, v10')
    a('v_cmp_gt_u32 vcc, 56, v11')
    a('v_cndmask_b32 v3, 2.0, v3, vcc')
    a('s_mul_i32 s16, s54, %d' % (16 * 896))
    a('s_add_u32 s17, s16, 7168')
    a('v_bfe_u32 v10, v1, 2, 2')
    a('v_lshl_add_u32 v10, v10, 2, v12')
    a('v_and_b32 v11, 0x30, v8')
    a('v_lshl_add_u32 v40, v10, 6, v11')
    a('s_mul_i32 s56, s54, %d' % GXS)
    a('s_add_u32 s56, s56, 0x%x' % WS_GX)
    a('v_and_b32 v10, 0x70, v8')
    a('v_bfe_u32 v11, v1, 3, 1')
    a('v_lshl_add_u32 v10, v11, 8, v10')
    a('v_lshl_add_u32 v41, v12, 7, v10')
    a('s_mul_i32 s57, s54, %d' % HS)
    a('s_lshl_b32 s7, s5, 9')
    a('s_add_u32 s57, s57, s7')
    a('s_add_u32 s57, s57, 0x%x' % WS_H2)
    a('s_cmp_eq_u32 s5, 3')
    a('s_cselect_b32 s58, 0x00ff00ff, -1')
    a('s_mov_b32 s59, 0')
    k0 = 2 * math.sqrt(2 / math.pi) * math.log2(math.e)
    a('v_mov_b32 v42, %s' % f32(-k0))
    a('v_mov_b32 v43, %s' % f32(1.0 / 448))
    a('s_mov_b32 s18, %s' % f32(1.0 / 448))
    a('s_mov_b32 s19, %s' % f32(-k0 * 0.044715))
    a('v_mov_b32 v75, s6')
    a('s_branch L_ft')
    flush_retry()

    a.section('v')
    if c['wo_at'] == 0:
        a.label('L_v1')
        a('s_cmp_ge_u32 s4, 14')
        a('s_cbranch_scc1 L_v')
        wo_setup()
        a('s_waitcnt lgkmcnt(0)')
        wo_issue()
    a.label('L_v')
    common()
    a('s_waitcnt lgkmcnt(0)')
    mktag()
    duties('')
    if c['touch'] in ('vs', 'vv'):
        a('s_lshl4_add_u32 s7, s3, s4')
        a('s_mul_i32 s44, s7, %d' % BLK)
        a('s_mul_i32 s45, s7, %d' % GXS)
        stamp(1)
        if c['touch'] == 'vs':
            a('s_lshl_b32 s7, s55, 10')
            a('s_add_u32 s44, s44, s7')
            a('s_lshl_b32 s7, s55, 8')
            a('s_add_u32 s45, s45, s7')
            for k in range(8): a('s_buffer_load_dwordx2 s[100:101], s[20:23], s44 offset:0x%x %s' % (WS_H0 + 60 + k * 128, c['tf']))
            for k in range(2): a('s_buffer_load_dwordx2 s[100:101], s[20:23], s45 offset:0x%x %s' % (WS_GX + 60 + k * 128, c['tf']))
            if diag: a('s_waitcnt lgkmcnt(0)')
        else:
            a('s_lshl_b32 s7, s55, 10')
            a('s_add_u32 s44, s44, s7')
            a('s_add_u32 s44, s44, 0x%x' % WS_H0)
            a('s_add_u32 s45, s45, 0x%x' % WS_GX)
            a('buffer_load_dwordx4 v[16:19], v8, s[20:23], s44 offen %s' % c['tf'])
            a('s_cmp_eq_u32 s5, 4')
            a('s_cbranch_scc0 L_tv')
            a('buffer_load_dwordx4 v[16:19], v8, s[20:23], s45 offen %s' % c['tf'])
            a.label('L_tv')
            if diag: a('s_waitcnt vmcnt(0)')
        stamp(5)
    a.label('L_v3')
    kv_addr()
    srd(12, 1 << 26)
    a('s_lshl_b32 s44, s44, 12')
    a('s_lshl_b32 s7, s55, 7')
    a('s_add_u32 s44, s44, s7')
    a('v_lshlrev_b32_e64 v221, 2, s55')
    a('v_mov_b32 v220, 1')
    a('v_and_b32 v10, 3, v1')
    a('v_lshlrev_b32 v217, 2, v10')
    a('v_bfe_u32 v11, v1, 3, 1')
    a('v_lshrrev_b32 v12, 4, v1')
    a('v_mul_u32_u24 v15, 528, v11')
    a('v_lshl_add_u32 v15, v12, 7, v15')
    a('v_lshrrev_b32 v10, 5, v1')
    a('v_bfe_u32 v11, v1, 2, 1')
    a('v_lshl_add_u32 v10, v10, 3, v11')
    a('v_mul_u32_u24 v10, %d, v10' % BLK)
    a('v_and_b32 v11, 3, v1')
    a('v_lshl_add_u32 v10, v11, 4, v10')
    a('v_bfe_u32 v11, v1, 4, 1')
    a('v_lshl_add_u32 v9, v11, 6, v10')
    a('s_lshl3_add_u32 s7, s3, s55')
    a('s_mul_i32 s57, s7, %d' % (2 * BLK))
    a('s_lshl_b32 s7, s4, 7')
    a('s_add_u32 s57, s57, s7')
    a('s_add_u32 s57, s57, 0x%x' % WS_H0)
    h0_gather()
    for k in range(8): a('v_mov_b32 v%d, 0' % (vC0 + k))
    a('v_mov_b32 v75, s6')
    NB = c['nb']
    GV = 217 if c['gall'] else 221
    gate_wait(0, GV)
    stamp(2)
    vs = Stream()
    def vload(n):
        if n > 0: a('s_xor_b32 s44, s44, 0x%x' % ((n ^ (n - 1)) << 12))
        a('buffer_load_dwordx4 %s, v%d, s[12:15], s44 offen nt' % (vr(vV + 4 * n), vKO))
        vs.seq.append(n)
        if n == 15:
            stamp(3)
            gate_open(4)
    for n in range(NB):
        if n == c['na']: gate_wait(1, GV)
        vs.throttle(n, DV)
        vload(n)
    stamp(4)
    gate_wait(5, 219)
    for z in range(8): a('ds_read_b128 %s, v15 offset:%d' % (vr(vP + 4 * z), L_P + 16 * z))
    a('s_waitcnt lgkmcnt(0)')
    stamp(6)
    nxt = NB
    if c['prio']: a('s_setprio %d' % c['prio'])
    def pand(k):
        for r in range(4): a('v_and_b32 v%d, v%d, v%d' % (vT + 4 * (k & 3) + r, vP + k, vM + r))
    pand(0); pand(1)
    for k in range(32):
        n = k >> 1
        if k == 26: a('ds_read_b32 v219, v217 offset:%d' % (L_GATE + 16 * 7))
        if k == 30:
            a('s_waitcnt lgkmcnt(0)')
            a.label('L_xf_chk')
            a('v_cmp_eq_u32 vcc, 0, v219')
            a('s_cbranch_vccnz L_xf_retry')
            a('v_cmp_ne_u32 vcc, 1, v219')
            a('s_cmp_eq_u64 vcc, 0')
            a('s_cselect_b32 s47, -1, 0')
            a('s_and_b32 s58, s47, 0x00ff00ff'); a('s_mov_b32 s59, s58')
            a('s_andn2_b32 s60, 0x00ff00ff, s47'); a('s_mov_b32 s61, s60')
        if k & 1 == 0:
            vs.wait(n)
            while nxt < 16 and nxt - 1 - n < c['pvd']:
                vload(nxt); nxt += 1
        mfma(vC1 if k & 1 else vC0, vT + 4 * (k & 3), vV + 4 * n, 1)
        if k < 30: pand(k + 2)
    stamp(7)
    for r in (3, 0, 1, 2): dpp('v_add_f32', vC0 + r, vC1 + r, vC0 + r, 'row_ror:8')
    pack24(72, vC0)
    store2(72, 9, 57)
    a('s_cmp_ge_u32 s4, 14')
    a('s_cbranch_scc1 L_ft0')

    a.label('L_wt')
    a('s_barrier')
    stamp(8)
    WT = 36
    def wsetup():
        a('v_lshrrev_b32 v10, 3, v1')
        a('v_lshlrev_b32 v10, 4, v10')
        a('ds_read_b128 %s, v10 offset:%d' % (vr(WT), L_WT))
        tr_addr()
        tr_read()
        a('v_mul_u32_u24 v13, 144, v11')
        a('v_lshl_add_u32 v13, s5, 4, v13')
        a('v_lshrrev_b32 v10, 2, v1')
        a('v_mul_u32_u24 v14, 144, v10')
        a('v_and_b32 v11, 3, v1')
        a('v_lshl_add_u32 v14, v11, 5, v14')
        a('v_and_b32 v11, 1, v10')
        a('v_lshrrev_b32 v10, 1, v10')
        a('v_lshlrev_b32 v10, 4, v10')
        a('v_lshl_add_u32 v12, v11, 7, v10')
        a('s_lshl1_add_u32 s44, s3, s54')
        a('s_mul_i32 s44, s44, %d' % HS)
        a('s_mul_i32 s45, s54, 7')
        a('s_sub_u32 s45, s4, s45')
        a('s_lshl_b32 s45, s45, 8')
        a('s_add_u32 s44, s44, s45')
        a('s_add_u32 s44, s44, 0x%x' % WS_H1)
        a('s_mov_b32 s58, 0x00010001'); a('s_mov_b32 s59, 0x00010001')
        a('s_mov_b32 s60, 0x11111111'); a('s_mov_b32 s61, 0x11111111')
        a('v_mov_b32 v75, s6')
    poll('L_p0', ['buffer_load_dwordx4 %s, v8, s[20:23], s56 offen offset:%d sc1' % (vr(G0 + 4 * k), 1024 * k) for k in range(4)],
         [G0 + 3, G1 + 3, G2 + 3, G3 + 3], between=wsetup, wait='vmcnt(0) lgkmcnt(0)')
    stamp(9)
    unpackn([G0, G1, G2, G3])
    for k in range(4):
        w, hi = WT + (k & 2), k & 1
        for p in (0, 2):
            if k == 0:
                a('v_pk_mul_f32 %s, %s, %s op_sel:[0,0] op_sel_hi:[1,0]' % (vr(G0 + p, 2), vr(G0 + p, 2), vr(w, 2)))
            else:
                a('v_pk_fma_f32 %s, %s, %s, %s op_sel:[0,%d,0] op_sel_hi:[1,%d,1]' % (vr(G0 + p, 2), vr(G0 + 4 * k + p, 2), vr(w, 2), vr(G0 + p, 2), hi, hi))
    scatter4(G0)
    vec32(vAX, G0, 0xf)
    for t in range(4): mfma(vD + 4 * t, vB + 4 * t, vAX, 0)
    a('s_mov_b64 exec, s[58:59]')
    for t in range(4): a('ds_write_b128 v13, %s offset:%d' % (vr(vD + 4 * t), L_RED + 576 * t))
    a('s_mov_b64 exec, -1')
    a('s_cmp_eq_u32 s5, 0')
    a('s_waitcnt lgkmcnt(0)')
    stamp(10)
    a('s_barrier')
    leave_if('scc0')
    a('ds_read_b128 %s, v14 offset:%d' % (vr(G0), L_RED))
    a('ds_read_b128 %s, v14 offset:%d' % (vr(G1), L_RED + 16))
    a('s_waitcnt lgkmcnt(0)')
    pkadd(G0, G0, G1); pkadd(G0 + 2, G0 + 2, G1 + 2)
    for ctl in (QP1, QP2):
        for k in range(4): dpp('v_add_f32', G0 + k, G0 + k, G0 + k, ctl)
    a('s_mov_b64 exec, s[60:61]')
    pack24(72, G0)
    a('buffer_store_dwordx4 v[72:75], v12, s[20:23], s44 offen sc1')
    stamp(12)
    leave()
    flush_retry()

    a.label('L_xf_retry')
    a('ds_read_b32 v219, v217 offset:%d' % (L_GATE + 16 * 7))
    a('s_waitcnt lgkmcnt(0)')
    a('s_branch L_xf_chk')

    a.label('L_ft0')
    a('s_cmp_eq_u32 s3, 7')
    leave_if('scc1')
    a('s_cmp_ge_u32 s4, 16')
    a('s_cbranch_scc1 L_fkv')
    a.label('L_fin')
    a('s_barrier')
    a('s_sub_u32 s54, s4, 14')
    a('s_lshl1_add_u32 s54, s3, s54')
    line_voff()
    a('v_and_b32 v13, 7, v1')
    a('v_lshl_add_u32 v14, v10, 3, v13')
    a('v_mul_u32_u24 v14, 48, v14')
    a('v_lshl_add_u32 v10, s5, 2, v14')
    a('s_cmp_eq_u32 s5, 7')
    a('s_cbranch_scc1 L_fin7')
    a('s_lshl_b32 s44, s54, 7')
    a('s_mul_i32 s7, s5, %d' % (16 * HS))
    a('s_add_u32 s44, s44, s7')
    a('s_add_u32 s44, s44, 0x%x' % WS_H2)
    a('s_add_u32 s45, s44, %d' % (8 * HS))
    two = ['buffer_load_dwordx4 %s, v9, s[20:23], s44 offen sc1' % vr(G0),
           'buffer_load_dwordx4 %s, v9, s[20:23], s45 offen sc1' % vr(G1)]
    poll('L_p2', two, [G0 + 3, G1 + 3])
    stamp(13)
    sum2scatter()
    a('ds_write_b32 v10, v%d offset:%d' % (G0, L_RED))
    a('s_waitcnt lgkmcnt(0)')
    a('s_barrier')
    leave()
    flush_retry()

    a.label('L_fin7')
    a('v_mov_b32 v11, 0')
    a('ds_write_b32 v10, v11 offset:%d' % L_RED)
    line_soff(54)
    a('v_bfe_u32 v11, v1, 3, 1')
    a('v_lshl_add_u32 v14, v11, 4, v14')
    a('s_mov_b32 s58, 0x00ff00ff'); a('s_mov_b32 s59, 0x00ff00ff')
    a('buffer_load_ushort v15, v12, s[36:39], s46 offen')
    poll('L_p3', two, [G0 + 3, G1 + 3])
    stamp(10)
    sum2scatter()
    a('v_lshlrev_b32 v15, 16, v15')
    rnd(G0, G0)
    a('v_add_f32 v15, v%d, v15' % G0)
    rnd(15, 15)
    a('v_mov_b32 v10, s6')
    a('s_cmp_eq_u32 s54, 0')
    a('s_cselect_b64 s[60:61], 1, 0')
    a('s_waitcnt lgkmcnt(0)')
    a('s_barrier')
    a('ds_read_b128 %s, v14 offset:%d' % (vr(G0), L_RED))
    a('s_waitcnt lgkmcnt(0)')
    stamp(13)
    pkadd(G0, G0, G0 + 2)
    a('v_add_f32 v%d, v%d, v%d' % (G0, G0, G0 + 1))
    dpp('v_add_f32', G0, G0, G0, 'row_ror:8')
    rnd(G0, G0)
    a('v_add_f32 v%d, v%d, v15' % (G0, G0))
    a('v_cvt_pk_bf16_f32 v%d, v%d, v%d' % (G0, G0, G0))
    a('s_mov_b64 exec, s[58:59]')
    a('buffer_store_short v%d, v12, s[40:43], s46 offen' % G0)
    a('s_mov_b64 exec, s[60:61]')
    a('buffer_store_dword v10, off, s[20:23], 0 sc1')
    leave()
    flush_retry()

    a.label('L_fkv')
    a('s_barrier')
    stamp(8)
    a('s_cmp_eq_u32 s5, 7')
    a('s_cbranch_scc0 L_fall')
    for k in range(2): a('v_mov_b32 v%d, 0' % (G0 + k))
    a('v_mul_u32_u24 v14, 80, v1')
    a('ds_write_b64 v14, %s offset:%d' % (vr(G0, 2), L_RED + 56))
    a('ds_write_b32 v%d, v%d offset:%d' % (G0, G0, L_STAT + 28))
    a('ds_write_b32 v%d, v%d offset:%d' % (G0, G0, L_STAT + 60))
    a('s_and_b32 s7, s4, 1')
    a('s_xor_b32 s7, s7, 1')
    a('s_lshl_b32 s7, s7, 5')
    a('v_mov_b32 v13, s7')
    a('v_lshrrev_b32 v10, 4, v1')
    a('v_mul_u32_u24 v10, %d, v10' % GXS)
    a('v_and_b32 v11, 3, v1')
    a('v_lshl_add_u32 v10, v11, 6, v10')
    a('v_bfe_u32 v11, v1, 2, 2')
    a('v_lshl_add_u32 v9, v11, 4, v10')
    a('s_and_b32 s7, s4, 12')
    a('s_lshl4_add_u32 s7, s3, s7')
    a('s_mul_i32 s57, s7, %d' % GXS)
    a('s_and_b32 s7, s4, 3')
    a('s_lshl_b32 s7, s7, 8')
    a('s_add_u32 s57, s57, s7')
    a('s_add_u32 s57, s57, 0x%x' % WS_GX)
    a('s_mov_b32 s58, s47'); a('s_mov_b32 s59, s47')
    a('s_not_b64 s[60:61], s[58:59]')
    a('s_waitcnt lgkmcnt(0)')
    a('s_barrier')
    a('s_barrier')
    for k in range(4): a('ds_read_b128 %s, v14 offset:%d' % (vr(G0 + 4 * k), L_RED + 16 * k))
    for k in range(2): a('ds_read_b128 %s, v13 offset:%d' % (vr(32 + 4 * k), L_STAT + 16 * k))
    a('s_waitcnt lgkmcnt(%d)' % (0 if diag else 4))
    pkadd(G0, G0, G0 + 2); pkadd(G1, G1, G1 + 2)
    if not diag: a('s_waitcnt lgkmcnt(2)')
    pkadd(G2, G2, G2 + 2); pkadd(G3, G3, G3 + 2)
    pkadd(G0, G0, G1); pkadd(G2, G2, G3)
    if not diag: a('s_waitcnt lgkmcnt(0)')
    pkadd(32, 32, 34); pkadd(36, 36, 38)
    pkadd(72, G0, G2)
    pkadd(32, 32, 36)
    a('v_add_f32 v74, v32, v33')
    store2(72, 9, 57)
    stamp(11)
    a('s_barrier')
    leave()

    a.label('L_ft')
    a('s_barrier')
    stamp(8)
    for i in range(7):
        a('buffer_load_dwordx4 v2, s[24:27], s%d offen nt lds' % (8 + i))
        if i < 6: a('s_add_u32 m0, m0, 0x1000')
    a.label('L_fall')
    line_voff()
    a('s_bfe_u32 s7, s4, 0x10001')
    a('s_mul_i32 s7, s7, 7')
    a('s_add_u32 s55, s7, s5')
    line_soff(55)
    a('buffer_load_ushort v15, v12, s[36:39], s46 offen')
    a('s_cmp_ge_u32 s5, 4')
    a('s_cbranch_scc1 L_nodown')
    for t in range(4):
        a('buffer_load_dwordx4 %s, v3, s[32:35], s%d offen offset:%d nt' % (vr(vW + 4 * t), 16 + (t >> 1), 3584 * (t & 1)))
    a.label('L_nodown')
    tr_addr()
    for k in range(4): a('v_mov_b32 v%d, 0x3f803f80' % (vAX + k))
    a('v_and_b32 v10, 15, v1')
    a('v_lshrrev_b32 v11, 5, v1')
    a('v_mul_u32_u24 v13, 80, v10')
    a('v_lshl_add_u32 v13, v11, 2, v13')
    a('v_lshl_add_u32 v13, s5, 3, v13')
    a('v_add_u32 v13, %d, v13' % L_RED)
    a('v_lshl_add_u32 v14, v10, 1, v11')
    a('v_lshlrev_b32 v14, 5, v14')
    a('v_lshl_add_u32 v14, s5, 2, v14')
    a('s_mov_b32 s60, 0xffff'); a('s_mov_b32 s61, 0xffff')
    a('s_waitcnt vmcnt(4)')
    a('s_barrier')
    stamp(9)
    poll('L_p1', two, [G0 + 3, G1 + 3], between=tr_read, wait='vmcnt(0) lgkmcnt(0)')
    stamp(10)
    a('v_lshlrev_b32 v15, 16, v15')
    sum2scatter()
    rnd(G0, G0)
    a('v_add_f32 v%d, v%d, v15' % (G0, G0))
    vec32(vAX, G0, 0x3)
    for t in range(4): mfma(vD + 4 * t, vAX, vB + 4 * t, 0)
    mfma(vD + 16, vAX, vAX, 0)
    a('s_mov_b64 exec, s[60:61]')
    a('s_cmp_ge_u32 s5, 4')
    a('ds_write2st64_b32 v13, v%d, v%d offset0:0 offset1:5' % (vD, vD + 4))
    a('ds_write2st64_b32 v13, v%d, v%d offset0:10 offset1:15' % (vD + 8, vD + 12))
    a('ds_write_b32 v14, v%d offset:%d' % (vD + 16, L_STAT))
    a('s_mov_b64 exec, -1')
    a('s_waitcnt lgkmcnt(0)')
    a('s_barrier')
    a('s_barrier')
    leave_if('scc1')
    poll('L_pg', ['buffer_load_dwordx4 %s, v40, s[20:23], s56 offen sc1' % vr(G0)], [G0 + 3])
    stamp(11)
    V, CS, ST, MU, E2, T = G0, G0 + 1, G0 + 2, G1, G1 + 1, G1 + 2
    dpp('v_add_f32', ST, ST, ST, 'row_ror:8')
    dpp('v_add_f32', V, V, V, 'row_ror:8')
    a('v_mul_f32 v%d, s18, v%d' % (MU, ST))
    a('v_mul_f32 v%d, s18, v%d' % (E2, ST))
    dpp('v_mul_f32', MU, ST, 43, 'row_ror:4', 'row_mask:0xf bank_mask:0xa')
    dpp('v_mul_f32', E2, ST, 43, 'row_ror:4', 'row_mask:0xf bank_mask:0x5')
    dpp('v_add_f32', CS, CS, CS, 'row_ror:8')
    a('v_fma_f32 v%d, -v%d, v%d, v%d' % (E2, MU, MU, E2))
    rnd(MU, MU)
    a('v_max_f32 v%d, 0, v%d' % (E2, E2))
    rnd(E2, E2)
    a('v_add_f32 v%d, %s, v%d' % (E2, f32(1e-5), E2))
    rnd(E2, E2)
    a('v_sqrt_f32 v%d, v%d' % (E2, E2))
    a('v_fma_f32 v%d, -v%d, v%d, v%d' % (V, MU, CS, V))
    rnd(E2, E2)
    a('v_rcp_f32 v%d, v%d' % (E2, E2))
    a('v_mul_f32 v%d, v%d, v%d' % (V, V, E2))
    rnd(V, V)
    a('v_mul_f32 v%d, v%d, v%d' % (T, V, V))
    a('v_fmac_f32 v42, s19, v%d' % T)
    a('v_mul_f32 v%d, v42, v%d' % (T, V))
    a('v_exp_f32 v%d, v%d' % (T, T))
    a('v_add_f32 v%d, 1.0, v%d' % (T, T))
    a('v_rcp_f32 v%d, v%d' % (T, T))
    a('v_mul_f32 v%d, v%d, v%d' % (T, V, T))
    rnd(T, T)
    dpp('v_mul_f32', T, V, T, 'row_ror:4')
    a('v_cvt_pk_bf16_f32 v%d, v%d, v%d' % (T, T, T))
    for t in range(4):
        for r in range(4):
            dpp('v_and_b32', vT + 4 * t + r, T, vM + r, 'row_newbcast:%d' % t)
            if t > 0 and r == 1: mfma(vC0, vT + 4 * t - 4, vW + 4 * t - 4, t > 1)
    mfma(vC0, vT + 12, vW + 12, 1)
    a('s_mov_b64 exec, s[58:59]')
    pack24(72, vC0)
    a('buffer_store_dwordx4 v[72:75], v41, s[20:23], s57 offen sc1')
    stamp(12)
    leave()
    flush_retry()

    a.section('q')
    a.label('L_v0')
    far = 'L_v1' if c['wo_at'] == 0 else 'L_v'
    a('s_cmp_ge_u32 s4, 16')
    a('s_cbranch_scc1 L_qw')
    a('s_waitcnt lgkmcnt(0)')
    a('s_load_dword s6, s[20:21], 0')
    a('s_barrier')
    a('s_branch %s' % far)
    a.label('L_qw')
    vWQ, vXN = 16, 128
    srd(16, 448 * 8192)
    srd(36, 896)
    a('v_lshlrev_b32 v8, 4, v1')
    a('v_lshrrev_b32 v12, 3, v1')
    a('v_mul_u32_u24 v3, %d, v12' % (28 * 8192))
    a('v_and_b32 v10, 0x70, v8')
    a('v_add_u32 v3, v3, v10')
    a('s_and_b32 s44, s4, 1')
    a('s_bfe_u32 s54, s4, 0x30001')
    a('s_lshl_b32 s45, s44, 5')
    a('s_add_u32 s44, s45, s55')
    a('s_mul_i32 s45, s44, %d' % (7 * 8192))
    a('s_lshl3_add_u32 s7, s3, s54')
    a('s_lshl_b32 s7, s7, 7')
    a('s_add_u32 s45, s45, s7')
    a('s_movk_i32 s46, 0x2000')
    a('s_waitcnt lgkmcnt(0)')
    stamp(1)
    a('buffer_load_dwordx4 %s, v8, s[36:39], 0 offen' % vr(vA))
    a('s_load_dword s6, s[20:21], 0')
    for n in range(7):
        a('buffer_load_dwordx4 %s, v3, s[16:19], s45 offen nt' % vr(vWQ + 4 * n))
        if n < 6: a('s_add_u32 s45, s45, s46')
    a('s_barrier')
    common(False)
    x, S1, S2 = vA + 8, vA + 4, vA + 5
    a('v_mov_b32 v%d, 0' % S1)
    a('v_mov_b32 v%d, 0' % S2)
    a('v_mov_b32 v%d, 0x3f803f80' % (vA + 6))
    a('v_mov_b32 v%d, %s' % (vA + 7, f32(1.0 / 448)))
    a('v_lshlrev_b32 v13, 5, v1')
    a('v_mul_u32_u24 v14, 112, v12')
    a('s_mul_i32 s7, s44, 28')
    a('s_add_u32 s7, s7, %d' % L_XN)
    a('v_add_u32 v14, s7, v14')
    a('s_and_b32 s44, s4, 1')
    a('v_lshl_add_u32 v15, s55, 3, v13')
    a('v_and_b32 v10, 3, v1')
    a('v_lshlrev_b32 v217, 2, v10')
    a('v_lshlrev_b32_e64 v221, 2, s55')
    a('v_mov_b32 v220, 1')
    a('v_and_b32 v10, 7, v1')
    a('v_lshlrev_b32 v10, 6, v10')
    a('v_bfe_u32 v11, v1, 4, 1')
    a('v_lshl_add_u32 v10, v11, 5, v10')
    a('v_lshrrev_b32 v11, 5, v1')
    a('v_lshl_add_u32 v9, v11, 4, v10')
    a('s_lshr_b32 s7, s54, 1')
    a('s_lshl2_add_u32 s7, s3, s7')
    a('s_lshl1_add_u32 s7, s7, s44')
    a('s_and_b32 s45, s54, 1')
    a('s_lshl1_add_u32 s7, s7, s45')
    a('s_lshl_b32 s57, s7, 9')
    a('s_add_u32 s57, s57, 0x%x' % WS_Q)
    a('s_lshl_b32 s7, s55, 1')
    a('s_lshl_b32 s58, 0x00030003, s7'); a('s_mov_b32 s59, s58')
    qx = 1 if c['qt'] == 'v' else 0
    if qx:
        a('s_mov_b64 exec, s[58:59]')
        a('buffer_load_dword v216, v9, s[20:23], s57 offen sc1')
        a('s_mov_b64 exec, -1')
    a('s_waitcnt vmcnt(%d)' % (7 + qx))
    for k in range(4):
        a('v_dot2c_f32_bf16 v%d, v%d, v%d' % (S1, vA + k, vA + 6))
        a('v_dot2c_f32_bf16 v%d, v%d, v%d' % (S2, vA + k, vA + k))
    unp = []
    for k in range(4):
        unp.append('v_lshlrev_b32 v%d, 16, v%d' % (x + 2 * k, vA + k))
        unp.append('v_and_b32 v%d, 0xffff0000, v%d' % (x + 2 * k + 1, vA + k))
    a(unp.pop()); a(unp.pop())
    for ctl, m in ((QP1, FULL), (QP2, FULL), ('row_half_mirror', FULL), ('row_mirror', FULL),
                   ('row_bcast:15', 'row_mask:0xa bank_mask:0xf'), ('row_bcast:31', 'row_mask:0xc bank_mask:0xf')):
        dpp('v_add_f32', S1, S1, S1, ctl, m)
        dpp('v_add_f32', S2, S2, S2, ctl, m)
        a(unp.pop())
    a('v_readlane_b32 s62, v%d, 63' % S1)
    a('v_readlane_b32 s63, v%d, 63' % S2)
    a('v_mul_f32 v%d, s62, v%d' % (S1, vA + 7))
    a('v_mul_f32 v%d, s63, v%d' % (S2, vA + 7))
    a('v_fma_f32 v%d, -v%d, v%d, v%d' % (S2, S1, S1, S2))
    rnd(S1, S1)
    a('v_max_f32 v%d, 0, v%d' % (S2, S2))
    rnd(S2, S2)
    a('v_add_f32 v%d, %s, v%d' % (S2, f32(1e-5), S2))
    rnd(S2, S2)
    a('v_sqrt_f32 v%d, v%d' % (S2, S2))
    for k in range(8): a('v_sub_f32 v%d, v%d, v%d' % (x + k, x + k, S1))
    rnd(S2, S2)
    a('v_rcp_f32 v%d, v%d' % (S2, S2))
    for k in range(8): rnd(x + k, x + k)
    for k in range(8): a('v_mul_f32 v%d, v%d, v%d' % (x + k, x + k, S2))
    for k in range(8): a('v_cvt_pk_bf16_f32 v%d, v%d, v%d' % (x + k, x + k, x + k))
    a('ds_write_b128 v13, %s offset:%d' % (vr(x), L_XN))
    a('ds_write_b128 v13, %s offset:%d' % (vr(x + 4), L_XN + 16))
    a('s_waitcnt lgkmcnt(0)')
    for z in range(3): a('ds_read2_b32 %s, v14 offset0:%d offset1:%d' % (vr(vXN + 2 * z, 2), 2 * z, 2 * z + 1))
    a('ds_read_b32 v%d, v14 offset:24' % (vXN + 6))
    mktag()
    qc = vA + 16
    a('v_mov_b32 v%d, s6' % (vA + 22))
    a('v_mov_b32 v%d, s6' % (vA + 23))
    a('s_waitcnt lgkmcnt(0)')
    def qand(n):
        for r in range(4): a('v_and_b32 v%d, v%d, v%d' % (vA + 4 * (n & 1) + r, vXN + n, vM + r))
    qand(0)
    for n in range(7):
        if n < 6: qand(n + 1)
        a('s_waitcnt vmcnt(%d)' % (6 + qx - n))
        mfma(qc, vA + 4 * (n & 1), vWQ + 4 * n, n)
    for r in range(4): a('v_mov_b32_dpp v%d, v%d row_ror:8 row_mask:0xc bank_mask:0xf' % (qc + r, qc + r))
    a('v_permlane32_swap_b32 v%d, v%d' % (qc, qc + 2))
    a('v_permlane32_swap_b32 v%d, v%d' % (qc + 1, qc + 3))
    pkadd(qc, qc, qc + 2)
    a('ds_write_b64 v15, %s offset:%d' % (vr(qc, 2), L_T))
    gate_open(6)
    duties('q')
    gate_wait(6, 217)
    a('ds_read_b128 %s, v13 offset:%d' % (vr(vA), L_T))
    a('ds_read_b128 %s, v13 offset:%d' % (vr(vA + 4), L_T + 16))
    a('s_waitcnt lgkmcnt(0)')
    stamp(5)
    pkadd(vA, vA, vA + 2); pkadd(vA + 4, vA + 4, vA + 6)
    pkadd(vA + 20, vA, vA + 4)
    a('s_mov_b64 exec, s[58:59]')
    a('buffer_store_dwordx4 %s, v9, s[20:23], s57 offen' % vr(vA + 20))
    gate_open(8)
    a('s_add_u32 s57, s57, 0x%x' % (WS_QB - WS_Q))
    a('buffer_store_dwordx4 %s, v9, s[20:23], s57 offen sc1' % vr(vA + 20))
    a('s_mov_b64 exec, -1')
    a('s_branch L_v3')

    a.section('end')

    a.label('L_exit')
    if c['probe'] and c['probe'][0] == 'skew':
        _, gsel, mult = c['probe']
        a('s_waitcnt lgkmcnt(0)')
        a('s_cmp_eq_u32 s5, 0')
        a('s_cbranch_scc0 L_end')
        a('s_mov_b64 exec, -1')
        a('s_lshl_b32 s7, s3, 5')
        a('s_add_u32 s7, s7, s4')
        a('s_lshl_b32 s7, s7, 7')
        a('s_add_u32 s7, s7, 0x%x' % WS_ST)
        a('v_mov_b32 v16, s64')
        a('buffer_store_dword v16, off, s[20:23], s7 sc1')
        a('s_cmp_eq_u32 s2, 113')
        a('s_cbranch_scc0 L_end')
        a.label('L_spin0')
        a('s_sleep 4')
        a('s_memrealtime s[94:95]')
        a('s_waitcnt lgkmcnt(0)')
        a('s_sub_u32 s44, s94, s64')
        a('s_cmp_lt_u32 s44, 2000')
        a('s_cbranch_scc1 L_spin0')
        a('v_and_b32 v10, 31, v1')
        a('v_lshlrev_b32 v10, 7, v10')
        a('s_mov_b32 s7, 0x%x' % WS_ST)
        for g in range(8):
            a('buffer_load_dword v%d, v10, s[20:23], s7 offen sc1' % (16 + g))
            a('s_add_u32 s7, s7, 4096')
        a('s_waitcnt vmcnt(0)')
        for g in range(8):
            a('v_subrev_u32 v%d, s64, v%d' % (16 + g, 16 + g))
            allred32('v_min_i32', 16 + g, 30)
        a('v_mov_b32 v24, v16'); a('v_mov_b32 v25, v16')
        for g in range(1, 8):
            a('v_min_i32 v24, v24, v%d' % (16 + g))
            a('v_max_i32 v25, v25, v%d' % (16 + g))
        a('v_sub_u32 v26, v%d, v24' % (16 + gsel if gsel < 8 else 25))
        a('v_readfirstlane_b32 s7, v26')
        a('v_readfirstlane_b32 s45, v24')
        a('s_min_u32 s7, s7, 400')
        a('s_mul_i32 s7, s7, %d' % mult)
        a('s_add_u32 s7, s7, s45')
        a('s_add_u32 s7, s7, 3000')
        a.label('L_spin')
        a('s_sleep 4')
        a('s_memrealtime s[94:95]')
        a('s_waitcnt lgkmcnt(0)')
        a('s_sub_u32 s44, s94, s64')
        a('s_cmp_lt_i32 s44, s7')
        a('s_cbranch_scc1 L_spin')
    elif c['probe']:
        k, base, mult = c['probe']
        stamp(14)
        a('s_waitcnt lgkmcnt(0)')
        a('s_cmp_eq_u32 s%d, 0' % (64 + 2 * k))
        a('s_cbranch_scc1 L_end')
        a('s_sub_u32 s7, s%d, s64' % (64 + 2 * k))
        a('s_min_u32 s7, s7, 10000')
        a('s_mul_i32 s7, s7, %d' % mult)
        a('s_add_u32 s7, s7, %d' % base)
        a.label('L_spin')
        a('s_sleep 4')
        a('s_memrealtime s[94:95]')
        a('s_waitcnt lgkmcnt(0)')
        a('s_sub_u32 s44, s94, s64')
        a('s_cmp_lt_u32 s44, s7')
        a('s_cbranch_scc1 L_spin')
    elif diag:
        stamp(14)
        a('s_sleep 127')
        a('s_mov_b64 exec, 1')
        a('s_lshl3_add_u32 s7, s2, s5')
        a('s_lshl_b32 s7, s7, 6')
        a('s_add_u32 s7, s7, 0x%x' % WS_ST)
        a('s_waitcnt lgkmcnt(0)')
        for k in range(15): a('v_mov_b32 v%d, s%d' % (16 + k, 64 + 2 * k))
        a('s_add_u32 s47, s47, 2')
        a('v_mov_b32 v31, s47')
        for k in range(4): a('buffer_store_dwordx4 %s, off, s[20:23], s7 offset:%d' % (vr(16 + 4 * k), 16 * k))
    a.label('L_end')
    a('s_endpgm')

    ref = open(os.path.join(os.path.dirname(os.path.abspath(__file__)), 'header.txt')).read()
    head = ref + '; @launch grid=(256,1,1) block=(512,1,1) lds=%d\n' % LDS_BYTES
    head += '.amdgcn_target "amdgcn-amd-amdhsa--gfx950"\n.text\n.globl {N}_kernel\n.p2align %d\n.p2align 8\n.type {N}_kernel,@function\n{N}_kernel:\n'.replace('{N}', NAME) % c['align']
    foot = """.section .rodata,"a"
.p2align 6
.amdhsa_kernel {N}_kernel
  .amdhsa_next_free_vgpr 224
  .amdhsa_next_free_sgpr 102
  .amdhsa_accum_offset 224
  .amdhsa_group_segment_fixed_size 0
  .amdhsa_kernarg_size 96
  .amdhsa_float_denorm_mode_32 3
  .amdhsa_user_sgpr_count 2
  .amdhsa_user_sgpr_kernarg_segment_ptr 1
  .amdhsa_system_sgpr_workgroup_id_x 1
.end_amdhsa_kernel
""".replace('{N}', NAME)
    return head + a.text(('main', 'q', 'k', 'v', 'end')) + foot

if __name__ == '__main__':
    out = sys.argv[1] if len(sys.argv) > 1 else 'cdna_kernels/%s.s' % NAME
    kw = eval('dict(%s)' % sys.argv[2]) if len(sys.argv) > 2 else {}
    open(out, 'w').write(gen(**kw))
```

```python
import sys, os, struct, math
sys.path.insert(0, os.path.dirname(os.path.abspath(__file__)))
from emit import Asm

NAME = 'sequential_preLN__sliding_block_cached__geglu_ffn__decode'

WS_X = 0x4000
WS_Q = 0x150000
BLK = 4096 + 128
WS_H0 = 0x20000
GXS = 1024 + 128
WS_QB = 0x170000
WS_XB = 0xC000
WS_GX = 0xC0000
HS = 1920
WS_H1 = 0x100000
WS_H2 = 0x110000
WS_ST = 0x200000

L_QL = 0
L_S = 1024
L_P = 2048
L_XN = 6400
L_WT = 3200
L_GATE = 8448
L_STAT = 8704
L_RED = 9728
L_T = 14848
LDS_BYTES = L_T + 8 * 4096

SPIN = 20000

def f32(x):
    return '0x%08x' % struct.unpack('<I', struct.pack('<f', x))[0]

def vr(a, n=4):
    return 'v[%d:%d]' % (a, a + n - 1)

DEF = dict(depth=6, dv=0, gq=14, ga=16, na=16, nb=16, pvd=6, dx=0, stamps=None, rs=1, rg=0, touch='vv',
           force_sc1=False, probe=None, wo_at=3, qdual=6, ldual=40, gall=1, g0deep=32, off0=1, b1=1, qh=6, pf=True, qt='v', prio=0, align=12)

def gen(**kw):
    c = dict(DEF); c.update(kw)
    a = Asm()
    D = c['depth']
    DV = c['dv'] or D
    DX = c['dx']
    diag = bool(c['stamps'])
    def stamp(k):
        if diag: a('%s s[%d:%d]' % (c['stamps'], 64 + 2 * k, 65 + 2 * k))
    def leave():
        a('s_branch L_exit' if diag else 's_endpgm')
    nlab = [0]
    def leave_if(cond):
        if diag:
            a('s_cbranch_%s L_exit' % cond)
        else:
            nlab[0] += 1
            a('s_cbranch_%s L_stay%d' % ('scc1' if cond == 'scc0' else 'scc0', nlab[0]))
            h = list(a.hist)
            a('s_endpgm')
            a.hist = h
            a.label('L_stay%d' % nlab[0])
    def srd(base, size):
        a('s_mov_b32 s%d, 0x%x' % (base + 2, size))
        a('s_mov_b32 s%d, 0x20000' % (base + 3))
    def mktag():
        a('s_mul_i32 s6, s6, 0x9e3779b1')
        a('s_add_u32 s6, s6, 0x7f4a7c15')
    def rnd(d, s):
        a('v_cvt_pk_bf16_f32 v%d, 0, v%d' % (d, s))
    QP1, QP2 = 'quad_perm:[1,0,3,2]', 'quad_perm:[2,3,0,1]'
    FULL = 'row_mask:0xf bank_mask:0xf'
    def dpp(op, d, s0, s1, ctl, mask=FULL):
        a('%s_dpp v%d, v%d, v%d %s %s' % (op, d, s0, s1, ctl, mask))
    def mfma(d, x, y, acc):
        a('v_mfma_f32_16x16x32_bf16 %s, %s, %s, %s' % (vr(d), vr(x), vr(y), vr(d) if acc else '0'))
    def pkadd(d, x, y):
        a('v_pk_add_f32 %s, %s, %s' % (vr(d, 2), vr(x, 2), vr(y, 2)))
    def masks():
        a('v_and_b32 v10, 1, v1')
        a('v_lshlrev_b32 v10, 4, v10')
        a('s_mov_b32 s7, 0xffff')
        a('v_lshlrev_b32_e64 v10, v10, s7')
        a('v_bfe_u32 v11, v1, 1, 2')
        for r in range(4):
            a('v_cmp_eq_u32 vcc, %d, v11' % r)
            a('v_cndmask_b32 v%d, 0, v10, vcc' % (vM + r))
    def pack24(d, s):
        for k in range(3):
            a('v_perm_b32 v%d, v%d, v%d, s%d' % (d + k, s + k, s + 3, sPK + k))
    def unpackn(gs):
        for g in gs: a('v_perm_b32 v%d, v%d, v%d, s%d' % (g + 3, g + 1, g, sUP))
        for g in gs: a('v_perm_b32 v%d, v%d, v%d, s%d' % (g + 3, g + 2, g + 3, sUP + 1))
    def scatter4(g):
        a('v_permlane32_swap_b32 v%d, v%d' % (g, g + 2))
        a('v_permlane32_swap_b32 v%d, v%d' % (g + 1, g + 3))
        pkadd(g, g, g + 2)
        a('v_permlane16_swap_b32 v%d, v%d' % (g, g + 1))
        a('v_add_f32 v%d, v%d, v%d' % (g, g, g + 1))
        dpp('v_add_f32', g, g, g, 'row_ror:8')
    def sum2scatter():
        unpackn([G0, G1])
        pkadd(G0, G0, G1); pkadd(G0 + 2, G0 + 2, G1 + 2)
        scatter4(G0)
    def vec32(d, s, banks):
        rnd(s + 1, s)
        a('v_cvt_pk_bf16_f32 v%d, v%d, 0' % (s, s))
        dpp('v_or_b32', s, s + 1, s, 'quad_perm:[1,1,3,3]')
        for k in range(4):
            a('v_mov_b32_dpp v%d, v%d row_newbcast:%d row_mask:0xf bank_mask:0x%x' % (d + k, s, 2 * k, banks))
    retry = []
    def poll(name, loads, tags, between=None, wait='vmcnt(0)', alt=None, half=False):
        for t in loads[:-1]: a(t)
        if half: a('s_mov_b32 exec_hi, 0')
        a(loads[-1])
        if half: a('s_mov_b32 exec_hi, -1')
        if between: between()
        a('s_mov_b32 s7, 0')
        if wait: a('s_waitcnt ' + wait)
        a.label(name + '_chk')
        a('v_cmp_ne_u32 vcc, s6, v%d' % tags[0])
        if len(tags) > 1:
            for i, t in enumerate(tags[1:]):
                a('v_cmp_ne_u32_e64 s[%d:%d], s6, v%d' % (96 + 2 * i, 97 + 2 * i, t))
            if half: a('s_and_b32 s%d, s%d, 0' % (93 + 2 * len(tags), 93 + 2 * len(tags)))
            for i, t in enumerate(tags[1:]):
                a('s_or_b64 s[62:63], %s, s[%d:%d]' % ('s[62:63]' if i else 'vcc', 96 + 2 * i, 97 + 2 * i))
            a('s_cbranch_scc1 %s_retry' % name)
        else:
            a('s_cbranch_vccnz %s_retry' % name)
        a.label(name + '_ok')
        retry.append((name, loads, alt))
    def flush_retry():
        for name, loads, alt in retry:
            a.label(name + '_retry')
            if alt:
                a('s_cmp_eq_u32 s7, %d' % alt[0])
                a('s_cselect_b32 s%d, s%d, s%d' % (alt[1], alt[2], alt[1]))
            for i, t in enumerate(loads):
                a('s_mov_b64 exec, %s' % ('s[%d:%d]' % (94 + 2 * i, 95 + 2 * i) if i else 'vcc'))
                a(t)
            a('s_mov_b64 exec, -1')
            a('s_add_u32 s7, s7, 1')
            a('s_cmp_ge_u32 s7, %d' % SPIN)
            a('s_waitcnt vmcnt(0)')
            a('s_cbranch_scc0 %s_chk' % name)
            a('s_branch %s_ok' % name)
        del retry[:]
    def common(x=True):
        if x: srd(36, 896)
        a('s_load_dwordx2 s[24:25], s[0:1], 48')
        a('s_load_dwordx2 s[28:29], s[0:1], 56')
        a('s_load_dwordx2 s[32:33], s[0:1], 64')
        a('s_load_dwordx2 s[40:41], s[0:1], 72')
        srd(20, 1 << 28)
        srd(24, 448 * 3584)
        srd(32, 1792 * 896)
        srd(40, 896)
        for k in range(3):
            a('s_mov_b32 s%d, 0x0706050%d' % (sPK + k, 1 + k))
        a('s_mov_b32 s%d, 0x0c04000c' % sUP)
        a('s_mov_b32 s%d, 0x04020100' % (sUP + 1))
        a('s_cmp_lt_u32 s4, %d' % c['g0deep'])
        a('s_cselect_b32 s30, 1, 0')
        a('s_cmp_eq_u32 s3, 0')
        a('s_cselect_b32 s30, s30, s31')
        masks()
        a('v_lshlrev_b32 v8, 4, v1')
    def gate_open(k):
        a('ds_write_b32 v221, v220 offset:%d' % (L_GATE + 16 * k))
    def gate_wait(k, vaddr):
        nlab[0] += 1
        if vaddr == 219: a('v_mov_b32 v219, 0')
        a.label('L_gate%d' % nlab[0])
        a('ds_read_b32 v219, v%d offset:%d' % (vaddr, L_GATE + 16 * k))
        a('s_waitcnt lgkmcnt(0)')
        a('v_cmp_ne_u32 vcc, 1, v219')
        a('s_cbranch_vccnz L_gate%d' % nlab[0])
    def store2(data, voff, soff):
        a('s_mov_b64 exec, s[58:59]')
        a('buffer_store_dwordx4 %s, v%d, s[20:23], s%d offen' % (vr(data), voff, soff))
        a('s_mov_b64 exec, s[60:61]')
        a('buffer_store_dwordx4 %s, v%d, s[20:23], s%d offen sc1' % (vr(data), voff, soff))
        a('s_mov_b64 exec, -1')
    def dma_voff(rowexpr_pitch):
        a('v_bfe_u32 v11, v1, 3, 2')
        a('v_lshlrev_b32 v11, 1, v11')
        a('v_xor_b32 v11, v11, v1')
        a('v_and_b32 v11, 7, v11')
        a('v_mul_u32_u24 v10, %d, v10' % rowexpr_pitch)
        a('v_lshl_add_u32 v2, v11, 4, v10')
    def tr_addr():
        a('v_bfe_u32 v10, v1, 2, 2')
        a('v_mul_u32_u24 v10, 160, v10')
        a('v_and_b32 v11, 3, v1')
        a('v_lshl_add_u32 v10, v11, 3, v10')
        a('v_lshrrev_b32 v11, 4, v1')
        a('v_lshl_add_u32 v10, v11, 10, v10')
        a('v_lshl_add_u32 v32, s5, 12, v10')
        for t in range(1, 4): a('v_xor_b32 v%d, %d, v32' % (32 + t, 32 * t))
    def tr_read():
        for t in range(4):
            for u in range(2):
                a('ds_read_b64_tr_b16 %s, v%d offset:%d' % (vr(vB + 4 * t + 2 * u, 2), 32 + t, L_T + 512 * u))
    def line_voff():
        a('v_lshrrev_b32 v10, 3, v1')
        a('v_mul_u32_u24 v10, %d, v10' % HS)
        a('v_and_b32 v11, 0x70, v8')
        a('v_add_u32 v9, v10, v11')
        a('v_lshrrev_b32 v10, 4, v1')
        a('v_lshl_add_u32 v12, v10, 1, v11')
    def line_soff(sl):
        a('s_lshl_b32 s44, s%d, 7' % sl)
        a('s_add_u32 s44, s44, 0x%x' % WS_H1)
        a('s_add_u32 s45, s44, %d' % (8 * HS))
        a('s_lshr_b32 s46, s%d, 1' % sl)
        a('s_lshl_b32 s46, s46, 7')
        a('s_and_b32 s7, s%d, 1' % sl)
        a('s_lshl3_add_u32 s46, s7, s46')
    def softmax_head(r):
        mx, t1, ls = r + 4, r + 5, r + 6
        a('v_max3_f32 v%d, v%d, v%d, v%d' % (mx, r, r + 1, r + 2))
        a('v_max_f32 v%d, v%d, v%d' % (mx, mx, r + 3))
        allred32('v_max_f32', mx, t1)
        a('v_mul_f32 v%d, s53, v%d' % (mx, mx))
        for k in range(4): a('v_fma_f32 v%d, v%d, s53, -v%d' % (r + k, r + k, mx))
        for k in range(4): a('v_exp_f32 v%d, v%d' % (r + k, r + k))
        a('v_add_f32 v%d, v%d, v%d' % (ls, r, r + 1))
        a('v_add_f32 v%d, v%d, v%d' % (t1, r + 2, r + 3))
        a('v_add_f32 v%d, v%d, v%d' % (ls, ls, t1))
        allred32('v_add_f32', ls, t1)
    def allred32(op, r, t1):
        for ctl in (QP1, QP2, 'row_half_mirror', 'row_mirror'): dpp(op, r, r, r, ctl)
        a('v_mov_b32 v%d, v%d' % (t1, r))
        a('v_permlane16_swap_b32 v%d, v%d' % (r, t1))
        a('%s v%d, v%d, v%d' % (op, r, r, t1))

    vM = 4
    vKO = 2
    vK, vV, vQ, vW = 16, 80, 144, 176
    vA = 192
    vP = 16
    vT = 48
    vC0, vC1 = 64, 68
    G0, G1, G2, G3 = 16, 20, 24, 28
    vB, vAX, vD = 80, 96, 100
    sPK, sUP = 48, 51
    SC = f32(math.log2(math.e) / 16)

    def wo_setup():
        a('s_load_dwordx2 s[16:17], s[0:1], 32')
        srd(16, 448 * 8192)
        a('v_bfe_u32 v10, v1, 3, 2')
        a('v_lshrrev_b32 v11, 5, v1')
        a('v_lshl_add_u32 v10, v10, 1, v11')
        dma_voff(4 * 896)
        a('s_cmp_ge_u32 s4, 7')
        a('s_cselect_b32 s54, 1, 0')
        a('s_lshl1_add_u32 s7, s3, s54')
        a('s_lshl_b32 s7, s7, 8')
        a('s_add_u32 s7, s7, s55')
        a('s_sub_u32 s7, s7, s54')
        a('s_mul_i32 s7, s7, 7')
        a('s_add_u32 s7, s7, s4')
        a('s_lshl_b32 s10, s7, 7')
        a('s_lshl_b32 s7, s55, 10')
        a('s_add_u32 m0, s7, %d' % L_T)
        a('s_movk_i32 s11, %d' % (32 * 896))
    def wo_issue():
        for i in range(8):
            a('buffer_load_dwordx4 v2, s[16:19], s10 offen nt lds')
            if i < 7:
                a('s_add_u32 m0, m0, 0x1000')
                a('s_add_u32 s10, s10, s11')
    def wo_issue_if():
        nlab[0] += 1
        a('s_cmp_ge_u32 s4, 14')
        a('s_cbranch_scc1 L_nowo%d' % nlab[0])
        wo_issue()
        a.label('L_nowo%d' % nlab[0])
    def kv_addr():
        a('v_and_b32 v10, 7, v1')
        a('v_lshrrev_b32 v11, 3, v1')
        a('v_lshlrev_b32 v10, 4, v10')
        a('v_lshl_add_u32 v%d, v11, 9, v10' % vKO)
        a('s_lshl_b32 s7, s3, 7')
        a('s_add_u32 s7, s7, s4')
        a('s_add_u32 s7, s7, 96')
        a('s_lshl_b32 s44, s7, 4')
        if c['rs'] == 1 and not c['rg']:
            a('s_and_b32 s7, s4, 15')
        else:
            a('s_mul_i32 s7, s4, %d' % c['rs'])
            a('s_mul_i32 s62, s3, %d' % c['rg'])
            a('s_add_u32 s7, s7, s62')
            a('s_and_b32 s7, s7, 15')
        a('s_or_b32 s44, s44, s7')
    def h0_gather():
        a('s_cmp_ge_u32 s4, 7')
        a('s_cselect_b32 s54, 1, 0')
        a('s_lshl1_add_u32 s7, s3, s54')
        a('s_lshl3_add_u32 s56, s7, s5')
        a('s_mul_i32 s56, s56, %d' % BLK)
        a('s_add_u32 s56, s56, 0x%x' % WS_H0)

    def xpub(part):
        if part & 1:
            a('s_lshl_b32 s7, s3, 5')
            a('s_add_u32 s7, s7, s4')
            a('s_lshl_b32 s7, s7, 7')
            a('s_add_u32 s47, s7, 0x%x' % WS_X)
            a('s_getreg_b32 s7, hwreg(HW_REG_XCC_ID, 0, 4)')
            a('v_mov_b32 v222, s7')
            a('v_mov_b32 v223, s6')
        if part & 2:
            nlab[0] += 1
            a('s_cmp_eq_u32 s5, 6')
            a('s_cbranch_scc0 L_xp%d' % nlab[0])
            a('s_mov_b64 exec, 1')
            a('buffer_store_dwordx2 v[222:223], off, s[20:23], s47')
            a('s_mov_b64 exec, -1')
            a.label('L_xp%d' % nlab[0])

    if diag:
        for k in range(1, 15): a('s_mov_b32 s%d, 0' % (64 + 2 * k))
    stamp(0)
    a('s_load_dwordx2 s[8:9], s[0:1], 8')
    a('s_load_dwordx2 s[36:37], s[0:1], 0')
    a('s_load_dwordx2 s[16:17], s[0:1], 24')
    a('s_load_dwordx2 s[12:13], s[0:1], 16')
    a('s_load_dwordx2 s[20:21], s[0:1], 88')
    a('s_cmp_ge_u32 s2, 256')
    a('s_cbranch_scc1 L_end')
    a('v_lshrrev_b32 v3, 6, v0')
    a('v_and_b32 v1, 63, v0')
    a('s_and_b32 s3, s2, 7')
    a('v_readfirstlane_b32 s5, v3')
    a('s_lshr_b32 s4, s2, 3')
    a('s_and_b32 s55, s5, 3')
    if c['off0']:
        a('s_cmp_ge_u32 s4, 14')
        a('s_cselect_b32 s31, 1, 0')
        a('s_cmp_ge_u32 s4, 16')
        a('s_cselect_b32 s31, s3, s31')
    else:
        a('s_lshr_b32 s31, s4, 4')
    a('s_cmp_ge_u32 s5, 4')
    a('s_cbranch_scc1 L_v0')

    if c['pf']:
        a('s_getpc_b64 s[46:47]')
        a.label('L_pc')
        a('s_lshl2_add_u32 s7, s4, s55')
        a('s_lshl_b32 s7, s7, 7')
        a('s_addk_i32 s7, 0x300')
        a('s_min_u32 s7, s7, L_end-L_pc')
        a('s_add_u32 s46, s46, s7')
        a('s_addc_u32 s47, s47, 0')
        a('v_mov_b32 v10, s46')
        a('v_mov_b32 v11, s47')
        a('global_load_dword v216, v[10:11], off')
    kv_addr()
    srd(8, 1 << 26)
    a('s_xor_b32 s45, s44, s55')
    a('s_lshl_b32 s45, s45, 12')
    a('v_and_b32 v10, 0xfc, v0')
    a('v_mov_b32 v11, 0')
    a('ds_write_b32 v10, v11 offset:%d' % L_GATE)
    a('s_cmp_lg_u32 s31, 0')
    a('s_waitcnt lgkmcnt(0)')
    a('s_load_dword s6, s[20:21], 0')
    if c['b1']:
        a('s_cbranch_scc0 L_k1')
        a('s_barrier')
        a.label('L_k1')
    stamp(1)
    GQ = c['gq']
    assert D <= GQ <= 16 and D <= c['ga'] <= 16
    class Stream:
        def __init__(self): self.seq, self.done = [], 0
        def left(self, n): return len(self.seq) - self.seq.index(n) - 1
        def wait(self, n):
            if self.seq.index(n) >= self.done:
                a('s_waitcnt vmcnt(%d)' % self.left(n))
                self.done = self.seq.index(n) + 1
        def throttle(self, n, d):
            if DX and n >= d and self.seq.index(n - d) >= self.done:
                nlab[0] += 1
                a('s_cmp_lg_u32 s30, 0')
                a('s_cbranch_scc1 L_thr%d' % nlab[0])
                a('s_waitcnt vmcnt(%d)' % self.left(n - d))
                a.label('L_thr%d' % nlab[0])
            if n >= d + DX: self.wait(n - d - DX)
    ks = Stream()
    def kload(idx):
        i, t = idx >> 2, idx & 3
        if t == 0 and i > 0: a('s_xor_b32 s45, s45, 0x%x' % ((i ^ (i - 1)) << 14))
        ks.throttle(idx, D)
        a('buffer_load_dwordx4 %s, v%d, s[8:11], s45 offen offset:%d nt' % (vr(vK + 4 * idx), vKO, 128 * t))
        ks.seq.append(idx)
    for idx in range(D): kload(idx)
    if c['b1']:
        a('s_cmp_lg_u32 s31, 0')
        a('s_cbranch_scc1 L_kb')
    a('s_barrier')
    a('s_branch L_kb')
    a.section('k')
    a.label('L_kb')
    common()
    for k in range(8): a('v_mov_b32 v%d, 0' % (vA + 8 + k))
    a('v_bfe_u32 v10, v1, 2, 1')
    a('v_lshlrev_b32 v10, 9, v10')
    a('v_lshrrev_b32 v12, 4, v1')
    a('v_lshl_add_u32 v10, v12, 7, v10')
    a('v_and_b32 v11, 3, v1')
    a('v_lshlrev_b32 v217, 2, v11')
    a('v_lshl_add_u32 v10, v11, 5, v10')
    a('v_bfe_u32 v11, v1, 3, 1')
    a('v_lshl_add_u32 v10, v11, 2, v10')
    a('v_lshl_add_u32 v13, s55, 3, v10')
    a('v_and_b32 v10, 31, v1')
    a('v_lshlrev_b32 v218, 7, v10')
    a('v_lshlrev_b32_e64 v221, 2, s55')
    a('v_mov_b32 v220, 1')
    a('v_and_b32 v9, 0x70, v8')
    a('v_lshlrev_b32 v12, 2, v0')
    a('s_lshl_b32 s46, s3, 12')
    a('s_add_u32 s46, s46, 0x%x' % WS_X)
    a('s_lshl_b32 s7, s5, 10')
    a('s_add_u32 s47, s46, s7')
    a('s_getreg_b32 s44, hwreg(HW_REG_XCC_ID, 0, 4)')
    a('s_lshl2_add_u32 s7, s3, s5')
    a('s_lshl_b32 s7, s7, 11')
    a('s_add_u32 s56, s7, 0x%x' % WS_Q)
    a('s_add_u32 s57, s7, 0x%x' % WS_QB)
    if c['off0']:
        a('s_cmp_eq_u32 s3, 0')
        a('s_cselect_b32 s56, s57, s56')
    a('s_mov_b32 s58, 0xaaaaaaaa'); a('s_mov_b32 s59, 0xaaaaaaaa')
    a('s_mov_b32 s60, 0xcccccccc'); a('s_mov_b32 s61, 0xcccccccc')
    a('s_mov_b32 s53, %s' % SC)
    if c['ga'] == D: gate_open(0)
    def krange(lo, hi):
        for idx in range(lo, hi):
            if c['qh'] and idx == c['qh']:
                a('s_cmp_lg_u32 s31, 0')
                a('s_cbranch_scc0 L_k2')
                gate_wait(8, 217)
                a.label('L_k2')
            kload(idx)
            if c['ga'] == idx + 1: gate_open(0)
    krange(D, GQ)
    def krest():
        ks.seq += ['q0', 'q1']
        krange(GQ, 16)
        stamp(2)
        a('s_waitcnt lgkmcnt(0)')
        mktag()
        if c['wo_at']: wo_setup()
        ks.wait('q1')
        gate_open(1)
    poll('L_pq', ['buffer_load_dwordx4 %s, v8, s[20:23], s56 offen offset:%d sc1' % (vr(vA + 4 * k), 1024 * k) for k in range(2)],
         [vA + 3, vA + 7], between=krest, wait=None, alt=(c['qdual'], 56, 57))
    stamp(3)
    pkadd(vA, vA, vA + 4)
    a('v_cvt_pk_bf16_f32 v%d, v%d, v%d' % (vA, vA, vA + 1))
    a('ds_write_b32 v12, v%d offset:%d' % (vA, L_QL))
    gate_open(2)
    a('s_mov_b64 exec, 0xff')
    a('buffer_load_dwordx2 v[222:223], v218, s[20:23], s47 offen sc1')
    a('s_mov_b64 exec, -1')
    ks.seq.append('x')
    gate_wait(2, 217)
    for h in range(2):
        for t in range(4):
            a('ds_read_b128 %s, v9 offset:%d' % (vr(vQ + 16 * h + 4 * t), L_QL + 512 * h + 128 * t))
    if c['wo_at'] == 2: wo_issue_if()
    a('s_waitcnt lgkmcnt(0)')
    stamp(4)
    acc = lambda i, h: vA + 8 + 4 * h + i
    for i in range(4):
        assert c['wo_at'] != 2 or GQ == 16
        ks.wait(4 * i + 3)
        for t in range(4):
            for d in range(4):
                for h in range(2):
                    a('v_dot2c_f32_bf16 v%d, v%d, v%d' % (acc(i, h), vK + 16 * i + 4 * t + d, vQ + 16 * h + 4 * t + d))
    X = acc(0, 0)
    for i in range(4): dpp('v_add_f32', X + i, X + i, X + i, 'row_half_mirror', 'row_mask:0xf bank_mask:0x5')
    for i in range(4): dpp('v_add_f32', X + i, X + 4 + i, X + 4 + i, 'row_half_mirror', 'row_mask:0xf bank_mask:0xa')
    for i in range(4): dpp('v_add_f32', X + i, X + i, X + i, QP1)
    a('v_cndmask_b32_e64 v%d, v%d, v%d, s[58:59]' % (X, X, X + 1))
    a('v_cndmask_b32_e64 v%d, v%d, v%d, s[58:59]' % (X + 2, X + 2, X + 3))
    dpp('v_add_f32', X, X, X, QP2)
    dpp('v_add_f32', X + 2, X + 2, X + 2, QP2)
    a('v_cndmask_b32_e64 v%d, v%d, v%d, s[60:61]' % (X, X, X + 2))
    rnd(X, X)
    a('ds_write_b32 v13, v%d offset:%d' % (X, L_S))
    gate_open(3)
    stamp(5)
    h0_gather()
    def xflag(left):
        a('s_waitcnt vmcnt(%d)' % left)
        a('v_cmp_ne_u32 vcc, s6, v223')
        a('v_cmp_ne_u32_e64 s[96:97], s44, v222')
        a('s_or_b32 s7, vcc_lo, s96')
        a('s_and_b32 s7, s7, 0xff')
        a('s_cselect_b32 s7, 2, %d' % (2 if c['force_sc1'] else 1))
        a('v_mov_b32 v219, s7')
        a('ds_write_b32 v221, v219 offset:%d' % (L_GATE + 16 * 7))
    a('s_cmp_eq_u32 s5, 3')
    a('s_cbranch_scc1 L_k3')
    xflag(0)
    a('s_cmp_ge_u32 s4, 14')
    a('s_cbranch_scc1 L_aux6')
    if c['wo_at'] == 4: gate_wait(4, 221)
    if c['wo_at'] >= 3: wo_issue()
    a('s_waitcnt vmcnt(0)')
    a('s_branch L_wt')

    a.label('L_k3')
    a('s_lshl3_add_u32 s45, s54, s46')
    a('s_add_u32 s57, s45, 0x%x' % (WS_XB - WS_X))
    a('v_lshrrev_b32 v10, 5, v1')
    a('v_lshl_add_u32 v14, v10, 4, v8')
    a('v_lshlrev_b32 v10, 3, v10')
    a('s_lshl_b32 s7, s4, 7')
    a('s_add_u32 s46, s46, s7')
    a('v_mov_b32 v13, s6')
    gate_wait(3, 217)
    a('ds_read_b128 %s, v8 offset:%d' % (vr(vA), L_S))
    a('s_waitcnt lgkmcnt(0)')
    softmax_head(vA)
    a('v_rcp_f32 v%d, v%d' % (vA + 5, vA + 6))
    a('v_log_f32 v12, v%d' % (vA + 6))
    for k in range(4): a('v_mul_f32 v%d, v%d, v%d' % (vA + k, vA + k, vA + 5))
    for k in range(4): a('v_cvt_pk_bf16_f32 v%d, v%d, v%d' % (vA + k, vA + k, vA + k))
    a('ds_write_b128 v14, %s offset:%d' % (vr(vA), L_P))
    a('ds_write_b32 v221, v220 offset:%d' % (L_GATE + 16 * 5 - 12))
    a('v_add_f32 v12, v12, v%d' % (vA + 4))
    def lse_store(sc):
        a('s_mov_b32 exec_lo, 1'); a('s_mov_b32 exec_hi, 1')
        a('buffer_store_dwordx2 v[12:13], v10, s[20:23], s46 offen offset:16' + sc)
        a('s_mov_b64 exec, -1')
    lse_store('')
    xflag(1)
    a('s_add_u32 s46, s46, 0x%x' % (WS_XB - WS_X))
    a('s_cmp_ge_u32 s4, 14')
    stamp(6)
    a('s_cbranch_scc0 L_k4')
    lse_store(' sc1')
    a('s_branch L_aux6')
    a.label('L_k4')
    gate_wait(4, 221)
    late = c['wo_at'] >= 3
    def lrest():
        if late: wo_issue()
        lse_store(' sc1')
    poll('L_pl', ['buffer_load_dwordx2 v[14:15], v218, s[20:23], s45 offen offset:16 sc1'], [15],
         between=lrest, wait='vmcnt(%d)' % (9 if late else 1), alt=(c['ldual'], 45, 57))
    stamp(7)
    a('v_mov_b32 v16, v14')
    allred32('v_max_f32', 16, 17)
    a('v_sub_f32 v14, v14, v16')
    a('v_exp_f32 v14, v14')
    a('v_and_b32 v10, 0x70, v8')
    a('v_mov_b32 v16, v14')
    allred32('v_add_f32', 16, 17)
    a('v_rcp_f32 v16, v16')
    a('v_bfe_u32 v11, v1, 3, 2')
    a('v_lshl_add_u32 v10, v11, 2, v10')
    a('v_mul_f32 v14, v14, v16')
    a('ds_write_b32 v10, v14 offset:%d' % L_WT)
    a('s_waitcnt vmcnt(1) lgkmcnt(0)')
    a('s_branch L_wt')
    a.label('L_aux6')
    a('s_waitcnt lgkmcnt(0)')
    a('s_sub_u32 s3, s3, 1')
    leave_if('scc1')
    a('s_cmp_ge_u32 s4, 16')
    a('s_cbranch_scc0 L_fin')
    a('s_sub_u32 s54, s4, 16')
    a('s_lshl4_add_u32 s54, s3, s54')
    a('v_lshrrev_b32 v10, 3, v1')
    dma_voff(8 * 3584)
    a('s_bitcmp1_b32 s4, 0')
    a('s_cselect_b64 s[24:25], s[28:29], s[24:25]')
    a('s_mul_i32 s44, s5, 3584')
    a('s_lshr_b32 s7, s54, 2')
    a('s_lshl_b32 s7, s7, 7')
    a('s_add_u32 s44, s44, s7')
    a('s_bitcmp1_b32 s4, 1')
    for i in range(7):
        r0, r1 = [64 * (x >> 1) + 4 * (x & 1) for x in (i, 7 + i)]
        a('s_mov_b32 s7, %d' % (r0 * 3584))
        a('s_cselect_b32 s%d, %d, s7' % (8 + i, r1 * 3584))
    for i in range(7): a('s_add_u32 s%d, s%d, s44' % (8 + i, 8 + i))
    a('s_lshl_b32 s7, s5, 10')
    a('s_add_u32 m0, s7, %d' % L_T)
    a('v_lshrrev_b32 v12, 4, v1')
    a('v_mul_u32_u24 v10, 896, v12')
    a('v_and_b32 v11, 15, v1')
    a('v_lshl_add_u32 v11, s5, 4, v11')
    a('v_lshl_add_u32 v3, v11, 4, v10')
    a('v_cmp_gt_u32 vcc, 56, v11')
    a('v_cndmask_b32 v3, 2.0, v3, vcc')
    a('s_mul_i32 s16, s54, %d' % (16 * 896))
    a('s_add_u32 s17, s16, 7168')
    a('v_bfe_u32 v10, v1, 2, 2')
    a('v_lshl_add_u32 v10, v10, 2, v12')
    a('v_and_b32 v11, 0x30, v8')
    a('v_lshl_add_u32 v40, v10, 6, v11')
    a('s_mul_i32 s56, s54, %d' % GXS)
    a('s_add_u32 s56, s56, 0x%x' % WS_GX)
    a('v_and_b32 v10, 0x70, v8')
    a('v_bfe_u32 v11, v1, 3, 1')
    a('v_lshl_add_u32 v10, v11, 8, v10')
    a('v_lshl_add_u32 v41, v12, 7, v10')
    a('s_mul_i32 s57, s54, %d' % HS)
    a('s_lshl_b32 s7, s5, 9')
    a('s_add_u32 s57, s57, s7')
    a('s_add_u32 s57, s57, 0x%x' % WS_H2)
    a('s_cmp_eq_u32 s5, 3')
    a('s_cselect_b32 s58, 0x00ff00ff, -1')
    a('s_mov_b32 s59, 0')
    k0 = 2 * math.sqrt(2 / math.pi) * math.log2(math.e)
    a('v_mov_b32 v42, %s' % f32(-k0))
    a('v_mov_b32 v43, %s' % f32(1.0 / 448))
    a('s_mov_b32 s18, %s' % f32(1.0 / 448))
    a('s_mov_b32 s19, %s' % f32(-k0 * 0.044715))
    a('v_mov_b32 v75, s6')
    a('s_branch L_ft')
    flush_retry()

    a.section('v')
    if c['wo_at'] == 0:
        a.label('L_v1')
        a('s_cmp_ge_u32 s4, 14')
        a('s_cbranch_scc1 L_v')
        wo_setup()
        a('s_waitcnt lgkmcnt(0)')
        wo_issue()
    a.label('L_v')
    common()
    a('s_waitcnt lgkmcnt(0)')
    mktag()
    xpub(3)
    a.label('L_v3')
    if c['touch']:
        a('s_cmp_ge_u32 s4, 16')
        a('s_cbranch_scc1 L_v4')
        a('s_lshl4_add_u32 s7, s3, s4')
        a('s_mul_i32 s44, s7, %d' % BLK)
        a('s_mul_i32 s45, s7, %d' % GXS)
        a('s_lshl_b32 s7, s55, 10')
        a('s_add_u32 s44, s44, s7')
        a('s_add_u32 s44, s44, 0x%x' % WS_H0)
        a('s_add_u32 s45, s45, 0x%x' % (WS_GX - 16 * GXS))
        a('buffer_load_dwordx4 v[16:19], v8, s[20:23], s44 offen')
        a('s_cmp_eq_u32 s5, 4')
        a('s_cbranch_scc0 L_v4')
        a('buffer_load_dwordx4 v[16:19], v8, s[20:23], s45 offen')
        a.label('L_v4')
    kv_addr()
    srd(12, 1 << 26)
    a('s_lshl_b32 s44, s44, 12')
    a('s_lshl_b32 s7, s55, 7')
    a('s_add_u32 s44, s44, s7')
    a('v_lshlrev_b32_e64 v221, 2, s55')
    a('v_mov_b32 v220, 1')
    a('v_and_b32 v10, 3, v1')
    a('v_lshlrev_b32 v217, 2, v10')
    a('v_bfe_u32 v11, v1, 3, 1')
    a('v_lshrrev_b32 v12, 4, v1')
    a('v_mul_u32_u24 v15, 528, v11')
    a('v_lshl_add_u32 v15, v12, 7, v15')
    a('v_lshrrev_b32 v10, 5, v1')
    a('v_bfe_u32 v11, v1, 2, 1')
    a('v_lshl_add_u32 v10, v10, 3, v11')
    a('v_mul_u32_u24 v10, %d, v10' % BLK)
    a('v_and_b32 v11, 3, v1')
    a('v_lshl_add_u32 v10, v11, 4, v10')
    a('v_bfe_u32 v11, v1, 4, 1')
    a('v_lshl_add_u32 v9, v11, 6, v10')
    a('s_lshl3_add_u32 s7, s3, s55')
    a('s_mul_i32 s57, s7, %d' % (2 * BLK))
    a('s_lshl_b32 s7, s4, 7')
    a('s_add_u32 s57, s57, s7')
    a('s_add_u32 s57, s57, 0x%x' % WS_H0)
    h0_gather()
    for k in range(8): a('v_mov_b32 v%d, 0' % (vC0 + k))
    a('v_mov_b32 v75, s6')
    NB = c['nb']
    GV = 217 if c['gall'] else 221
    gate_wait(0, GV)
    stamp(2)
    vs = Stream()
    def vload(n):
        if n > 0: a('s_xor_b32 s44, s44, 0x%x' % ((n ^ (n - 1)) << 12))
        a('buffer_load_dwordx4 %s, v%d, s[12:15], s44 offen nt' % (vr(vV + 4 * n), vKO))
        vs.seq.append(n)
        if n == 15:
            stamp(3)
            gate_open(4)
    for n in range(NB):
        if n == c['na']: gate_wait(1, GV)
        vs.throttle(n, DV)
        vload(n)
    stamp(4)
    gate_wait(5, 219)
    for z in range(8): a('ds_read_b128 %s, v15 offset:%d' % (vr(vP + 4 * z), L_P + 16 * z))
    a('s_waitcnt lgkmcnt(0)')
    stamp(6)
    nxt = NB
    if c['prio']: a('s_setprio %d' % c['prio'])
    def pand(k):
        for r in range(4): a('v_and_b32 v%d, v%d, v%d' % (vT + 4 * (k & 3) + r, vP + k, vM + r))
    pand(0); pand(1)
    for k in range(32):
        n = k >> 1
        if k == 26: a('ds_read_b32 v219, v217 offset:%d' % (L_GATE + 16 * 7))
        if k == 30:
            a('s_waitcnt lgkmcnt(0)')
            a.label('L_xf_chk')
            a('v_cmp_eq_u32 vcc, 0, v219')
            a('s_cbranch_vccnz L_xf_retry')
            a('v_cmp_ne_u32 vcc, 1, v219')
            a('s_cmp_eq_u64 vcc, 0')
            a('s_cselect_b32 s47, -1, 0')
            a('s_and_b32 s58, s47, 0x00ff00ff'); a('s_mov_b32 s59, s58')
            a('s_andn2_b32 s60, 0x00ff00ff, s47'); a('s_mov_b32 s61, s60')
        if k & 1 == 0:
            vs.wait(n)
            while nxt < 16 and nxt - 1 - n < c['pvd']:
                vload(nxt); nxt += 1
        mfma(vC1 if k & 1 else vC0, vT + 4 * (k & 3), vV + 4 * n, 1)
        if k < 30: pand(k + 2)
    stamp(7)
    for r in (3, 0, 1, 2): dpp('v_add_f32', vC0 + r, vC1 + r, vC0 + r, 'row_ror:8')
    pack24(72, vC0)
    store2(72, 9, 57)
    a('s_cmp_ge_u32 s4, 14')
    a('s_cbranch_scc1 L_ft0')

    a.label('L_wt')
    a('s_barrier')
    stamp(8)
    WT = 36
    def wsetup():
        a('v_lshrrev_b32 v10, 3, v1')
        a('v_lshlrev_b32 v10, 4, v10')
        a('ds_read_b128 %s, v10 offset:%d' % (vr(WT), L_WT))
        tr_addr()
        tr_read()
        a('v_mul_u32_u24 v13, 144, v11')
        a('v_lshl_add_u32 v13, s5, 4, v13')
        a('v_lshrrev_b32 v10, 2, v1')
        a('v_mul_u32_u24 v14, 144, v10')
        a('v_and_b32 v11, 3, v1')
        a('v_lshl_add_u32 v14, v11, 5, v14')
        a('v_and_b32 v11, 1, v10')
        a('v_lshrrev_b32 v10, 1, v10')
        a('v_lshlrev_b32 v10, 4, v10')
        a('v_lshl_add_u32 v12, v11, 7, v10')
        a('s_lshl1_add_u32 s44, s3, s54')
        a('s_mul_i32 s44, s44, %d' % HS)
        a('s_mul_i32 s45, s54, 7')
        a('s_sub_u32 s45, s4, s45')
        a('s_lshl_b32 s45, s45, 8')
        a('s_add_u32 s44, s44, s45')
        a('s_add_u32 s44, s44, 0x%x' % WS_H1)
        a('s_mov_b32 s58, 0x00010001'); a('s_mov_b32 s59, 0x00010001')
        a('s_mov_b32 s60, 0x11111111'); a('s_mov_b32 s61, 0x11111111')
        a('v_mov_b32 v75, s6')
    poll('L_p0', ['buffer_load_dwordx4 %s, v8, s[20:23], s56 offen offset:%d sc1' % (vr(G0 + 4 * k), 1024 * k) for k in range(4)],
         [G0 + 3, G1 + 3, G2 + 3, G3 + 3], between=wsetup, wait='vmcnt(0) lgkmcnt(0)')
    stamp(9)
    unpackn([G0, G1, G2, G3])
    for k in range(4):
        w, hi = WT + (k & 2), k & 1
        for p in (0, 2):
            if k == 0:
                a('v_pk_mul_f32 %s, %s, %s op_sel:[0,0] op_sel_hi:[1,0]' % (vr(G0 + p, 2), vr(G0 + p, 2), vr(w, 2)))
            else:
                a('v_pk_fma_f32 %s, %s, %s, %s op_sel:[0,%d,0] op_sel_hi:[1,%d,1]' % (vr(G0 + p, 2), vr(G0 + 4 * k + p, 2), vr(w, 2), vr(G0 + p, 2), hi, hi))
    scatter4(G0)
    vec32(vAX, G0, 0xf)
    for t in range(4): mfma(vD + 4 * t, vB + 4 * t, vAX, 0)
    a('s_mov_b64 exec, s[58:59]')
    for t in range(4): a('ds_write_b128 v13, %s offset:%d' % (vr(vD + 4 * t), L_RED + 576 * t))
    a('s_mov_b64 exec, -1')
    a('s_cmp_eq_u32 s5, 0')
    a('s_waitcnt lgkmcnt(0)')
    stamp(10)
    a('s_barrier')
    leave_if('scc0')
    a('ds_read_b128 %s, v14 offset:%d' % (vr(G0), L_RED))
    a('ds_read_b128 %s, v14 offset:%d' % (vr(G1), L_RED + 16))
    a('s_waitcnt lgkmcnt(0)')
    pkadd(G0, G0, G1); pkadd(G0 + 2, G0 + 2, G1 + 2)
    for ctl in (QP1, QP2):
        for k in range(4): dpp('v_add_f32', G0 + k, G0 + k, G0 + k, ctl)
    a('s_mov_b64 exec, s[60:61]')
    pack24(72, G0)
    a('buffer_store_dwordx4 v[72:75], v12, s[20:23], s44 offen sc1')
    stamp(12)
    leave()
    flush_retry()

    a.label('L_xf_retry')
    a('ds_read_b32 v219, v217 offset:%d' % (L_GATE + 16 * 7))
    a('s_waitcnt lgkmcnt(0)')
    a('s_branch L_xf_chk')

    a.label('L_ft0')
    a('s_sub_u32 s3, s3, 1')
    leave_if('scc1')
    a('s_cmp_ge_u32 s4, 16')
    a('s_cbranch_scc1 L_fkv')
    a.label('L_fin')
    a('s_barrier')
    a('s_sub_u32 s54, s4, 14')
    a('s_lshl1_add_u32 s54, s3, s54')
    line_voff()
    a('v_and_b32 v13, 7, v1')
    a('v_lshl_add_u32 v14, v10, 3, v13')
    a('v_mul_u32_u24 v14, 48, v14')
    a('v_lshl_add_u32 v10, s5, 2, v14')
    a('s_cmp_eq_u32 s5, 7')
    a('s_cbranch_scc1 L_fin7')
    a('s_lshl_b32 s44, s54, 7')
    a('s_mul_i32 s7, s5, %d' % (16 * HS))
    a('s_add_u32 s44, s44, s7')
    a('s_add_u32 s44, s44, 0x%x' % WS_H2)
    a('s_add_u32 s45, s44, %d' % (8 * HS))
    two = ['buffer_load_dwordx4 %s, v9, s[20:23], s44 offen sc1' % vr(G0),
           'buffer_load_dwordx4 %s, v9, s[20:23], s45 offen sc1' % vr(G1)]
    poll('L_p2', two, [G0 + 3, G1 + 3])
    stamp(13)
    sum2scatter()
    a('ds_write_b32 v10, v%d offset:%d' % (G0, L_RED))
    a('s_waitcnt lgkmcnt(0)')
    a('s_barrier')
    leave()
    flush_retry()

    a.label('L_fin7')
    a('v_mov_b32 v11, 0')
    a('ds_write_b32 v10, v11 offset:%d' % L_RED)
    line_soff(54)
    a('v_bfe_u32 v11, v1, 3, 1')
    a('v_lshl_add_u32 v14, v11, 4, v14')
    a('s_mov_b32 s58, 0x00ff00ff'); a('s_mov_b32 s59, 0x00ff00ff')
    a('buffer_load_ushort v15, v12, s[36:39], s46 offen')
    poll('L_p3', two, [G0 + 3, G1 + 3])
    stamp(10)
    sum2scatter()
    a('v_lshlrev_b32 v15, 16, v15')
    rnd(G0, G0)
    a('v_add_f32 v15, v%d, v15' % G0)
    rnd(15, 15)
    a('v_mov_b32 v10, s6')
    a('s_cmp_eq_u32 s54, 0')
    a('s_cselect_b64 s[60:61], 1, 0')
    a('s_waitcnt lgkmcnt(0)')
    a('s_barrier')
    a('ds_read_b128 %s, v14 offset:%d' % (vr(G0), L_RED))
    a('s_waitcnt lgkmcnt(0)')
    stamp(13)
    pkadd(G0, G0, G0 + 2)
    a('v_add_f32 v%d, v%d, v%d' % (G0, G0, G0 + 1))
    dpp('v_add_f32', G0, G0, G0, 'row_ror:8')
    rnd(G0, G0)
    a('v_add_f32 v%d, v%d, v15' % (G0, G0))
    a('v_cvt_pk_bf16_f32 v%d, v%d, v%d' % (G0, G0, G0))
    a('s_mov_b64 exec, s[58:59]')
    a('buffer_store_short v%d, v12, s[40:43], s46 offen' % G0)
    a('s_mov_b64 exec, s[60:61]')
    a('buffer_store_dword v10, off, s[20:23], 0 sc1')
    leave()
    flush_retry()

    a.label('L_fkv')
    a('s_barrier')
    stamp(8)
    a('s_cmp_eq_u32 s5, 7')
    a('s_cbranch_scc0 L_fall')
    for k in range(2): a('v_mov_b32 v%d, 0' % (G0 + k))
    a('v_mul_u32_u24 v14, 80, v1')
    a('ds_write_b64 v14, %s offset:%d' % (vr(G0, 2), L_RED + 56))
    a('ds_write_b32 v%d, v%d offset:%d' % (G0, G0, L_STAT + 28))
    a('ds_write_b32 v%d, v%d offset:%d' % (G0, G0, L_STAT + 60))
    a('s_and_b32 s7, s4, 1')
    a('s_xor_b32 s7, s7, 1')
    a('s_lshl_b32 s7, s7, 5')
    a('v_mov_b32 v13, s7')
    a('v_lshrrev_b32 v10, 4, v1')
    a('v_mul_u32_u24 v10, %d, v10' % GXS)
    a('v_and_b32 v11, 3, v1')
    a('v_lshl_add_u32 v10, v11, 6, v10')
    a('v_bfe_u32 v11, v1, 2, 2')
    a('v_lshl_add_u32 v9, v11, 4, v10')
    a('s_and_b32 s7, s4, 12')
    a('s_lshl4_add_u32 s7, s3, s7')
    a('s_mul_i32 s57, s7, %d' % GXS)
    a('s_and_b32 s7, s4, 3')
    a('s_lshl_b32 s7, s7, 8')
    a('s_add_u32 s57, s57, s7')
    a('s_add_u32 s57, s57, 0x%x' % WS_GX)
    a('s_mov_b32 s58, s47'); a('s_mov_b32 s59, s47')
    a('s_not_b64 s[60:61], s[58:59]')
    a('s_waitcnt lgkmcnt(0)')
    a('s_barrier')
    a('s_barrier')
    for k in range(4): a('ds_read_b128 %s, v14 offset:%d' % (vr(G0 + 4 * k), L_RED + 16 * k))
    for k in range(2): a('ds_read_b128 %s, v13 offset:%d' % (vr(32 + 4 * k), L_STAT + 16 * k))
    a('s_waitcnt lgkmcnt(%d)' % (0 if diag else 4))
    pkadd(G0, G0, G0 + 2); pkadd(G1, G1, G1 + 2)
    if not diag: a('s_waitcnt lgkmcnt(2)')
    pkadd(G2, G2, G2 + 2); pkadd(G3, G3, G3 + 2)
    pkadd(G0, G0, G1); pkadd(G2, G2, G3)
    if not diag: a('s_waitcnt lgkmcnt(0)')
    pkadd(32, 32, 34); pkadd(36, 36, 38)
    pkadd(72, G0, G2)
    pkadd(32, 32, 36)
    a('v_add_f32 v74, v32, v33')
    store2(72, 9, 57)
    stamp(11)
    a('s_barrier')
    leave()

    a.label('L_ft')
    a('s_barrier')
    stamp(8)
    for i in range(7):
        a('buffer_load_dwordx4 v2, s[24:27], s%d offen nt lds' % (8 + i))
        if i < 6: a('s_add_u32 m0, m0, 0x1000')
    a.label('L_fall')
    line_voff()
    a('s_bfe_u32 s7, s4, 0x10001')
    a('s_mul_i32 s7, s7, 7')
    a('s_add_u32 s55, s7, s5')
    line_soff(55)
    a('buffer_load_ushort v15, v12, s[36:39], s46 offen')
    a('s_cmp_ge_u32 s5, 4')
    a('s_cbranch_scc1 L_nodown')
    for t in range(4):
        a('buffer_load_dwordx4 %s, v3, s[32:35], s%d offen offset:%d nt' % (vr(vW + 4 * t), 16 + (t >> 1), 3584 * (t & 1)))
    a.label('L_nodown')
    tr_addr()
    for k in range(4): a('v_mov_b32 v%d, 0x3f803f80' % (vAX + k))
    a('v_and_b32 v10, 15, v1')
    a('v_lshrrev_b32 v11, 5, v1')
    a('v_mul_u32_u24 v13, 80, v10')
    a('v_lshl_add_u32 v13, v11, 2, v13')
    a('v_lshl_add_u32 v13, s5, 3, v13')
    a('v_add_u32 v13, %d, v13' % L_RED)
    a('v_lshl_add_u32 v14, v10, 1, v11')
    a('v_lshlrev_b32 v14, 5, v14')
    a('v_lshl_add_u32 v14, s5, 2, v14')
    a('s_mov_b32 s60, 0xffff'); a('s_mov_b32 s61, 0xffff')
    a('s_waitcnt vmcnt(4)')
    a('s_barrier')
    stamp(9)
    poll('L_p1', two, [G0 + 3, G1 + 3], between=tr_read, wait='vmcnt(0) lgkmcnt(0)')
    stamp(10)
    a('v_lshlrev_b32 v15, 16, v15')
    sum2scatter()
    rnd(G0, G0)
    a('v_add_f32 v%d, v%d, v15' % (G0, G0))
    vec32(vAX, G0, 0x3)
    for t in range(4): mfma(vD + 4 * t, vAX, vB + 4 * t, 0)
    mfma(vD + 16, vAX, vAX, 0)
    a('s_mov_b64 exec, s[60:61]')
    a('s_cmp_ge_u32 s5, 4')
    a('ds_write2st64_b32 v13, v%d, v%d offset0:0 offset1:5' % (vD, vD + 4))
    a('ds_write2st64_b32 v13, v%d, v%d offset0:10 offset1:15' % (vD + 8, vD + 12))
    a('ds_write_b32 v14, v%d offset:%d' % (vD + 16, L_STAT))
    a('s_mov_b64 exec, -1')
    a('s_waitcnt lgkmcnt(0)')
    a('s_barrier')
    a('s_barrier')
    leave_if('scc1')
    poll('L_pg', ['buffer_load_dwordx4 %s, v40, s[20:23], s56 offen sc1' % vr(G0)], [G0 + 3])
    stamp(11)
    V, CS, ST, MU, E2, T = G0, G0 + 1, G0 + 2, G1, G1 + 1, G1 + 2
    dpp('v_add_f32', ST, ST, ST, 'row_ror:8')
    dpp('v_add_f32', V, V, V, 'row_ror:8')
    a('v_mul_f32 v%d, s18, v%d' % (MU, ST))
    a('v_mul_f32 v%d, s18, v%d' % (E2, ST))
    dpp('v_mul_f32', MU, ST, 43, 'row_ror:4', 'row_mask:0xf bank_mask:0xa')
    dpp('v_mul_f32', E2, ST, 43, 'row_ror:4', 'row_mask:0xf bank_mask:0x5')
    dpp('v_add_f32', CS, CS, CS, 'row_ror:8')
    a('v_fma_f32 v%d, -v%d, v%d, v%d' % (E2, MU, MU, E2))
    rnd(MU, MU)
    a('v_max_f32 v%d, 0, v%d' % (E2, E2))
    rnd(E2, E2)
    a('v_add_f32 v%d, %s, v%d' % (E2, f32(1e-5), E2))
    rnd(E2, E2)
    a('v_sqrt_f32 v%d, v%d' % (E2, E2))
    a('v_fma_f32 v%d, -v%d, v%d, v%d' % (V, MU, CS, V))
    rnd(E2, E2)
    a('v_rcp_f32 v%d, v%d' % (E2, E2))
    a('v_mul_f32 v%d, v%d, v%d' % (V, V, E2))
    rnd(V, V)
    a('v_mul_f32 v%d, v%d, v%d' % (T, V, V))
    a('v_fmac_f32 v42, s19, v%d' % T)
    a('v_mul_f32 v%d, v42, v%d' % (T, V))
    a('v_exp_f32 v%d, v%d' % (T, T))
    a('v_add_f32 v%d, 1.0, v%d' % (T, T))
    a('v_rcp_f32 v%d, v%d' % (T, T))
    a('v_mul_f32 v%d, v%d, v%d' % (T, V, T))
    rnd(T, T)
    dpp('v_mul_f32', T, V, T, 'row_ror:4')
    a('v_cvt_pk_bf16_f32 v%d, v%d, v%d' % (T, T, T))
    for t in range(4):
        for r in range(4):
            dpp('v_and_b32', vT + 4 * t + r, T, vM + r, 'row_newbcast:%d' % t)
            if t > 0 and r == 1: mfma(vC0, vT + 4 * t - 4, vW + 4 * t - 4, t > 1)
    mfma(vC0, vT + 12, vW + 12, 1)
    a('s_mov_b64 exec, s[58:59]')
    pack24(72, vC0)
    a('buffer_store_dwordx4 v[72:75], v41, s[20:23], s57 offen sc1')
    stamp(12)
    leave()
    flush_retry()

    a.section('q')
    a.label('L_v0')
    far = 'L_v1' if c['wo_at'] == 0 else 'L_v'
    a('s_cmp_lg_u32 s31, 0')
    a('s_cbranch_scc1 L_qw')
    a('s_waitcnt lgkmcnt(0)')
    a('s_load_dword s6, s[20:21], 0')
    a('s_barrier')
    a('s_branch %s' % far)
    a.label('L_qw')
    vWQ, vXN = 16, 128
    srd(16, 448 * 8192)
    srd(36, 896)
    a('v_lshlrev_b32 v8, 4, v1')
    a('v_lshrrev_b32 v12, 3, v1')
    a('v_mul_u32_u24 v3, %d, v12' % (28 * 8192))
    a('v_and_b32 v10, 0x70, v8')
    a('v_add_u32 v3, v3, v10')
    a('s_bfe_u32 s54, s4, 0x30001')
    a('s_lshl3_add_u32 s54, s3, s54')
    a('s_cmp_ge_u32 s4, 16')
    a('s_cselect_b32 s54, s54, s3')
    a('s_and_b32 s44, s4, 1')
    a('s_lshl_b32 s44, s44, 5')
    a('s_add_u32 s44, s44, s55')
    a('s_mul_i32 s45, s44, %d' % (7 * 64))
    a('s_add_u32 s45, s45, s54')
    a('s_lshl_b32 s45, s45, 7')
    a('s_movk_i32 s46, 0x2000')
    a('s_waitcnt lgkmcnt(0)')
    stamp(1)
    a('buffer_load_dwordx4 %s, v8, s[36:39], 0 offen' % vr(vA))
    a('s_load_dword s6, s[20:21], 0')
    for n in range(7):
        a('buffer_load_dwordx4 %s, v3, s[16:19], s45 offen nt' % vr(vWQ + 4 * n))
        if n < 6: a('s_add_u32 s45, s45, s46')
    a('s_barrier')
    common(False)
    x, S1, S2 = vA + 8, vA + 4, vA + 5
    a('v_mov_b32 v%d, 0' % S1)
    a('v_mov_b32 v%d, 0' % S2)
    a('v_mov_b32 v%d, 0x3f803f80' % (vA + 6))
    a('v_mov_b32 v%d, %s' % (vA + 7, f32(1.0 / 448)))
    a('v_lshlrev_b32 v13, 5, v1')
    a('v_mul_u32_u24 v14, 112, v12')
    a('s_mul_i32 s7, s44, 28')
    a('s_add_u32 s7, s7, %d' % L_XN)
    a('v_add_u32 v14, s7, v14')
    a('v_lshl_add_u32 v15, s55, 3, v13')
    a('v_and_b32 v10, 3, v1')
    a('v_lshlrev_b32 v217, 2, v10')
    a('v_lshlrev_b32_e64 v221, 2, s55')
    a('v_mov_b32 v220, 1')
    a('v_and_b32 v10, 7, v1')
    a('v_lshlrev_b32 v10, 6, v10')
    a('v_bfe_u32 v11, v1, 4, 1')
    a('v_lshl_add_u32 v10, v11, 5, v10')
    a('v_lshrrev_b32 v11, 5, v1')
    a('v_lshl_add_u32 v9, v11, 4, v10')
    a('s_lshr_b32 s7, s54, 1')
    a('s_and_b32 s44, s4, 1')
    a('s_lshl1_add_u32 s7, s7, s44')
    a('s_and_b32 s45, s54, 1')
    a('s_lshl1_add_u32 s7, s7, s45')
    a('s_lshl_b32 s57, s7, 9')
    a('s_add_u32 s57, s57, 0x%x' % WS_Q)
    a('s_lshl_b32 s7, s55, 1')
    a('s_lshl_b32 s58, 0x00030003, s7'); a('s_mov_b32 s59, s58')
    qx = 1 if c['qt'] == 'v' else 0
    if qx:
        a('s_mov_b64 exec, s[58:59]')
        a('buffer_load_dword v216, v9, s[20:23], s57 offen sc1')
        a('s_mov_b64 exec, -1')
    a('s_waitcnt vmcnt(%d)' % (7 + qx))
    for k in range(4):
        a('v_dot2c_f32_bf16 v%d, v%d, v%d' % (S1, vA + k, vA + 6))
        a('v_dot2c_f32_bf16 v%d, v%d, v%d' % (S2, vA + k, vA + k))
    unp = []
    for k in range(4):
        unp.append('v_lshlrev_b32 v%d, 16, v%d' % (x + 2 * k, vA + k))
        unp.append('v_and_b32 v%d, 0xffff0000, v%d' % (x + 2 * k + 1, vA + k))
    a(unp.pop()); a(unp.pop())
    for ctl, m in ((QP1, FULL), (QP2, FULL), ('row_half_mirror', FULL), ('row_mirror', FULL),
                   ('row_bcast:15', 'row_mask:0xa bank_mask:0xf'), ('row_bcast:31', 'row_mask:0xc bank_mask:0xf')):
        dpp('v_add_f32', S1, S1, S1, ctl, m)
        dpp('v_add_f32', S2, S2, S2, ctl, m)
        a(unp.pop())
    a('v_readlane_b32 s62, v%d, 63' % S1)
    a('v_readlane_b32 s63, v%d, 63' % S2)
    a('v_mul_f32 v%d, s62, v%d' % (S1, vA + 7))
    a('v_mul_f32 v%d, s63, v%d' % (S2, vA + 7))
    a('v_fma_f32 v%d, -v%d, v%d, v%d' % (S2, S1, S1, S2))
    rnd(S1, S1)
    a('v_max_f32 v%d, 0, v%d' % (S2, S2))
    rnd(S2, S2)
    a('v_add_f32 v%d, %s, v%d' % (S2, f32(1e-5), S2))
    rnd(S2, S2)
    a('v_sqrt_f32 v%d, v%d' % (S2, S2))
    for k in range(8): a('v_sub_f32 v%d, v%d, v%d' % (x + k, x + k, S1))
    rnd(S2, S2)
    a('v_rcp_f32 v%d, v%d' % (S2, S2))
    for k in range(8): rnd(x + k, x + k)
    for k in range(8): a('v_mul_f32 v%d, v%d, v%d' % (x + k, x + k, S2))
    for k in range(8): a('v_cvt_pk_bf16_f32 v%d, v%d, v%d' % (x + k, x + k, x + k))
    a('ds_write_b128 v13, %s offset:%d' % (vr(x), L_XN))
    a('ds_write_b128 v13, %s offset:%d' % (vr(x + 4), L_XN + 16))
    a('s_waitcnt lgkmcnt(0)')
    for z in range(3): a('ds_read2_b32 %s, v14 offset0:%d offset1:%d' % (vr(vXN + 2 * z, 2), 2 * z, 2 * z + 1))
    a('ds_read_b32 v%d, v14 offset:24' % (vXN + 6))
    mktag()
    qc = vA + 16
    a('v_mov_b32 v%d, s6' % (vA + 22))
    a('v_mov_b32 v%d, s6' % (vA + 23))
    xpub(1)
    a('s_waitcnt lgkmcnt(0)')
    def qand(n):
        for r in range(4): a('v_and_b32 v%d, v%d, v%d' % (vA + 4 * (n & 1) + r, vXN + n, vM + r))
    qand(0)
    for n in range(7):
        if n < 6: qand(n + 1)
        a('s_waitcnt vmcnt(%d)' % (6 + qx - n))
        mfma(qc, vA + 4 * (n & 1), vWQ + 4 * n, n)
    for r in range(4): a('v_mov_b32_dpp v%d, v%d row_ror:8 row_mask:0xc bank_mask:0xf' % (qc + r, qc + r))
    a('v_permlane32_swap_b32 v%d, v%d' % (qc, qc + 2))
    a('v_permlane32_swap_b32 v%d, v%d' % (qc + 1, qc + 3))
    pkadd(qc, qc, qc + 2)
    a('ds_write_b64 v15, %s offset:%d' % (vr(qc, 2), L_T))
    gate_open(6)
    xpub(2)
    gate_wait(6, 217)
    a('ds_read_b128 %s, v13 offset:%d' % (vr(vA), L_T))
    a('ds_read_b128 %s, v13 offset:%d' % (vr(vA + 4), L_T + 16))
    a('s_waitcnt lgkmcnt(0)')
    stamp(5)
    pkadd(vA, vA, vA + 2); pkadd(vA + 4, vA + 4, vA + 6)
    pkadd(vA + 20, vA, vA + 4)
    a('s_mov_b64 exec, s[58:59]')
    a('buffer_store_dwordx4 %s, v9, s[20:23], s57 offen' % vr(vA + 20))
    a('s_add_u32 s57, s57, 0x%x' % (WS_QB - WS_Q))
    a('buffer_store_dwordx4 %s, v9, s[20:23], s57 offen sc1' % vr(vA + 20))
    gate_open(8)
    a('s_mov_b64 exec, -1')
    a('s_branch L_v3')

    a.section('end')

    a.label('L_exit')
    if c['probe'] and c['probe'][0] == 'skew':
        _, gsel, mult = c['probe']
        a('s_waitcnt lgkmcnt(0)')
        a('s_cmp_eq_u32 s5, 0')
        a('s_cbranch_scc0 L_end')
        a('s_mov_b64 exec, -1')
        a('s_lshl_b32 s7, s3, 5')
        a('s_add_u32 s7, s7, s4')
        a('s_lshl_b32 s7, s7, 7')
        a('s_add_u32 s7, s7, 0x%x' % WS_ST)
        a('v_mov_b32 v16, s64')
        a('buffer_store_dword v16, off, s[20:23], s7 sc1')
        a('s_cmp_eq_u32 s2, 113')
        a('s_cbranch_scc0 L_end')
        a.label('L_spin0')
        a('s_sleep 4')
        a('s_memrealtime s[94:95]')
        a('s_waitcnt lgkmcnt(0)')
        a('s_sub_u32 s44, s94, s64')
        a('s_cmp_lt_u32 s44, 2000')
        a('s_cbranch_scc1 L_spin0')
        a('v_and_b32 v10, 31, v1')
        a('v_lshlrev_b32 v10, 7, v10')
        a('s_mov_b32 s7, 0x%x' % WS_ST)
        for g in range(8):
            a('buffer_load_dword v%d, v10, s[20:23], s7 offen sc1' % (16 + g))
            a('s_add_u32 s7, s7, 4096')
        a('s_waitcnt vmcnt(0)')
        for g in range(8):
            a('v_subrev_u32 v%d, s64, v%d' % (16 + g, 16 + g))
            allred32('v_min_i32', 16 + g, 30)
        a('v_mov_b32 v24, v16'); a('v_mov_b32 v25, v16')
        for g in range(1, 8):
            a('v_min_i32 v24, v24, v%d' % (16 + g))
            a('v_max_i32 v25, v25, v%d' % (16 + g))
        a('v_sub_u32 v26, v%d, v24' % (16 + gsel if gsel < 8 else 25))
        a('v_readfirstlane_b32 s7, v26')
        a('v_readfirstlane_b32 s45, v24')
        a('s_min_u32 s7, s7, 400')
        a('s_mul_i32 s7, s7, %d' % mult)
        a('s_add_u32 s7, s7, s45')
        a('s_add_u32 s7, s7, 3000')
        a.label('L_spin')
        a('s_sleep 4')
        a('s_memrealtime s[94:95]')
        a('s_waitcnt lgkmcnt(0)')
        a('s_sub_u32 s44, s94, s64')
        a('s_cmp_lt_i32 s44, s7')
        a('s_cbranch_scc1 L_spin')
    elif c['probe']:
        k, base, mult = c['probe']
        stamp(14)
        a('s_waitcnt lgkmcnt(0)')
        a('s_cmp_eq_u32 s%d, 0' % (64 + 2 * k))
        a('s_cbranch_scc1 L_end')
        a('s_sub_u32 s7, s%d, s64' % (64 + 2 * k))
        a('s_min_u32 s7, s7, 10000')
        a('s_mul_i32 s7, s7, %d' % mult)
        a('s_add_u32 s7, s7, %d' % base)
        a.label('L_spin')
        a('s_sleep 4')
        a('s_memrealtime s[94:95]')
        a('s_waitcnt lgkmcnt(0)')
        a('s_sub_u32 s44, s94, s64')
        a('s_cmp_lt_u32 s44, s7')
        a('s_cbranch_scc1 L_spin')
    elif diag:
        stamp(14)
        a('s_sleep 127')
        a('s_mov_b64 exec, 1')
        a('s_lshl3_add_u32 s7, s2, s5')
        a('s_lshl_b32 s7, s7, 6')
        a('s_add_u32 s7, s7, 0x%x' % WS_ST)
        a('s_waitcnt lgkmcnt(0)')
        for k in range(15): a('v_mov_b32 v%d, s%d' % (16 + k, 64 + 2 * k))
        a('s_add_u32 s47, s47, 2')
        a('v_mov_b32 v31, s47')
        for k in range(4): a('buffer_store_dwordx4 %s, off, s[20:23], s7 offset:%d' % (vr(16 + 4 * k), 16 * k))
    a.label('L_end')
    a('s_endpgm')

    ref = open(os.path.join(os.path.dirname(os.path.abspath(__file__)), 'header.txt')).read()
    head = ref + '; @launch grid=(256,1,1) block=(512,1,1) lds=%d\n' % LDS_BYTES
    head += '.amdgcn_target "amdgcn-amd-amdhsa--gfx950"\n.text\n.globl {N}_kernel\n.p2align %d\n.p2align 8\n.type {N}_kernel,@function\n{N}_kernel:\n'.replace('{N}', NAME) % c['align']
    foot = """.section .rodata,"a"
.p2align 6
.amdhsa_kernel {N}_kernel
  .amdhsa_next_free_vgpr 224
  .amdhsa_next_free_sgpr 102
  .amdhsa_accum_offset 224
  .amdhsa_group_segment_fixed_size 0
  .amdhsa_kernarg_size 96
  .amdhsa_float_denorm_mode_32 3
  .amdhsa_user_sgpr_count 2
  .amdhsa_user_sgpr_kernarg_segment_ptr 1
  .amdhsa_system_sgpr_workgroup_id_x 1
.end_amdhsa_kernel
""".replace('{N}', NAME)
    return head + a.text(('main', 'q', 'k', 'v', 'end')) + foot

if __name__ == '__main__':
    out = sys.argv[1] if len(sys.argv) > 1 else 'cdna_kernels/%s.s' % NAME
    kw = eval('dict(%s)' % sys.argv[2]) if len(sys.argv) > 2 else {}
    open(out, 'w').write(gen(**kw))
```

```python
import sys, os, struct, math
sys.path.insert(0, os.path.dirname(os.path.abspath(__file__)))
from emit import Asm

NAME = 'sequential_preLN__sliding_block_cached__geglu_ffn__decode'

WS_X = 0x4000
WS_Q = 0x150000
BLK = 4096 + 128
WS_H0 = 0x20000
GXS = 1024 + 128
WS_QB = 0x170000
WS_XB = 0xC000
WS_GX = 0xC0000
HS = 1920
WS_H1 = 0x100000
WS_H2 = 0x110000
WS_ST = 0x200000

L_QL = 0
L_S = 1024
L_P = 2048
L_XN = 6400
L_WT = 3200
L_GATE = 8448
L_STAT = 8704
L_RED = 9728
L_T = 14848
LDS_BYTES = L_T + 8 * 4096

SPIN = 20000

def f32(x):
    return '0x%08x' % struct.unpack('<I', struct.pack('<f', x))[0]

def vr(a, n=4):
    return 'v[%d:%d]' % (a, a + n - 1)

DEF = dict(depth=6, dv=0, gq=14, ga=16, na=16, nb=16, pvd=6, dx=0, stamps=None, rs=1, rg=0, touch='vv',
           force_sc1=False, probe=None, wo_at=3, qdual=6, ldual=40, gall=1, g0deep=32, off0=1, b1=1, qh=6, pf=True, qt='v', prio=0, align=12)

def gen(**kw):
    c = dict(DEF); c.update(kw)
    a = Asm()
    D = c['depth']
    DV = c['dv'] or D
    DX = c['dx']
    diag = bool(c['stamps'])
    def stamp(k):
        if diag: a('%s s[%d:%d]' % (c['stamps'], 64 + 2 * k, 65 + 2 * k))
    def leave():
        a('s_branch L_exit' if diag else 's_endpgm')
    nlab = [0]
    def leave_if(cond):
        if diag:
            a('s_cbranch_%s L_exit' % cond)
        else:
            nlab[0] += 1
            a('s_cbranch_%s L_stay%d' % ('scc1' if cond == 'scc0' else 'scc0', nlab[0]))
            h = list(a.hist)
            a('s_endpgm')
            a.hist = h
            a.label('L_stay%d' % nlab[0])
    def srd(base, size):
        a('s_mov_b32 s%d, 0x%x' % (base + 2, size))
        a('s_mov_b32 s%d, 0x20000' % (base + 3))
    def mktag():
        a('s_mul_i32 s6, s6, 0x9e3779b1')
        a('s_add_u32 s6, s6, 0x7f4a7c15')
    def rnd(d, s):
        a('v_cvt_pk_bf16_f32 v%d, 0, v%d' % (d, s))
    QP1, QP2 = 'quad_perm:[1,0,3,2]', 'quad_perm:[2,3,0,1]'
    FULL = 'row_mask:0xf bank_mask:0xf'
    def dpp(op, d, s0, s1, ctl, mask=FULL):
        a('%s_dpp v%d, v%d, v%d %s %s' % (op, d, s0, s1, ctl, mask))
    def mfma(d, x, y, acc):
        a('v_mfma_f32_16x16x32_bf16 %s, %s, %s, %s' % (vr(d), vr(x), vr(y), vr(d) if acc else '0'))
    def pkadd(d, x, y):
        a('v_pk_add_f32 %s, %s, %s' % (vr(d, 2), vr(x, 2), vr(y, 2)))
    def masks():
        a('v_and_b32 v10, 1, v1')
        a('v_lshlrev_b32 v10, 4, v10')
        a('s_mov_b32 s7, 0xffff')
        a('v_lshlrev_b32_e64 v10, v10, s7')
        a('v_bfe_u32 v11, v1, 1, 2')
        for r in range(4):
            a('v_cmp_eq_u32 vcc, %d, v11' % r)
            a('v_cndmask_b32 v%d, 0, v10, vcc' % (vM + r))
    def pack24(d, s):
        for k in range(3):
            a('v_perm_b32 v%d, v%d, v%d, s%d' % (d + k, s + k, s + 3, sPK + k))
    def unpackn(gs):
        for g in gs: a('v_perm_b32 v%d, v%d, v%d, s%d' % (g + 3, g + 1, g, sUP))
        for g in gs: a('v_perm_b32 v%d, v%d, v%d, s%d' % (g + 3, g + 2, g + 3, sUP + 1))
    def scatter4(g):
        a('v_permlane32_swap_b32 v%d, v%d' % (g, g + 2))
        a('v_permlane32_swap_b32 v%d, v%d' % (g + 1, g + 3))
        pkadd(g, g, g + 2)
        a('v_permlane16_swap_b32 v%d, v%d' % (g, g + 1))
        a('v_add_f32 v%d, v%d, v%d' % (g, g, g + 1))
        dpp('v_add_f32', g, g, g, 'row_ror:8')
    def sum2scatter():
        unpackn([G0, G1])
        pkadd(G0, G0, G1); pkadd(G0 + 2, G0 + 2, G1 + 2)
        scatter4(G0)
    def vec32(d, s, banks):
        rnd(s + 1, s)
        a('v_cvt_pk_bf16_f32 v%d, v%d, 0' % (s, s))
        dpp('v_or_b32', s, s + 1, s, 'quad_perm:[1,1,3,3]')
        for k in range(4):
            a('v_mov_b32_dpp v%d, v%d row_newbcast:%d row_mask:0xf bank_mask:0x%x' % (d + k, s, 2 * k, banks))
    retry = []
    def poll(name, loads, tags, between=None, wait='vmcnt(0)', alt=None, half=False):
        for t in loads[:-1]: a(t)
        if half: a('s_mov_b32 exec_hi, 0')
        a(loads[-1])
        if half: a('s_mov_b32 exec_hi, -1')
        if between: between()
        a('s_mov_b32 s7, 0')
        if wait: a('s_waitcnt ' + wait)
        a.label(name + '_chk')
        a('v_cmp_ne_u32 vcc, s6, v%d' % tags[0])
        if len(tags) > 1:
            for i, t in enumerate(tags[1:]):
                a('v_cmp_ne_u32_e64 s[%d:%d], s6, v%d' % (96 + 2 * i, 97 + 2 * i, t))
            if half: a('s_and_b32 s%d, s%d, 0' % (93 + 2 * len(tags), 93 + 2 * len(tags)))
            for i, t in enumerate(tags[1:]):
                a('s_or_b64 s[62:63], %s, s[%d:%d]' % ('s[62:63]' if i else 'vcc', 96 + 2 * i, 97 + 2 * i))
            a('s_cbranch_scc1 %s_retry' % name)
        else:
            a('s_cbranch_vccnz %s_retry' % name)
        a.label(name + '_ok')
        retry.append((name, loads, alt))
    def flush_retry():
        for name, loads, alt in retry:
            a.label(name + '_retry')
            if alt:
                a('s_cmp_eq_u32 s7, %d' % alt[0])
                a('s_cselect_b32 s%d, s%d, s%d' % (alt[1], alt[2], alt[1]))
            for i, t in enumerate(loads):
                a('s_mov_b64 exec, %s' % ('s[%d:%d]' % (94 + 2 * i, 95 + 2 * i) if i else 'vcc'))
                a(t)
            a('s_mov_b64 exec, -1')
            a('s_add_u32 s7, s7, 1')
            a('s_cmp_ge_u32 s7, %d' % SPIN)
            a('s_waitcnt vmcnt(0)')
            a('s_cbranch_scc0 %s_chk' % name)
            a('s_branch %s_ok' % name)
        del retry[:]
    def common(x=True):
        if x: srd(36, 896)
        a('s_load_dwordx2 s[24:25], s[0:1], 48')
        a('s_load_dwordx2 s[28:29], s[0:1], 56')
        a('s_load_dwordx2 s[32:33], s[0:1], 64')
        a('s_load_dwordx2 s[40:41], s[0:1], 72')
        srd(20, 1 << 28)
        srd(24, 448 * 3584)
        srd(32, 1792 * 896)
        srd(40, 896)
        for k in range(3):
            a('s_mov_b32 s%d, 0x0706050%d' % (sPK + k, 1 + k))
        a('s_mov_b32 s%d, 0x0c04000c' % sUP)
        a('s_mov_b32 s%d, 0x04020100' % (sUP + 1))
        a('s_cmp_lt_u32 s4, %d' % c['g0deep'])
        a('s_cselect_b32 s30, 1, 0')
        a('s_cmp_eq_u32 s3, 0')
        a('s_cselect_b32 s30, s30, s31')
        masks()
        a('v_lshlrev_b32 v8, 4, v1')
    def gate_open(k):
        a('ds_write_b32 v221, v220 offset:%d' % (L_GATE + 16 * k))
    def gate_wait(k, vaddr):
        nlab[0] += 1
        if vaddr == 219: a('v_mov_b32 v219, 0')
        a.label('L_gate%d' % nlab[0])
        a('ds_read_b32 v219, v%d offset:%d' % (vaddr, L_GATE + 16 * k))
        a('s_waitcnt lgkmcnt(0)')
        a('v_cmp_ne_u32 vcc, 1, v219')
        a('s_cbranch_vccnz L_gate%d' % nlab[0])
    def store2(data, voff, soff):
        a('s_mov_b64 exec, s[58:59]')
        a('buffer_store_dwordx4 %s, v%d, s[20:23], s%d offen' % (vr(data), voff, soff))
        a('s_mov_b64 exec, s[60:61]')
        a('buffer_store_dwordx4 %s, v%d, s[20:23], s%d offen sc1' % (vr(data), voff, soff))
        a('s_mov_b64 exec, -1')
    def dma_voff(rowexpr_pitch):
        a('v_bfe_u32 v11, v1, 3, 2')
        a('v_lshlrev_b32 v11, 1, v11')
        a('v_xor_b32 v11, v11, v1')
        a('v_and_b32 v11, 7, v11')
        a('v_mul_u32_u24 v10, %d, v10' % rowexpr_pitch)
        a('v_lshl_add_u32 v2, v11, 4, v10')
    def tr_addr():
        a('v_bfe_u32 v10, v1, 2, 2')
        a('v_mul_u32_u24 v10, 160, v10')
        a('v_and_b32 v11, 3, v1')
        a('v_lshl_add_u32 v10, v11, 3, v10')
        a('v_lshrrev_b32 v11, 4, v1')
        a('v_lshl_add_u32 v10, v11, 10, v10')
        a('v_lshl_add_u32 v32, s5, 12, v10')
        for t in range(1, 4): a('v_xor_b32 v%d, %d, v32' % (32 + t, 32 * t))
    def tr_read():
        for t in range(4):
            for u in range(2):
                a('ds_read_b64_tr_b16 %s, v%d offset:%d' % (vr(vB + 4 * t + 2 * u, 2), 32 + t, L_T + 512 * u))
    def line_voff():
        a('v_lshrrev_b32 v10, 3, v1')
        a('v_mul_u32_u24 v10, %d, v10' % HS)
        a('v_and_b32 v11, 0x70, v8')
        a('v_add_u32 v9, v10, v11')
        a('v_lshrrev_b32 v10, 4, v1')
        a('v_lshl_add_u32 v12, v10, 1, v11')
    def line_soff(sl):
        a('s_lshl_b32 s44, s%d, 7' % sl)
        a('s_add_u32 s44, s44, 0x%x' % WS_H1)
        a('s_add_u32 s45, s44, %d' % (8 * HS))
        a('s_lshr_b32 s46, s%d, 1' % sl)
        a('s_lshl_b32 s46, s46, 7')
        a('s_and_b32 s7, s%d, 1' % sl)
        a('s_lshl3_add_u32 s46, s7, s46')
    def softmax_head(r):
        mx, t1, ls = r + 4, r + 5, r + 6
        a('v_max3_f32 v%d, v%d, v%d, v%d' % (mx, r, r + 1, r + 2))
        a('v_max_f32 v%d, v%d, v%d' % (mx, mx, r + 3))
        allred32('v_max_f32', mx, t1)
        a('v_mul_f32 v%d, s53, v%d' % (mx, mx))
        for k in range(4): a('v_fma_f32 v%d, v%d, s53, -v%d' % (r + k, r + k, mx))
        for k in range(4): a('v_exp_f32 v%d, v%d' % (r + k, r + k))
        a('v_add_f32 v%d, v%d, v%d' % (ls, r, r + 1))
        a('v_add_f32 v%d, v%d, v%d' % (t1, r + 2, r + 3))
        a('v_add_f32 v%d, v%d, v%d' % (ls, ls, t1))
        allred32('v_add_f32', ls, t1)
    def allred32(op, r, t1):
        for ctl in (QP1, QP2, 'row_half_mirror', 'row_mirror'): dpp(op, r, r, r, ctl)
        a('v_mov_b32 v%d, v%d' % (t1, r))
        a('v_permlane16_swap_b32 v%d, v%d' % (r, t1))
        a('%s v%d, v%d, v%d' % (op, r, r, t1))

    vM = 4
    vKO = 2
    vK, vV, vQ, vW = 16, 80, 144, 176
    vA = 192
    vP = 16
    vT = 48
    vC0, vC1 = 64, 68
    G0, G1, G2, G3 = 16, 20, 24, 28
    vB, vAX, vD = 80, 96, 100
    sPK, sUP = 48, 51
    SC = f32(math.log2(math.e) / 16)

    def wo_setup():
        a('s_load_dwordx2 s[16:17], s[0:1], 32')
        srd(16, 448 * 8192)
        a('v_bfe_u32 v10, v1, 3, 2')
        a('v_lshrrev_b32 v11, 5, v1')
        a('v_lshl_add_u32 v10, v10, 1, v11')
        dma_voff(4 * 896)
        a('s_cmp_ge_u32 s4, 7')
        a('s_cselect_b32 s54, 1, 0')
        a('s_lshl1_add_u32 s7, s3, s54')
        a('s_lshl_b32 s7, s7, 8')
        a('s_add_u32 s7, s7, s55')
        a('s_sub_u32 s7, s7, s54')
        a('s_mul_i32 s7, s7, 7')
        a('s_add_u32 s7, s7, s4')
        a('s_lshl_b32 s10, s7, 7')
        a('s_lshl_b32 s7, s55, 10')
        a('s_add_u32 m0, s7, %d' % L_T)
        a('s_movk_i32 s11, %d' % (32 * 896))
    def wo_issue():
        for i in range(8):
            a('buffer_load_dwordx4 v2, s[16:19], s10 offen nt lds')
            if i < 7:
                a('s_add_u32 m0, m0, 0x1000')
                a('s_add_u32 s10, s10, s11')
    def wo_issue_if():
        nlab[0] += 1
        a('s_cmp_ge_u32 s4, 14')
        a('s_cbranch_scc1 L_nowo%d' % nlab[0])
        wo_issue()
        a.label('L_nowo%d' % nlab[0])
    def kv_addr():
        a('v_and_b32 v10, 7, v1')
        a('v_lshrrev_b32 v11, 3, v1')
        a('v_lshlrev_b32 v10, 4, v10')
        a('v_lshl_add_u32 v%d, v11, 9, v10' % vKO)
        a('s_lshl_b32 s7, s3, 7')
        a('s_add_u32 s7, s7, s4')
        a('s_add_u32 s7, s7, 96')
        a('s_lshl_b32 s44, s7, 4')
        if c['rs'] == 1 and not c['rg']:
            a('s_and_b32 s7, s4, 15')
        else:
            a('s_mul_i32 s7, s4, %d' % c['rs'])
            a('s_mul_i32 s62, s3, %d' % c['rg'])
            a('s_add_u32 s7, s7, s62')
            a('s_and_b32 s7, s7, 15')
        a('s_or_b32 s44, s44, s7')
    def h0_gather():
        a('s_cmp_ge_u32 s4, 7')
        a('s_cselect_b32 s54, 1, 0')
        a('s_lshl1_add_u32 s7, s3, s54')
        a('s_lshl3_add_u32 s56, s7, s5')
        a('s_mul_i32 s56, s56, %d' % BLK)
        a('s_add_u32 s56, s56, 0x%x' % WS_H0)

    def xpub(part):
        if part & 1:
            a('s_lshl_b32 s7, s3, 5')
            a('s_add_u32 s7, s7, s4')
            a('s_lshl_b32 s7, s7, 7')
            a('s_add_u32 s47, s7, 0x%x' % WS_X)
            a('s_getreg_b32 s7, hwreg(HW_REG_XCC_ID, 0, 4)')
            a('v_mov_b32 v222, s7')
            a('v_mov_b32 v223, s6')
        if part & 2:
            nlab[0] += 1
            a('s_cmp_eq_u32 s5, 6')
            a('s_cbranch_scc0 L_xp%d' % nlab[0])
            a('s_mov_b64 exec, 1')
            a('buffer_store_dwordx2 v[222:223], off, s[20:23], s47')
            a('s_mov_b64 exec, -1')
            a.label('L_xp%d' % nlab[0])

    if diag:
        for k in range(1, 15): a('s_mov_b32 s%d, 0' % (64 + 2 * k))
    stamp(0)
    a('s_load_dwordx2 s[8:9], s[0:1], 8')
    a('s_load_dwordx2 s[36:37], s[0:1], 0')
    a('s_load_dwordx2 s[16:17], s[0:1], 24')
    a('s_load_dwordx2 s[12:13], s[0:1], 16')
    a('s_load_dwordx2 s[20:21], s[0:1], 88')
    a('s_cmp_ge_u32 s2, 256')
    a('s_cbranch_scc1 L_end')
    a('v_lshrrev_b32 v3, 6, v0')
    a('v_and_b32 v1, 63, v0')
    a('s_and_b32 s3, s2, 7')
    a('v_readfirstlane_b32 s5, v3')
    a('s_lshr_b32 s4, s2, 3')
    a('s_and_b32 s55, s5, 3')
    if c['off0']:
        a('s_cmp_ge_u32 s4, 14')
        a('s_cselect_b32 s31, 1, 0')
        a('s_cmp_ge_u32 s4, 16')
        a('s_cselect_b32 s31, s3, s31')
    else:
        a('s_lshr_b32 s31, s4, 4')
    a('s_cmp_ge_u32 s5, 4')
    a('s_cbranch_scc1 L_v0')

    if c['pf']:
        a('s_getpc_b64 s[46:47]')
        a.label('L_pc')
        a('s_lshl2_add_u32 s7, s4, s55')
        a('s_lshl_b32 s7, s7, 7')
        a('s_addk_i32 s7, 0x300')
        a('s_min_u32 s7, s7, L_end-L_pc')
        a('s_add_u32 s46, s46, s7')
        a('s_addc_u32 s47, s47, 0')
        a('v_mov_b32 v10, s46')
        a('v_mov_b32 v11, s47')
        a('global_load_dword v216, v[10:11], off')
    kv_addr()
    srd(8, 1 << 26)
    a('s_xor_b32 s45, s44, s55')
    a('s_lshl_b32 s45, s45, 12')
    a('v_and_b32 v10, 0xfc, v0')
    a('v_mov_b32 v11, 0')
    a('ds_write_b32 v10, v11 offset:%d' % L_GATE)
    a('s_cmp_lg_u32 s31, 0')
    a('s_waitcnt lgkmcnt(0)')
    a('s_load_dword s6, s[20:21], 0')
    if c['b1']:
        a('s_cbranch_scc0 L_k1')
        a('s_barrier')
        a.label('L_k1')
    stamp(1)
    GQ = c['gq']
    assert D <= GQ <= 16 and D <= c['ga'] <= 16
    class Stream:
        def __init__(self): self.seq, self.done = [], 0
        def left(self, n): return len(self.seq) - self.seq.index(n) - 1
        def wait(self, n):
            if self.seq.index(n) >= self.done:
                a('s_waitcnt vmcnt(%d)' % self.left(n))
                self.done = self.seq.index(n) + 1
        def throttle(self, n, d):
            if DX and n >= d and self.seq.index(n - d) >= self.done:
                nlab[0] += 1
                a('s_cmp_lg_u32 s30, 0')
                a('s_cbranch_scc1 L_thr%d' % nlab[0])
                a('s_waitcnt vmcnt(%d)' % self.left(n - d))
                a.label('L_thr%d' % nlab[0])
            if n >= d + DX: self.wait(n - d - DX)
    ks = Stream()
    def kload(idx):
        i, t = idx >> 2, idx & 3
        if t == 0 and i > 0: a('s_xor_b32 s45, s45, 0x%x' % ((i ^ (i - 1)) << 14))
        ks.throttle(idx, D)
        a('buffer_load_dwordx4 %s, v%d, s[8:11], s45 offen offset:%d nt' % (vr(vK + 4 * idx), vKO, 128 * t))
        ks.seq.append(idx)
    for idx in range(D): kload(idx)
    if c['b1']:
        a('s_cmp_lg_u32 s31, 0')
        a('s_cbranch_scc1 L_kb')
    a('s_barrier')
    a('s_branch L_kb')
    a.section('k')
    a.label('L_kb')
    common()
    for k in range(8): a('v_mov_b32 v%d, 0' % (vA + 8 + k))
    a('v_bfe_u32 v10, v1, 2, 1')
    a('v_lshlrev_b32 v10, 9, v10')
    a('v_lshrrev_b32 v12, 4, v1')
    a('v_lshl_add_u32 v10, v12, 7, v10')
    a('v_and_b32 v11, 3, v1')
    a('v_lshlrev_b32 v217, 2, v11')
    a('v_lshl_add_u32 v10, v11, 5, v10')
    a('v_bfe_u32 v11, v1, 3, 1')
    a('v_lshl_add_u32 v10, v11, 2, v10')
    a('v_lshl_add_u32 v13, s55, 3, v10')
    a('v_and_b32 v10, 31, v1')
    a('v_lshlrev_b32 v218, 7, v10')
    a('v_lshlrev_b32_e64 v221, 2, s55')
    a('v_mov_b32 v220, 1')
    a('v_and_b32 v9, 0x70, v8')
    a('v_lshlrev_b32 v12, 2, v0')
    a('s_lshl_b32 s46, s3, 12')
    a('s_add_u32 s46, s46, 0x%x' % WS_X)
    a('s_lshl_b32 s7, s5, 10')
    a('s_add_u32 s47, s46, s7')
    a('s_getreg_b32 s44, hwreg(HW_REG_XCC_ID, 0, 4)')
    a('s_lshl2_add_u32 s7, s3, s5')
    a('s_lshl_b32 s7, s7, 11')
    a('s_add_u32 s56, s7, 0x%x' % WS_Q)
    a('s_add_u32 s57, s7, 0x%x' % WS_QB)
    if c['off0']:
        a('s_cmp_eq_u32 s3, 0')
        a('s_cselect_b32 s56, s57, s56')
    a('s_mov_b32 s58, 0xaaaaaaaa'); a('s_mov_b32 s59, 0xaaaaaaaa')
    a('s_mov_b32 s60, 0xcccccccc'); a('s_mov_b32 s61, 0xcccccccc')
    a('s_mov_b32 s53, %s' % SC)
    if c['ga'] == D: gate_open(0)
    def krange(lo, hi):
        for idx in range(lo, hi):
            if c['qh'] and idx == c['qh']:
                a('s_cmp_lg_u32 s31, 0')
                a('s_cbranch_scc0 L_k2')
                gate_wait(8, 217)
                a.label('L_k2')
            kload(idx)
            if c['ga'] == idx + 1: gate_open(0)
    krange(D, GQ)
    def krest():
        ks.seq += ['q0', 'q1']
        krange(GQ, 16)
        stamp(2)
        a('s_waitcnt lgkmcnt(0)')
        mktag()
        if c['wo_at']: wo_setup()
        ks.wait('q1')
        gate_open(1)
    poll('L_pq', ['buffer_load_dwordx4 %s, v8, s[20:23], s56 offen offset:%d sc1' % (vr(vA + 4 * k), 1024 * k) for k in range(2)],
         [vA + 3, vA + 7], between=krest, wait=None, alt=(c['qdual'], 56, 57))
    stamp(3)
    pkadd(vA, vA, vA + 4)
    a('v_cvt_pk_bf16_f32 v%d, v%d, v%d' % (vA, vA, vA + 1))
    a('ds_write_b32 v12, v%d offset:%d' % (vA, L_QL))
    gate_open(2)
    a('s_mov_b64 exec, 0xff')
    a('buffer_load_dwordx2 v[222:223], v218, s[20:23], s47 offen sc1')
    a('s_mov_b64 exec, -1')
    ks.seq.append('x')
    gate_wait(2, 217)
    for h in range(2):
        for t in range(4):
            a('ds_read_b128 %s, v9 offset:%d' % (vr(vQ + 16 * h + 4 * t), L_QL + 512 * h + 128 * t))
    if c['wo_at'] == 2: wo_issue_if()
    a('s_waitcnt lgkmcnt(0)')
    stamp(4)
    acc = lambda i, h: vA + 8 + 4 * h + i
    for i in range(4):
        assert c['wo_at'] != 2 or GQ == 16
        ks.wait(4 * i + 3)
        for t in range(4):
            for d in range(4):
                for h in range(2):
                    a('v_dot2c_f32_bf16 v%d, v%d, v%d' % (acc(i, h), vK + 16 * i + 4 * t + d, vQ + 16 * h + 4 * t + d))
    X = acc(0, 0)
    for i in range(4): dpp('v_add_f32', X + i, X + i, X + i, 'row_half_mirror', 'row_mask:0xf bank_mask:0x5')
    for i in range(4): dpp('v_add_f32', X + i, X + 4 + i, X + 4 + i, 'row_half_mirror', 'row_mask:0xf bank_mask:0xa')
    for i in range(4): dpp('v_add_f32', X + i, X + i, X + i, QP1)
    a('v_cndmask_b32_e64 v%d, v%d, v%d, s[58:59]' % (X, X, X + 1))
    a('v_cndmask_b32_e64 v%d, v%d, v%d, s[58:59]' % (X + 2, X + 2, X + 3))
    dpp('v_add_f32', X, X, X, QP2)
    dpp('v_add_f32', X + 2, X + 2, X + 2, QP2)
    a('v_cndmask_b32_e64 v%d, v%d, v%d, s[60:61]' % (X, X, X + 2))
    rnd(X, X)
    a('ds_write_b32 v13, v%d offset:%d' % (X, L_S))
    gate_open(3)
    stamp(5)
    h0_gather()
    def xflag(left):
        a('s_waitcnt vmcnt(%d)' % left)
        a('v_cmp_ne_u32 vcc, s6, v223')
        a('v_cmp_ne_u32_e64 s[96:97], s44, v222')
        a('s_or_b32 s7, vcc_lo, s96')
        a('s_and_b32 s7, s7, 0xff')
        a('s_cselect_b32 s7, 2, %d' % (2 if c['force_sc1'] else 1))
        a('v_mov_b32 v219, s7')
        a('ds_write_b32 v221, v219 offset:%d' % (L_GATE + 16 * 7))
    a('s_cmp_eq_u32 s5, 3')
    a('s_cbranch_scc1 L_k3')
    xflag(0)
    a('s_cmp_ge_u32 s4, 14')
    a('s_cbranch_scc1 L_aux6')
    if c['wo_at'] == 4: gate_wait(4, 221)
    if c['wo_at'] >= 3: wo_issue()
    a('s_waitcnt vmcnt(0)')
    a('s_branch L_wt')

    a.label('L_k3')
    a('s_lshl3_add_u32 s45, s54, s46')
    a('s_add_u32 s57, s45, 0x%x' % (WS_XB - WS_X))
    a('v_lshrrev_b32 v10, 5, v1')
    a('v_lshl_add_u32 v14, v10, 4, v8')
    a('v_lshlrev_b32 v10, 3, v10')
    a('s_lshl_b32 s7, s4, 7')
    a('s_add_u32 s46, s46, s7')
    a('v_mov_b32 v13, s6')
    gate_wait(3, 217)
    a('ds_read_b128 %s, v8 offset:%d' % (vr(vA), L_S))
    a('s_waitcnt lgkmcnt(0)')
    softmax_head(vA)
    a('v_rcp_f32 v%d, v%d' % (vA + 5, vA + 6))
    a('v_log_f32 v12, v%d' % (vA + 6))
    for k in range(4): a('v_mul_f32 v%d, v%d, v%d' % (vA + k, vA + k, vA + 5))
    for k in range(4): a('v_cvt_pk_bf16_f32 v%d, v%d, v%d' % (vA + k, vA + k, vA + k))
    a('ds_write_b128 v14, %s offset:%d' % (vr(vA), L_P))
    a('ds_write_b32 v221, v220 offset:%d' % (L_GATE + 16 * 5 - 12))
    a('v_add_f32 v12, v12, v%d' % (vA + 4))
    def lse_store(sc):
        a('s_mov_b32 exec_lo, 1'); a('s_mov_b32 exec_hi, 1')
        a('buffer_store_dwordx2 v[12:13], v10, s[20:23], s46 offen offset:16' + sc)
        a('s_mov_b64 exec, -1')
    lse_store('')
    xflag(1)
    a('s_add_u32 s46, s46, 0x%x' % (WS_XB - WS_X))
    a('s_cmp_ge_u32 s4, 14')
    stamp(6)
    a('s_cbranch_scc0 L_k4')
    lse_store(' sc1')
    a('s_branch L_aux6')
    a.label('L_k4')
    gate_wait(4, 221)
    late = c['wo_at'] >= 3
    def lrest():
        if late: wo_issue()
        lse_store(' sc1')
    poll('L_pl', ['buffer_load_dwordx2 v[14:15], v218, s[20:23], s45 offen offset:16 sc1'], [15],
         between=lrest, wait='vmcnt(%d)' % (9 if late else 1), alt=(c['ldual'], 45, 57))
    stamp(7)
    a('v_mov_b32 v16, v14')
    allred32('v_max_f32', 16, 17)
    a('v_sub_f32 v14, v14, v16')
    a('v_exp_f32 v14, v14')
    a('v_and_b32 v10, 0x70, v8')
    a('v_mov_b32 v16, v14')
    allred32('v_add_f32', 16, 17)
    a('v_rcp_f32 v16, v16')
    a('v_bfe_u32 v11, v1, 3, 2')
    a('v_lshl_add_u32 v10, v11, 2, v10')
    a('v_mul_f32 v14, v14, v16')
    a('ds_write_b32 v10, v14 offset:%d' % L_WT)
    a('s_waitcnt vmcnt(1) lgkmcnt(0)')
    a('s_branch L_wt')
    a.label('L_aux6')
    a('s_waitcnt lgkmcnt(0)')
    a('s_sub_u32 s3, s3, 1')
    leave_if('scc1')
    a('s_cmp_ge_u32 s4, 16')
    a('s_cbranch_scc0 L_fin')
    a('s_sub_u32 s54, s4, 16')
    a('s_lshl4_add_u32 s54, s3, s54')
    a('v_lshrrev_b32 v10, 3, v1')
    dma_voff(8 * 3584)
    a('s_bitcmp1_b32 s4, 0')
    a('s_cselect_b64 s[24:25], s[28:29], s[24:25]')
    a('s_mul_i32 s44, s5, 3584')
    a('s_lshr_b32 s7, s54, 2')
    a('s_lshl_b32 s7, s7, 7')
    a('s_add_u32 s44, s44, s7')
    a('s_bitcmp1_b32 s4, 1')
    for i in range(7):
        r0, r1 = [64 * (x >> 1) + 4 * (x & 1) for x in (i, 7 + i)]
        a('s_mov_b32 s7, %d' % (r0 * 3584))
        a('s_cselect_b32 s%d, %d, s7' % (8 + i, r1 * 3584))
    for i in range(7): a('s_add_u32 s%d, s%d, s44' % (8 + i, 8 + i))
    a('s_lshl_b32 s7, s5, 10')
    a('s_add_u32 m0, s7, %d' % L_T)
    a('v_lshrrev_b32 v12, 4, v1')
    a('v_mul_u32_u24 v10, 896, v12')
    a('v_and_b32 v11, 15, v1')
    a('v_lshl_add_u32 v11, s5, 4, v11')
    a('v_lshl_add_u32 v3, v11, 4, v10')
    a('v_cmp_gt_u32 vcc, 56, v11')
    a('v_cndmask_b32 v3, 2.0, v3, vcc')
    a('s_mul_i32 s16, s54, %d' % (16 * 896))
    a('s_add_u32 s17, s16, 7168')
    a('v_bfe_u32 v10, v1, 2, 2')
    a('v_lshl_add_u32 v10, v10, 2, v12')
    a('v_and_b32 v11, 0x30, v8')
    a('v_lshl_add_u32 v40, v10, 6, v11')
    a('s_mul_i32 s56, s54, %d' % GXS)
    a('s_add_u32 s56, s56, 0x%x' % WS_GX)
    a('v_and_b32 v10, 0x70, v8')
    a('v_bfe_u32 v11, v1, 3, 1')
    a('v_lshl_add_u32 v10, v11, 8, v10')
    a('v_lshl_add_u32 v41, v12, 7, v10')
    a('s_mul_i32 s57, s54, %d' % HS)
    a('s_lshl_b32 s7, s5, 9')
    a('s_add_u32 s57, s57, s7')
    a('s_add_u32 s57, s57, 0x%x' % WS_H2)
    a('s_cmp_eq_u32 s5, 3')
    a('s_cselect_b32 s58, 0x00ff00ff, -1')
    a('s_mov_b32 s59, 0')
    k0 = 2 * math.sqrt(2 / math.pi) * math.log2(math.e)
    a('v_mov_b32 v42, %s' % f32(-k0))
    a('v_mov_b32 v43, %s' % f32(1.0 / 448))
    a('s_mov_b32 s18, %s' % f32(1.0 / 448))
    a('s_mov_b32 s19, %s' % f32(-k0 * 0.044715))
    a('v_mov_b32 v75, s6')
    a('s_branch L_ft')
    flush_retry()

    a.section('v')
    if c['wo_at'] == 0:
        a.label('L_v1')
        a('s_cmp_ge_u32 s4, 14')
        a('s_cbranch_scc1 L_v')
        wo_setup()
        a('s_waitcnt lgkmcnt(0)')
        wo_issue()
    a.label('L_v')
    common()
    a('s_waitcnt lgkmcnt(0)')
    mktag()
    xpub(3)
    a.label('L_v3')
    if c['touch']:
        a('s_cmp_ge_u32 s4, 16')
        a('s_cbranch_scc1 L_v4')
        a('s_lshl4_add_u32 s7, s3, s4')
        a('s_mul_i32 s44, s7, %d' % BLK)
        a('s_mul_i32 s45, s7, %d' % GXS)
        a('s_lshl_b32 s7, s55, 10')
        a('s_add_u32 s44, s44, s7')
        a('s_add_u32 s44, s44, 0x%x' % WS_H0)
        a('s_add_u32 s45, s45, 0x%x' % (WS_GX - 16 * GXS))
        a('buffer_load_dwordx4 v[16:19], v8, s[20:23], s44 offen')
        a('s_cmp_eq_u32 s5, 4')
        a('s_cbranch_scc0 L_v4')
        a('buffer_load_dwordx4 v[16:19], v8, s[20:23], s45 offen')
        a.label('L_v4')
    kv_addr()
    srd(12, 1 << 26)
    a('s_lshl_b32 s44, s44, 12')
    a('s_lshl_b32 s7, s55, 7')
    a('s_add_u32 s44, s44, s7')
    a('v_lshlrev_b32_e64 v221, 2, s55')
    a('v_mov_b32 v220, 1')
    a('v_and_b32 v10, 3, v1')
    a('v_lshlrev_b32 v217, 2, v10')
    a('v_bfe_u32 v11, v1, 3, 1')
    a('v_lshrrev_b32 v12, 4, v1')
    a('v_mul_u32_u24 v15, 528, v11')
    a('v_lshl_add_u32 v15, v12, 7, v15')
    a('v_lshrrev_b32 v10, 5, v1')
    a('v_bfe_u32 v11, v1, 2, 1')
    a('v_lshl_add_u32 v10, v10, 3, v11')
    a('v_mul_u32_u24 v10, %d, v10' % BLK)
    a('v_and_b32 v11, 3, v1')
    a('v_lshl_add_u32 v10, v11, 4, v10')
    a('v_bfe_u32 v11, v1, 4, 1')
    a('v_lshl_add_u32 v9, v11, 6, v10')
    a('s_lshl3_add_u32 s7, s3, s55')
    a('s_mul_i32 s57, s7, %d' % (2 * BLK))
    a('s_lshl_b32 s7, s4, 7')
    a('s_add_u32 s57, s57, s7')
    a('s_add_u32 s57, s57, 0x%x' % WS_H0)
    h0_gather()
    for k in range(8): a('v_mov_b32 v%d, 0' % (vC0 + k))
    a('v_mov_b32 v75, s6')
    NB = c['nb']
    GV = 217 if c['gall'] else 221
    gate_wait(0, GV)
    stamp(2)
    vs = Stream()
    def vload(n):
        if n > 0: a('s_xor_b32 s44, s44, 0x%x' % ((n ^ (n - 1)) << 12))
        a('buffer_load_dwordx4 %s, v%d, s[12:15], s44 offen nt' % (vr(vV + 4 * n), vKO))
        vs.seq.append(n)
        if n == 15:
            stamp(3)
            gate_open(4)
    for n in range(NB):
        if n == c['na']: gate_wait(1, GV)
        vs.throttle(n, DV)
        vload(n)
    stamp(4)
    gate_wait(5, 219)
    for z in range(8): a('ds_read_b128 %s, v15 offset:%d' % (vr(vP + 4 * z), L_P + 16 * z))
    a('s_waitcnt lgkmcnt(0)')
    stamp(6)
    nxt = NB
    if c['prio']: a('s_setprio %d' % c['prio'])
    def pand(k):
        for r in range(4): a('v_and_b32 v%d, v%d, v%d' % (vT + 4 * (k & 3) + r, vP + k, vM + r))
    pand(0); pand(1)
    for k in range(32):
        n = k >> 1
        if k == 26: a('ds_read_b32 v219, v217 offset:%d' % (L_GATE + 16 * 7))
        if k == 30:
            a('s_waitcnt lgkmcnt(0)')
            a.label('L_xf_chk')
            a('v_cmp_eq_u32 vcc, 0, v219')
            a('s_cbranch_vccnz L_xf_retry')
            a('v_cmp_ne_u32 vcc, 1, v219')
            a('s_cmp_eq_u64 vcc, 0')
            a('s_cselect_b32 s47, -1, 0')
            a('s_and_b32 s58, s47, 0x00ff00ff'); a('s_mov_b32 s59, s58')
            a('s_andn2_b32 s60, 0x00ff00ff, s47'); a('s_mov_b32 s61, s60')
        if k & 1 == 0:
            vs.wait(n)
            while nxt < 16 and nxt - 1 - n < c['pvd']:
                vload(nxt); nxt += 1
        mfma(vC1 if k & 1 else vC0, vT + 4 * (k & 3), vV + 4 * n, 1)
        if k < 30: pand(k + 2)
    stamp(7)
    for r in (3, 0, 1, 2): dpp('v_add_f32', vC0 + r, vC1 + r, vC0 + r, 'row_ror:8')
    pack24(72, vC0)
    store2(72, 9, 57)
    a('s_cmp_ge_u32 s4, 14')
    a('s_cbranch_scc1 L_ft0')

    a.label('L_wt')
    a('s_barrier')
    stamp(8)
    WT = 36
    def wsetup():
        a('v_lshrrev_b32 v10, 3, v1')
        a('v_lshlrev_b32 v10, 4, v10')
        a('ds_read_b128 %s, v10 offset:%d' % (vr(WT), L_WT))
        tr_addr()
        tr_read()
        a('v_mul_u32_u24 v13, 144, v11')
        a('v_lshl_add_u32 v13, s5, 4, v13')
        a('v_lshrrev_b32 v10, 2, v1')
        a('v_mul_u32_u24 v14, 144, v10')
        a('v_and_b32 v11, 3, v1')
        a('v_lshl_add_u32 v14, v11, 5, v14')
        a('v_and_b32 v11, 1, v10')
        a('v_lshrrev_b32 v10, 1, v10')
        a('v_lshlrev_b32 v10, 4, v10')
        a('v_lshl_add_u32 v12, v11, 7, v10')
        a('s_lshl1_add_u32 s44, s3, s54')
        a('s_mul_i32 s44, s44, %d' % HS)
        a('s_mul_i32 s45, s54, 7')
        a('s_sub_u32 s45, s4, s45')
        a('s_lshl_b32 s45, s45, 8')
        a('s_add_u32 s44, s44, s45')
        a('s_add_u32 s44, s44, 0x%x' % WS_H1)
        a('s_mov_b32 s58, 0x00010001'); a('s_mov_b32 s59, 0x00010001')
        a('s_mov_b32 s60, 0x11111111'); a('s_mov_b32 s61, 0x11111111')
        a('v_mov_b32 v75, s6')
    poll('L_p0', ['buffer_load_dwordx4 %s, v8, s[20:23], s56 offen offset:%d sc1' % (vr(G0 + 4 * k), 1024 * k) for k in range(4)],
         [G0 + 3, G1 + 3, G2 + 3, G3 + 3], between=wsetup, wait='vmcnt(0) lgkmcnt(0)')
    stamp(9)
    unpackn([G0, G1, G2, G3])
    for k in range(4):
        w, hi = WT + (k & 2), k & 1
        for p in (0, 2):
            if k == 0:
                a('v_pk_mul_f32 %s, %s, %s op_sel:[0,0] op_sel_hi:[1,0]' % (vr(G0 + p, 2), vr(G0 + p, 2), vr(w, 2)))
            else:
                a('v_pk_fma_f32 %s, %s, %s, %s op_sel:[0,%d,0] op_sel_hi:[1,%d,1]' % (vr(G0 + p, 2), vr(G0 + 4 * k + p, 2), vr(w, 2), vr(G0 + p, 2), hi, hi))
    scatter4(G0)
    vec32(vAX, G0, 0xf)
    for t in range(4): mfma(vD + 4 * t, vB + 4 * t, vAX, 0)
    a('s_mov_b64 exec, s[58:59]')
    for t in range(4): a('ds_write_b128 v13, %s offset:%d' % (vr(vD + 4 * t), L_RED + 576 * t))
    a('s_mov_b64 exec, -1')
    a('s_cmp_eq_u32 s5, 0')
    a('s_waitcnt lgkmcnt(0)')
    stamp(10)
    a('s_barrier')
    leave_if('scc0')
    a('ds_read_b128 %s, v14 offset:%d' % (vr(G0), L_RED))
    a('ds_read_b128 %s, v14 offset:%d' % (vr(G1), L_RED + 16))
    a('s_waitcnt lgkmcnt(0)')
    pkadd(G0, G0, G1); pkadd(G0 + 2, G0 + 2, G1 + 2)
    for ctl in (QP1, QP2):
        for k in range(4): dpp('v_add_f32', G0 + k, G0 + k, G0 + k, ctl)
    a('s_mov_b64 exec, s[60:61]')
    pack24(72, G0)
    a('buffer_store_dwordx4 v[72:75], v12, s[20:23], s44 offen sc1')
    stamp(12)
    leave()
    flush_retry()

    a.label('L_xf_retry')
    a('ds_read_b32 v219, v217 offset:%d' % (L_GATE + 16 * 7))
    a('s_waitcnt lgkmcnt(0)')
    a('s_branch L_xf_chk')

    a.label('L_ft0')
    a('s_sub_u32 s3, s3, 1')
    leave_if('scc1')
    a('s_cmp_ge_u32 s4, 16')
    a('s_cbranch_scc1 L_fkv')
    a.label('L_fin')
    a('s_barrier')
    a('s_sub_u32 s54, s4, 14')
    a('s_lshl1_add_u32 s54, s3, s54')
    line_voff()
    a('v_and_b32 v13, 7, v1')
    a('v_lshl_add_u32 v14, v10, 3, v13')
    a('v_mul_u32_u24 v14, 48, v14')
    a('v_lshl_add_u32 v10, s5, 2, v14')
    a('s_cmp_eq_u32 s5, 7')
    a('s_cbranch_scc1 L_fin7')
    a('s_lshl_b32 s44, s54, 7')
    a('s_mul_i32 s7, s5, %d' % (16 * HS))
    a('s_add_u32 s44, s44, s7')
    a('s_add_u32 s44, s44, 0x%x' % WS_H2)
    a('s_add_u32 s45, s44, %d' % (8 * HS))
    two = ['buffer_load_dwordx4 %s, v9, s[20:23], s44 offen sc1' % vr(G0),
           'buffer_load_dwordx4 %s, v9, s[20:23], s45 offen sc1' % vr(G1)]
    poll('L_p2', two, [G0 + 3, G1 + 3])
    stamp(13)
    sum2scatter()
    a('ds_write_b32 v10, v%d offset:%d' % (G0, L_RED))
    a('s_waitcnt lgkmcnt(0)')
    a('s_barrier')
    leave()
    flush_retry()

    a.label('L_fin7')
    a('v_mov_b32 v11, 0')
    a('ds_write_b32 v10, v11 offset:%d' % L_RED)
    line_soff(54)
    a('v_bfe_u32 v11, v1, 3, 1')
    a('v_lshl_add_u32 v14, v11, 4, v14')
    a('s_mov_b32 s58, 0x00ff00ff'); a('s_mov_b32 s59, 0x00ff00ff')
    a('buffer_load_ushort v15, v12, s[36:39], s46 offen')
    poll('L_p3', two, [G0 + 3, G1 + 3])
    stamp(10)
    sum2scatter()
    a('v_lshlrev_b32 v15, 16, v15')
    rnd(G0, G0)
    a('v_add_f32 v15, v%d, v15' % G0)
    rnd(15, 15)
    a('v_mov_b32 v10, s6')
    a('s_cmp_eq_u32 s54, 0')
    a('s_cselect_b64 s[60:61], 1, 0')
    a('s_waitcnt lgkmcnt(0)')
    a('s_barrier')
    a('ds_read_b128 %s, v14 offset:%d' % (vr(G0), L_RED))
    a('s_waitcnt lgkmcnt(0)')
    stamp(13)
    pkadd(G0, G0, G0 + 2)
    a('v_add_f32 v%d, v%d, v%d' % (G0, G0, G0 + 1))
    dpp('v_add_f32', G0, G0, G0, 'row_ror:8')
    rnd(G0, G0)
    a('v_add_f32 v%d, v%d, v15' % (G0, G0))
    a('v_cvt_pk_bf16_f32 v%d, v%d, v%d' % (G0, G0, G0))
    a('s_mov_b64 exec, s[58:59]')
    a('buffer_store_short v%d, v12, s[40:43], s46 offen' % G0)
    a('s_mov_b64 exec, s[60:61]')
    a('buffer_store_dword v10, off, s[20:23], 0 sc1')
    leave()
    flush_retry()

    a.label('L_fkv')
    a('s_barrier')
    stamp(8)
    a('s_cmp_eq_u32 s5, 7')
    a('s_cbranch_scc0 L_fall')
    for k in range(2): a('v_mov_b32 v%d, 0' % (G0 + k))
    a('v_mul_u32_u24 v14, 80, v1')
    a('ds_write_b64 v14, %s offset:%d' % (vr(G0, 2), L_RED + 56))
    a('ds_write_b32 v%d, v%d offset:%d' % (G0, G0, L_STAT + 28))
    a('ds_write_b32 v%d, v%d offset:%d' % (G0, G0, L_STAT + 60))
    a('s_and_b32 s7, s4, 1')
    a('s_xor_b32 s7, s7, 1')
    a('s_lshl_b32 s7, s7, 5')
    a('v_mov_b32 v13, s7')
    a('v_lshrrev_b32 v10, 4, v1')
    a('v_mul_u32_u24 v10, %d, v10' % GXS)
    a('v_and_b32 v11, 3, v1')
    a('v_lshl_add_u32 v10, v11, 6, v10')
    a('v_bfe_u32 v11, v1, 2, 2')
    a('v_lshl_add_u32 v9, v11, 4, v10')
    a('s_and_b32 s7, s4, 12')
    a('s_lshl4_add_u32 s7, s3, s7')
    a('s_mul_i32 s57, s7, %d' % GXS)
    a('s_and_b32 s7, s4, 3')
    a('s_lshl_b32 s7, s7, 8')
    a('s_add_u32 s57, s57, s7')
    a('s_add_u32 s57, s57, 0x%x' % WS_GX)
    a('s_mov_b32 s58, s47'); a('s_mov_b32 s59, s47')
    a('s_not_b64 s[60:61], s[58:59]')
    a('s_waitcnt lgkmcnt(0)')
    a('s_barrier')
    a('s_barrier')
    for k in range(4): a('ds_read_b128 %s, v14 offset:%d' % (vr(G0 + 4 * k), L_RED + 16 * k))
    for k in range(2): a('ds_read_b128 %s, v13 offset:%d' % (vr(32 + 4 * k), L_STAT + 16 * k))
    a('s_waitcnt lgkmcnt(%d)' % (0 if diag else 4))
    pkadd(G0, G0, G0 + 2); pkadd(G1, G1, G1 + 2)
    if not diag: a('s_waitcnt lgkmcnt(2)')
    pkadd(G2, G2, G2 + 2); pkadd(G3, G3, G3 + 2)
    pkadd(G0, G0, G1); pkadd(G2, G2, G3)
    if not diag: a('s_waitcnt lgkmcnt(0)')
    pkadd(32, 32, 34); pkadd(36, 36, 38)
    pkadd(72, G0, G2)
    pkadd(32, 32, 36)
    a('v_add_f32 v74, v32, v33')
    store2(72, 9, 57)
    stamp(11)
    a('s_barrier')
    leave()

    a.label('L_ft')
    a('s_barrier')
    stamp(8)
    for i in range(7):
        a('buffer_load_dwordx4 v2, s[24:27], s%d offen nt lds' % (8 + i))
        if i < 6: a('s_add_u32 m0, m0, 0x1000')
    a.label('L_fall')
    line_voff()
    a('s_bfe_u32 s7, s4, 0x10001')
    a('s_mul_i32 s7, s7, 7')
    a('s_add_u32 s55, s7, s5')
    line_soff(55)
    a('buffer_load_ushort v15, v12, s[36:39], s46 offen')
    a('s_cmp_ge_u32 s5, 4')
    a('s_cbranch_scc1 L_nodown')
    for t in range(4):
        a('buffer_load_dwordx4 %s, v3, s[32:35], s%d offen offset:%d nt' % (vr(vW + 4 * t), 16 + (t >> 1), 3584 * (t & 1)))
    a.label('L_nodown')
    tr_addr()
    for k in range(4): a('v_mov_b32 v%d, 0x3f803f80' % (vAX + k))
    a('v_and_b32 v10, 15, v1')
    a('v_lshrrev_b32 v11, 5, v1')
    a('v_mul_u32_u24 v13, 80, v10')
    a('v_lshl_add_u32 v13, v11, 2, v13')
    a('v_lshl_add_u32 v13, s5, 3, v13')
    a('v_add_u32 v13, %d, v13' % L_RED)
    a('v_lshl_add_u32 v14, v10, 1, v11')
    a('v_lshlrev_b32 v14, 5, v14')
    a('v_lshl_add_u32 v14, s5, 2, v14')
    a('s_mov_b32 s60, 0xffff'); a('s_mov_b32 s61, 0xffff')
    a('s_waitcnt vmcnt(4)')
    a('s_barrier')
    stamp(9)
    poll('L_p1', two, [G0 + 3, G1 + 3], between=tr_read, wait='vmcnt(0) lgkmcnt(0)')
    stamp(10)
    a('v_lshlrev_b32 v15, 16, v15')
    sum2scatter()
    rnd(G0, G0)
    a('v_add_f32 v%d, v%d, v15' % (G0, G0))
    vec32(vAX, G0, 0x3)
    for t in range(4): mfma(vD + 4 * t, vAX, vB + 4 * t, 0)
    mfma(vD + 16, vAX, vAX, 0)
    a('s_mov_b64 exec, s[60:61]')
    a('s_cmp_ge_u32 s5, 4')
    a('ds_write2st64_b32 v13, v%d, v%d offset0:0 offset1:5' % (vD, vD + 4))
    a('ds_write2st64_b32 v13, v%d, v%d offset0:10 offset1:15' % (vD + 8, vD + 12))
    a('ds_write_b32 v14, v%d offset:%d' % (vD + 16, L_STAT))
    a('s_mov_b64 exec, -1')
    a('s_waitcnt lgkmcnt(0)')
    a('s_barrier')
    a('s_barrier')
    leave_if('scc1')
    poll('L_pg', ['buffer_load_dwordx4 %s, v40, s[20:23], s56 offen sc1' % vr(G0)], [G0 + 3])
    stamp(11)
    V, CS, ST, MU, E2, T = G0, G0 + 1, G0 + 2, G1, G1 + 1, G1 + 2
    dpp('v_add_f32', ST, ST, ST, 'row_ror:8')
    dpp('v_add_f32', V, V, V, 'row_ror:8')
    a('v_mul_f32 v%d, s18, v%d' % (MU, ST))
    a('v_mul_f32 v%d, s18, v%d' % (E2, ST))
    dpp('v_mul_f32', MU, ST, 43, 'row_ror:4', 'row_mask:0xf bank_mask:0xa')
    dpp('v_mul_f32', E2, ST, 43, 'row_ror:4', 'row_mask:0xf bank_mask:0x5')
    dpp('v_add_f32', CS, CS, CS, 'row_ror:8')
    a('v_fma_f32 v%d, -v%d, v%d, v%d' % (E2, MU, MU, E2))
    rnd(MU, MU)
    a('v_max_f32 v%d, 0, v%d' % (E2, E2))
    rnd(E2, E2)
    a('v_add_f32 v%d, %s, v%d' % (E2, f32(1e-5), E2))
    rnd(E2, E2)
    a('v_sqrt_f32 v%d, v%d' % (E2, E2))
    a('v_fma_f32 v%d, -v%d, v%d, v%d' % (V, MU, CS, V))
    rnd(E2, E2)
    a('v_rcp_f32 v%d, v%d' % (E2, E2))
    a('v_mul_f32 v%d, v%d, v%d' % (V, V, E2))
    rnd(V, V)
    a('v_mul_f32 v%d, v%d, v%d' % (T, V, V))
    a('v_fmac_f32 v42, s19, v%d' % T)
    a('v_mul_f32 v%d, v42, v%d' % (T, V))
    a('v_exp_f32 v%d, v%d' % (T, T))
    a('v_add_f32 v%d, 1.0, v%d' % (T, T))
    a('v_rcp_f32 v%d, v%d' % (T, T))
    a('v_mul_f32 v%d, v%d, v%d' % (T, V, T))
    rnd(T, T)
    dpp('v_mul_f32', T, V, T, 'row_ror:4')
    a('v_cvt_pk_bf16_f32 v%d, v%d, v%d' % (T, T, T))
    for t in range(4):
        for r in range(4):
            dpp('v_and_b32', vT + 4 * t + r, T, vM + r, 'row_newbcast:%d' % t)
            if t > 0 and r == 1: mfma(vC0, vT + 4 * t - 4, vW + 4 * t - 4, t > 1)
    mfma(vC0, vT + 12, vW + 12, 1)
    a('s_mov_b64 exec, s[58:59]')
    pack24(72, vC0)
    a('buffer_store_dwordx4 v[72:75], v41, s[20:23], s57 offen sc1')
    stamp(12)
    leave()
    flush_retry()

    a.section('q')
    a.label('L_v0')
    far = 'L_v1' if c['wo_at'] == 0 else 'L_v'
    a('s_cmp_lg_u32 s31, 0')
    a('s_cbranch_scc1 L_qw')
    a('s_waitcnt lgkmcnt(0)')
    a('s_load_dword s6, s[20:21], 0')
    a('s_barrier')
    a('s_branch %s' % far)
    a.label('L_qw')
    vWQ, vXN = 16, 128
    srd(16, 448 * 8192)
    srd(36, 896)
    a('v_lshlrev_b32 v8, 4, v1')
    a('v_lshrrev_b32 v12, 3, v1')
    a('v_mul_u32_u24 v3, %d, v12' % (28 * 8192))
    a('v_and_b32 v10, 0x70, v8')
    a('v_add_u32 v3, v3, v10')
    a('s_bfe_u32 s54, s4, 0x30001')
    a('s_lshl3_add_u32 s54, s3, s54')
    a('s_cmp_ge_u32 s4, 16')
    a('s_cselect_b32 s54, s54, s3')
    a('s_and_b32 s44, s4, 1')
    a('s_lshl_b32 s44, s44, 5')
    a('s_add_u32 s44, s44, s55')
    a('s_mul_i32 s45, s44, %d' % (7 * 64))
    a('s_add_u32 s45, s45, s54')
    a('s_lshl_b32 s45, s45, 7')
    a('s_movk_i32 s46, 0x2000')
    a('s_waitcnt lgkmcnt(0)')
    stamp(1)
    a('buffer_load_dwordx4 %s, v8, s[36:39], 0 offen' % vr(vA))
    a('s_load_dword s6, s[20:21], 0')
    for n in range(7):
        a('buffer_load_dwordx4 %s, v3, s[16:19], s45 offen nt' % vr(vWQ + 4 * n))
        if n < 6: a('s_add_u32 s45, s45, s46')
    a('s_barrier')
    common(False)
    x, S1, S2 = vA + 8, vA + 4, vA + 5
    a('v_mov_b32 v%d, 0' % S1)
    a('v_mov_b32 v%d, 0' % S2)
    a('v_mov_b32 v%d, 0x3f803f80' % (vA + 6))
    a('v_mov_b32 v%d, %s' % (vA + 7, f32(1.0 / 448)))
    a('v_lshlrev_b32 v13, 5, v1')
    a('v_mul_u32_u24 v14, 112, v12')
    a('s_mul_i32 s7, s44, 28')
    a('s_add_u32 s7, s7, %d' % L_XN)
    a('v_add_u32 v14, s7, v14')
    a('v_lshl_add_u32 v15, s55, 3, v13')
    a('v_and_b32 v10, 3, v1')
    a('v_lshlrev_b32 v217, 2, v10')
    a('v_lshlrev_b32_e64 v221, 2, s55')
    a('v_mov_b32 v220, 1')
    a('v_and_b32 v10, 7, v1')
    a('v_lshlrev_b32 v10, 6, v10')
    a('v_bfe_u32 v11, v1, 4, 1')
    a('v_lshl_add_u32 v10, v11, 5, v10')
    a('v_lshrrev_b32 v11, 5, v1')
    a('v_lshl_add_u32 v9, v11, 4, v10')
    a('s_lshr_b32 s7, s54, 1')
    a('s_and_b32 s44, s4, 1')
    a('s_lshl1_add_u32 s7, s7, s44')
    a('s_and_b32 s45, s54, 1')
    a('s_lshl1_add_u32 s7, s7, s45')
    a('s_lshl_b32 s57, s7, 9')
    a('s_add_u32 s57, s57, 0x%x' % WS_Q)
    a('s_lshl_b32 s7, s55, 1')
    a('s_lshl_b32 s58, 0x00030003, s7'); a('s_mov_b32 s59, s58')
    qx = 1 if c['qt'] == 'v' else 0
    if qx:
        a('s_mov_b64 exec, s[58:59]')
        a('buffer_load_dword v216, v9, s[20:23], s57 offen sc1')
        a('s_mov_b64 exec, -1')
    a('s_waitcnt vmcnt(%d)' % (7 + qx))
    for k in range(4):
        a('v_dot2c_f32_bf16 v%d, v%d, v%d' % (S1, vA + k, vA + 6))
        a('v_dot2c_f32_bf16 v%d, v%d, v%d' % (S2, vA + k, vA + k))
    unp = []
    for k in range(4):
        unp.append('v_lshlrev_b32 v%d, 16, v%d' % (x + 2 * k, vA + k))
        unp.append('v_and_b32 v%d, 0xffff0000, v%d' % (x + 2 * k + 1, vA + k))
    a(unp.pop()); a(unp.pop())
    for ctl, m in ((QP1, FULL), (QP2, FULL), ('row_half_mirror', FULL), ('row_mirror', FULL),
                   ('row_bcast:15', 'row_mask:0xa bank_mask:0xf'), ('row_bcast:31', 'row_mask:0xc bank_mask:0xf')):
        dpp('v_add_f32', S1, S1, S1, ctl, m)
        dpp('v_add_f32', S2, S2, S2, ctl, m)
        a(unp.pop())
    a('v_readlane_b32 s62, v%d, 63' % S1)
    a('v_readlane_b32 s63, v%d, 63' % S2)
    a('v_mul_f32 v%d, s62, v%d' % (S1, vA + 7))
    a('v_mul_f32 v%d, s63, v%d' % (S2, vA + 7))
    a('v_fma_f32 v%d, -v%d, v%d, v%d' % (S2, S1, S1, S2))
    rnd(S1, S1)
    a('v_max_f32 v%d, 0, v%d' % (S2, S2))
    rnd(S2, S2)
    a('v_add_f32 v%d, %s, v%d' % (S2, f32(1e-5), S2))
    rnd(S2, S2)
    a('v_sqrt_f32 v%d, v%d' % (S2, S2))
    for k in range(8): a('v_sub_f32 v%d, v%d, v%d' % (x + k, x + k, S1))
    rnd(S2, S2)
    a('v_rcp_f32 v%d, v%d' % (S2, S2))
    for k in range(8): rnd(x + k, x + k)
    for k in range(8): a('v_mul_f32 v%d, v%d, v%d' % (x + k, x + k, S2))
    for k in range(8): a('v_cvt_pk_bf16_f32 v%d, v%d, v%d' % (x + k, x + k, x + k))
    a('ds_write_b128 v13, %s offset:%d' % (vr(x), L_XN))
    a('ds_write_b128 v13, %s offset:%d' % (vr(x + 4), L_XN + 16))
    a('s_waitcnt lgkmcnt(0)')
    for z in range(3): a('ds_read2_b32 %s, v14 offset0:%d offset1:%d' % (vr(vXN + 2 * z, 2), 2 * z, 2 * z + 1))
    a('ds_read_b32 v%d, v14 offset:24' % (vXN + 6))
    mktag()
    qc = vA + 16
    a('v_mov_b32 v%d, s6' % (vA + 22))
    a('v_mov_b32 v%d, s6' % (vA + 23))
    xpub(1)
    a('s_waitcnt lgkmcnt(0)')
    def qand(n):
        for r in range(4): a('v_and_b32 v%d, v%d, v%d' % (vA + 4 * (n & 1) + r, vXN + n, vM + r))
    qand(0)
    for n in range(7):
        if n < 6: qand(n + 1)
        a('s_waitcnt vmcnt(%d)' % (6 + qx - n))
        mfma(qc, vA + 4 * (n & 1), vWQ + 4 * n, n)
    for r in range(4): a('v_mov_b32_dpp v%d, v%d row_ror:8 row_mask:0xc bank_mask:0xf' % (qc + r, qc + r))
    a('v_permlane32_swap_b32 v%d, v%d' % (qc, qc + 2))
    a('v_permlane32_swap_b32 v%d, v%d' % (qc + 1, qc + 3))
    pkadd(qc, qc, qc + 2)
    a('ds_write_b64 v15, %s offset:%d' % (vr(qc, 2), L_T))
    gate_open(6)
    xpub(2)
    gate_wait(6, 217)
    a('ds_read_b128 %s, v13 offset:%d' % (vr(vA), L_T))
    a('ds_read_b128 %s, v13 offset:%d' % (vr(vA + 4), L_T + 16))
    a('s_waitcnt lgkmcnt(0)')
    stamp(5)
    pkadd(vA, vA, vA + 2); pkadd(vA + 4, vA + 4, vA + 6)
    pkadd(vA + 20, vA, vA + 4)
    a('s_mov_b64 exec, s[58:59]')
    a('buffer_store_dwordx4 %s, v9, s[20:23], s57 offen' % vr(vA + 20))
    a('s_add_u32 s57, s57, 0x%x' % (WS_QB - WS_Q))
    a('buffer_store_dwordx4 %s, v9, s[20:23], s57 offen sc1' % vr(vA + 20))
    gate_open(8)
    a('s_mov_b64 exec, -1')
    a('s_branch L_v3')

    a.section('end')

    a.label('L_exit')
    if c['probe'] and c['probe'][0] == 'skew':
        _, gsel, mult = c['probe']
        a('s_waitcnt lgkmcnt(0)')
        a('s_cmp_eq_u32 s5, 0')
        a('s_cbranch_scc0 L_end')
        a('s_mov_b64 exec, -1')
        a('s_lshl_b32 s7, s3, 5')
        a('s_add_u32 s7, s7, s4')
        a('s_lshl_b32 s7, s7, 7')
        a('s_add_u32 s7, s7, 0x%x' % WS_ST)
        a('v_mov_b32 v16, s64')
        a('buffer_store_dword v16, off, s[20:23], s7 sc1')
        a('s_cmp_eq_u32 s2, 113')
        a('s_cbranch_scc0 L_end')
        a.label('L_spin0')
        a('s_sleep 4')
        a('s_memrealtime s[94:95]')
        a('s_waitcnt lgkmcnt(0)')
        a('s_sub_u32 s44, s94, s64')
        a('s_cmp_lt_u32 s44, 2000')
        a('s_cbranch_scc1 L_spin0')
        a('v_and_b32 v10, 31, v1')
        a('v_lshlrev_b32 v10, 7, v10')
        a('s_mov_b32 s7, 0x%x' % WS_ST)
        for g in range(8):
            a('buffer_load_dword v%d, v10, s[20:23], s7 offen sc1' % (16 + g))
            a('s_add_u32 s7, s7, 4096')
        a('s_waitcnt vmcnt(0)')
        for g in range(8):
            a('v_subrev_u32 v%d, s64, v%d' % (16 + g, 16 + g))
            allred32('v_min_i32', 16 + g, 30)
        a('v_mov_b32 v24, v16'); a('v_mov_b32 v25, v16')
        for g in range(1, 8):
            a('v_min_i32 v24, v24, v%d' % (16 + g))
            a('v_max_i32 v25, v25, v%d' % (16 + g))
        a('v_sub_u32 v26, v%d, v24' % (16 + gsel if gsel < 8 else 25))
        a('v_readfirstlane_b32 s7, v26')
        a('v_readfirstlane_b32 s45, v24')
        a('s_min_u32 s7, s7, 400')
        a('s_mul_i32 s7, s7, %d' % mult)
        a('s_add_u32 s7, s7, s45')
        a('s_add_u32 s7, s7, 3000')
        a.label('L_spin')
        a('s_sleep 4')
        a('s_memrealtime s[94:95]')
        a('s_waitcnt lgkmcnt(0)')
        a('s_sub_u32 s44, s94, s64')
        a('s_cmp_lt_i32 s44, s7')
        a('s_cbranch_scc1 L_spin')
    elif c['probe'] and c['probe'][0] == 'dirty':
        _, nkb, sc, base = c['probe']
        a('s_mov_b64 exec, -1')
        a('s_lshl3_add_u32 s7, s2, s5')
        a('s_lshl_b32 s7, s7, 13')
        a('s_add_u32 s7, s7, 0x1000000')
        a('v_lshlrev_b32 v8, 4, v1')
        for k in range(nkb):
            a('buffer_store_dwordx4 v[16:19], v8, s[20:23], s7 offen' + sc)
            a('s_add_u32 s7, s7, 1024')
        a('s_waitcnt lgkmcnt(0)')
        a.label('L_spin')
        a('s_sleep 4')
        a('s_memrealtime s[94:95]')
        a('s_waitcnt lgkmcnt(0)')
        a('s_sub_u32 s44, s94, s64')
        a('s_cmp_lt_u32 s44, %d' % base)
        a('s_cbranch_scc1 L_spin')
    elif c['probe']:
        k, base, mult = c['probe']
        stamp(14)
        a('s_waitcnt lgkmcnt(0)')
        a('s_cmp_eq_u32 s%d, 0' % (64 + 2 * k))
        a('s_cbranch_scc1 L_end')
        a('s_sub_u32 s7, s%d, s64' % (64 + 2 * k))
        a('s_min_u32 s7, s7, 10000')
        a('s_mul_i32 s7, s7, %d' % mult)
        a('s_add_u32 s7, s7, %d' % base)
        a.label('L_spin')
        a('s_sleep 4')
        a('s_memrealtime s[94:95]')
        a('s_waitcnt lgkmcnt(0)')
        a('s_sub_u32 s44, s94, s64')
        a('s_cmp_lt_u32 s44, s7')
        a('s_cbranch_scc1 L_spin')
    elif diag:
        stamp(14)
        a('s_sleep 127')
        a('s_mov_b64 exec, 1')
        a('s_lshl3_add_u32 s7, s2, s5')
        a('s_lshl_b32 s7, s7, 6')
        a('s_add_u32 s7, s7, 0x%x' % WS_ST)
        a('s_waitcnt lgkmcnt(0)')
        for k in range(15): a('v_mov_b32 v%d, s%d' % (16 + k, 64 + 2 * k))
        a('s_add_u32 s47, s47, 2')
        a('v_mov_b32 v31, s47')
        for k in range(4): a('buffer_store_dwordx4 %s, off, s[20:23], s7 offset:%d' % (vr(16 + 4 * k), 16 * k))
    a.label('L_end')
    a('s_endpgm')

    ref = open(os.path.join(os.path.dirname(os.path.abspath(__file__)), 'header.txt')).read()
    head = ref + '; @launch grid=(256,1,1) block=(512,1,1) lds=%d\n' % LDS_BYTES
    head += '.amdgcn_target "amdgcn-amd-amdhsa--gfx950"\n.text\n.globl {N}_kernel\n.p2align %d\n.p2align 8\n.type {N}_kernel,@function\n{N}_kernel:\n'.replace('{N}', NAME) % c['align']
    foot = """.section .rodata,"a"
.p2align 6
.amdhsa_kernel {N}_kernel
  .amdhsa_next_free_vgpr 224
  .amdhsa_next_free_sgpr 102
  .amdhsa_accum_offset 224
  .amdhsa_group_segment_fixed_size 0
  .amdhsa_kernarg_size 96
  .amdhsa_float_denorm_mode_32 3
  .amdhsa_user_sgpr_count 2
  .amdhsa_user_sgpr_kernarg_segment_ptr 1
  .amdhsa_system_sgpr_workgroup_id_x 1
.end_amdhsa_kernel
""".replace('{N}', NAME)
    return head + a.text(('main', 'q', 'k', 'v', 'end')) + foot

if __name__ == '__main__':
    out = sys.argv[1] if len(sys.argv) > 1 else 'cdna_kernels/%s.s' % NAME
    kw = eval('dict(%s)' % sys.argv[2]) if len(sys.argv) > 2 else {}
    open(out, 'w').write(gen(**kw))
```

```python
import sys, os, struct, math
sys.path.insert(0, os.path.dirname(os.path.abspath(__file__)))
from emit import Asm

NAME = 'sequential_preLN__sliding_block_cached__geglu_ffn__decode'

WS_X = 0x4000
WS_Q = 0x180000
BLK = 4096 + 128
WS_H0 = 0x20000
GXS = 1024 + 128
WS_QB = 0x190000
WS_XB = 0xC000
WS_GX = 0xC0000
HS = 1920
WS_H1 = 0x100000
WS_H2 = 0x110000
WS_R = 0x1a0000
WS_ST = 0x200000

L_QL = 0
L_S = 1024
L_P = 2048
L_XN = 6400
L_WT = 3200
L_GATE = 8448
L_STAT = 8704
L_RED = 9728
L_T = 14848
LDS_BYTES = L_T + 8 * 4096

SPIN = 20000

def f32(x):
    return '0x%08x' % struct.unpack('<I', struct.pack('<f', x))[0]

def vr(a, n=4):
    return 'v[%d:%d]' % (a, a + n - 1)

DEF = dict(depth=6, dv=0, gq=14, ga=16, na=16, nb=16, pvd=6, dx=0, stamps=None, rs=1, rg=0, touch='vv',
           force_sc1=False, probe=None, wo_at=3, qdual=6, ldual=40, gall=1, g0deep=32, off0=1, b1=1, qh=6, pf=True, qt='v', prio=0, align=12, near=1, pv=2, pk=1, pk3=0, tw=0, wb=0, swap=1, early=1)

def gen(**kw):
    c = dict(DEF); c.update(kw)
    a = Asm()
    D = c['depth']
    DV = c['dv'] or D
    DX = c['dx']
    diag = bool(c['stamps'])
    def stamp(k):
        if diag: a('%s s[%d:%d]' % (c['stamps'], 64 + 2 * k, 65 + 2 * k))
    def leave():
        a('s_branch L_exit' if diag else 's_endpgm')
    nlab = [0]
    def leave_if(cond):
        if diag:
            a('s_cbranch_%s L_exit' % cond)
        else:
            nlab[0] += 1
            a('s_cbranch_%s L_stay%d' % ('scc1' if cond == 'scc0' else 'scc0', nlab[0]))
            h = list(a.hist)
            a('s_endpgm')
            a.hist = h
            a.label('L_stay%d' % nlab[0])
    def srd(base, size):
        a('s_mov_b32 s%d, 0x%x' % (base + 2, size))
        a('s_mov_b32 s%d, 0x20000' % (base + 3))
    def mktag():
        a('s_mul_i32 s6, s6, 0x9e3779b1')
        a('s_add_u32 s6, s6, 0x7f4a7c15')
    def rnd(d, s):
        a('v_cvt_pk_bf16_f32 v%d, 0, v%d' % (d, s))
    QP1, QP2 = 'quad_perm:[1,0,3,2]', 'quad_perm:[2,3,0,1]'
    FULL = 'row_mask:0xf bank_mask:0xf'
    def dpp(op, d, s0, s1, ctl, mask=FULL):
        a('%s_dpp v%d, v%d, v%d %s %s' % (op, d, s0, s1, ctl, mask))
    def mfma(d, x, y, acc):
        a('v_mfma_f32_16x16x32_bf16 %s, %s, %s, %s' % (vr(d), vr(x), vr(y), vr(d) if acc else '0'))
    def pkadd(d, x, y):
        a('v_pk_add_f32 %s, %s, %s' % (vr(d, 2), vr(x, 2), vr(y, 2)))
    def masks():
        a('v_and_b32 v10, 1, v1')
        a('v_lshlrev_b32 v10, 4, v10')
        a('s_mov_b32 s7, 0xffff')
        a('v_lshlrev_b32_e64 v10, v10, s7')
        a('v_bfe_u32 v11, v1, 1, 2')
        for r in range(4):
            a('v_cmp_eq_u32 vcc, %d, v11' % r)
            a('v_cndmask_b32 v%d, 0, v10, vcc' % (vM + r))
    def pack24(d, s):
        for k in range(3):
            a('v_perm_b32 v%d, v%d, v%d, s%d' % (d + k, s + k, s + 3, sPK + k))
    def unpackn(gs):
        for g in gs: a('v_perm_b32 v%d, v%d, v%d, s%d' % (g + 3, g + 1, g, sUP))
        for g in gs: a('v_perm_b32 v%d, v%d, v%d, s%d' % (g + 3, g + 2, g + 3, sUP + 1))
    def scatter4(g):
        a('v_permlane32_swap_b32 v%d, v%d' % (g, g + 2))
        a('v_permlane32_swap_b32 v%d, v%d' % (g + 1, g + 3))
        pkadd(g, g, g + 2)
        a('v_permlane16_swap_b32 v%d, v%d' % (g, g + 1))
        a('v_add_f32 v%d, v%d, v%d' % (g, g, g + 1))
        dpp('v_add_f32', g, g, g, 'row_ror:8')
    def sum2scatter():
        unpackn([G0, G1])
        pkadd(G0, G0, G1); pkadd(G0 + 2, G0 + 2, G1 + 2)
        scatter4(G0)
    def vec32(d, s, banks):
        rnd(s + 1, s)
        a('v_cvt_pk_bf16_f32 v%d, v%d, 0' % (s, s))
        dpp('v_or_b32', s, s + 1, s, 'quad_perm:[1,1,3,3]')
        for k in range(4):
            a('v_mov_b32_dpp v%d, v%d row_newbcast:%d row_mask:0xf bank_mask:0x%x' % (d + k, s, 2 * k, banks))
    retry = []
    def poll(name, loads, tags, between=None, wait='vmcnt(0)', alt=None, half=False):
        for t in loads[:-1]: a(t)
        if half: a('s_mov_b32 exec_hi, 0')
        a(loads[-1])
        if half: a('s_mov_b32 exec_hi, -1')
        if between: between()
        a('s_mov_b32 s7, 0')
        if wait: a('s_waitcnt ' + wait)
        a.label(name + '_chk')
        a('v_cmp_ne_u32 vcc, s6, v%d' % tags[0])
        if len(tags) > 1:
            for i, t in enumerate(tags[1:]):
                a('v_cmp_ne_u32_e64 s[%d:%d], s6, v%d' % (96 + 2 * i, 97 + 2 * i, t))
            if half: a('s_and_b32 s%d, s%d, 0' % (93 + 2 * len(tags), 93 + 2 * len(tags)))
            for i, t in enumerate(tags[1:]):
                a('s_or_b64 s[62:63], %s, s[%d:%d]' % ('s[62:63]' if i else 'vcc', 96 + 2 * i, 97 + 2 * i))
            a('s_cbranch_scc1 %s_retry' % name)
        else:
            a('s_cbranch_vccnz %s_retry' % name)
        a.label(name + '_ok')
        retry.append((name, loads, alt))
    def flush_retry():
        for name, loads, alt in retry:
            a.label(name + '_retry')
            if alt:
                a('s_cmp_eq_u32 s7, %d' % alt[0])
                a('s_cselect_b32 s%d, s%d, s%d' % (alt[1], alt[2], alt[1]))
            for i, t in enumerate(loads):
                a('s_mov_b64 exec, %s' % ('s[%d:%d]' % (94 + 2 * i, 95 + 2 * i) if i else 'vcc'))
                a(t)
            a('s_mov_b64 exec, -1')
            a('s_add_u32 s7, s7, 1')
            a('s_cmp_ge_u32 s7, %d' % SPIN)
            a('s_waitcnt vmcnt(0)')
            a('s_cbranch_scc0 %s_chk' % name)
            a('s_branch %s_ok' % name)
        del retry[:]
    def common(x=True):
        if x: srd(36, 896)
        a('s_load_dwordx2 s[24:25], s[0:1], 48')
        a('s_load_dwordx2 s[28:29], s[0:1], 56')
        a('s_load_dwordx2 s[32:33], s[0:1], 64')
        a('s_load_dwordx2 s[40:41], s[0:1], 72')
        srd(20, 1 << 28)
        srd(24, 448 * 3584)
        srd(32, 1792 * 896)
        srd(40, 896)
        for k in range(3):
            a('s_mov_b32 s%d, 0x0706050%d' % (sPK + k, 1 + k))
        a('s_mov_b32 s%d, 0x0c04000c' % sUP)
        a('s_mov_b32 s%d, 0x04020100' % (sUP + 1))
        a('s_cmp_lt_u32 s4, %d' % c['g0deep'])
        a('s_cselect_b32 s30, 1, 0')
        a('s_cmp_eq_u32 s3, 0')
        a('s_cselect_b32 s30, s30, s31')
        masks()
        a('v_lshlrev_b32 v8, 4, v1')
    def gate_open(k):
        a('ds_write_b32 v221, v220 offset:%d' % (L_GATE + 16 * k))
    def gate_wait(k, vaddr):
        nlab[0] += 1
        if vaddr == 219: a('v_mov_b32 v219, 0')
        a.label('L_gate%d' % nlab[0])
        a('ds_read_b32 v219, v%d offset:%d' % (vaddr, L_GATE + 16 * k))
        a('s_waitcnt lgkmcnt(0)')
        a('v_cmp_ne_u32 vcc, 1, v219')
        a('s_cbranch_vccnz L_gate%d' % nlab[0])
    def store2(data, voff, soff):
        a('s_mov_b64 exec, s[58:59]')
        a('buffer_store_dwordx4 %s, v%d, s[20:23], s%d offen' % (vr(data), voff, soff))
        a('s_mov_b64 exec, s[60:61]')
        a('buffer_store_dwordx4 %s, v%d, s[20:23], s%d offen sc1' % (vr(data), voff, soff))
        a('s_mov_b64 exec, -1')
    def dma_voff(rowexpr_pitch):
        a('v_bfe_u32 v11, v1, 3, 2')
        a('v_lshlrev_b32 v11, 1, v11')
        a('v_xor_b32 v11, v11, v1')
        a('v_and_b32 v11, 7, v11')
        a('v_mul_u32_u24 v10, %d, v10' % rowexpr_pitch)
        a('v_lshl_add_u32 v2, v11, 4, v10')
    def tr_addr():
        a('v_bfe_u32 v10, v1, 2, 2')
        a('v_mul_u32_u24 v10, 160, v10')
        a('v_and_b32 v11, 3, v1')
        a('v_lshl_add_u32 v10, v11, 3, v10')
        a('v_lshrrev_b32 v11, 4, v1')
        a('v_lshl_add_u32 v10, v11, 10, v10')
        a('v_lshl_add_u32 v32, s5, 12, v10')
        for t in range(1, 4): a('v_xor_b32 v%d, %d, v32' % (32 + t, 32 * t))
    def tr_read():
        for t in range(4):
            for u in range(2):
                a('ds_read_b64_tr_b16 %s, v%d offset:%d' % (vr(vB + 4 * t + 2 * u, 2), 32 + t, L_T + 512 * u))
    def line_voff():
        a('v_bfe_u32 v10, v1, 3, 2')
        a('v_mul_u32_u24 v10, %d, v10' % HS)
        a('v_lshrrev_b32 v11, 5, v1')
        a('v_lshl_add_u32 v10, v11, 14, v10')
        a('v_and_b32 v11, 0x70, v8')
        a('v_add_u32 v9, v10, v11')
        a('v_lshrrev_b32 v10, 4, v1')
        a('v_lshl_add_u32 v12, v10, 1, v11')
    def line_soff(sl):
        a('s_lshl_b32 s44, s%d, 7' % sl)
        a('s_add_u32 s44, s44, 0x%x' % WS_H1)
        a('s_lshr_b32 s46, s%d, 1' % sl)
        a('s_lshl_b32 s46, s46, 7')
        a('s_and_b32 s7, s%d, 1' % sl)
        a('s_lshl3_add_u32 s46, s7, s46')
    def softmax_head(r):
        mx, t1, ls = r + 4, r + 5, r + 6
        a('v_max3_f32 v%d, v%d, v%d, v%d' % (mx, r, r + 1, r + 2))
        a('v_max_f32 v%d, v%d, v%d' % (mx, mx, r + 3))
        allred32('v_max_f32', mx, t1)
        a('v_mul_f32 v%d, s53, v%d' % (mx, mx))
        for k in range(4): a('v_fma_f32 v%d, v%d, s53, -v%d' % (r + k, r + k, mx))
        for k in range(4): a('v_exp_f32 v%d, v%d' % (r + k, r + k))
        a('v_add_f32 v%d, v%d, v%d' % (ls, r, r + 1))
        a('v_add_f32 v%d, v%d, v%d' % (t1, r + 2, r + 3))
        a('v_add_f32 v%d, v%d, v%d' % (ls, ls, t1))
        allred32('v_add_f32', ls, t1)
    def allred32(op, r, t1):
        for ctl in (QP1, QP2, 'row_half_mirror', 'row_mirror'): dpp(op, r, r, r, ctl)
        a('v_mov_b32 v%d, v%d' % (t1, r))
        a('v_permlane16_swap_b32 v%d, v%d' % (r, t1))
        a('%s v%d, v%d, v%d' % (op, r, r, t1))

    vM = 4
    vKO = 2
    vK, vV, vQ, vW = 16, 80, 144, 176
    vA = 192
    vP = 16
    vT = 48
    vC0, vC1 = 64, 68
    G0, G1, G2, G3 = 16, 20, 24, 28
    vB, vAX, vD = 80, 96, 100
    sPK, sUP = 48, 51
    SC = f32(math.log2(math.e) / 16)

    def wo_setup():
        a('s_load_dwordx2 s[16:17], s[0:1], 32')
        srd(16, 448 * 8192)
        a('v_bfe_u32 v10, v1, 3, 2')
        a('v_lshrrev_b32 v11, 5, v1')
        a('v_lshl_add_u32 v10, v10, 1, v11')
        dma_voff(4 * 896)
        a('s_cmp_ge_u32 s4, 7')
        a('s_cselect_b32 s54, 1, 0')
        a('s_lshl1_add_u32 s7, s3, s54')
        a('s_lshl_b32 s7, s7, 8')
        a('s_add_u32 s7, s7, s55')
        a('s_sub_u32 s7, s7, s54')
        a('s_mul_i32 s7, s7, 7')
        a('s_add_u32 s7, s7, s4')
        a('s_lshl_b32 s10, s7, 7')
        a('s_lshl_b32 s7, s55, 10')
        a('s_add_u32 m0, s7, %d' % L_T)
        a('s_movk_i32 s11, %d' % (32 * 896))
    def wo_issue():
        for i in range(8):
            a('buffer_load_dwordx4 v2, s[16:19], s10 offen nt lds')
            if i < 7:
                a('s_add_u32 m0, m0, 0x1000')
                a('s_add_u32 s10, s10, s11')
    def wo_issue_if():
        nlab[0] += 1
        a('s_cmp_ge_u32 s4, 14')
        a('s_cbranch_scc1 L_nowo%d' % nlab[0])
        wo_issue()
        a.label('L_nowo%d' % nlab[0])
    def kv_addr():
        a('v_and_b32 v10, 7, v1')
        a('v_lshrrev_b32 v11, 3, v1')
        a('v_lshlrev_b32 v10, 4, v10')
        a('v_lshl_add_u32 v%d, v11, 9, v10' % vKO)
        a('s_lshl_b32 s7, s3, 7')
        a('s_add_u32 s7, s7, s4')
        a('s_add_u32 s7, s7, 96')
        a('s_lshl_b32 s44, s7, 4')
        if c['rs'] == 1 and not c['rg']:
            a('s_and_b32 s7, s4, 15')
        else:
            a('s_mul_i32 s7, s4, %d' % c['rs'])
            a('s_mul_i32 s62, s3, %d' % c['rg'])
            a('s_add_u32 s7, s7, s62')
            a('s_and_b32 s7, s7, 15')
        a('s_or_b32 s44, s44, s7')
    def h0_gather():
        a('s_cmp_ge_u32 s4, 7')
        a('s_cselect_b32 s54, 1, 0')
        a('s_lshl1_add_u32 s7, s3, s54')
        a('s_lshl3_add_u32 s56, s7, s5')
        a('s_mul_i32 s56, s56, %d' % BLK)
        a('s_add_u32 s56, s56, 0x%x' % WS_H0)

    def probe_addr():
        a('s_lshr_b32 s44, s2, 5')
        a('s_lshl_b32 s44, s44, 3')
        a('s_and_b32 s7, s55, 2')
        a('s_lshl1_add_u32 s44, s7, s44')
        a('s_and_b32 s7, s55, 1')
        a('s_add_u32 s44, s44, s7')
        a('s_lshl_b32 s44, s44, 5')
        a('s_and_b32 s7, s2, 31')
        a('s_add_u32 s44, s44, s7')
        a('s_lshl_b32 s44, s44, 7')
        a('s_add_u32 s44, s44, 0x%x' % WS_R)
    def probe(n):
        if not (n and c['near']): return
        probe_addr()
        a('s_xor_b32 s45, s44, 0x2000')
        t = [8, 10, 16, 18][:2 * n] + [62]
        for i in range(2 * n):
            a('s_memtime s[%d:%d]' % (t[i], t[i] + 1))
            if c['tw']: a('s_waitcnt lgkmcnt(0)')
            a('s_buffer_load_dword s7, s[20:23], s%d glc' % (44 + (i & 1)))
            a('s_waitcnt lgkmcnt(0)')
        a('s_memtime s[62:63]')
        a('v_lshlrev_b32 v10, 2, v1')
        a('s_waitcnt lgkmcnt(0)')
        for i in range(2 * n): a('s_sub_u32 s%d, s%d, s%d' % (t[i], t[i], t[i + 1]))
        if n == 2:
            a('s_max_u32 s8, s8, s16')
            a('s_max_u32 s10, s10, s18')
        a('v_mov_b32 v11, s8')
        a('v_writelane_b32 v11, s10, 1')
        a('s_mov_b64 exec, 3')
        a('ds_max_u32 v10, v11 offset:%d' % (L_GATE + 16 * 9))
        a('s_mov_b64 exec, -1')
    def side_read():
        if c['near']:
            a('v_mov_b32 v219, 0')
            a('ds_read_b64 v[218:219], v219 offset:%d' % (L_GATE + 16 * 9))
    def side_add():
        if c['near']:
            a('s_waitcnt lgkmcnt(0)')
            a('v_cmp_%s_u32 vcc, v218, v219' % ('lt' if c['near'] > 0 else 'gt'))
            a('s_and_b32 s7, vcc_lo, 0x2000')
            if diag: a('s_add_u32 s47, s7, 0x100')
            a('s_add_u32 s44, s44, s7')
        a('s_add_u32 s45, s44, 0x8000')
    def xpub(part):
        if part & 1:
            a('s_lshl_b32 s7, s3, 5')
            a('s_add_u32 s7, s7, s4')
            a('s_lshl_b32 s7, s7, 7')
            a('s_add_u32 s47, s7, 0x%x' % WS_X)
            a('s_getreg_b32 s7, hwreg(HW_REG_XCC_ID, 0, 4)')
            a('v_mov_b32 v222, s7')
            a('v_mov_b32 v223, s6')
        if part & 2:
            nlab[0] += 1
            a('s_cmp_eq_u32 s5, 6')
            a('s_cbranch_scc0 L_xp%d' % nlab[0])
            a('s_mov_b64 exec, 1')
            a('buffer_store_dwordx2 v[222:223], off, s[20:23], s47')
            a('s_mov_b64 exec, -1')
            a.label('L_xp%d' % nlab[0])

    if diag:
        for k in range(1, 15): a('s_mov_b32 s%d, 0' % (64 + 2 * k))
    stamp(0)
    a('s_load_dwordx2 s[8:9], s[0:1], 8')
    a('s_load_dwordx2 s[36:37], s[0:1], 0')
    a('s_load_dwordx2 s[16:17], s[0:1], 24')
    a('s_load_dwordx2 s[12:13], s[0:1], 16')
    a('s_load_dwordx2 s[20:21], s[0:1], 88')
    a('s_cmp_ge_u32 s2, 256')
    a('s_cbranch_scc1 L_end')
    a('v_lshrrev_b32 v3, 6, v0')
    a('v_and_b32 v1, 63, v0')
    a('s_and_b32 s3, s2, 7')
    a('v_readfirstlane_b32 s5, v3')
    a('s_lshr_b32 s4, s2, 3')
    a('s_and_b32 s55, s5, 3')
    if c['off0']:
        a('s_cmp_ge_u32 s4, 14')
        a('s_cselect_b32 s31, 1, 0')
        a('s_cmp_ge_u32 s4, 16')
        a('s_cselect_b32 s31, s3, s31')
    else:
        a('s_lshr_b32 s31, s4, 4')
    if c['swap']:
        a('s_cmp_lg_u32 s31, 0')
        a('s_cselect_b32 s7, 4, 0')
        a('s_xor_b32 s5, s5, s7')
    a('s_cmp_ge_u32 s5, 4')
    a('s_cbranch_scc1 L_v0')

    if c['pf']:
        a('s_getpc_b64 s[46:47]')
        a.label('L_pc')
        a('s_lshl2_add_u32 s7, s4, s55')
        a('s_lshl_b32 s7, s7, 7')
        a('s_addk_i32 s7, 0x300')
        a('s_min_u32 s7, s7, L_end-L_pc')
        a('s_add_u32 s46, s46, s7')
        a('s_addc_u32 s47, s47, 0')
        a('v_mov_b32 v10, s46')
        a('v_mov_b32 v11, s47')
        a('global_load_dword v216, v[10:11], off')
    kv_addr()
    srd(8, 1 << 26)
    a('s_xor_b32 s45, s44, s55')
    a('s_lshl_b32 s45, s45, 12')
    a('v_and_b32 v10, 0xfc, v0')
    a('v_mov_b32 v11, 0')
    a('ds_write_b32 v10, v11 offset:%d' % L_GATE)
    a('s_cmp_lg_u32 s31, 0')
    a('s_waitcnt lgkmcnt(0)')
    a('s_load_dword s6, s[20:21], 0')
    if c['b1']:
        a('s_cbranch_scc0 L_k1')
        a('s_barrier')
        a.label('L_k1')
    stamp(1)
    GQ = c['gq']
    assert D <= GQ <= 16 and D <= c['ga'] <= 16
    class Stream:
        def __init__(self): self.seq, self.done = [], 0
        def left(self, n): return len(self.seq) - self.seq.index(n) - 1
        def wait(self, n):
            if self.seq.index(n) >= self.done:
                a('s_waitcnt vmcnt(%d)' % self.left(n))
                self.done = self.seq.index(n) + 1
        def throttle(self, n, d):
            if DX and n >= d and self.seq.index(n - d) >= self.done:
                nlab[0] += 1
                a('s_cmp_lg_u32 s30, 0')
                a('s_cbranch_scc1 L_thr%d' % nlab[0])
                a('s_waitcnt vmcnt(%d)' % self.left(n - d))
                a.label('L_thr%d' % nlab[0])
            if n >= d + DX: self.wait(n - d - DX)
    ks = Stream()
    def kload(idx):
        i, t = idx >> 2, idx & 3
        if t == 0 and i > 0: a('s_xor_b32 s45, s45, 0x%x' % ((i ^ (i - 1)) << 14))
        ks.throttle(idx, D)
        a('buffer_load_dwordx4 %s, v%d, s[8:11], s45 offen offset:%d nt' % (vr(vK + 4 * idx), vKO, 128 * t))
        ks.seq.append(idx)
    for idx in range(D): kload(idx)
    if c['b1']:
        a('s_cmp_lg_u32 s31, 0')
        a('s_cbranch_scc1 L_kb')
    a('s_barrier')
    a('s_branch L_kb')
    a.section('k')
    a.label('L_kb')
    common()
    for k in range(8): a('v_mov_b32 v%d, 0' % (vA + 8 + k))
    a('v_bfe_u32 v10, v1, 2, 1')
    a('v_lshlrev_b32 v10, 9, v10')
    a('v_lshrrev_b32 v12, 4, v1')
    a('v_lshl_add_u32 v10, v12, 7, v10')
    a('v_and_b32 v11, 3, v1')
    a('v_lshlrev_b32 v217, 2, v11')
    a('v_lshl_add_u32 v10, v11, 5, v10')
    a('v_bfe_u32 v11, v1, 3, 1')
    a('v_lshl_add_u32 v10, v11, 2, v10')
    a('v_lshl_add_u32 v13, s55, 3, v10')
    a('v_and_b32 v10, 31, v1')
    a('v_lshlrev_b32 v218, 7, v10')
    a('v_lshlrev_b32_e64 v221, 2, s55')
    a('v_mov_b32 v220, 1')
    a('v_and_b32 v9, 0x70, v8')
    a('v_and_b32 v12, 0xff, v0')
    a('v_lshlrev_b32 v12, 2, v12')
    a('s_lshl_b32 s46, s3, 12')
    a('s_add_u32 s46, s46, 0x%x' % WS_X)
    a('s_lshl_b32 s7, s5, 10')
    a('s_add_u32 s47, s46, s7')
    if c['near']:
        a('s_cmp_lg_u32 s31, 0')
        a('s_cbranch_scc0 L_k0')
        probe_addr()
        a('s_buffer_load_dword s62, s[20:23], s44 glc')
        a('s_xor_b32 s44, s44, 0x2000')
        a('s_buffer_load_dword s63, s[20:23], s44 glc')
        a.label('L_k0')
    a('s_getreg_b32 s44, hwreg(HW_REG_XCC_ID, 0, 4)')
    a('s_lshl2_add_u32 s7, s3, s5')
    a('s_lshl_b32 s7, s7, 11')
    a('s_add_u32 s56, s7, 0x%x' % WS_Q)
    a('s_add_u32 s57, s7, 0x%x' % WS_QB)
    if c['off0']:
        a('s_cmp_eq_u32 s3, 0')
        a('s_cselect_b32 s56, s57, s56')
    a('s_mov_b32 s58, 0xaaaaaaaa'); a('s_mov_b32 s59, 0xaaaaaaaa')
    a('s_mov_b32 s60, 0xcccccccc'); a('s_mov_b32 s61, 0xcccccccc')
    a('s_mov_b32 s53, %s' % SC)
    if c['ga'] == D: gate_open(0)
    def krange(lo, hi):
        for idx in range(lo, hi):
            if c['qh'] and idx == c['qh']:
                a('s_cmp_lg_u32 s31, 0')
                a('s_cbranch_scc0 L_k2')
                gate_wait(8, 217)
                a.label('L_k2')
            kload(idx)
            if c['ga'] == idx + 1: gate_open(0)
    krange(D, GQ)
    def krest():
        ks.seq += ['q0', 'q1']
        krange(GQ, 16)
        stamp(2)
        a('s_waitcnt lgkmcnt(0)')
        mktag()
        if c['wo_at']: wo_setup()
        ks.wait('q1')
        gate_open(1)
    poll('L_pq', ['buffer_load_dwordx4 %s, v8, s[20:23], s56 offen offset:%d sc1' % (vr(vA + 4 * k), 1024 * k) for k in range(2)],
         [vA + 3, vA + 7], between=krest, wait=None, alt=(c['qdual'], 56, 57))
    stamp(3)
    pkadd(vA, vA, vA + 4)
    a('v_cvt_pk_bf16_f32 v%d, v%d, v%d' % (vA, vA, vA + 1))
    a('ds_write_b32 v12, v%d offset:%d' % (vA, L_QL))
    gate_open(2)
    a('s_mov_b64 exec, 0xff')
    a('buffer_load_dwordx2 v[222:223], v218, s[20:23], s47 offen sc1')
    a('s_mov_b64 exec, -1')
    ks.seq.append('x')
    gate_wait(2, 217)
    for h in range(2):
        for t in range(4):
            a('ds_read_b128 %s, v9 offset:%d' % (vr(vQ + 16 * h + 4 * t), L_QL + 512 * h + 128 * t))
    if c['wo_at'] == 2: wo_issue_if()
    a('s_waitcnt lgkmcnt(0)')
    stamp(4)
    acc = lambda i, h: vA + 8 + 4 * h + i
    for i in range(4):
        assert c['wo_at'] != 2 or GQ == 16
        ks.wait(4 * i + 3)
        for t in range(4):
            for d in range(4):
                for h in range(2):
                    a('v_dot2c_f32_bf16 v%d, v%d, v%d' % (acc(i, h), vK + 16 * i + 4 * t + d, vQ + 16 * h + 4 * t + d))
    X = acc(0, 0)
    for i in range(4): dpp('v_add_f32', X + i, X + i, X + i, 'row_half_mirror', 'row_mask:0xf bank_mask:0x5')
    for i in range(4): dpp('v_add_f32', X + i, X + 4 + i, X + 4 + i, 'row_half_mirror', 'row_mask:0xf bank_mask:0xa')
    for i in range(4): dpp('v_add_f32', X + i, X + i, X + i, QP1)
    a('v_cndmask_b32_e64 v%d, v%d, v%d, s[58:59]' % (X, X, X + 1))
    a('v_cndmask_b32_e64 v%d, v%d, v%d, s[58:59]' % (X + 2, X + 2, X + 3))
    dpp('v_add_f32', X, X, X, QP2)
    dpp('v_add_f32', X + 2, X + 2, X + 2, QP2)
    a('v_cndmask_b32_e64 v%d, v%d, v%d, s[60:61]' % (X, X, X + 2))
    rnd(X, X)
    a('ds_write_b32 v13, v%d offset:%d' % (X, L_S))
    gate_open(3)
    stamp(5)
    h0_gather()
    def xflag(left):
        a('s_waitcnt vmcnt(%d)' % left)
        a('v_cmp_ne_u32 vcc, s6, v223')
        a('v_cmp_ne_u32_e64 s[96:97], s44, v222')
        a('s_or_b32 s7, vcc_lo, s96')
        a('s_and_b32 s7, s7, 0xff')
        a('s_cselect_b32 s7, 2, %d' % (2 if c['force_sc1'] else 1))
        a('v_mov_b32 v219, s7')
        a('ds_write_b32 v221, v219 offset:%d' % (L_GATE + 16 * 7))
    a('s_cmp_eq_u32 s5, 3')
    a('s_cbranch_scc1 L_k3')
    xflag(0)
    a('s_cmp_ge_u32 s4, 14')
    a('s_cbranch_scc1 L_aux6')
    if c['wo_at'] == 4: gate_wait(4, 221)
    if c['wo_at'] >= 3: wo_issue()
    a('s_waitcnt vmcnt(0)')
    a('s_branch L_wt')

    a.label('L_k3')
    a('s_lshl3_add_u32 s45, s54, s46')
    a('s_add_u32 s57, s45, 0x%x' % (WS_XB - WS_X))
    a('v_lshrrev_b32 v10, 5, v1')
    a('v_lshl_add_u32 v14, v10, 4, v8')
    a('v_lshlrev_b32 v10, 3, v10')
    a('s_lshl_b32 s7, s4, 7')
    a('s_add_u32 s46, s46, s7')
    a('v_mov_b32 v13, s6')
    gate_wait(3, 217)
    a('ds_read_b128 %s, v8 offset:%d' % (vr(vA), L_S))
    a('s_waitcnt lgkmcnt(0)')
    softmax_head(vA)
    a('v_rcp_f32 v%d, v%d' % (vA + 5, vA + 6))
    a('v_log_f32 v12, v%d' % (vA + 6))
    for k in range(4): a('v_mul_f32 v%d, v%d, v%d' % (vA + k, vA + k, vA + 5))
    for k in range(4): a('v_cvt_pk_bf16_f32 v%d, v%d, v%d' % (vA + k, vA + k, vA + k))
    a('ds_write_b128 v14, %s offset:%d' % (vr(vA), L_P))
    a('ds_write_b32 v221, v220 offset:%d' % (L_GATE + 16 * 5 - 12))
    a('v_add_f32 v12, v12, v%d' % (vA + 4))
    def lse_store(sc):
        a('s_mov_b32 exec_lo, 1'); a('s_mov_b32 exec_hi, 1')
        a('buffer_store_dwordx2 v[12:13], v10, s[20:23], s46 offen offset:16' + sc)
        a('s_mov_b64 exec, -1')
    lse_store('')
    xflag(1)
    a('s_add_u32 s46, s46, 0x%x' % (WS_XB - WS_X))
    a('s_cmp_ge_u32 s4, 14')
    stamp(6)
    a('s_cbranch_scc0 L_k4')
    lse_store(' sc1')
    a('s_branch L_aux6')
    a.label('L_k4')
    gate_wait(4, 221)
    late = c['wo_at'] >= 3
    def lrest():
        if late: wo_issue()
        lse_store(' sc1')
    poll('L_pl', ['buffer_load_dwordx2 v[14:15], v218, s[20:23], s45 offen offset:16 sc1'], [15],
         between=lrest, wait='vmcnt(%d)' % (9 if late else 1), alt=(c['ldual'], 45, 57))
    stamp(7)
    a('v_mov_b32 v16, v14')
    allred32('v_max_f32', 16, 17)
    a('v_sub_f32 v14, v14, v16')
    a('v_exp_f32 v14, v14')
    a('v_and_b32 v10, 0x70, v8')
    a('v_mov_b32 v16, v14')
    allred32('v_add_f32', 16, 17)
    a('v_rcp_f32 v16, v16')
    a('v_bfe_u32 v11, v1, 3, 2')
    a('v_lshl_add_u32 v10, v11, 2, v10')
    a('v_mul_f32 v14, v14, v16')
    a('ds_write_b32 v10, v14 offset:%d' % L_WT)
    a('s_waitcnt vmcnt(1) lgkmcnt(0)')
    a('s_branch L_wt')
    a.label('L_aux6')
    a('s_waitcnt lgkmcnt(0)')
    a('s_sub_u32 s3, s3, 1')
    leave_if('scc1')
    if c['pk'] and c['near']:
        if not c['pk3']:
            a('s_cmp_eq_u32 s5, 3')
            a('s_cbranch_scc1 L_aux7')
        probe(c['pk'])
        a('s_waitcnt lgkmcnt(0)')
        stamp(7)
        a.label('L_aux7')
    a('s_cmp_ge_u32 s4, 16')
    a('s_cbranch_scc0 L_fin')
    a('s_sub_u32 s54, s4, 16')
    a('s_lshl4_add_u32 s54, s3, s54')
    a('v_lshrrev_b32 v10, 3, v1')
    dma_voff(8 * 3584)
    a('s_bitcmp1_b32 s4, 0')
    a('s_cselect_b64 s[24:25], s[28:29], s[24:25]')
    a('s_mul_i32 s44, s5, 3584')
    a('s_lshr_b32 s7, s54, 2')
    a('s_lshl_b32 s7, s7, 7')
    a('s_add_u32 s44, s44, s7')
    a('s_bitcmp1_b32 s4, 1')
    for i in range(7):
        r0, r1 = [64 * (x >> 1) + 4 * (x & 1) for x in (i, 7 + i)]
        a('s_mov_b32 s7, %d' % (r0 * 3584))
        a('s_cselect_b32 s%d, %d, s7' % (8 + i, r1 * 3584))
    for i in range(7): a('s_add_u32 s%d, s%d, s44' % (8 + i, 8 + i))
    a('s_lshl_b32 s7, s5, 10')
    a('s_add_u32 m0, s7, %d' % L_T)
    a('v_lshrrev_b32 v12, 4, v1')
    a('v_mul_u32_u24 v10, 896, v12')
    a('v_and_b32 v11, 15, v1')
    a('v_lshl_add_u32 v11, s5, 4, v11')
    a('v_lshl_add_u32 v3, v11, 4, v10')
    a('v_cmp_gt_u32 vcc, 56, v11')
    a('v_cndmask_b32 v3, 2.0, v3, vcc')
    a('s_mul_i32 s16, s54, %d' % (16 * 896))
    a('s_add_u32 s17, s16, 7168')
    a('v_bfe_u32 v10, v1, 2, 2')
    a('v_lshl_add_u32 v10, v10, 2, v12')
    a('v_and_b32 v11, 0x30, v8')
    a('v_lshl_add_u32 v40, v10, 6, v11')
    a('s_mul_i32 s56, s54, %d' % GXS)
    a('s_add_u32 s56, s56, 0x%x' % WS_GX)
    a('v_and_b32 v10, 0x70, v8')
    a('v_bfe_u32 v11, v1, 3, 1')
    a('v_lshl_add_u32 v10, v11, 8, v10')
    a('v_bfe_u32 v11, v1, 4, 1')
    a('v_lshl_add_u32 v10, v11, 7, v10')
    a('v_lshrrev_b32 v11, 5, v1')
    a('v_lshl_add_u32 v41, v11, 13, v10')
    a('s_and_b32 s57, s54, 3')
    a('s_mul_i32 s57, s57, %d' % (HS - 4096))
    a('s_lshl3_add_u32 s7, s54, s5')
    a('s_lshl_b32 s7, s7, 9')
    a('s_add_u32 s57, s57, s7')
    a('s_add_u32 s57, s57, 0x%x' % WS_H2)
    a('s_cmp_eq_u32 s5, 3')
    a('s_cselect_b32 s58, 0x00ff00ff, -1')
    a('s_mov_b32 s59, %s' % ('s58' if c['near'] else '0'))
    k0 = 2 * math.sqrt(2 / math.pi) * math.log2(math.e)
    a('v_mov_b32 v42, %s' % f32(-k0))
    a('v_mov_b32 v43, %s' % f32(1.0 / 448))
    a('s_mov_b32 s18, %s' % f32(1.0 / 448))
    a('s_mov_b32 s19, %s' % f32(-k0 * 0.044715))
    a('v_mov_b32 v75, s6')
    a('s_branch L_ft')
    flush_retry()

    a.section('v')
    if c['wo_at'] == 0:
        a.label('L_v1')
        a('s_cmp_ge_u32 s4, 14')
        a('s_cbranch_scc1 L_v')
        wo_setup()
        a('s_waitcnt lgkmcnt(0)')
        wo_issue()
    a.label('L_v')
    common()
    a('s_waitcnt lgkmcnt(0)')
    mktag()
    xpub(3)
    a.label('L_v3')
    if c['touch']:
        a('s_cmp_ge_u32 s4, 16')
        a('s_cbranch_scc1 L_v4')
        a('s_lshl4_add_u32 s7, s3, s4')
        a('s_mul_i32 s44, s7, %d' % BLK)
        a('s_mul_i32 s45, s7, %d' % GXS)
        a('s_lshl_b32 s7, s55, 10')
        a('s_add_u32 s44, s44, s7')
        a('s_add_u32 s44, s44, 0x%x' % WS_H0)
        a('s_add_u32 s45, s45, 0x%x' % (WS_GX - 16 * GXS))
        a('buffer_load_dwordx4 v[16:19], v8, s[20:23], s44 offen')
        a('s_cmp_eq_u32 s5, 4')
        a('s_cbranch_scc0 L_v4')
        a('buffer_load_dwordx4 v[16:19], v8, s[20:23], s45 offen')
        a.label('L_v4')
    kv_addr()
    srd(12, 1 << 26)
    a('s_lshl_b32 s44, s44, 12')
    a('s_lshl_b32 s7, s55, 7')
    a('s_add_u32 s44, s44, s7')
    a('v_lshlrev_b32_e64 v221, 2, s55')
    a('v_mov_b32 v220, 1')
    a('v_and_b32 v10, 3, v1')
    a('v_lshlrev_b32 v217, 2, v10')
    a('v_bfe_u32 v11, v1, 3, 1')
    a('v_lshrrev_b32 v12, 4, v1')
    a('v_mul_u32_u24 v15, 528, v11')
    a('v_lshl_add_u32 v15, v12, 7, v15')
    a('v_lshrrev_b32 v10, 5, v1')
    a('v_bfe_u32 v11, v1, 2, 1')
    a('v_lshl_add_u32 v10, v10, 3, v11')
    a('v_mul_u32_u24 v10, %d, v10' % BLK)
    a('v_and_b32 v11, 3, v1')
    a('v_lshl_add_u32 v10, v11, 4, v10')
    a('v_bfe_u32 v11, v1, 4, 1')
    a('v_lshl_add_u32 v9, v11, 6, v10')
    a('s_lshl3_add_u32 s7, s3, s55')
    a('s_mul_i32 s57, s7, %d' % (2 * BLK))
    a('s_lshl_b32 s7, s4, 7')
    a('s_add_u32 s57, s57, s7')
    a('s_add_u32 s57, s57, 0x%x' % WS_H0)
    h0_gather()
    for k in range(8): a('v_mov_b32 v%d, 0' % (vC0 + k))
    a('v_mov_b32 v75, s6')
    NB = c['nb']
    GV = 217 if c['gall'] else 221
    gate_wait(0, GV)
    stamp(2)
    vs = Stream()
    def vload(n):
        if n > 0: a('s_xor_b32 s44, s44, 0x%x' % ((n ^ (n - 1)) << 12))
        a('buffer_load_dwordx4 %s, v%d, s[12:15], s44 offen nt' % (vr(vV + 4 * n), vKO))
        vs.seq.append(n)
        if n == 15:
            stamp(3)
            gate_open(4)
    for n in range(NB):
        if n == c['na']: gate_wait(1, GV)
        vs.throttle(n, DV)
        vload(n)
    stamp(4)
    gate_wait(5, 219)
    for z in range(8): a('ds_read_b128 %s, v15 offset:%d' % (vr(vP + 4 * z), L_P + 16 * z))
    a('s_waitcnt lgkmcnt(0)')
    stamp(6)
    nxt = NB
    if c['prio']: a('s_setprio %d' % c['prio'])
    def pand(k):
        for r in range(4): a('v_and_b32 v%d, v%d, v%d' % (vT + 4 * (k & 3) + r, vP + k, vM + r))
    pand(0); pand(1)
    for k in range(32):
        n = k >> 1
        if k == 26: a('ds_read_b32 v219, v217 offset:%d' % (L_GATE + 16 * 7))
        if k == 30:
            a('s_waitcnt lgkmcnt(0)')
            a.label('L_xf_chk')
            a('v_cmp_eq_u32 vcc, 0, v219')
            a('s_cbranch_vccnz L_xf_retry')
            a('v_cmp_ne_u32 vcc, 1, v219')
            a('s_cmp_eq_u64 vcc, 0')
            a('s_cselect_b32 s47, -1, 0')
            a('s_and_b32 s58, s47, 0x00ff00ff'); a('s_mov_b32 s59, s58')
            a('s_andn2_b32 s60, 0x00ff00ff, s47'); a('s_mov_b32 s61, s60')
        if k & 1 == 0:
            vs.wait(n)
            while nxt < 16 and nxt - 1 - n < c['pvd']:
                vload(nxt); nxt += 1
        mfma(vC1 if k & 1 else vC0, vT + 4 * (k & 3), vV + 4 * n, 1)
        if k < 30: pand(k + 2)
    stamp(7)
    for r in (3, 0, 1, 2): dpp('v_add_f32', vC0 + r, vC1 + r, vC0 + r, 'row_ror:8')
    pack24(72, vC0)
    store2(72, 9, 57)
    a('s_cmp_ge_u32 s4, 14')
    a('s_cbranch_scc1 L_ft0')

    a.label('L_wt')
    a('s_barrier')
    stamp(8)
    WT = 36
    def wsetup():
        a('v_lshrrev_b32 v10, 3, v1')
        a('v_lshlrev_b32 v10, 4, v10')
        a('ds_read_b128 %s, v10 offset:%d' % (vr(WT), L_WT))
        tr_addr()
        tr_read()
        a('v_mul_u32_u24 v13, 144, v11')
        a('v_lshl_add_u32 v13, s5, 4, v13')
        a('v_lshrrev_b32 v10, 2, v1')
        a('v_mul_u32_u24 v14, 144, v10')
        a('v_and_b32 v11, 3, v1')
        a('v_lshl_add_u32 v14, v11, 5, v14')
        a('v_and_b32 v11, 1, v10')
        a('v_lshrrev_b32 v10, 1, v10')
        a('v_lshlrev_b32 v10, 4, v10')
        a('v_lshl_add_u32 v12, v11, 7, v10')
        a('v_and_b32 v11, 1, v1')
        a('v_lshl_add_u32 v12, v11, 13, v12')
        a('s_lshl1_add_u32 s7, s3, s54')
        a('s_and_b32 s44, s7, 3')
        a('s_mul_i32 s44, s44, %d' % (HS - 4096))
        a('s_lshl_b32 s7, s7, 12')
        a('s_add_u32 s44, s44, s7')
        a('s_mul_i32 s45, s54, 7')
        a('s_sub_u32 s45, s4, s45')
        a('s_lshl_b32 s45, s45, 8')
        a('s_add_u32 s44, s44, s45')
        a('s_add_u32 s44, s44, 0x%x' % WS_H1)
        a('s_mov_b32 s58, 0x00010001'); a('s_mov_b32 s59, 0x00010001')
        a('s_mov_b32 s60, 0x%x' % (0x33333333 if c['near'] else 0x11111111)); a('s_mov_b32 s61, s60')
        a('v_mov_b32 v75, s6')
    poll('L_p0', ['buffer_load_dwordx4 %s, v8, s[20:23], s56 offen offset:%d sc1' % (vr(G0 + 4 * k), 1024 * k) for k in range(4)],
         [G0 + 3, G1 + 3, G2 + 3, G3 + 3], between=wsetup, wait='vmcnt(0) lgkmcnt(0)')
    stamp(9)
    unpackn([G0, G1, G2, G3])
    for k in range(4):
        w, hi = WT + (k & 2), k & 1
        for p in (0, 2):
            if k == 0:
                a('v_pk_mul_f32 %s, %s, %s op_sel:[0,0] op_sel_hi:[1,0]' % (vr(G0 + p, 2), vr(G0 + p, 2), vr(w, 2)))
            else:
                a('v_pk_fma_f32 %s, %s, %s, %s op_sel:[0,%d,0] op_sel_hi:[1,%d,1]' % (vr(G0 + p, 2), vr(G0 + 4 * k + p, 2), vr(w, 2), vr(G0 + p, 2), hi, hi))
    scatter4(G0)
    vec32(vAX, G0, 0xf)
    for t in range(4): mfma(vD + 4 * t, vB + 4 * t, vAX, 0)
    a('s_mov_b64 exec, s[58:59]')
    for t in range(4): a('ds_write_b128 v13, %s offset:%d' % (vr(vD + 4 * t), L_RED + 576 * t))
    a('s_mov_b64 exec, -1')
    a('s_cmp_eq_u32 s5, 0')
    a('s_waitcnt lgkmcnt(0)')
    stamp(10)
    a('s_barrier')
    leave_if('scc0')
    a('ds_read_b128 %s, v14 offset:%d' % (vr(G0), L_RED))
    a('ds_read_b128 %s, v14 offset:%d' % (vr(G1), L_RED + 16))
    a('s_waitcnt lgkmcnt(0)')
    pkadd(G0, G0, G1); pkadd(G0 + 2, G0 + 2, G1 + 2)
    for ctl in (QP1, QP2):
        for k in range(4): dpp('v_add_f32', G0 + k, G0 + k, G0 + k, ctl)
    a('s_mov_b64 exec, s[60:61]')
    pack24(72, G0)
    a('buffer_store_dwordx4 v[72:75], v12, s[20:23], s44 offen sc1')
    stamp(12)
    if c['wb'] >= 2:
        a('s_cmp_eq_u32 s4, 0')
        leave_if('scc0')
        if c['wb'] == 2: a('s_waitcnt vmcnt(0)')
        a('buffer_wbl2 sc1')
    leave()
    flush_retry()

    a.label('L_xf_retry')
    a('ds_read_b32 v219, v217 offset:%d' % (L_GATE + 16 * 7))
    a('s_waitcnt lgkmcnt(0)')
    a('s_branch L_xf_chk')

    a.label('L_ft0')
    a('s_sub_u32 s3, s3, 1')
    if c['wb'] == 1:
        a('s_cbranch_scc0 L_ft1')
        a('s_lshl3_add_u32 s7, s2, s5')
        a('s_cmp_eq_u32 s7, %d' % (8 * 8 * 14 + 7))
        leave_if('scc0')
        a('s_mov_b32 s3, 0')
        a.label('L_ft1')
    else:
        leave_if('scc1')
    a('s_cmp_ge_u32 s4, 16')
    a('s_cbranch_scc1 L_fkv')
    a.label('L_fin')
    a('s_barrier')
    side_read()
    a('s_sub_u32 s54, s4, 14')
    a('s_lshl1_add_u32 s54, s3, s54')
    line_voff()
    a('v_and_b32 v13, 7, v1')
    a('v_lshl_add_u32 v14, v10, 3, v13')
    a('v_mul_u32_u24 v14, 48, v14')
    a('v_lshl_add_u32 v10, s5, 2, v14')
    a('s_cmp_eq_u32 s5, 7')
    a('s_cbranch_scc1 L_fin7')
    a('s_lshl_b32 s44, s54, 7')
    a('s_lshl_b32 s7, s5, 16')
    a('s_add_u32 s44, s44, s7')
    a('s_add_u32 s44, s44, 0x%x' % WS_H2)
    side_add()
    two = ['buffer_load_dwordx4 %s, v9, s[20:23], s44 offen sc1' % vr(G0),
           'buffer_load_dwordx4 %s, v9, s[20:23], s45 offen sc1' % vr(G1)]
    poll('L_p2', two, [G0 + 3, G1 + 3])
    stamp(13)
    sum2scatter()
    a('ds_write_b32 v10, v%d offset:%d' % (G0, L_RED))
    a('s_waitcnt lgkmcnt(0)')
    a('s_barrier')
    leave()
    flush_retry()

    a.label('L_fin7')
    a('v_mov_b32 v11, 0')
    a('ds_write_b32 v10, v11 offset:%d' % L_RED)
    line_soff(54)
    a('v_bfe_u32 v11, v1, 3, 1')
    a('v_lshl_add_u32 v14, v11, 4, v14')
    a('s_mov_b32 s58, 0x00ff00ff'); a('s_mov_b32 s59, 0x00ff00ff')
    a('buffer_load_ushort v15, v12, s[36:39], s46 offen')
    side_add()
    poll('L_p3', two, [G0 + 3, G1 + 3])
    stamp(10)
    if c['early']:
        a('v_mov_b32 v10, s6')
        a('s_cmp_eq_u32 s2, %d' % (8 * 14 + 1))
        a('s_cselect_b64 exec, 1, 0')
        a('buffer_store_dword v10, off, s[20:23], 0')
        a('s_mov_b64 exec, -1')
    if c['wb'] == 1:
        a('s_cmp_eq_u32 s4, 14')
        a('s_cbranch_scc0 L_nowb')
        a('buffer_wbl2 sc1')
        a('s_cmp_eq_u32 s2, %d' % (8 * 14))
        leave_if('scc1')
        a.label('L_nowb')
    sum2scatter()
    a('v_lshlrev_b32 v15, 16, v15')
    rnd(G0, G0)
    a('v_add_f32 v15, v%d, v15' % G0)
    rnd(15, 15)
    if not c['early']:
        a('v_mov_b32 v10, s6')
        a('s_cmp_eq_u32 s54, 0')
        a('s_cselect_b64 s[60:61], 1, 0')
    a('s_waitcnt lgkmcnt(0)')
    a('s_barrier')
    a('ds_read_b128 %s, v14 offset:%d' % (vr(G0), L_RED))
    a('s_waitcnt lgkmcnt(0)')
    stamp(13)
    pkadd(G0, G0, G0 + 2)
    a('v_add_f32 v%d, v%d, v%d' % (G0, G0, G0 + 1))
    dpp('v_add_f32', G0, G0, G0, 'row_ror:8')
    rnd(G0, G0)
    a('v_add_f32 v%d, v%d, v15' % (G0, G0))
    a('v_cvt_pk_bf16_f32 v%d, v%d, v%d' % (G0, G0, G0))
    a('s_mov_b64 exec, s[58:59]')
    a('buffer_store_short v%d, v12, s[40:43], s46 offen' % G0)
    if not c['early']:
        a('s_mov_b64 exec, s[60:61]')
        a('buffer_store_dword v10, off, s[20:23], 0 sc1')
    leave()
    flush_retry()

    a.label('L_fkv')
    a('s_barrier')
    stamp(8)
    a('s_cmp_eq_u32 s5, 7')
    a('s_cbranch_scc0 L_fall')
    for k in range(2): a('v_mov_b32 v%d, 0' % (G0 + k))
    a('v_mul_u32_u24 v14, 80, v1')
    a('ds_write_b64 v14, %s offset:%d' % (vr(G0, 2), L_RED + 56))
    a('ds_write_b32 v%d, v%d offset:%d' % (G0, G0, L_STAT + 28))
    a('ds_write_b32 v%d, v%d offset:%d' % (G0, G0, L_STAT + 60))
    a('s_and_b32 s7, s4, 1')
    a('s_xor_b32 s7, s7, 1')
    a('s_lshl_b32 s7, s7, 5')
    a('v_mov_b32 v13, s7')
    a('v_lshrrev_b32 v10, 4, v1')
    a('v_mul_u32_u24 v10, %d, v10' % GXS)
    a('v_and_b32 v11, 3, v1')
    a('v_lshl_add_u32 v10, v11, 6, v10')
    a('v_bfe_u32 v11, v1, 2, 2')
    a('v_lshl_add_u32 v9, v11, 4, v10')
    a('s_and_b32 s7, s4, 12')
    a('s_lshl4_add_u32 s7, s3, s7')
    a('s_mul_i32 s57, s7, %d' % GXS)
    a('s_and_b32 s7, s4, 3')
    a('s_lshl_b32 s7, s7, 8')
    a('s_add_u32 s57, s57, s7')
    a('s_add_u32 s57, s57, 0x%x' % WS_GX)
    a('s_mov_b32 s58, s47'); a('s_mov_b32 s59, s47')
    a('s_not_b64 s[60:61], s[58:59]')
    a('s_waitcnt lgkmcnt(0)')
    a('s_barrier')
    a('s_barrier')
    for k in range(4): a('ds_read_b128 %s, v14 offset:%d' % (vr(G0 + 4 * k), L_RED + 16 * k))
    for k in range(2): a('ds_read_b128 %s, v13 offset:%d' % (vr(32 + 4 * k), L_STAT + 16 * k))
    a('s_waitcnt lgkmcnt(%d)' % (0 if diag else 4))
    pkadd(G0, G0, G0 + 2); pkadd(G1, G1, G1 + 2)
    if not diag: a('s_waitcnt lgkmcnt(2)')
    pkadd(G2, G2, G2 + 2); pkadd(G3, G3, G3 + 2)
    pkadd(G0, G0, G1); pkadd(G2, G2, G3)
    if not diag: a('s_waitcnt lgkmcnt(0)')
    pkadd(32, 32, 34); pkadd(36, 36, 38)
    pkadd(72, G0, G2)
    pkadd(32, 32, 36)
    a('v_add_f32 v74, v32, v33')
    store2(72, 9, 57)
    stamp(11)
    a('s_barrier')
    leave()

    a.label('L_ft')
    a('s_barrier')
    stamp(8)
    for i in range(7):
        a('buffer_load_dwordx4 v2, s[24:27], s%d offen nt lds' % (8 + i))
        if i < 6: a('s_add_u32 m0, m0, 0x1000')
    a.label('L_fall')
    side_read()
    line_voff()
    a('s_bfe_u32 s7, s4, 0x10001')
    a('s_mul_i32 s7, s7, 7')
    a('s_add_u32 s55, s7, s5')
    line_soff(55)
    a('buffer_load_ushort v15, v12, s[36:39], s46 offen')
    a('s_cmp_ge_u32 s5, 4')
    a('s_cbranch_scc1 L_nodown')
    for t in range(4):
        a('buffer_load_dwordx4 %s, v3, s[32:35], s%d offen offset:%d nt' % (vr(vW + 4 * t), 16 + (t >> 1), 3584 * (t & 1)))
    a.label('L_nodown')
    tr_addr()
    for k in range(4): a('v_mov_b32 v%d, 0x3f803f80' % (vAX + k))
    a('v_and_b32 v10, 15, v1')
    a('v_lshrrev_b32 v11, 5, v1')
    a('v_mul_u32_u24 v13, 80, v10')
    a('v_lshl_add_u32 v13, v11, 2, v13')
    a('v_lshl_add_u32 v13, s5, 3, v13')
    a('v_add_u32 v13, %d, v13' % L_RED)
    a('v_lshl_add_u32 v14, v10, 1, v11')
    a('v_lshlrev_b32 v14, 5, v14')
    a('v_lshl_add_u32 v14, s5, 2, v14')
    a('s_mov_b32 s60, 0xffff'); a('s_mov_b32 s61, 0xffff')
    side_add()
    a('s_waitcnt vmcnt(4)')
    a('s_barrier')
    stamp(9)
    poll('L_p1', two, [G0 + 3, G1 + 3], between=tr_read, wait='vmcnt(0) lgkmcnt(0)')
    stamp(10)
    a('v_lshlrev_b32 v15, 16, v15')
    sum2scatter()
    rnd(G0, G0)
    a('v_add_f32 v%d, v%d, v15' % (G0, G0))
    vec32(vAX, G0, 0x3)
    for t in range(4): mfma(vD + 4 * t, vAX, vB + 4 * t, 0)
    mfma(vD + 16, vAX, vAX, 0)
    a('s_mov_b64 exec, s[60:61]')
    a('s_cmp_ge_u32 s5, 4')
    a('ds_write2st64_b32 v13, v%d, v%d offset0:0 offset1:5' % (vD, vD + 4))
    a('ds_write2st64_b32 v13, v%d, v%d offset0:10 offset1:15' % (vD + 8, vD + 12))
    a('ds_write_b32 v14, v%d offset:%d' % (vD + 16, L_STAT))
    a('s_mov_b64 exec, -1')
    a('s_waitcnt lgkmcnt(0)')
    a('s_barrier')
    a('s_barrier')
    leave_if('scc1')
    poll('L_pg', ['buffer_load_dwordx4 %s, v40, s[20:23], s56 offen sc1' % vr(G0)], [G0 + 3])
    stamp(11)
    V, CS, ST, MU, E2, T = G0, G0 + 1, G0 + 2, G1, G1 + 1, G1 + 2
    dpp('v_add_f32', ST, ST, ST, 'row_ror:8')
    dpp('v_add_f32', V, V, V, 'row_ror:8')
    a('v_mul_f32 v%d, s18, v%d' % (MU, ST))
    a('v_mul_f32 v%d, s18, v%d' % (E2, ST))
    dpp('v_mul_f32', MU, ST, 43, 'row_ror:4', 'row_mask:0xf bank_mask:0xa')
    dpp('v_mul_f32', E2, ST, 43, 'row_ror:4', 'row_mask:0xf bank_mask:0x5')
    dpp('v_add_f32', CS, CS, CS, 'row_ror:8')
    a('v_fma_f32 v%d, -v%d, v%d, v%d' % (E2, MU, MU, E2))
    rnd(MU, MU)
    a('v_max_f32 v%d, 0, v%d' % (E2, E2))
    rnd(E2, E2)
    a('v_add_f32 v%d, %s, v%d' % (E2, f32(1e-5), E2))
    rnd(E2, E2)
    a('v_sqrt_f32 v%d, v%d' % (E2, E2))
    a('v_fma_f32 v%d, -v%d, v%d, v%d' % (V, MU, CS, V))
    rnd(E2, E2)
    a('v_rcp_f32 v%d, v%d' % (E2, E2))
    a('v_mul_f32 v%d, v%d, v%d' % (V, V, E2))
    rnd(V, V)
    a('v_mul_f32 v%d, v%d, v%d' % (T, V, V))
    a('v_fmac_f32 v42, s19, v%d' % T)
    a('v_mul_f32 v%d, v42, v%d' % (T, V))
    a('v_exp_f32 v%d, v%d' % (T, T))
    a('v_add_f32 v%d, 1.0, v%d' % (T, T))
    a('v_rcp_f32 v%d, v%d' % (T, T))
    a('v_mul_f32 v%d, v%d, v%d' % (T, V, T))
    rnd(T, T)
    dpp('v_mul_f32', T, V, T, 'row_ror:4')
    a('v_cvt_pk_bf16_f32 v%d, v%d, v%d' % (T, T, T))
    for t in range(4):
        for r in range(4):
            dpp('v_and_b32', vT + 4 * t + r, T, vM + r, 'row_newbcast:%d' % t)
            if t > 0 and r == 1: mfma(vC0, vT + 4 * t - 4, vW + 4 * t - 4, t > 1)
    mfma(vC0, vT + 12, vW + 12, 1)
    a('s_mov_b64 exec, s[58:59]')
    pack24(72, vC0)
    a('buffer_store_dwordx4 v[72:75], v41, s[20:23], s57 offen sc1')
    stamp(12)
    leave()
    flush_retry()

    a.section('q')
    a.label('L_v0')
    far = 'L_v1' if c['wo_at'] == 0 else 'L_v'
    a('s_cmp_lg_u32 s31, 0')
    a('s_cbranch_scc1 L_qw')
    a('s_waitcnt lgkmcnt(0)')
    a('s_load_dword s6, s[20:21], 0')
    a('s_barrier')
    a('s_branch %s' % far)
    a.label('L_qw')
    vWQ, vXN = 16, 128
    srd(16, 448 * 8192)
    srd(36, 896)
    a('v_lshlrev_b32 v8, 4, v1')
    a('v_lshrrev_b32 v12, 3, v1')
    a('v_mul_u32_u24 v3, %d, v12' % (28 * 8192))
    a('v_and_b32 v10, 0x70, v8')
    a('v_add_u32 v3, v3, v10')
    a('s_bfe_u32 s54, s4, 0x30001')
    a('s_lshl3_add_u32 s54, s3, s54')
    a('s_cmp_ge_u32 s4, 16')
    a('s_cselect_b32 s54, s54, s3')
    a('s_and_b32 s44, s4, 1')
    a('s_lshl_b32 s44, s44, 5')
    a('s_add_u32 s44, s44, s55')
    a('s_mul_i32 s45, s44, %d' % (7 * 64))
    a('s_add_u32 s45, s45, s54')
    a('s_lshl_b32 s45, s45, 7')
    a('s_movk_i32 s46, 0x2000')
    a('s_waitcnt lgkmcnt(0)')
    stamp(1)
    a('buffer_load_dwordx4 %s, v8, s[36:39], 0 offen' % vr(vA))
    a('s_load_dword s6, s[20:21], 0')
    for n in range(7):
        a('buffer_load_dwordx4 %s, v3, s[16:19], s45 offen nt' % vr(vWQ + 4 * n))
        if n < 6: a('s_add_u32 s45, s45, s46')
    a('s_barrier')
    common(False)
    x, S1, S2 = vA + 8, vA + 4, vA + 5
    a('v_mov_b32 v%d, 0' % S1)
    a('v_mov_b32 v%d, 0' % S2)
    a('v_mov_b32 v%d, 0x3f803f80' % (vA + 6))
    a('v_mov_b32 v%d, %s' % (vA + 7, f32(1.0 / 448)))
    a('v_lshlrev_b32 v13, 5, v1')
    a('v_mul_u32_u24 v14, 112, v12')
    a('s_mul_i32 s7, s44, 28')
    a('s_add_u32 s7, s7, %d' % L_XN)
    a('v_add_u32 v14, s7, v14')
    a('v_lshl_add_u32 v15, s55, 3, v13')
    a('v_and_b32 v10, 3, v1')
    a('v_lshlrev_b32 v217, 2, v10')
    a('v_lshlrev_b32_e64 v221, 2, s55')
    a('v_mov_b32 v220, 1')
    a('v_and_b32 v10, 7, v1')
    a('v_lshlrev_b32 v10, 6, v10')
    a('v_bfe_u32 v11, v1, 4, 1')
    a('v_lshl_add_u32 v10, v11, 5, v10')
    a('v_lshrrev_b32 v11, 5, v1')
    a('v_lshl_add_u32 v9, v11, 4, v10')
    a('s_lshr_b32 s7, s54, 1')
    a('s_and_b32 s44, s4, 1')
    a('s_lshl1_add_u32 s7, s7, s44')
    a('s_and_b32 s45, s54, 1')
    a('s_lshl1_add_u32 s7, s7, s45')
    a('s_lshl_b32 s57, s7, 9')
    a('s_add_u32 s57, s57, 0x%x' % WS_Q)
    a('s_lshl_b32 s7, s55, 1')
    a('s_lshl_b32 s58, 0x00030003, s7'); a('s_mov_b32 s59, s58')
    qx = 1 if c['qt'] == 'v' else 0
    if qx:
        a('s_mov_b64 exec, s[58:59]')
        a('buffer_load_dword v216, v9, s[20:23], s57 offen sc1')
        a('s_mov_b64 exec, -1')
    a('s_waitcnt vmcnt(%d)' % (7 + qx))
    for k in range(4):
        a('v_dot2c_f32_bf16 v%d, v%d, v%d' % (S1, vA + k, vA + 6))
        a('v_dot2c_f32_bf16 v%d, v%d, v%d' % (S2, vA + k, vA + k))
    unp = []
    for k in range(4):
        unp.append('v_lshlrev_b32 v%d, 16, v%d' % (x + 2 * k, vA + k))
        unp.append('v_and_b32 v%d, 0xffff0000, v%d' % (x + 2 * k + 1, vA + k))
    a(unp.pop()); a(unp.pop())
    for ctl, m in ((QP1, FULL), (QP2, FULL), ('row_half_mirror', FULL), ('row_mirror', FULL),
                   ('row_bcast:15', 'row_mask:0xa bank_mask:0xf'), ('row_bcast:31', 'row_mask:0xc bank_mask:0xf')):
        dpp('v_add_f32', S1, S1, S1, ctl, m)
        dpp('v_add_f32', S2, S2, S2, ctl, m)
        a(unp.pop())
    a('v_readlane_b32 s62, v%d, 63' % S1)
    a('v_readlane_b32 s63, v%d, 63' % S2)
    a('v_mul_f32 v%d, s62, v%d' % (S1, vA + 7))
    a('v_mul_f32 v%d, s63, v%d' % (S2, vA + 7))
    a('v_fma_f32 v%d, -v%d, v%d, v%d' % (S2, S1, S1, S2))
    rnd(S1, S1)
    a('v_max_f32 v%d, 0, v%d' % (S2, S2))
    rnd(S2, S2)
    a('v_add_f32 v%d, %s, v%d' % (S2, f32(1e-5), S2))
    rnd(S2, S2)
    a('v_sqrt_f32 v%d, v%d' % (S2, S2))
    for k in range(8): a('v_sub_f32 v%d, v%d, v%d' % (x + k, x + k, S1))
    rnd(S2, S2)
    a('v_rcp_f32 v%d, v%d' % (S2, S2))
    for k in range(8): rnd(x + k, x + k)
    for k in range(8): a('v_mul_f32 v%d, v%d, v%d' % (x + k, x + k, S2))
    for k in range(8): a('v_cvt_pk_bf16_f32 v%d, v%d, v%d' % (x + k, x + k, x + k))
    a('ds_write_b128 v13, %s offset:%d' % (vr(x), L_XN))
    a('ds_write_b128 v13, %s offset:%d' % (vr(x + 4), L_XN + 16))
    a('s_waitcnt lgkmcnt(0)')
    for z in range(3): a('ds_read2_b32 %s, v14 offset0:%d offset1:%d' % (vr(vXN + 2 * z, 2), 2 * z, 2 * z + 1))
    a('ds_read_b32 v%d, v14 offset:24' % (vXN + 6))
    mktag()
    qc = vA + 16
    a('v_mov_b32 v%d, s6' % (vA + 22))
    a('v_mov_b32 v%d, s6' % (vA + 23))
    xpub(1)
    a('s_waitcnt lgkmcnt(0)')
    def qand(n):
        for r in range(4): a('v_and_b32 v%d, v%d, v%d' % (vA + 4 * (n & 1) + r, vXN + n, vM + r))
    qand(0)
    for n in range(7):
        if n < 6: qand(n + 1)
        a('s_waitcnt vmcnt(%d)' % (6 + qx - n))
        mfma(qc, vA + 4 * (n & 1), vWQ + 4 * n, n)
    for r in range(4): a('v_mov_b32_dpp v%d, v%d row_ror:8 row_mask:0xc bank_mask:0xf' % (qc + r, qc + r))
    a('v_permlane32_swap_b32 v%d, v%d' % (qc, qc + 2))
    a('v_permlane32_swap_b32 v%d, v%d' % (qc + 1, qc + 3))
    pkadd(qc, qc, qc + 2)
    a('ds_write_b64 v15, %s offset:%d' % (vr(qc, 2), L_T))
    gate_open(6)
    xpub(2)
    gate_wait(6, 217)
    a('ds_read_b128 %s, v13 offset:%d' % (vr(vA), L_T))
    a('ds_read_b128 %s, v13 offset:%d' % (vr(vA + 4), L_T + 16))
    a('s_waitcnt lgkmcnt(0)')
    stamp(5)
    pkadd(vA, vA, vA + 2); pkadd(vA + 4, vA + 4, vA + 6)
    pkadd(vA + 20, vA, vA + 4)
    a('s_mov_b64 exec, s[58:59]')
    a('buffer_store_dwordx4 %s, v9, s[20:23], s57 offen' % vr(vA + 20))
    a('s_add_u32 s57, s57, 0x%x' % (WS_QB - WS_Q))
    a('buffer_store_dwordx4 %s, v9, s[20:23], s57 offen sc1' % vr(vA + 20))
    gate_open(8)
    a('s_mov_b64 exec, -1')
    probe(c['pv'])
    a('s_branch L_v3')

    a.section('end')

    a.label('L_exit')
    if c['probe'] and c['probe'][0] == 'skew':
        _, gsel, mult = c['probe']
        a('s_waitcnt lgkmcnt(0)')
        a('s_cmp_eq_u32 s5, 0')
        a('s_cbranch_scc0 L_end')
        a('s_mov_b64 exec, -1')
        a('s_lshl_b32 s7, s3, 5')
        a('s_add_u32 s7, s7, s4')
        a('s_lshl_b32 s7, s7, 7')
        a('s_add_u32 s7, s7, 0x%x' % WS_ST)
        a('v_mov_b32 v16, s64')
        a('buffer_store_dword v16, off, s[20:23], s7 sc1')
        a('s_cmp_eq_u32 s2, 113')
        a('s_cbranch_scc0 L_end')
        a.label('L_spin0')
        a('s_sleep 4')
        a('s_memrealtime s[94:95]')
        a('s_waitcnt lgkmcnt(0)')
        a('s_sub_u32 s44, s94, s64')
        a('s_cmp_lt_u32 s44, 2000')
        a('s_cbranch_scc1 L_spin0')
        a('v_and_b32 v10, 31, v1')
        a('v_lshlrev_b32 v10, 7, v10')
        a('s_mov_b32 s7, 0x%x' % WS_ST)
        for g in range(8):
            a('buffer_load_dword v%d, v10, s[20:23], s7 offen sc1' % (16 + g))
            a('s_add_u32 s7, s7, 4096')
        a('s_waitcnt vmcnt(0)')
        for g in range(8):
            a('v_subrev_u32 v%d, s64, v%d' % (16 + g, 16 + g))
            allred32('v_min_i32', 16 + g, 30)
        a('v_mov_b32 v24, v16'); a('v_mov_b32 v25, v16')
        for g in range(1, 8):
            a('v_min_i32 v24, v24, v%d' % (16 + g))
            a('v_max_i32 v25, v25, v%d' % (16 + g))
        a('v_sub_u32 v26, v%d, v24' % (16 + gsel if gsel < 8 else 25))
        a('v_readfirstlane_b32 s7, v26')
        a('v_readfirstlane_b32 s45, v24')
        a('s_min_u32 s7, s7, 400')
        a('s_mul_i32 s7, s7, %d' % mult)
        a('s_add_u32 s7, s7, s45')
        a('s_add_u32 s7, s7, 3000')
        a.label('L_spin')
        a('s_sleep 4')
        a('s_memrealtime s[94:95]')
        a('s_waitcnt lgkmcnt(0)')
        a('s_sub_u32 s44, s94, s64')
        a('s_cmp_lt_i32 s44, s7')
        a('s_cbranch_scc1 L_spin')
    elif c['probe'] and c['probe'][0] == 'dirty':
        _, nkb, sc, base = c['probe']
        a('s_mov_b64 exec, -1')
        a('s_lshl3_add_u32 s7, s2, s5')
        a('s_lshl_b32 s7, s7, 13')
        a('s_add_u32 s7, s7, 0x1000000')
        a('v_lshlrev_b32 v8, 4, v1')
        for k in range(nkb):
            a('buffer_store_dwordx4 v[16:19], v8, s[20:23], s7 offen' + sc)
            a('s_add_u32 s7, s7, 1024')
        a('s_waitcnt lgkmcnt(0)')
        a.label('L_spin')
        a('s_sleep 4')
        a('s_memrealtime s[94:95]')
        a('s_waitcnt lgkmcnt(0)')
        a('s_sub_u32 s44, s94, s64')
        a('s_cmp_lt_u32 s44, %d' % base)
        a('s_cbranch_scc1 L_spin')
    elif c['probe']:
        k, base, mult = c['probe']
        stamp(14)
        a('s_waitcnt lgkmcnt(0)')
        a('s_cmp_eq_u32 s%d, 0' % (64 + 2 * k))
        a('s_cbranch_scc1 L_end')
        a('s_sub_u32 s7, s%d, s64' % (64 + 2 * k))
        a('s_min_u32 s7, s7, 10000')
        a('s_mul_i32 s7, s7, %d' % mult)
        a('s_add_u32 s7, s7, %d' % base)
        a.label('L_spin')
        a('s_sleep 4')
        a('s_memrealtime s[94:95]')
        a('s_waitcnt lgkmcnt(0)')
        a('s_sub_u32 s44, s94, s64')
        a('s_cmp_lt_u32 s44, s7')
        a('s_cbranch_scc1 L_spin')
    elif diag:
        stamp(14)
        a('s_sleep 127')
        a('s_mov_b64 exec, 1')
        a('s_lshl3_add_u32 s7, s2, s5')
        a('s_lshl_b32 s7, s7, 6')
        a('s_add_u32 s7, s7, 0x%x' % WS_ST)
        a('s_waitcnt lgkmcnt(0)')
        for k in range(15): a('v_mov_b32 v%d, s%d' % (16 + k, 64 + 2 * k))
        a('s_add_u32 s47, s47, 2')
        a('v_mov_b32 v31, s47')
        for k in range(4): a('buffer_store_dwordx4 %s, off, s[20:23], s7 offset:%d' % (vr(16 + 4 * k), 16 * k))
    a.label('L_end')
    a('s_endpgm')

    ref = open(os.path.join(os.path.dirname(os.path.abspath(__file__)), 'header.txt')).read()
    head = ref + '; @launch grid=(256,1,1) block=(512,1,1) lds=%d\n' % LDS_BYTES
    head += '.amdgcn_target "amdgcn-amd-amdhsa--gfx950"\n.text\n.globl {N}_kernel\n.p2align %d\n.p2align 8\n.type {N}_kernel,@function\n{N}_kernel:\n'.replace('{N}', NAME) % c['align']
    foot = """.section .rodata,"a"
.p2align 6
.amdhsa_kernel {N}_kernel
  .amdhsa_next_free_vgpr 224
  .amdhsa_next_free_sgpr 102
  .amdhsa_accum_offset 224
  .amdhsa_group_segment_fixed_size 0
  .amdhsa_kernarg_size 96
  .amdhsa_float_denorm_mode_32 3
  .amdhsa_user_sgpr_count 2
  .amdhsa_user_sgpr_kernarg_segment_ptr 1
  .amdhsa_system_sgpr_workgroup_id_x 1
.end_amdhsa_kernel
""".replace('{N}', NAME)
    return head + a.text(('main', 'q', 'k', 'v', 'end')) + foot

if __name__ == '__main__':
    out = sys.argv[1] if len(sys.argv) > 1 else 'cdna_kernels/%s.s' % NAME
    kw = eval('dict(%s)' % sys.argv[2]) if len(sys.argv) > 2 else {}
    open(out, 'w').write(gen(**kw))
```

```python
import sys, os, struct, math
sys.path.insert(0, os.path.dirname(os.path.abspath(__file__)))
from emit import Asm

NAME = 'sequential_preLN__sliding_block_cached__geglu_ffn__decode'

WS_X = 0x4000
WS_Q = 0x180000
WS_QX = 0x1e0000
BLK = 4096 + 128
WS_H0 = 0x20000
GXS = 1024 + 128
WS_QB = 0x190000
WS_XB = 0xC000
WS_GX = 0xC0000
HS = 1920
WS_H1 = 0x100000
WS_H2 = 0x110000
WS_R = 0x1a0000
WS_ST = 0x200000

L_QL = 0
L_S = 1024
L_P = 2048
L_XN = 6400
L_WT = 3200
L_GATE = 8448
L_STAT = 8704
L_RED = 9728
L_T = 14848
LDS_BYTES = L_T + 8 * 4096

SPIN = 20000

def f32(x):
    return '0x%08x' % struct.unpack('<I', struct.pack('<f', x))[0]

def vr(a, n=4):
    return 'v[%d:%d]' % (a, a + n - 1)

DEF = dict(depth=6, dv=0, gq=16, ga=16, na=16, nb=16, pvd=6, dx=0, stamps=None, rs=1, rg=0, touch='wn', gxt=0, h2late=1, nts='q', ot=1,
           force_sc1=False, probe=None, wo_at=4, qdual=6, ldual=40, gall=1, deep0=14, deep=28, skipz=1, split3=1, tfl='', b1=1, qh=6, pf=True, qt='', prio=0, align=12, near=1, pk=2, sdn=12, swap=1)

def gen(**kw):
    c = dict(DEF); c.update(kw)
    a = Asm()
    D = c['depth']
    DV = c['dv'] or D
    DX = c['dx']
    diag = bool(c['stamps'])
    def nt(k):
        return ' nt' if k in c['nts'] else ''
    def stamp(k):
        if diag: a('%s s[%d:%d]' % (c['stamps'], 64 + 2 * k, 65 + 2 * k))
    def leave():
        a('s_branch L_exit' if diag else 's_endpgm')
    nlab = [0]
    def leave_if(cond):
        if diag:
            a('s_cbranch_%s L_exit' % cond)
        else:
            nlab[0] += 1
            a('s_cbranch_%s L_stay%d' % ('scc1' if cond == 'scc0' else 'scc0', nlab[0]))
            h = list(a.hist)
            a('s_endpgm')
            a.hist = h
            a.label('L_stay%d' % nlab[0])
    def srd(base, size):
        a('s_mov_b32 s%d, 0x%x' % (base + 2, size))
        a('s_mov_b32 s%d, 0x20000' % (base + 3))
    def mktag():
        a('s_mul_i32 s6, s6, 0x9e3779b1')
        a('s_add_u32 s6, s6, 0x7f4a7c15')
    def rnd(d, s):
        a('v_cvt_pk_bf16_f32 v%d, 0, v%d' % (d, s))
    QP1, QP2 = 'quad_perm:[1,0,3,2]', 'quad_perm:[2,3,0,1]'
    FULL = 'row_mask:0xf bank_mask:0xf'
    def dpp(op, d, s0, s1, ctl, mask=FULL):
        a('%s_dpp v%d, v%d, v%d %s %s' % (op, d, s0, s1, ctl, mask))
    def mfma(d, x, y, acc):
        a('v_mfma_f32_16x16x32_bf16 %s, %s, %s, %s' % (vr(d), vr(x), vr(y), vr(d) if acc else '0'))
    def pkadd(d, x, y):
        a('v_pk_add_f32 %s, %s, %s' % (vr(d, 2), vr(x, 2), vr(y, 2)))
    def masks():
        a('v_and_b32 v10, 1, v1')
        a('v_lshlrev_b32 v10, 4, v10')
        a('s_mov_b32 s7, 0xffff')
        a('v_lshlrev_b32_e64 v10, v10, s7')
        a('v_bfe_u32 v11, v1, 1, 2')
        for r in range(4):
            a('v_cmp_eq_u32 vcc, %d, v11' % r)
            a('v_cndmask_b32 v%d, 0, v10, vcc' % (vM + r))
    def pack24(d, s):
        for k in range(3):
            a('v_perm_b32 v%d, v%d, v%d, s%d' % (d + k, s + k, s + 3, sPK + k))
    def unpackn(gs):
        for g in gs: a('v_perm_b32 v%d, v%d, v%d, s%d' % (g + 3, g + 1, g, sUP))
        for g in gs: a('v_perm_b32 v%d, v%d, v%d, s%d' % (g + 3, g + 2, g + 3, sUP + 1))
    def scatter4(g):
        a('v_permlane32_swap_b32 v%d, v%d' % (g, g + 2))
        a('v_permlane32_swap_b32 v%d, v%d' % (g + 1, g + 3))
        pkadd(g, g, g + 2)
        a('v_permlane16_swap_b32 v%d, v%d' % (g, g + 1))
        a('v_add_f32 v%d, v%d, v%d' % (g, g, g + 1))
        dpp('v_add_f32', g, g, g, 'row_ror:8')
    def sum2scatter():
        unpackn([G0, G1])
        pkadd(G0, G0, G1); pkadd(G0 + 2, G0 + 2, G1 + 2)
        scatter4(G0)
    def vec32(d, s, banks):
        rnd(s + 1, s)
        a('v_cvt_pk_bf16_f32 v%d, v%d, 0' % (s, s))
        dpp('v_or_b32', s, s + 1, s, 'quad_perm:[1,1,3,3]')
        for k in range(4):
            a('v_mov_b32_dpp v%d, v%d row_newbcast:%d row_mask:0xf bank_mask:0x%x' % (d + k, s, 2 * k, banks))
    retry = []
    def poll(name, loads, tags, between=None, wait='vmcnt(0)', alt=None, half=False, extra=[]):
        for t in loads[:-1]: a(t)
        if half: a('s_mov_b32 exec_hi, 0')
        a(loads[-1])
        if half: a('s_mov_b32 exec_hi, -1')
        if between: between()
        a('s_mov_b32 s7, 0')
        if wait: a('s_waitcnt ' + wait)
        a.label(name + '_chk')
        a('v_cmp_ne_u32 vcc, s6, v%d' % tags[0])
        if len(tags) > 1:
            for i, t in enumerate(tags[1:]):
                a('v_cmp_ne_u32_e64 s[%d:%d], s6, v%d' % (96 + 2 * i, 97 + 2 * i, t))
            if half: a('s_and_b32 s%d, s%d, 0' % (93 + 2 * len(tags), 93 + 2 * len(tags)))
            for i, t in enumerate(tags[1:]):
                a('s_or_b64 s[62:63], %s, s[%d:%d]' % ('s[62:63]' if i else 'vcc', 96 + 2 * i, 97 + 2 * i))
            a('s_cbranch_scc1 %s_retry' % name)
        else:
            a('s_cbranch_vccnz %s_retry' % name)
        a.label(name + '_ok')
        retry.append((name, loads + extra, alt))
    def flush_retry():
        for name, loads, alt in retry:
            a.label(name + '_retry')
            if alt:
                a('s_cmp_eq_u32 s7, %d' % alt[0])
                a('s_cselect_b32 s%d, s%d, s%d' % (alt[1], alt[2], alt[1]))
            for i, t in enumerate(loads):
                a('s_mov_b64 exec, %s' % ('s[%d:%d]' % (94 + 2 * i, 95 + 2 * i) if i else 'vcc'))
                skip = c['skipz'] and len(loads) > 2
                if skip: a('s_cbranch_execz %s_z%d' % (name, i))
                a(t)
                if skip: a.label('%s_z%d' % (name, i))
            a('s_mov_b64 exec, -1')
            a('s_add_u32 s7, s7, 1')
            a('s_cmp_ge_u32 s7, %d' % SPIN)
            a('s_waitcnt vmcnt(0)')
            a('s_cbranch_scc0 %s_chk' % name)
            a('s_branch %s_ok' % name)
        del retry[:]
    def common(x=True):
        if x: srd(36, 896)
        a('s_load_dwordx2 s[24:25], s[0:1], 48')
        a('s_load_dwordx2 s[28:29], s[0:1], 56')
        a('s_load_dwordx2 s[32:33], s[0:1], 64')
        a('s_load_dwordx2 s[40:41], s[0:1], 72')
        srd(20, 1 << 28)
        srd(24, 448 * 3584)
        srd(32, 1792 * 896)
        srd(40, 896)
        for k in range(3):
            a('s_mov_b32 s%d, 0x0706050%d' % (sPK + k, 1 + k))
        a('s_mov_b32 s%d, 0x0c04000c' % sUP)
        a('s_mov_b32 s%d, 0x04020100' % (sUP + 1))
        if DX:
            a('s_cmp_eq_u32 s3, 0')
            a('s_cselect_b32 s30, %d, %d' % (c['deep0'], c['deep']))
            a('s_cmp_ge_u32 s4, s30')
            a('s_cselect_b32 s30, 1, 0')
        masks()
        a('v_lshlrev_b32 v8, 4, v1')
    def gate_open(k):
        a('ds_write_b32 v221, v220 offset:%d' % (L_GATE + 16 * k))
    def gate_wait(k, vaddr):
        nlab[0] += 1
        if vaddr == 219: a('v_mov_b32 v219, 0')
        a.label('L_gate%d' % nlab[0])
        a('ds_read_b32 v219, v%d offset:%d' % (vaddr, L_GATE + 16 * k))
        a('s_waitcnt lgkmcnt(0)')
        a('v_cmp_ne_u32 vcc, 1, v219')
        a('s_cbranch_vccnz L_gate%d' % nlab[0])
    def store2(data, voff, soff):
        a('s_mov_b64 exec, s[58:59]')
        a('buffer_store_dwordx4 %s, v%d, s[20:23], s%d offen' % (vr(data), voff, soff))
        a('s_mov_b64 exec, s[60:61]')
        a('buffer_store_dwordx4 %s, v%d, s[20:23], s%d offen sc1' % (vr(data), voff, soff))
        a('s_mov_b64 exec, -1')
    def dma_voff(rowexpr_pitch):
        a('v_bfe_u32 v11, v1, 3, 2')
        a('v_lshlrev_b32 v11, 1, v11')
        a('v_xor_b32 v11, v11, v1')
        a('v_and_b32 v11, 7, v11')
        a('v_mul_u32_u24 v10, %d, v10' % rowexpr_pitch)
        a('v_lshl_add_u32 v2, v11, 4, v10')
    def tr_addr():
        a('v_bfe_u32 v10, v1, 2, 2')
        a('v_mul_u32_u24 v10, 160, v10')
        a('v_and_b32 v11, 3, v1')
        a('v_lshl_add_u32 v10, v11, 3, v10')
        a('v_lshrrev_b32 v11, 4, v1')
        a('v_lshl_add_u32 v10, v11, 10, v10')
        a('v_lshl_add_u32 v32, s5, 12, v10')
        for t in range(1, 4): a('v_xor_b32 v%d, %d, v32' % (32 + t, 32 * t))
    def tr_read():
        for t in range(4):
            for u in range(2):
                a('ds_read_b64_tr_b16 %s, v%d offset:%d' % (vr(vB + 4 * t + 2 * u, 2), 32 + t, L_T + 512 * u))
    def line_voff():
        a('v_bfe_u32 v10, v1, 3, 2')
        a('v_mul_u32_u24 v10, %d, v10' % HS)
        a('v_lshrrev_b32 v11, 5, v1')
        a('v_lshl_add_u32 v10, v11, 14, v10')
        a('v_and_b32 v11, 0x70, v8')
        a('v_add_u32 v9, v10, v11')
        a('v_lshrrev_b32 v10, 4, v1')
        a('v_lshl_add_u32 v12, v10, 1, v11')
    def line_soff(sl):
        a('s_lshl_b32 s44, s%d, 7' % sl)
        a('s_add_u32 s44, s44, 0x%x' % WS_H1)
        a('s_lshr_b32 s46, s%d, 1' % sl)
        a('s_lshl_b32 s46, s46, 7')
        a('s_and_b32 s7, s%d, 1' % sl)
        a('s_lshl3_add_u32 s46, s7, s46')
    def softmax_head(r):
        mx, t1, ls = r + 4, r + 5, r + 6
        a('v_max3_f32 v%d, v%d, v%d, v%d' % (mx, r, r + 1, r + 2))
        a('v_max_f32 v%d, v%d, v%d' % (mx, mx, r + 3))
        allred32('v_max_f32', mx, t1)
        a('v_mul_f32 v%d, s53, v%d' % (mx, mx))
        for k in range(4): a('v_fma_f32 v%d, v%d, s53, -v%d' % (r + k, r + k, mx))
        for k in range(4): a('v_exp_f32 v%d, v%d' % (r + k, r + k))
        a('v_add_f32 v%d, v%d, v%d' % (ls, r, r + 1))
        a('v_add_f32 v%d, v%d, v%d' % (t1, r + 2, r + 3))
        a('v_add_f32 v%d, v%d, v%d' % (ls, ls, t1))
        allred32('v_add_f32', ls, t1)
    def allred32(op, r, t1):
        for ctl in (QP1, QP2, 'row_half_mirror', 'row_mirror'): dpp(op, r, r, r, ctl)
        a('v_mov_b32 v%d, v%d' % (t1, r))
        a('v_permlane16_swap_b32 v%d, v%d' % (r, t1))
        a('%s v%d, v%d, v%d' % (op, r, r, t1))

    vM = 4
    vKO = 2
    vK, vV, vQ, vW = 16, 80, 144, 176
    vA = 192
    vP = 16
    vT = 48
    vC0, vC1 = 64, 68
    G0, G1, G2, G3 = 16, 20, 24, 28
    vB, vAX, vD = 80, 96, 100
    sPK, sUP = 48, 51
    SC = f32(math.log2(math.e) / 16)

    def wo_setup():
        a('s_load_dwordx2 s[16:17], s[0:1], 32')
        srd(16, 448 * 8192)
        a('v_bfe_u32 v10, v1, 3, 2')
        a('v_lshrrev_b32 v11, 5, v1')
        a('v_lshl_add_u32 v10, v10, 1, v11')
        dma_voff(4 * 896)
        a('s_cmp_ge_u32 s4, 7')
        a('s_cselect_b32 s54, 1, 0')
        a('s_lshl1_add_u32 s7, s3, s54')
        a('s_lshl_b32 s7, s7, 8')
        a('s_add_u32 s7, s7, s55')
        a('s_sub_u32 s7, s7, s54')
        a('s_mul_i32 s7, s7, 7')
        a('s_add_u32 s7, s7, s4')
        a('s_lshl_b32 s10, s7, 7')
        a('s_lshl_b32 s7, s55, 10')
        a('s_add_u32 m0, s7, %d' % L_T)
        a('s_movk_i32 s11, %d' % (32 * 896))
    def wo_issue():
        for i in range(8):
            a('buffer_load_dwordx4 v2, s[16:19], s10 offen nt lds')
            if i < 7:
                a('s_add_u32 m0, m0, 0x1000')
                a('s_add_u32 s10, s10, s11')
    def wo_issue_if():
        nlab[0] += 1
        a('s_cmp_ge_u32 s4, 14')
        a('s_cbranch_scc1 L_nowo%d' % nlab[0])
        wo_issue()
        a.label('L_nowo%d' % nlab[0])
    def kv_addr():
        a('v_and_b32 v10, 7, v1')
        a('v_lshrrev_b32 v11, 3, v1')
        a('v_lshlrev_b32 v10, 4, v10')
        a('v_lshl_add_u32 v%d, v11, 9, v10' % vKO)
        a('s_lshl_b32 s7, s3, 7')
        a('s_add_u32 s7, s7, s4')
        a('s_add_u32 s7, s7, 96')
        a('s_lshl_b32 s44, s7, 4')
        if c['rs'] == 1 and not c['rg']:
            a('s_and_b32 s7, s4, 15')
        else:
            a('s_mul_i32 s7, s4, %d' % c['rs'])
            a('s_mul_i32 s62, s3, %d' % c['rg'])
            a('s_add_u32 s7, s7, s62')
            a('s_and_b32 s7, s7, 15')
        a('s_or_b32 s44, s44, s7')
    def h0_gather():
        a('s_cmp_ge_u32 s4, 7')
        a('s_cselect_b32 s54, 1, 0')
        a('s_lshl1_add_u32 s7, s3, s54')
        a('s_lshl3_add_u32 s56, s7, s5')
        a('s_mul_i32 s56, s56, %d' % BLK)
        a('s_add_u32 s56, s56, 0x%x' % WS_H0)

    def probe_addr():
        a('s_lshr_b32 s98, s2, 5')
        a('s_lshl_b32 s98, s98, 3')
        a('s_and_b32 s7, s55, 2')
        a('s_lshl1_add_u32 s98, s7, s98')
        a('s_and_b32 s7, s55, 1')
        a('s_add_u32 s98, s98, s7')
        a('s_lshl_b32 s98, s98, 5')
        a('s_and_b32 s7, s2, 31')
        a('s_add_u32 s98, s98, s7')
        a('s_lshl_b32 s98, s98, 7')
        a('s_add_u32 s98, s98, 0x%x' % WS_R)
    def probe(n):
        probe_addr()
        a('s_and_b32 s7, s55, 1')
        a('v_xor_b32 v10, s7, v1')
        a('v_lshlrev_b32 v10, 2, v10')
        a('s_lshl_b32 s7, s7, 13')
        a('s_xor_b32 s98, s98, s7')
        a('s_xor_b32 s99, s98, 0x2000')
        a('s_mov_b64 s[12:13], 0')
        a('s_mov_b32 s96, 0')
        a('s_buffer_load_dword s62, s[20:23], s98 glc')
        a('s_buffer_load_dword s63, s[20:23], s99 glc')
        a('s_waitcnt lgkmcnt(0)')
        a.label('L_probe')
        a('s_memtime s[14:15]')
        a('s_buffer_load_dword s7, s[20:23], s98 glc')
        a('s_waitcnt lgkmcnt(0)')
        a('s_memtime s[100:101]')
        a('s_buffer_load_dword s7, s[20:23], s99 glc')
        a('s_waitcnt lgkmcnt(0)')
        a('s_memtime s[62:63]')
        a('s_sub_u32 s14, s14, s100')
        a('s_max_u32 s12, s12, s14')
        a('s_add_u32 s96, s96, 1')
        a('s_waitcnt lgkmcnt(0)')
        a('s_sub_u32 s100, s100, s62')
        a('s_max_u32 s13, s13, s100')
        a('s_cmp_lt_u32 s96, %d' % n)
        a('s_cbranch_scc1 L_probe')
        a('v_mov_b32 v11, s12')
        a('v_writelane_b32 v11, s13, 1')
        a('s_mov_b64 exec, 3')
        a('ds_max_u32 v10, v11 offset:%d' % (L_GATE + 16 * 9))
        a('s_mov_b64 exec, -1')
    def side_load(first):
        if first:
            a('v_lshlrev_b32 v217, 7, v1')
            a('s_lshl_b32 s45, s3, 12')
            a('s_add_u32 s45, s45, 0x%x' % (WS_X + 4096))
            a('s_mov_b32 s62, 0')
        a('s_mov_b64 exec, 3')
        a('buffer_load_dwordx2 v[218:219], v217, s[20:23], s45 offen offset:%d sc1' % (14 * 128 + 32))
        a('s_mov_b64 exec, -1')
    def side_add(name):
        if c['near']:
            a.label(name + '_wait')
            a('s_waitcnt vmcnt(0)')
            a('v_cmp_eq_u32 vcc, s6, v219')
            a('s_and_b32 s7, vcc_lo, 3')
            a('s_cbranch_scc0 %s_retry' % name)
            a('s_ff1_i32_b32 s7, s7')
            a('v_readlane_b32 s7, v218, s7')
            a('s_and_b32 s7, s7, 0x2000')
            a('s_add_u32 s44, s44, s7')
            a.label(name + '_ok')
            if diag: a('s_add_u32 s47, s7, 0x100')
        else:
            a('s_waitcnt vmcnt(0)')
        a('s_add_u32 s45, s44, 0x8000')
    def side_retry(name):
        if c['near']:
            a.label(name + '_retry')
            a('s_add_u32 s62, s62, 1')
            a('s_cmp_ge_u32 s62, %d' % c['sdn'])
            a('s_cbranch_scc1 %s_ok' % name)
            side_load(False)
            a('s_branch %s_wait' % name)
    def xpub(part):
        if part & 1:
            a('s_lshl_b32 s7, s3, 5')
            a('s_add_u32 s7, s7, s4')
            a('s_lshl_b32 s7, s7, 7')
            a('s_add_u32 s47, s7, 0x%x' % WS_X)
            a('s_getreg_b32 s7, hwreg(HW_REG_XCC_ID, 0, 4)')
            a('v_mov_b32 v222, s7')
            a('v_mov_b32 v223, s6')
        if part & 2:
            nlab[0] += 1
            a('s_cmp_eq_u32 s5, 6')
            a('s_cbranch_scc0 L_xp%d' % nlab[0])
            a('s_mov_b64 exec, 1')
            a('buffer_store_dwordx2 v[222:223], off, s[20:23], s47')
            a('s_mov_b64 exec, -1')
            a.label('L_xp%d' % nlab[0])

    if diag:
        for k in range(1, 15): a('s_mov_b32 s%d, 0' % (64 + 2 * k))
    stamp(0)
    a('s_load_dwordx2 s[8:9], s[0:1], 8')
    a('s_load_dwordx2 s[36:37], s[0:1], 0')
    a('s_load_dwordx2 s[16:17], s[0:1], 24')
    a('s_load_dwordx2 s[12:13], s[0:1], 16')
    a('s_load_dwordx2 s[20:21], s[0:1], 88')
    a('s_cmp_ge_u32 s2, 256')
    a('s_cbranch_scc1 L_end')
    a('v_lshrrev_b32 v3, 6, v0')
    a('v_and_b32 v1, 63, v0')
    a('s_and_b32 s3, s2, 7')
    a('v_readfirstlane_b32 s5, v3')
    a('s_lshr_b32 s4, s2, 3')
    a('s_and_b32 s55, s5, 3')
    a('s_add_u32 s31, s4, 2')
    a('s_lshr_b32 s31, s31, 4')
    if c['swap']:
        a('s_cmp_lg_u32 s31, 0')
        a('s_cselect_b32 s7, 4, 0')
        a('s_xor_b32 s5, s5, s7')
    a('s_cmp_ge_u32 s5, 4')
    a('s_cbranch_scc1 L_v0')

    if c['pf']:
        a('s_getpc_b64 s[46:47]')
        a.label('L_pc')
        a('s_lshl2_add_u32 s7, s4, s55')
        a('s_lshl_b32 s7, s7, 7')
        a('s_addk_i32 s7, 0x300')
        a('s_min_u32 s7, s7, L_end-L_pc')
        a('s_add_u32 s46, s46, s7')
        a('s_addc_u32 s47, s47, 0')
        a('v_mov_b32 v10, s46')
        a('v_mov_b32 v11, s47')
        a('global_load_dword v216, v[10:11], off' + nt('c'))
    kv_addr()
    srd(8, 1 << 26)
    a('s_xor_b32 s45, s44, s55')
    a('s_lshl_b32 s45, s45, 12')
    a('v_and_b32 v10, 0xfc, v0')
    a('v_mov_b32 v11, 0')
    a('ds_write_b32 v10, v11 offset:%d' % L_GATE)
    a('s_cmp_lg_u32 s31, 0')
    a('s_waitcnt lgkmcnt(0)')
    a('s_load_dword s6, s[20:21], 0')
    if c['b1']:
        a('s_cbranch_scc0 L_k1')
        a('s_barrier')
        a.label('L_k1')
    stamp(1)
    GQ = c['gq']
    assert D <= GQ <= 16 and D <= c['ga'] <= 16
    class Stream:
        def __init__(self): self.seq, self.done = [], 0
        def left(self, n): return len(self.seq) - self.seq.index(n) - 1
        def wait(self, n):
            if self.seq.index(n) >= self.done:
                a('s_waitcnt vmcnt(%d)' % self.left(n))
                self.done = self.seq.index(n) + 1
        def throttle(self, n, d):
            if DX and n >= d and self.seq.index(n - d) >= self.done:
                nlab[0] += 1
                a('s_cmp_lg_u32 s30, 0')
                a('s_cbranch_scc1 L_thr%d' % nlab[0])
                a('s_waitcnt vmcnt(%d)' % self.left(n - d))
                a.label('L_thr%d' % nlab[0])
            if n >= d + DX: self.wait(n - d - DX)
    ks = Stream()
    def kload(idx):
        i, t = idx >> 2, idx & 3
        if t == 0 and i > 0: a('s_xor_b32 s45, s45, 0x%x' % ((i ^ (i - 1)) << 14))
        ks.throttle(idx, D)
        a('buffer_load_dwordx4 %s, v%d, s[8:11], s45 offen offset:%d nt' % (vr(vK + 4 * idx), vKO, 128 * t))
        ks.seq.append(idx)
    for idx in range(D): kload(idx)
    if c['b1']:
        a('s_cmp_lg_u32 s31, 0')
        a('s_cbranch_scc1 L_kb')
    a('s_barrier')
    a('s_branch L_kb')
    a.section('k')
    a.label('L_kb')
    common()
    for k in range(8): a('v_mov_b32 v%d, 0' % (vA + 8 + k))
    if c['split3']:
        for k in (0, 1, 4, 5): a('v_mov_b32 v%d, 0' % (vA + 16 + k))
        a('s_mul_i32 s7, s3, %d' % (1024 - 8192))
        a('s_add_u32 s7, s7, 0x%x' % (WS_QX - WS_Q - 2048))
        a('v_add_u32 v14, s7, v8')
    a('v_bfe_u32 v10, v1, 2, 1')
    a('v_lshlrev_b32 v10, 9, v10')
    a('v_lshrrev_b32 v12, 4, v1')
    a('v_lshl_add_u32 v10, v12, 7, v10')
    a('v_and_b32 v11, 3, v1')
    a('v_lshlrev_b32 v217, 2, v11')
    a('v_lshl_add_u32 v10, v11, 5, v10')
    a('v_bfe_u32 v11, v1, 3, 1')
    a('v_lshl_add_u32 v10, v11, 2, v10')
    a('v_lshl_add_u32 v13, s55, 3, v10')
    a('v_and_b32 v10, 31, v1')
    a('v_lshlrev_b32 v218, 7, v10')
    a('v_lshlrev_b32_e64 v221, 2, s55')
    a('v_mov_b32 v220, 1')
    a('v_and_b32 v9, 0x70, v8')
    a('v_and_b32 v12, 0xff, v0')
    a('v_lshlrev_b32 v12, 2, v12')
    a('s_lshl_b32 s46, s3, 12')
    a('s_add_u32 s46, s46, 0x%x' % WS_X)
    a('s_getreg_b32 s44, hwreg(HW_REG_XCC_ID, 0, 4)')
    a('s_lshl2_add_u32 s7, s3, s5')
    a('s_lshl_b32 s7, s7, 11')
    a('s_add_u32 s56, s7, 0x%x' % WS_Q)
    a('s_add_u32 s57, s7, 0x%x' % WS_QB)
    a('s_mov_b32 s58, 0xaaaaaaaa'); a('s_mov_b32 s59, 0xaaaaaaaa')
    a('s_mov_b32 s60, 0xcccccccc'); a('s_mov_b32 s61, 0xcccccccc')
    a('s_mov_b32 s53, %s' % SC)
    if c['ga'] == D: gate_open(0)
    def krange(lo, hi):
        for idx in range(lo, hi):
            if c['qh'] and idx == c['qh']:
                a('s_cmp_lg_u32 s31, 0')
                a('s_cbranch_scc0 L_k2')
                gate_wait(8, 217)
                a.label('L_k2')
            kload(idx)
            if c['ga'] == idx + 1: gate_open(0)
    krange(D, GQ)
    vE = vA + 16
    qx3 = 'buffer_load_dwordx4 %s, v14, s[20:23], s56 offen sc1' % vr(vE) + nt('q')
    if c['split3']:
        a('s_cmp_eq_u32 s5, 1')
        a('s_cbranch_scc0 L_k6')
        a(qx3)
        a.label('L_k6')
    def krest():
        ks.seq += ['q0', 'q1']
        krange(GQ, 16)
        stamp(2)
        a('s_waitcnt lgkmcnt(0)')
        mktag()
        if c['split3']:
            a('s_cmp_eq_u32 s5, 1')
            a('s_cbranch_scc1 L_k7')
            a('v_mov_b32 v%d, s6' % (vE + 3))
            a.label('L_k7')
        if c['wo_at']: wo_setup()
        ks.wait('q1')
        gate_open(1)
    poll('L_pq', ['buffer_load_dwordx4 %s, v8, s[20:23], s56 offen offset:%d sc1' % (vr(vA + 4 * k), 1024 * k) + nt('q') for k in range(2)],
         [vA + 3, vA + 7] + [vE + 3] * c['split3'], between=krest, wait=None, alt=(c['qdual'], 56, 57), extra=[qx3] * c['split3'])
    stamp(3)
    pkadd(vA, vA, vA + 4)
    if c['split3']:
        a('v_permlane32_swap_b32 v%d, v%d' % (vE + 4, vE))
        a('v_permlane32_swap_b32 v%d, v%d' % (vE + 5, vE + 1))
        pkadd(vE, vE, vE + 4)
        pkadd(vA, vA, vE)
    a('v_cvt_pk_bf16_f32 v%d, v%d, v%d' % (vA, vA, vA + 1))
    a('ds_write_b32 v12, v%d offset:%d' % (vA, L_QL))
    gate_open(2)
    gate_wait(2, 217)
    for h in range(2):
        for t in range(4):
            a('ds_read_b128 %s, v9 offset:%d' % (vr(vQ + 16 * h + 4 * t), L_QL + 512 * h + 128 * t))
    if c['wo_at'] == 2: wo_issue_if()
    a('s_waitcnt lgkmcnt(0)')
    stamp(4)
    acc = lambda i, h: vA + 8 + 4 * h + i
    for i in range(4):
        assert c['wo_at'] != 2 or GQ == 16
        ks.wait(4 * i + 3)
        for t in range(4):
            for d in range(4):
                for h in range(2):
                    a('v_dot2c_f32_bf16 v%d, v%d, v%d' % (acc(i, h), vK + 16 * i + 4 * t + d, vQ + 16 * h + 4 * t + d))
    X = acc(0, 0)
    for i in range(4): dpp('v_add_f32', X + i, X + i, X + i, 'row_half_mirror', 'row_mask:0xf bank_mask:0x5')
    for i in range(4): dpp('v_add_f32', X + i, X + 4 + i, X + 4 + i, 'row_half_mirror', 'row_mask:0xf bank_mask:0xa')
    for i in range(4): dpp('v_add_f32', X + i, X + i, X + i, QP1)
    a('v_cndmask_b32_e64 v%d, v%d, v%d, s[58:59]' % (X, X, X + 1))
    a('v_cndmask_b32_e64 v%d, v%d, v%d, s[58:59]' % (X + 2, X + 2, X + 3))
    dpp('v_add_f32', X, X, X, QP2)
    dpp('v_add_f32', X + 2, X + 2, X + 2, QP2)
    a('v_cndmask_b32_e64 v%d, v%d, v%d, s[60:61]' % (X, X, X + 2))
    rnd(X, X)
    a('ds_write_b32 v13, v%d offset:%d' % (X, L_S))
    gate_open(3)
    stamp(5)
    h0_gather()
    def xflag(left):
        a('s_waitcnt vmcnt(%d)' % left)
        a('v_cmp_ne_u32 vcc, s6, v223')
        a('v_cmp_ne_u32_e64 s[96:97], s44, v222')
        a('s_or_b32 s7, vcc_lo, s96')
        a('s_cselect_b32 s7, 2, %d' % (2 if c['force_sc1'] else 1))
        a('v_mov_b32 v219, s7')
        a('ds_write_b32 v217, v219 offset:%d' % (L_GATE + 16 * 7))
    a('s_cmp_eq_u32 s5, 3')
    a('s_cbranch_scc1 L_k3')
    a('s_cmp_ge_u32 s4, 14')
    a('s_cbranch_scc1 L_aux6')
    if c['wo_at'] == 4: gate_wait(4, 221)
    if c['wo_at'] >= 3: wo_issue()
    a('s_waitcnt vmcnt(0)')
    a('s_branch L_wt')

    a.label('L_k3')
    a('s_mov_b32 exec_hi, 0')
    a('buffer_load_dwordx2 v[222:223], v218, s[20:23], s46 offen sc1' + nt('t'))
    a('s_mov_b32 exec_hi, -1')
    a('s_lshl3_add_u32 s45, s54, s46')
    a('s_add_u32 s57, s45, 0x%x' % (WS_XB - WS_X))
    a('v_lshrrev_b32 v10, 5, v1')
    a('v_lshl_add_u32 v14, v10, 4, v8')
    a('v_lshlrev_b32 v10, 3, v10')
    a('s_lshl_b32 s7, s4, 7')
    a('s_add_u32 s46, s46, s7')
    a('v_mov_b32 v13, s6')
    gate_wait(3, 217)
    a('ds_read_b128 %s, v8 offset:%d' % (vr(vA), L_S))
    a('s_waitcnt lgkmcnt(0)')
    softmax_head(vA)
    a('v_rcp_f32 v%d, v%d' % (vA + 5, vA + 6))
    a('v_log_f32 v12, v%d' % (vA + 6))
    for k in range(4): a('v_mul_f32 v%d, v%d, v%d' % (vA + k, vA + k, vA + 5))
    for k in range(4): a('v_cvt_pk_bf16_f32 v%d, v%d, v%d' % (vA + k, vA + k, vA + k))
    a('ds_write_b128 v14, %s offset:%d' % (vr(vA), L_P))
    a('ds_write_b32 v221, v220 offset:%d' % (L_GATE + 16 * 5 - 12))
    a('v_add_f32 v12, v12, v%d' % (vA + 4))
    def lse_store(sc):
        a('s_mov_b32 exec_lo, 1'); a('s_mov_b32 exec_hi, 1')
        a('buffer_store_dwordx2 v[12:13], v10, s[20:23], s46 offen offset:16' + sc)
        a('s_mov_b64 exec, -1')
    lse_store('')
    xflag(1)
    a('s_add_u32 s46, s46, 0x%x' % (WS_XB - WS_X))
    a('s_cmp_ge_u32 s4, 14')
    stamp(6)
    a('s_cbranch_scc0 L_k4')
    lse_store(' sc1' + nt('s'))
    a('s_branch L_aux6')
    a.label('L_k4')
    gate_wait(4, 221)
    late = c['wo_at'] >= 3
    def lrest():
        if late: wo_issue()
        lse_store(' sc1' + nt('s'))
    poll('L_pl', ['buffer_load_dwordx2 v[14:15], v218, s[20:23], s45 offen offset:16 sc1'], [15],
         between=lrest, wait='vmcnt(%d)' % (9 if late else 1), alt=(c['ldual'], 45, 57))
    stamp(7)
    a('v_mov_b32 v16, v14')
    allred32('v_max_f32', 16, 17)
    a('v_sub_f32 v14, v14, v16')
    a('v_exp_f32 v14, v14')
    a('v_and_b32 v10, 0x70, v8')
    a('v_mov_b32 v16, v14')
    allred32('v_add_f32', 16, 17)
    a('v_rcp_f32 v16, v16')
    a('v_bfe_u32 v11, v1, 3, 2')
    a('v_lshl_add_u32 v10, v11, 2, v10')
    a('v_mul_f32 v14, v14, v16')
    a('ds_write_b32 v10, v14 offset:%d' % L_WT)
    a('s_waitcnt vmcnt(1) lgkmcnt(0)')
    a('s_branch L_wt')
    a.label('L_aux6')
    a('s_waitcnt lgkmcnt(0)')
    a('s_cmp_ge_u32 s4, 16')
    a('s_cbranch_scc0 L_aux7')
    a('s_sub_u32 s3, s3, 1')
    a('s_cbranch_scc1 L_fin')
    a('s_sub_u32 s54, s4, 16')
    a('s_lshl4_add_u32 s54, s3, s54')
    a('v_lshrrev_b32 v10, 3, v1')
    dma_voff(8 * 3584)
    a('s_bitcmp1_b32 s4, 0')
    a('s_cselect_b64 s[24:25], s[28:29], s[24:25]')
    a('s_mul_i32 s44, s5, 3584')
    a('s_lshr_b32 s7, s54, 2')
    a('s_lshl_b32 s7, s7, 7')
    a('s_add_u32 s44, s44, s7')
    a('s_bitcmp1_b32 s4, 1')
    for i in range(7):
        r0, r1 = [64 * (x >> 1) + 4 * (x & 1) for x in (i, 7 + i)]
        a('s_mov_b32 s7, %d' % (r0 * 3584))
        a('s_cselect_b32 s%d, %d, s7' % (8 + i, r1 * 3584))
    for i in range(7): a('s_add_u32 s%d, s%d, s44' % (8 + i, 8 + i))
    a('s_lshl_b32 s7, s5, 10')
    a('s_add_u32 m0, s7, %d' % L_T)
    a('s_branch L_ft')
    a.label('L_aux7')
    if c['near']:
        a('s_cmp_eq_u32 s5, 3')
        a('s_cbranch_scc1 L_aux8')
        probe(c['pk'])
        stamp(7)
        a.label('L_aux8')
        gate_open(10)
        a('s_cmp_eq_u32 s5, 0')
        a('s_cbranch_scc0 L_aux9')
        a('s_lshl_b32 s7, s4, 7')
        a('s_add_u32 s46, s46, s7')
        a('v_mov_b32 v13, s6')
        gate_wait(10, 217)
        a('ds_read_b64 v[218:219], v221 offset:%d' % (L_GATE + 16 * 9))
        a('s_waitcnt lgkmcnt(0)')
        a('v_cmp_lt_u32 vcc, v218, v219')
        a('v_cndmask_b32_e64 v12, 0, -1, vcc')
        a('s_mov_b64 exec, 1')
        a('buffer_store_dwordx2 v[12:13], off, s[20:23], s46 offset:32')
        a.label('L_aux9')
    a('s_barrier')
    leave()
    flush_retry()

    a.section('v')
    if c['wo_at'] == 0:
        a.label('L_v1')
        a('s_cmp_ge_u32 s4, 14')
        a('s_cbranch_scc1 L_v')
        wo_setup()
        a('s_waitcnt lgkmcnt(0)')
        wo_issue()
    a.label('L_v')
    common()
    a('s_waitcnt lgkmcnt(0)')
    mktag()
    xpub(3)
    a.label('L_v3')
    kv_addr()
    srd(12, 1 << 26)
    a('s_lshl_b32 s44, s44, 12')
    a('s_lshl_b32 s7, s55, 7')
    a('s_add_u32 s44, s44, s7')
    a('v_lshlrev_b32_e64 v221, 2, s55')
    a('v_mov_b32 v220, 1')
    a('v_and_b32 v10, 3, v1')
    a('v_lshlrev_b32 v217, 2, v10')
    a('v_bfe_u32 v11, v1, 3, 1')
    a('v_lshrrev_b32 v12, 4, v1')
    a('v_mul_u32_u24 v15, 528, v11')
    a('v_lshl_add_u32 v15, v12, 7, v15')
    a('v_lshrrev_b32 v10, 5, v1')
    a('v_bfe_u32 v11, v1, 2, 1')
    a('v_lshl_add_u32 v10, v10, 3, v11')
    a('v_mul_u32_u24 v10, %d, v10' % BLK)
    a('v_and_b32 v11, 3, v1')
    a('v_lshl_add_u32 v10, v11, 4, v10')
    a('v_bfe_u32 v11, v1, 4, 1')
    a('v_lshl_add_u32 v9, v11, 6, v10')
    a('s_lshl3_add_u32 s7, s3, s55')
    a('s_mul_i32 s57, s7, %d' % (2 * BLK))
    a('s_lshl_b32 s7, s4, 7')
    a('s_add_u32 s57, s57, s7')
    a('s_add_u32 s57, s57, 0x%x' % WS_H0)
    if c['touch'] in ('nw', 'wn', 'l'):
        a('v_not_b32 v75, s6')
        a('s_mov_b32 exec_lo, 0x00ff00ff'); a('s_mov_b32 exec_hi, 0x00ff00ff')
        for x in c['touch']:
            if x == 'w': a('buffer_store_dwordx4 v[72:75], v9, s[20:23], s57 offen')
            else: a('buffer_load_dwordx4 v[16:19], v9, s[20:23], s57 offen' + (' nt' if x == 'n' else c['tfl']))
        a('s_mov_b64 exec, -1')
    h0_gather()
    for k in range(8): a('v_mov_b32 v%d, 0' % (vC0 + k))
    a('v_mov_b32 v75, s6')
    NB = c['nb']
    GV = 217 if c['gall'] else 221
    gate_wait(0, GV)
    stamp(2)
    vs = Stream()
    def vload(n):
        if n > 0: a('s_xor_b32 s44, s44, 0x%x' % ((n ^ (n - 1)) << 12))
        a('buffer_load_dwordx4 %s, v%d, s[12:15], s44 offen nt' % (vr(vV + 4 * n), vKO))
        vs.seq.append(n)
        if n == 15:
            stamp(3)
            gate_open(4)
    for n in range(NB):
        if n == c['na']: gate_wait(1, GV)
        vs.throttle(n, DV)
        vload(n)
    stamp(4)
    gate_wait(5, 219)
    for z in range(8): a('ds_read_b128 %s, v15 offset:%d' % (vr(vP + 4 * z), L_P + 16 * z))
    a('s_waitcnt lgkmcnt(0)')
    stamp(6)
    nxt = NB
    if c['prio']: a('s_setprio %d' % c['prio'])
    def pand(k):
        for r in range(4): a('v_and_b32 v%d, v%d, v%d' % (vT + 4 * (k & 3) + r, vP + k, vM + r))
    pand(0); pand(1)
    for k in range(32):
        n = k >> 1
        if k == 26: a('ds_read_b32 v219, v217 offset:%d' % (L_GATE + 16 * 7))
        if k == 30:
            a('s_waitcnt lgkmcnt(0)')
            a.label('L_xf_chk')
            a('v_cmp_eq_u32 vcc, 0, v219')
            a('s_cbranch_vccnz L_xf_retry')
            a('v_cmp_ne_u32 vcc, 1, v219')
            a('s_cmp_eq_u64 vcc, 0')
            a('s_cselect_b32 s47, -1, 0')
            a('s_and_b32 s58, s47, 0x00ff00ff'); a('s_mov_b32 s59, s58')
            a('s_andn2_b32 s60, 0x00ff00ff, s47'); a('s_mov_b32 s61, s60')
        if k & 1 == 0:
            vs.wait(n)
            while nxt < 16 and nxt - 1 - n < c['pvd']:
                vload(nxt); nxt += 1
        mfma(vC1 if k & 1 else vC0, vT + 4 * (k & 3), vV + 4 * n, 1)
        if k < 30: pand(k + 2)
    stamp(7)
    for r in (3, 0, 1, 2): dpp('v_add_f32', vC0 + r, vC1 + r, vC0 + r, 'row_ror:8')
    pack24(72, vC0)
    store2(72, 9, 57)
    a('s_cmp_ge_u32 s4, 14')
    a('s_cbranch_scc1 L_ft0')

    a.label('L_wt')
    a('s_barrier')
    stamp(8)
    WT = 36
    def wsetup():
        a('v_lshrrev_b32 v10, 3, v1')
        a('v_lshlrev_b32 v10, 4, v10')
        a('ds_read_b128 %s, v10 offset:%d' % (vr(WT), L_WT))
        tr_addr()
        tr_read()
        a('v_mul_u32_u24 v13, 144, v11')
        a('v_lshl_add_u32 v13, s5, 4, v13')
        a('v_lshrrev_b32 v10, 2, v1')
        a('v_mul_u32_u24 v14, 144, v10')
        a('v_and_b32 v11, 3, v1')
        a('v_lshl_add_u32 v14, v11, 5, v14')
        a('v_and_b32 v11, 1, v10')
        a('v_lshrrev_b32 v10, 1, v10')
        a('v_lshlrev_b32 v10, 4, v10')
        a('v_lshl_add_u32 v12, v11, 7, v10')
        a('v_and_b32 v11, 1, v1')
        a('v_lshl_add_u32 v12, v11, 13, v12')
        a('s_lshl1_add_u32 s7, s3, s54')
        a('s_and_b32 s44, s7, 3')
        a('s_mul_i32 s44, s44, %d' % (HS - 4096))
        a('s_lshl_b32 s7, s7, 12')
        a('s_add_u32 s44, s44, s7')
        a('s_mul_i32 s45, s54, 7')
        a('s_sub_u32 s45, s4, s45')
        a('s_lshl_b32 s45, s45, 8')
        a('s_add_u32 s44, s44, s45')
        a('s_add_u32 s44, s44, 0x%x' % WS_H1)
        a('s_mov_b32 s58, 0x00010001'); a('s_mov_b32 s59, 0x00010001')
        a('s_mov_b32 s60, 0x%x' % (0x33333333 if c['near'] else 0x11111111)); a('s_mov_b32 s61, s60')
        a('v_mov_b32 v75, s6')
    poll('L_p0', ['buffer_load_dwordx4 %s, v8, s[20:23], s56 offen offset:%d sc1' % (vr(G0 + 4 * k), 1024 * k) for k in range(4)],
         [G0 + 3, G1 + 3, G2 + 3, G3 + 3], between=wsetup, wait='vmcnt(0) lgkmcnt(0)')
    stamp(9)
    unpackn([G0, G1, G2, G3])
    for k in range(4):
        w, hi = WT + (k & 2), k & 1
        for p in (0, 2):
            if k == 0:
                a('v_pk_mul_f32 %s, %s, %s op_sel:[0,0] op_sel_hi:[1,0]' % (vr(G0 + p, 2), vr(G0 + p, 2), vr(w, 2)))
            else:
                a('v_pk_fma_f32 %s, %s, %s, %s op_sel:[0,%d,0] op_sel_hi:[1,%d,1]' % (vr(G0 + p, 2), vr(G0 + 4 * k + p, 2), vr(w, 2), vr(G0 + p, 2), hi, hi))
    scatter4(G0)
    vec32(vAX, G0, 0xf)
    for t in range(4): mfma(vD + 4 * t, vB + 4 * t, vAX, 0)
    a('s_mov_b64 exec, s[58:59]')
    for t in range(4): a('ds_write_b128 v13, %s offset:%d' % (vr(vD + 4 * t), L_RED + 576 * t))
    a('s_mov_b64 exec, -1')
    a('s_cmp_eq_u32 s5, 0')
    a('s_waitcnt lgkmcnt(0)')
    stamp(10)
    a('s_barrier')
    a('s_cbranch_scc0 L_d0')
    a('ds_read_b128 %s, v14 offset:%d' % (vr(G0), L_RED))
    a('ds_read_b128 %s, v14 offset:%d' % (vr(G1), L_RED + 16))
    a('s_waitcnt lgkmcnt(0)')
    pkadd(G0, G0, G1); pkadd(G0 + 2, G0 + 2, G1 + 2)
    for ctl in (QP1, QP2):
        for k in range(4): dpp('v_add_f32', G0 + k, G0 + k, G0 + k, ctl)
    a('s_mov_b64 exec, s[60:61]')
    pack24(72, G0)
    a('buffer_store_dwordx4 v[72:75], v12, s[20:23], s44 offen sc1')
    stamp(12)
    a('s_barrier')
    leave()
    flush_retry()

    a.label('L_xf_retry')
    a('ds_read_b32 v219, v217 offset:%d' % (L_GATE + 16 * 7))
    a('s_waitcnt lgkmcnt(0)')
    a('s_branch L_xf_chk')

    a.label('L_ft0')
    a('s_cmp_ge_u32 s4, 16')
    a('s_cbranch_scc0 L_d1')
    a('s_sub_u32 s3, s3, 1')
    a('s_cbranch_scc0 L_fkv')
    a.label('L_fin')
    a('s_cmp_ge_u32 s4, 30')
    leave_if('scc1')
    a('s_barrier')
    if c['near']: side_load(True)
    a('s_sub_u32 s54, s4, 16')
    line_voff()
    a('v_and_b32 v13, 7, v1')
    a('v_lshl_add_u32 v14, v10, 3, v13')
    a('v_mul_u32_u24 v14, 48, v14')
    a('v_lshl_add_u32 v10, s5, 2, v14')
    line_soff(54)
    a('s_add_u32 s7, s5, 1')
    a('s_and_b32 s7, s7, 7')
    a('s_lshl_b32 s7, s7, 16')
    a('s_add_u32 s44, s44, s7')
    assert WS_H2 == WS_H1 + 0x10000
    side_add('L_sf')
    a('s_cmp_eq_u32 s5, 7')
    a('s_cbranch_scc1 L_fin7')
    two = ['buffer_load_dwordx4 %s, v9, s[20:23], s44 offen sc1' % vr(G0),
           'buffer_load_dwordx4 %s, v9, s[20:23], s45 offen sc1' % vr(G1)]
    if c['h2late']: a('s_barrier')
    poll('L_p2', two, [G0 + 3, G1 + 3])
    stamp(13)
    sum2scatter()
    a('ds_write_b32 v10, v%d offset:%d' % (G0, L_RED))
    a('s_waitcnt lgkmcnt(0)')
    a('s_barrier')
    leave()
    side_retry('L_sf')
    flush_retry()

    a.label('L_fin7')
    a('v_mov_b32 v11, 0')
    a('ds_write_b32 v10, v11 offset:%d' % L_RED)
    a('v_bfe_u32 v11, v1, 3, 1')
    a('v_lshl_add_u32 v14, v11, 4, v14')
    a('s_mov_b32 s58, 0x00ff00ff'); a('s_mov_b32 s59, 0x00ff00ff')
    a('buffer_load_ushort v15, v12, s[36:39], s46 offen' + nt('x'))
    if c['ot']: a('buffer_load_ushort v216, v12, s[40:43], s46 offen')
    poll('L_p3', two, [G0 + 3, G1 + 3])
    if c['h2late']: a('s_barrier')
    stamp(10)
    a('v_mov_b32 v10, s6')
    a('s_cmp_eq_u32 s54, 0')
    a('s_cselect_b64 exec, 1, 0')
    a('buffer_store_dword v10, off, s[20:23], 0')
    a('s_mov_b64 exec, -1')
    sum2scatter()
    a('v_lshlrev_b32 v15, 16, v15')
    rnd(G0, G0)
    a('v_add_f32 v15, v%d, v15' % G0)
    rnd(15, 15)
    a('s_waitcnt lgkmcnt(0)')
    a('s_barrier')
    a('ds_read_b128 %s, v14 offset:%d' % (vr(G0), L_RED))
    a('s_waitcnt lgkmcnt(0)')
    stamp(13)
    pkadd(G0, G0, G0 + 2)
    a('v_add_f32 v%d, v%d, v%d' % (G0, G0, G0 + 1))
    dpp('v_add_f32', G0, G0, G0, 'row_ror:8')
    rnd(G0, G0)
    a('v_add_f32 v%d, v%d, v15' % (G0, G0))
    a('v_cvt_pk_bf16_f32 v%d, v%d, v%d' % (G0, G0, G0))
    a('s_mov_b64 exec, s[58:59]')
    a('buffer_store_short v%d, v12, s[40:43], s46 offen' % G0)
    leave()
    flush_retry()

    a.label('L_fkv')
    a('s_barrier')
    stamp(8)
    a('s_cmp_eq_u32 s5, 7')
    a('s_cbranch_scc0 L_fall')
    for k in range(2): a('v_mov_b32 v%d, 0' % (G0 + k))
    a('v_mul_u32_u24 v14, 80, v1')
    a('ds_write_b64 v14, %s offset:%d' % (vr(G0, 2), L_RED + 56))
    a('ds_write_b32 v%d, v%d offset:%d' % (G0, G0, L_STAT + 28))
    a('ds_write_b32 v%d, v%d offset:%d' % (G0, G0, L_STAT + 60))
    a('s_and_b32 s7, s4, 1')
    a('s_xor_b32 s7, s7, 1')
    a('s_lshl_b32 s7, s7, 5')
    a('v_mov_b32 v13, s7')
    a('v_lshrrev_b32 v10, 4, v1')
    a('v_mul_u32_u24 v10, %d, v10' % GXS)
    a('v_and_b32 v11, 3, v1')
    a('v_lshl_add_u32 v10, v11, 6, v10')
    a('v_bfe_u32 v11, v1, 2, 2')
    a('v_lshl_add_u32 v9, v11, 4, v10')
    a('s_and_b32 s7, s4, 12')
    a('s_lshl4_add_u32 s7, s3, s7')
    a('s_mul_i32 s57, s7, %d' % GXS)
    a('s_and_b32 s7, s4, 3')
    a('s_lshl_b32 s7, s7, 8')
    a('s_add_u32 s57, s57, s7')
    a('s_add_u32 s57, s57, 0x%x' % WS_GX)
    if c['gxt'] == 2:
        a('v_not_b32 v71, s6')
        a('buffer_store_dwordx4 v[68:71], v9, s[20:23], s57 offen')
    if c['gxt']: a('buffer_load_dwordx4 v[64:67], v9, s[20:23], s57 offen' + (' nt' if c['gxt'] > 1 else ''))
    a('s_mov_b32 s58, s47'); a('s_mov_b32 s59, s47')
    a('s_not_b64 s[60:61], s[58:59]')
    a('s_waitcnt lgkmcnt(0)')
    a('s_barrier')
    a('s_barrier')
    for k in range(4): a('ds_read_b128 %s, v14 offset:%d' % (vr(G0 + 4 * k), L_RED + 16 * k))
    for k in range(2): a('ds_read_b128 %s, v13 offset:%d' % (vr(32 + 4 * k), L_STAT + 16 * k))
    a('s_waitcnt lgkmcnt(%d)' % (0 if diag else 4))
    pkadd(G0, G0, G0 + 2); pkadd(G1, G1, G1 + 2)
    if not diag: a('s_waitcnt lgkmcnt(2)')
    pkadd(G2, G2, G2 + 2); pkadd(G3, G3, G3 + 2)
    pkadd(G0, G0, G1); pkadd(G2, G2, G3)
    if not diag: a('s_waitcnt lgkmcnt(0)')
    pkadd(32, 32, 34); pkadd(36, 36, 38)
    pkadd(72, G0, G2)
    pkadd(32, 32, 36)
    a('v_add_f32 v74, v32, v33')
    store2(72, 9, 57)
    stamp(11)
    leave()

    a.label('L_ft')
    a('s_barrier')
    stamp(8)
    for i in range(7):
        a('buffer_load_dwordx4 v2, s[24:27], s%d offen nt lds' % (8 + i))
        if i < 6: a('s_add_u32 m0, m0, 0x1000')
    a.label('L_fall')
    line_voff()
    a('s_bfe_u32 s7, s4, 0x10001')
    a('s_mul_i32 s7, s7, 7')
    a('s_add_u32 s55, s7, s5')
    line_soff(55)
    a('buffer_load_ushort v15, v12, s[36:39], s46 offen' + nt('x'))
    if c['near']: side_load(True)
    tr_addr()
    for k in range(4): a('v_mov_b32 v%d, 0x3f803f80' % (vAX + k))
    a('v_and_b32 v10, 15, v1')
    a('v_lshrrev_b32 v11, 5, v1')
    a('v_mul_u32_u24 v13, 80, v10')
    a('v_lshl_add_u32 v13, v11, 2, v13')
    a('v_lshl_add_u32 v13, s5, 3, v13')
    a('v_add_u32 v13, %d, v13' % L_RED)
    a('v_lshl_add_u32 v14, v10, 1, v11')
    a('v_lshlrev_b32 v14, 5, v14')
    a('v_lshl_add_u32 v14, s5, 2, v14')
    a('s_mov_b32 s60, 0xffff'); a('s_mov_b32 s61, 0xffff')
    side_add('L_sd')
    a('s_barrier')
    stamp(9)
    poll('L_p1', two, [G0 + 3, G1 + 3], between=tr_read, wait='vmcnt(0) lgkmcnt(0)')
    stamp(10)
    a('v_lshlrev_b32 v15, 16, v15')
    sum2scatter()
    rnd(G0, G0)
    a('v_add_f32 v%d, v%d, v15' % (G0, G0))
    vec32(vAX, G0, 0x3)
    for t in range(4): mfma(vD + 4 * t, vAX, vB + 4 * t, 0)
    mfma(vD + 16, vAX, vAX, 0)
    a('s_mov_b64 exec, s[60:61]')
    a('ds_write2st64_b32 v13, v%d, v%d offset0:0 offset1:5' % (vD, vD + 4))
    a('ds_write2st64_b32 v13, v%d, v%d offset0:10 offset1:15' % (vD + 8, vD + 12))
    a('ds_write_b32 v14, v%d offset:%d' % (vD + 16, L_STAT))
    a('s_waitcnt lgkmcnt(0)')
    a('s_barrier')
    leave()
    side_retry('L_sd')
    flush_retry()

    a.label('L_d0')
    a('s_cmp_ge_u32 s5, 4')
    if diag:
        a('s_cbranch_scc1 L_d1')
        a('s_barrier')
    leave_if('scc0')
    a.label('L_d1')
    a('s_sub_u32 s3, s3, 1')
    a('s_barrier')
    leave_if('scc1')
    a('s_lshl4_add_u32 s54, s3, s4')
    a('v_lshrrev_b32 v12, 4, v1')
    a('v_mul_u32_u24 v10, 896, v12')
    a('v_and_b32 v11, 15, v1')
    a('v_lshl_add_u32 v11, s55, 4, v11')
    a('v_lshl_add_u32 v3, v11, 4, v10')
    a('v_cmp_gt_u32 vcc, 56, v11')
    a('v_cndmask_b32 v3, 2.0, v3, vcc')
    a('s_mul_i32 s16, s54, %d' % (16 * 896))
    a('s_add_u32 s17, s16, 7168')
    for t in range(4):
        a('buffer_load_dwordx4 %s, v3, s[32:35], s%d offen offset:%d nt' % (vr(vW + 4 * t), 16 + (t >> 1), 3584 * (t & 1)))
    a('v_bfe_u32 v10, v1, 2, 2')
    a('v_lshl_add_u32 v10, v10, 2, v12')
    a('v_and_b32 v11, 0x30, v8')
    a('v_lshl_add_u32 v40, v10, 6, v11')
    a('s_mul_i32 s56, s54, %d' % GXS)
    a('s_add_u32 s56, s56, 0x%x' % WS_GX)
    def dsetup():
        a('v_and_b32 v10, 0x70, v8')
        a('v_bfe_u32 v11, v1, 3, 1')
        a('v_lshl_add_u32 v10, v11, 8, v10')
        a('v_bfe_u32 v11, v1, 4, 1')
        a('v_lshl_add_u32 v10, v11, 7, v10')
        a('v_lshrrev_b32 v11, 5, v1')
        a('v_lshl_add_u32 v41, v11, 13, v10')
        a('s_and_b32 s57, s54, 3')
        a('s_mul_i32 s57, s57, %d' % (HS - 4096))
        a('s_lshl3_add_u32 s7, s54, s55')
        a('s_lshl_b32 s7, s7, 9')
        a('s_add_u32 s57, s57, s7')
        a('s_add_u32 s57, s57, 0x%x' % WS_H2)
        a('s_cmp_eq_u32 s55, 3')
        a('s_cselect_b32 s58, 0x00ff00ff, -1')
        a('s_mov_b32 s59, %s' % ('s58' if c['near'] else '0'))
        k0 = 2 * math.sqrt(2 / math.pi) * math.log2(math.e)
        a('v_mov_b32 v42, %s' % f32(-k0))
        a('v_mov_b32 v43, %s' % f32(1.0 / 448))
        a('s_mov_b32 s18, %s' % f32(1.0 / 448))
        a('s_mov_b32 s19, %s' % f32(-k0 * 0.044715))
        a('v_mov_b32 v75, s6')
        if diag:
            a('s_waitcnt vmcnt(1)')
            stamp(13)
    poll('L_pg', ['buffer_load_dwordx4 %s, v40, s[20:23], s56 offen sc1' % vr(G0)], [G0 + 3], between=dsetup)
    stamp(11)
    V, CS, ST, MU, E2, T = G0, G0 + 1, G0 + 2, G1, G1 + 1, G1 + 2
    dpp('v_add_f32', ST, ST, ST, 'row_ror:8')
    dpp('v_add_f32', V, V, V, 'row_ror:8')
    a('v_mul_f32 v%d, s18, v%d' % (MU, ST))
    a('v_mul_f32 v%d, s18, v%d' % (E2, ST))
    dpp('v_mul_f32', MU, ST, 43, 'row_ror:4', 'row_mask:0xf bank_mask:0xa')
    dpp('v_mul_f32', E2, ST, 43, 'row_ror:4', 'row_mask:0xf bank_mask:0x5')
    dpp('v_add_f32', CS, CS, CS, 'row_ror:8')
    a('v_fma_f32 v%d, -v%d, v%d, v%d' % (E2, MU, MU, E2))
    rnd(MU, MU)
    a('v_max_f32 v%d, 0, v%d' % (E2, E2))
    rnd(E2, E2)
    a('v_add_f32 v%d, %s, v%d' % (E2, f32(1e-5), E2))
    rnd(E2, E2)
    a('v_sqrt_f32 v%d, v%d' % (E2, E2))
    a('v_fma_f32 v%d, -v%d, v%d, v%d' % (V, MU, CS, V))
    rnd(E2, E2)
    a('v_rcp_f32 v%d, v%d' % (E2, E2))
    a('v_mul_f32 v%d, v%d, v%d' % (V, V, E2))
    rnd(V, V)
    a('v_mul_f32 v%d, v%d, v%d' % (T, V, V))
    a('v_fmac_f32 v42, s19, v%d' % T)
    a('v_mul_f32 v%d, v42, v%d' % (T, V))
    a('v_exp_f32 v%d, v%d' % (T, T))
    a('v_add_f32 v%d, 1.0, v%d' % (T, T))
    a('v_rcp_f32 v%d, v%d' % (T, T))
    a('v_mul_f32 v%d, v%d, v%d' % (T, V, T))
    rnd(T, T)
    dpp('v_mul_f32', T, V, T, 'row_ror:4')
    a('v_cvt_pk_bf16_f32 v%d, v%d, v%d' % (T, T, T))
    for t in range(4):
        for r in range(4):
            dpp('v_and_b32', vT + 4 * t + r, T, vM + r, 'row_newbcast:%d' % t)
            if t > 0 and r == 1: mfma(vC0, vT + 4 * t - 4, vW + 4 * t - 4, t > 1)
    mfma(vC0, vT + 12, vW + 12, 1)
    a('s_mov_b64 exec, s[58:59]')
    pack24(72, vC0)
    a('buffer_store_dwordx4 v[72:75], v41, s[20:23], s57 offen sc1')
    stamp(12)
    leave()
    flush_retry()

    a.section('q')
    a.label('L_v0')
    far = 'L_v1' if c['wo_at'] == 0 else 'L_v'
    a('s_cmp_lg_u32 s31, 0')
    a('s_cbranch_scc1 L_qw')
    a('s_waitcnt lgkmcnt(0)')
    a('s_load_dword s6, s[20:21], 0')
    a('s_barrier')
    a('s_branch %s' % far)
    a.label('L_qw')
    vWQ, vXN = 16, 128
    srd(16, 448 * 8192)
    srd(36, 896)
    a('v_lshlrev_b32 v8, 4, v1')
    a('v_lshrrev_b32 v12, 3, v1')
    a('v_mul_u32_u24 v3, %d, v12' % (28 * 8192))
    a('v_and_b32 v10, 0x70, v8')
    a('v_add_u32 v3, v3, v10')
    a('s_bfe_u32 s54, s4, 0x30001')
    if c['split3']:
        a('s_cmp_eq_u32 s54, 3')
        a('s_cselect_b32 vcc_hi, 0, -1')
        a('s_cmp_ge_u32 s4, 16')
        a('s_cselect_b32 vcc_lo, -1, 0')
        a('s_cselect_b32 s54, s54, 3')
        a('s_lshl3_add_u32 s54, s3, s54')
        a('v_cndmask_b32 v3, 2.0, v3, vcc')
    else:
        a('s_lshl3_add_u32 s54, s3, s54')
        a('s_cmp_ge_u32 s4, 16')
        a('s_cselect_b32 s54, s54, s3')
    a('s_and_b32 s44, s4, 1')
    a('s_lshl_b32 s44, s44, 5')
    a('s_add_u32 s44, s44, s55')
    a('s_mul_i32 s45, s44, %d' % (7 * 64))
    a('s_add_u32 s45, s45, s54')
    a('s_lshl_b32 s45, s45, 7')
    a('s_movk_i32 s46, 0x2000')
    a('s_waitcnt lgkmcnt(0)')
    stamp(1)
    a('buffer_load_dwordx4 %s, v8, s[36:39], 0 offen' % vr(vA) + nt('x'))
    a('s_load_dword s6, s[20:21], 0')
    for n in range(7):
        a('buffer_load_dwordx4 %s, v3, s[16:19], s45 offen nt' % vr(vWQ + 4 * n))
        if n < 6: a('s_add_u32 s45, s45, s46')
    a('s_barrier')
    common(False)
    x, S1, S2 = vA + 8, vA + 4, vA + 5
    a('v_mov_b32 v%d, 0' % S1)
    a('v_mov_b32 v%d, 0' % S2)
    a('v_mov_b32 v%d, 0x3f803f80' % (vA + 6))
    a('v_mov_b32 v%d, %s' % (vA + 7, f32(1.0 / 448)))
    a('v_lshlrev_b32 v13, 5, v1')
    a('v_mul_u32_u24 v14, 112, v12')
    a('s_mul_i32 s7, s44, 28')
    a('s_add_u32 s7, s7, %d' % L_XN)
    a('v_add_u32 v14, s7, v14')
    a('v_lshl_add_u32 v15, s55, 3, v13')
    a('v_and_b32 v10, 3, v1')
    a('v_lshlrev_b32 v217, 2, v10')
    a('v_lshlrev_b32_e64 v221, 2, s55')
    a('v_mov_b32 v220, 1')
    a('v_and_b32 v10, 7, v1')
    a('v_lshlrev_b32 v10, 6, v10')
    a('v_bfe_u32 v11, v1, 4, 1')
    a('v_lshl_add_u32 v10, v11, 5, v10')
    a('v_lshrrev_b32 v11, 5, v1')
    a('v_lshl_add_u32 v9, v11, 4, v10')
    a('s_lshr_b32 s7, s54, 1')
    a('s_and_b32 s44, s4, 1')
    a('s_lshl1_add_u32 s7, s7, s44')
    a('s_and_b32 s45, s54, 1')
    a('s_lshl1_add_u32 s7, s7, s45')
    if c['split3']:
        a('s_lshl1_add_u32 s45, s3, s44')
        a('s_add_u32 s45, s45, 0x%x' % ((WS_QX - WS_Q) >> 9))
        a('s_cmp_ge_u32 s4, 16')
        a('s_cselect_b32 s7, s7, s45')
    a('s_lshl_b32 s57, s7, 9')
    a('s_add_u32 s57, s57, 0x%x' % WS_Q)
    a('s_lshl_b32 s7, s55, 1')
    a('s_lshl_b32 s58, 0x00030003, s7'); a('s_mov_b32 s59, s58')
    qx = 1 if c['qt'] else 0
    if qx:
        a('s_mov_b64 exec, s[58:59]')
        a('buffer_load_dword v216, v9, s[20:23], s57 offen ' + ('sc1' if c['qt'] == 'v' else 'nt'))
        a('s_mov_b64 exec, -1')
    a('s_waitcnt vmcnt(%d)' % (7 + qx))
    for k in range(4):
        a('v_dot2c_f32_bf16 v%d, v%d, v%d' % (S1, vA + k, vA + 6))
        a('v_dot2c_f32_bf16 v%d, v%d, v%d' % (S2, vA + k, vA + k))
    unp = []
    for k in range(4):
        unp.append('v_lshlrev_b32 v%d, 16, v%d' % (x + 2 * k, vA + k))
        unp.append('v_and_b32 v%d, 0xffff0000, v%d' % (x + 2 * k + 1, vA + k))
    a(unp.pop()); a(unp.pop())
    for ctl, m in ((QP1, FULL), (QP2, FULL), ('row_half_mirror', FULL), ('row_mirror', FULL),
                   ('row_bcast:15', 'row_mask:0xa bank_mask:0xf'), ('row_bcast:31', 'row_mask:0xc bank_mask:0xf')):
        dpp('v_add_f32', S1, S1, S1, ctl, m)
        dpp('v_add_f32', S2, S2, S2, ctl, m)
        a(unp.pop())
    a('v_readlane_b32 s62, v%d, 63' % S1)
    a('v_readlane_b32 s63, v%d, 63' % S2)
    a('v_mul_f32 v%d, s62, v%d' % (S1, vA + 7))
    a('v_mul_f32 v%d, s63, v%d' % (S2, vA + 7))
    a('v_fma_f32 v%d, -v%d, v%d, v%d' % (S2, S1, S1, S2))
    rnd(S1, S1)
    a('v_max_f32 v%d, 0, v%d' % (S2, S2))
    rnd(S2, S2)
    a('v_add_f32 v%d, %s, v%d' % (S2, f32(1e-5), S2))
    rnd(S2, S2)
    a('v_sqrt_f32 v%d, v%d' % (S2, S2))
    for k in range(8): a('v_sub_f32 v%d, v%d, v%d' % (x + k, x + k, S1))
    rnd(S2, S2)
    a('v_rcp_f32 v%d, v%d' % (S2, S2))
    for k in range(8): rnd(x + k, x + k)
    for k in range(8): a('v_mul_f32 v%d, v%d, v%d' % (x + k, x + k, S2))
    for k in range(8): a('v_cvt_pk_bf16_f32 v%d, v%d, v%d' % (x + k, x + k, x + k))
    a('ds_write_b128 v13, %s offset:%d' % (vr(x), L_XN))
    a('ds_write_b128 v13, %s offset:%d' % (vr(x + 4), L_XN + 16))
    a('s_waitcnt lgkmcnt(0)')
    for z in range(3): a('ds_read2_b32 %s, v14 offset0:%d offset1:%d' % (vr(vXN + 2 * z, 2), 2 * z, 2 * z + 1))
    a('ds_read_b32 v%d, v14 offset:24' % (vXN + 6))
    mktag()
    qc = vA + 16
    a('v_mov_b32 v%d, s6' % (vA + 22))
    a('v_mov_b32 v%d, s6' % (vA + 23))
    xpub(1)
    a('s_waitcnt lgkmcnt(0)')
    def qand(n):
        for r in range(4): a('v_and_b32 v%d, v%d, v%d' % (vA + 4 * (n & 1) + r, vXN + n, vM + r))
    qand(0)
    for n in range(7):
        if n < 6: qand(n + 1)
        a('s_waitcnt vmcnt(%d)' % (6 + qx - n))
        mfma(qc, vA + 4 * (n & 1), vWQ + 4 * n, n)
    for r in range(4): a('v_mov_b32_dpp v%d, v%d row_ror:8 row_mask:0xc bank_mask:0xf' % (qc + r, qc + r))
    a('v_permlane32_swap_b32 v%d, v%d' % (qc, qc + 2))
    a('v_permlane32_swap_b32 v%d, v%d' % (qc + 1, qc + 3))
    pkadd(qc, qc, qc + 2)
    a('ds_write_b64 v15, %s offset:%d' % (vr(qc, 2), L_T))
    gate_open(6)
    xpub(2)
    gate_wait(6, 217)
    a('ds_read_b128 %s, v13 offset:%d' % (vr(vA), L_T))
    a('ds_read_b128 %s, v13 offset:%d' % (vr(vA + 4), L_T + 16))
    a('s_waitcnt lgkmcnt(0)')
    stamp(5)
    pkadd(vA, vA, vA + 2); pkadd(vA + 4, vA + 4, vA + 6)
    pkadd(vA + 20, vA, vA + 4)
    a('s_mov_b64 exec, s[58:59]')
    a('buffer_store_dwordx4 %s, v9, s[20:23], s57 offen' % vr(vA + 20))
    a('s_add_u32 s57, s57, 0x%x' % (WS_QB - WS_Q))
    a('buffer_store_dwordx4 %s, v9, s[20:23], s57 offen sc1' % vr(vA + 20) + nt('s'))
    gate_open(8)
    a('s_mov_b64 exec, -1')
    a('s_branch L_v3')

    a.section('end')

    a.label('L_exit')
    if c['probe'] and c['probe'][0] == 'skew':
        _, gsel, mult = c['probe']
        a('s_waitcnt lgkmcnt(0)')
        a('s_cmp_eq_u32 s5, 0')
        a('s_cbranch_scc0 L_end')
        a('s_mov_b64 exec, -1')
        a('s_lshl_b32 s7, s3, 5')
        a('s_add_u32 s7, s7, s4')
        a('s_lshl_b32 s7, s7, 7')
        a('s_add_u32 s7, s7, 0x%x' % WS_ST)
        a('v_mov_b32 v16, s64')
        a('buffer_store_dword v16, off, s[20:23], s7 sc1')
        a('s_cmp_eq_u32 s2, 113')
        a('s_cbranch_scc0 L_end')
        a.label('L_spin0')
        a('s_sleep 4')
        a('s_memrealtime s[94:95]')
        a('s_waitcnt lgkmcnt(0)')
        a('s_sub_u32 s44, s94, s64')
        a('s_cmp_lt_u32 s44, 2000')
        a('s_cbranch_scc1 L_spin0')
        a('v_and_b32 v10, 31, v1')
        a('v_lshlrev_b32 v10, 7, v10')
        a('s_mov_b32 s7, 0x%x' % WS_ST)
        for g in range(8):
            a('buffer_load_dword v%d, v10, s[20:23], s7 offen sc1' % (16 + g))
            a('s_add_u32 s7, s7, 4096')
        a('s_waitcnt vmcnt(0)')
        for g in range(8):
            a('v_subrev_u32 v%d, s64, v%d' % (16 + g, 16 + g))
            allred32('v_min_i32', 16 + g, 30)
        a('v_mov_b32 v24, v16'); a('v_mov_b32 v25, v16')
        for g in range(1, 8):
            a('v_min_i32 v24, v24, v%d' % (16 + g))
            a('v_max_i32 v25, v25, v%d' % (16 + g))
        a('v_sub_u32 v26, v%d, v24' % (16 + gsel if gsel < 8 else 25))
        a('v_readfirstlane_b32 s7, v26')
        a('v_readfirstlane_b32 s45, v24')
        a('s_min_u32 s7, s7, 400')
        a('s_mul_i32 s7, s7, %d' % mult)
        a('s_add_u32 s7, s7, s45')
        a('s_add_u32 s7, s7, 3000')
        a.label('L_spin')
        a('s_sleep 4')
        a('s_memrealtime s[94:95]')
        a('s_waitcnt lgkmcnt(0)')
        a('s_sub_u32 s44, s94, s64')
        a('s_cmp_lt_i32 s44, s7')
        a('s_cbranch_scc1 L_spin')
    elif c['probe'] and c['probe'][0] == 'dirty':
        _, nkb, sc, base = c['probe']
        a('s_mov_b64 exec, -1')
        a('s_lshl3_add_u32 s7, s2, s5')
        a('s_lshl_b32 s7, s7, 13')
        a('s_add_u32 s7, s7, 0x1000000')
        a('v_lshlrev_b32 v8, 4, v1')
        for k in range(nkb):
            a('buffer_store_dwordx4 v[16:19], v8, s[20:23], s7 offen' + sc)
            a('s_add_u32 s7, s7, 1024')
        a('s_waitcnt lgkmcnt(0)')
        a.label('L_spin')
        a('s_sleep 4')
        a('s_memrealtime s[94:95]')
        a('s_waitcnt lgkmcnt(0)')
        a('s_sub_u32 s44, s94, s64')
        a('s_cmp_lt_u32 s44, %d' % base)
        a('s_cbranch_scc1 L_spin')
    elif c['probe']:
        k, base, mult = c['probe']
        stamp(14)
        a('s_waitcnt lgkmcnt(0)')
        a('s_cmp_eq_u32 s%d, 0' % (64 + 2 * k))
        a('s_cbranch_scc1 L_end')
        a('s_sub_u32 s7, s%d, s64' % (64 + 2 * k))
        a('s_min_u32 s7, s7, 10000')
        a('s_mul_i32 s7, s7, %d' % mult)
        a('s_add_u32 s7, s7, %d' % base)
        a.label('L_spin')
        a('s_sleep 4')
        a('s_memrealtime s[94:95]')
        a('s_waitcnt lgkmcnt(0)')
        a('s_sub_u32 s44, s94, s64')
        a('s_cmp_lt_u32 s44, s7')
        a('s_cbranch_scc1 L_spin')
    elif diag:
        stamp(14)
        a('s_sleep 127')
        a('s_mov_b64 exec, 1')
        a('s_lshl3_add_u32 s7, s2, s5')
        a('s_lshl_b32 s7, s7, 6')
        a('s_add_u32 s7, s7, 0x%x' % WS_ST)
        a('s_waitcnt lgkmcnt(0)')
        for k in range(15): a('v_mov_b32 v%d, s%d' % (16 + k, 64 + 2 * k))
        a('s_add_u32 s47, s47, 2')
        a('v_mov_b32 v31, s47')
        for k in range(4): a('buffer_store_dwordx4 %s, off, s[20:23], s7 offset:%d' % (vr(16 + 4 * k), 16 * k))
    a.label('L_end')
    a('s_endpgm')

    ref = open(os.path.join(os.path.dirname(os.path.abspath(__file__)), 'header.txt')).read()
    head = ref + '; @launch grid=(256,1,1) block=(512,1,1) lds=%d\n' % LDS_BYTES
    head += '.amdgcn_target "amdgcn-amd-amdhsa--gfx950"\n.text\n.globl {N}_kernel\n.p2align %d\n.p2align 8\n.type {N}_kernel,@function\n{N}_kernel:\n'.replace('{N}', NAME) % c['align']
    foot = """.section .rodata,"a"
.p2align 6
.amdhsa_kernel {N}_kernel
  .amdhsa_next_free_vgpr 224
  .amdhsa_next_free_sgpr 102
  .amdhsa_accum_offset 224
  .amdhsa_group_segment_fixed_size 0
  .amdhsa_kernarg_size 96
  .amdhsa_float_denorm_mode_32 3
  .amdhsa_user_sgpr_count 2
  .amdhsa_user_sgpr_kernarg_segment_ptr 1
  .amdhsa_system_sgpr_workgroup_id_x 1
.end_amdhsa_kernel
""".replace('{N}', NAME)
    return head + a.text(('main', 'q', 'k', 'v', 'end')) + foot

if __name__ == '__main__':
    out = sys.argv[1] if len(sys.argv) > 1 else 'cdna_kernels/%s.s' % NAME
    kw = eval('dict(%s)' % sys.argv[2]) if len(sys.argv) > 2 else {}
    open(out, 'w').write(gen(**kw))
```

```python
import sys, os, struct, math
sys.path.insert(0, os.path.dirname(os.path.abspath(__file__)))
from emit import Asm

NAME = 'sequential_preLN__sliding_block_cached__geglu_ffn__decode'

WS_X = 0x4000
WS_Q = 0x180000
WS_QX = 0x1e0000
BLK = 4096 + 128
WS_H0 = 0x20000
GXS = 1024 + 128
WS_QB = 0x190000
WS_XB = 0xC000
WS_GX = 0xC0000
HS = 1920
WS_H1 = 0x100000
WS_H2 = 0x110000
WS_R = 0x1a0000
WS_ST = 0x200000

L_QL = 0
L_S = 1024
L_P = 2048
L_XN = 6400
L_WT = 3200
L_GATE = 8448
L_STAT = 8704
L_RED = 9728
L_T = 14848
LDS_BYTES = L_T + 8 * 4096

SPIN = 20000

def f32(x):
    return '0x%08x' % struct.unpack('<I', struct.pack('<f', x))[0]

def vr(a, n=4):
    return 'v[%d:%d]' % (a, a + n - 1)

DEF = dict(depth=6, dv=0, gq=16, ga=16, na=16, nb=16, pvd=6, dx=0, stamps=None, rs=1, rg=0, touch='wn', gxt=0, h2late=1, nts='q', ot=1,
           force_sc1=False, probe=None, wo_at=4, qdual=6, ldual=40, gall=1, deep0=14, deep=28, skipz=1, split3=1, tfl='', b1=1, qh=6, pf=True, qt='', prio=0, align=12, near=1, pk=2, sdn=12, swap=1)

def gen(**kw):
    c = dict(DEF); c.update(kw)
    a = Asm()
    D = c['depth']
    DV = c['dv'] or D
    DX = c['dx']
    diag = bool(c['stamps'])
    def nt(k):
        return ' nt' if k in c['nts'] else ''
    def stamp(k):
        if diag: a('%s s[%d:%d]' % (c['stamps'], 64 + 2 * k, 65 + 2 * k))
    def leave():
        a('s_branch L_exit' if diag else 's_endpgm')
    nlab = [0]
    def leave_if(cond):
        if diag:
            a('s_cbranch_%s L_exit' % cond)
        else:
            nlab[0] += 1
            a('s_cbranch_%s L_stay%d' % ('scc1' if cond == 'scc0' else 'scc0', nlab[0]))
            h = list(a.hist)
            a('s_endpgm')
            a.hist = h
            a.label('L_stay%d' % nlab[0])
    def srd(base, size):
        a('s_mov_b32 s%d, 0x%x' % (base + 2, size))
        a('s_mov_b32 s%d, 0x20000' % (base + 3))
    def mktag():
        a('s_mul_i32 s6, s6, 0x9e3779b1')
        a('s_add_u32 s6, s6, 0x7f4a7c15')
    def rnd(d, s):
        a('v_cvt_pk_bf16_f32 v%d, 0, v%d' % (d, s))
    QP1, QP2 = 'quad_perm:[1,0,3,2]', 'quad_perm:[2,3,0,1]'
    FULL = 'row_mask:0xf bank_mask:0xf'
    def dpp(op, d, s0, s1, ctl, mask=FULL):
        a('%s_dpp v%d, v%d, v%d %s %s' % (op, d, s0, s1, ctl, mask))
    def mfma(d, x, y, acc):
        a('v_mfma_f32_16x16x32_bf16 %s, %s, %s, %s' % (vr(d), vr(x), vr(y), vr(d) if acc else '0'))
    def pkadd(d, x, y):
        a('v_pk_add_f32 %s, %s, %s' % (vr(d, 2), vr(x, 2), vr(y, 2)))
    def masks():
        a('v_and_b32 v10, 1, v1')
        a('v_lshlrev_b32 v10, 4, v10')
        a('s_mov_b32 s7, 0xffff')
        a('v_lshlrev_b32_e64 v10, v10, s7')
        a('v_bfe_u32 v11, v1, 1, 2')
        for r in range(4):
            a('v_cmp_eq_u32 vcc, %d, v11' % r)
            a('v_cndmask_b32 v%d, 0, v10, vcc' % (vM + r))
    def pack24(d, s):
        for k in range(3):
            a('v_perm_b32 v%d, v%d, v%d, s%d' % (d + k, s + k, s + 3, sPK + k))
    def unpackn(gs):
        for g in gs: a('v_perm_b32 v%d, v%d, v%d, s%d' % (g + 3, g + 1, g, sUP))
        for g in gs: a('v_perm_b32 v%d, v%d, v%d, s%d' % (g + 3, g + 2, g + 3, sUP + 1))
    def scatter4(g):
        a('v_permlane32_swap_b32 v%d, v%d' % (g, g + 2))
        a('v_permlane32_swap_b32 v%d, v%d' % (g + 1, g + 3))
        pkadd(g, g, g + 2)
        a('v_permlane16_swap_b32 v%d, v%d' % (g, g + 1))
        a('v_add_f32 v%d, v%d, v%d' % (g, g, g + 1))
        dpp('v_add_f32', g, g, g, 'row_ror:8')
    def sum2scatter():
        unpackn([G0, G1])
        pkadd(G0, G0, G1); pkadd(G0 + 2, G0 + 2, G1 + 2)
        scatter4(G0)
    def vec32(d, s, banks):
        rnd(s + 1, s)
        a('v_cvt_pk_bf16_f32 v%d, v%d, 0' % (s, s))
        dpp('v_or_b32', s, s + 1, s, 'quad_perm:[1,1,3,3]')
        for k in range(4):
            a('v_mov_b32_dpp v%d, v%d row_newbcast:%d row_mask:0xf bank_mask:0x%x' % (d + k, s, 2 * k, banks))
    retry = []
    def poll(name, loads, tags, between=None, wait='vmcnt(0)', alt=None, half=False, extra=[]):
        for t in loads[:-1]: a(t)
        if half: a('s_mov_b32 exec_hi, 0')
        a(loads[-1])
        if half: a('s_mov_b32 exec_hi, -1')
        if between: between()
        a('s_mov_b32 s7, 0')
        if wait: a('s_waitcnt ' + wait)
        a.label(name + '_chk')
        a('v_cmp_ne_u32 vcc, s6, v%d' % tags[0])
        if len(tags) > 1:
            for i, t in enumerate(tags[1:]):
                a('v_cmp_ne_u32_e64 s[%d:%d], s6, v%d' % (96 + 2 * i, 97 + 2 * i, t))
            if half: a('s_and_b32 s%d, s%d, 0' % (93 + 2 * len(tags), 93 + 2 * len(tags)))
            for i, t in enumerate(tags[1:]):
                a('s_or_b64 s[62:63], %s, s[%d:%d]' % ('s[62:63]' if i else 'vcc', 96 + 2 * i, 97 + 2 * i))
            a('s_cbranch_scc1 %s_retry' % name)
        else:
            a('s_cbranch_vccnz %s_retry' % name)
        a.label(name + '_ok')
        retry.append((name, loads + extra, alt))
    def flush_retry():
        for name, loads, alt in retry:
            a.label(name + '_retry')
            if alt:
                a('s_cmp_eq_u32 s7, %d' % alt[0])
                a('s_cselect_b32 s%d, s%d, s%d' % (alt[1], alt[2], alt[1]))
            for i, t in enumerate(loads):
                a('s_mov_b64 exec, %s' % ('s[%d:%d]' % (94 + 2 * i, 95 + 2 * i) if i else 'vcc'))
                skip = c['skipz'] and len(loads) > 2
                if skip: a('s_cbranch_execz %s_z%d' % (name, i))
                a(t)
                if skip: a.label('%s_z%d' % (name, i))
            a('s_mov_b64 exec, -1')
            a('s_add_u32 s7, s7, 1')
            a('s_cmp_ge_u32 s7, %d' % SPIN)
            a('s_waitcnt vmcnt(0)')
            a('s_cbranch_scc0 %s_chk' % name)
            a('s_branch %s_ok' % name)
        del retry[:]
    def common(x=True):
        if x: srd(36, 896)
        a('s_load_dwordx2 s[24:25], s[0:1], 48')
        a('s_load_dwordx2 s[28:29], s[0:1], 56')
        a('s_load_dwordx2 s[32:33], s[0:1], 64')
        a('s_load_dwordx2 s[40:41], s[0:1], 72')
        srd(20, 1 << 28)
        srd(24, 448 * 3584)
        srd(32, 1792 * 896)
        srd(40, 896)
        for k in range(3):
            a('s_mov_b32 s%d, 0x0706050%d' % (sPK + k, 1 + k))
        a('s_mov_b32 s%d, 0x0c04000c' % sUP)
        a('s_mov_b32 s%d, 0x04020100' % (sUP + 1))
        if DX:
            a('s_cmp_eq_u32 s3, 0')
            a('s_cselect_b32 s30, %d, %d' % (c['deep0'], c['deep']))
            a('s_cmp_ge_u32 s4, s30')
            a('s_cselect_b32 s30, 1, 0')
        masks()
        a('v_lshlrev_b32 v8, 4, v1')
    def gate_open(k):
        a('ds_write_b32 v221, v220 offset:%d' % (L_GATE + 16 * k))
    def gate_wait(k, vaddr):
        nlab[0] += 1
        if vaddr == 219: a('v_mov_b32 v219, 0')
        a.label('L_gate%d' % nlab[0])
        a('ds_read_b32 v219, v%d offset:%d' % (vaddr, L_GATE + 16 * k))
        a('s_waitcnt lgkmcnt(0)')
        a('v_cmp_ne_u32 vcc, 1, v219')
        a('s_cbranch_vccnz L_gate%d' % nlab[0])
    def store2(data, voff, soff):
        a('s_mov_b64 exec, s[58:59]')
        a('buffer_store_dwordx4 %s, v%d, s[20:23], s%d offen' % (vr(data), voff, soff))
        a('s_mov_b64 exec, s[60:61]')
        a('buffer_store_dwordx4 %s, v%d, s[20:23], s%d offen sc1' % (vr(data), voff, soff))
        a('s_mov_b64 exec, -1')
    def dma_voff(rowexpr_pitch):
        a('v_bfe_u32 v11, v1, 3, 2')
        a('v_lshlrev_b32 v11, 1, v11')
        a('v_xor_b32 v11, v11, v1')
        a('v_and_b32 v11, 7, v11')
        a('v_mul_u32_u24 v10, %d, v10' % rowexpr_pitch)
        a('v_lshl_add_u32 v2, v11, 4, v10')
    def tr_addr():
        a('v_bfe_u32 v10, v1, 2, 2')
        a('v_mul_u32_u24 v10, 160, v10')
        a('v_and_b32 v11, 3, v1')
        a('v_lshl_add_u32 v10, v11, 3, v10')
        a('v_lshrrev_b32 v11, 4, v1')
        a('v_lshl_add_u32 v10, v11, 10, v10')
        a('v_lshl_add_u32 v32, s5, 12, v10')
        for t in range(1, 4): a('v_xor_b32 v%d, %d, v32' % (32 + t, 32 * t))
    def tr_read():
        for t in range(4):
            for u in range(2):
                a('ds_read_b64_tr_b16 %s, v%d offset:%d' % (vr(vB + 4 * t + 2 * u, 2), 32 + t, L_T + 512 * u))
    def line_voff():
        a('v_bfe_u32 v10, v1, 3, 2')
        a('v_mul_u32_u24 v10, %d, v10' % HS)
        a('v_lshrrev_b32 v11, 5, v1')
        a('v_lshl_add_u32 v10, v11, 14, v10')
        a('v_and_b32 v11, 0x70, v8')
        a('v_add_u32 v9, v10, v11')
        a('v_lshrrev_b32 v10, 4, v1')
        a('v_lshl_add_u32 v12, v10, 1, v11')
    def line_soff(sl):
        a('s_lshl_b32 s44, s%d, 7' % sl)
        a('s_add_u32 s44, s44, 0x%x' % WS_H1)
        a('s_lshr_b32 s46, s%d, 1' % sl)
        a('s_lshl_b32 s46, s46, 7')
        a('s_and_b32 s7, s%d, 1' % sl)
        a('s_lshl3_add_u32 s46, s7, s46')
    def softmax_head(r):
        mx, t1, ls = r + 4, r + 5, r + 6
        a('v_max3_f32 v%d, v%d, v%d, v%d' % (mx, r, r + 1, r + 2))
        a('v_max_f32 v%d, v%d, v%d' % (mx, mx, r + 3))
        allred32('v_max_f32', mx, t1)
        a('v_mul_f32 v%d, s53, v%d' % (mx, mx))
        for k in range(4): a('v_fma_f32 v%d, v%d, s53, -v%d' % (r + k, r + k, mx))
        for k in range(4): a('v_exp_f32 v%d, v%d' % (r + k, r + k))
        a('v_add_f32 v%d, v%d, v%d' % (ls, r, r + 1))
        a('v_add_f32 v%d, v%d, v%d' % (t1, r + 2, r + 3))
        a('v_add_f32 v%d, v%d, v%d' % (ls, ls, t1))
        allred32('v_add_f32', ls, t1)
    def allred32(op, r, t1):
        for ctl in (QP1, QP2, 'row_half_mirror', 'row_mirror'): dpp(op, r, r, r, ctl)
        a('v_mov_b32 v%d, v%d' % (t1, r))
        a('v_permlane16_swap_b32 v%d, v%d' % (r, t1))
        a('%s v%d, v%d, v%d' % (op, r, r, t1))

    vM = 4
    vKO = 2
    vK, vV, vQ, vW = 16, 80, 144, 176
    vA = 192
    vP = 16
    vT = 48
    vC0, vC1 = 64, 68
    G0, G1, G2, G3 = 16, 20, 24, 28
    vB, vAX, vD = 80, 96, 100
    sPK, sUP = 48, 51
    SC = f32(math.log2(math.e) / 16)

    def wo_setup():
        a('s_load_dwordx2 s[16:17], s[0:1], 32')
        srd(16, 448 * 8192)
        a('v_bfe_u32 v10, v1, 3, 2')
        a('v_lshrrev_b32 v11, 5, v1')
        a('v_lshl_add_u32 v10, v10, 1, v11')
        dma_voff(4 * 896)
        a('s_cmp_ge_u32 s4, 7')
        a('s_cselect_b32 s54, 1, 0')
        a('s_lshl1_add_u32 s7, s3, s54')
        a('s_lshl_b32 s7, s7, 8')
        a('s_add_u32 s7, s7, s55')
        a('s_sub_u32 s7, s7, s54')
        a('s_mul_i32 s7, s7, 7')
        a('s_add_u32 s7, s7, s4')
        a('s_lshl_b32 s10, s7, 7')
        a('s_lshl_b32 s7, s55, 10')
        a('s_add_u32 m0, s7, %d' % L_T)
        a('s_movk_i32 s11, %d' % (32 * 896))
    def wo_issue():
        for i in range(8):
            a('buffer_load_dwordx4 v2, s[16:19], s10 offen nt lds')
            if i < 7:
                a('s_add_u32 m0, m0, 0x1000')
                a('s_add_u32 s10, s10, s11')
    def wo_issue_if():
        nlab[0] += 1
        a('s_cmp_ge_u32 s4, 14')
        a('s_cbranch_scc1 L_nowo%d' % nlab[0])
        wo_issue()
        a.label('L_nowo%d' % nlab[0])
    def kv_addr():
        a('v_and_b32 v10, 7, v1')
        a('v_lshrrev_b32 v11, 3, v1')
        a('v_lshlrev_b32 v10, 4, v10')
        a('v_lshl_add_u32 v%d, v11, 9, v10' % vKO)
        a('s_lshl_b32 s7, s3, 7')
        a('s_add_u32 s7, s7, s4')
        a('s_add_u32 s7, s7, 96')
        a('s_lshl_b32 s44, s7, 4')
        if c['rs'] == 1 and not c['rg']:
            a('s_and_b32 s7, s4, 15')
        else:
            a('s_mul_i32 s7, s4, %d' % c['rs'])
            a('s_mul_i32 s62, s3, %d' % c['rg'])
            a('s_add_u32 s7, s7, s62')
            a('s_and_b32 s7, s7, 15')
        a('s_or_b32 s44, s44, s7')
    def h0_gather():
        a('s_cmp_ge_u32 s4, 7')
        a('s_cselect_b32 s54, 1, 0')
        a('s_lshl1_add_u32 s7, s3, s54')
        a('s_lshl3_add_u32 s56, s7, s5')
        a('s_mul_i32 s56, s56, %d' % BLK)
        a('s_add_u32 s56, s56, 0x%x' % WS_H0)

    def probe_addr():
        a('s_lshr_b32 s98, s2, 5')
        a('s_lshl_b32 s98, s98, 3')
        a('s_and_b32 s7, s55, 2')
        a('s_lshl1_add_u32 s98, s7, s98')
        a('s_and_b32 s7, s55, 1')
        a('s_add_u32 s98, s98, s7')
        a('s_lshl_b32 s98, s98, 5')
        a('s_and_b32 s7, s2, 31')
        a('s_add_u32 s98, s98, s7')
        a('s_lshl_b32 s98, s98, 7')
        a('s_add_u32 s98, s98, 0x%x' % WS_R)
    def probe(n):
        probe_addr()
        a('s_and_b32 s7, s55, 1')
        a('v_xor_b32 v10, s7, v1')
        a('v_lshlrev_b32 v10, 2, v10')
        a('s_lshl_b32 s7, s7, 13')
        a('s_xor_b32 s98, s98, s7')
        a('s_xor_b32 s99, s98, 0x2000')
        a('s_mov_b64 s[12:13], 0')
        a('s_mov_b32 s96, 0')
        a('s_buffer_load_dword s62, s[20:23], s98 glc')
        a('s_buffer_load_dword s63, s[20:23], s99 glc')
        a('s_waitcnt lgkmcnt(0)')
        a.label('L_probe')
        a('s_memtime s[14:15]')
        a('s_buffer_load_dword s7, s[20:23], s98 glc')
        a('s_waitcnt lgkmcnt(0)')
        a('s_memtime s[100:101]')
        a('s_buffer_load_dword s7, s[20:23], s99 glc')
        a('s_waitcnt lgkmcnt(0)')
        a('s_memtime s[62:63]')
        a('s_sub_u32 s14, s14, s100')
        a('s_max_u32 s12, s12, s14')
        a('s_add_u32 s96, s96, 1')
        a('s_waitcnt lgkmcnt(0)')
        a('s_sub_u32 s100, s100, s62')
        a('s_max_u32 s13, s13, s100')
        a('s_cmp_lt_u32 s96, %d' % n)
        a('s_cbranch_scc1 L_probe')
        a('v_mov_b32 v11, s12')
        a('v_writelane_b32 v11, s13, 1')
        a('s_mov_b64 exec, 3')
        a('ds_max_u32 v10, v11 offset:%d' % (L_GATE + 16 * 9))
        a('s_mov_b64 exec, -1')
    def side_load(first):
        if first:
            a('v_lshlrev_b32 v217, 7, v1')
            a('s_lshl_b32 s45, s3, 12')
            a('s_add_u32 s45, s45, 0x%x' % (WS_X + 4096))
            a('s_mov_b32 s62, 0')
        a('s_mov_b64 exec, 3')
        a('buffer_load_dwordx2 v[218:219], v217, s[20:23], s45 offen offset:%d sc1' % (14 * 128 + 32))
        a('s_mov_b64 exec, -1')
    def side_add(name):
        if c['near']:
            a.label(name + '_wait')
            a('s_waitcnt vmcnt(0)')
            a('v_cmp_eq_u32 vcc, s6, v219')
            a('s_and_b32 s7, vcc_lo, 3')
            a('s_cbranch_scc0 %s_retry' % name)
            a('s_ff1_i32_b32 s7, s7')
            a('v_readlane_b32 s7, v218, s7')
            a('s_and_b32 s7, s7, 0x2000')
            a('s_add_u32 s44, s44, s7')
            a.label(name + '_ok')
            if diag: a('s_add_u32 s47, s7, 0x100')
        else:
            a('s_waitcnt vmcnt(0)')
        a('s_add_u32 s45, s44, 0x8000')
    def side_retry(name):
        if c['near']:
            a.label(name + '_retry')
            a('s_add_u32 s62, s62, 1')
            a('s_cmp_ge_u32 s62, %d' % c['sdn'])
            a('s_cbranch_scc1 %s_ok' % name)
            side_load(False)
            a('s_branch %s_wait' % name)
    def xpub(part):
        if part & 1:
            a('s_lshl_b32 s7, s3, 5')
            a('s_add_u32 s7, s7, s4')
            a('s_lshl_b32 s7, s7, 7')
            a('s_add_u32 s47, s7, 0x%x' % WS_X)
            a('s_getreg_b32 s7, hwreg(HW_REG_XCC_ID, 0, 4)')
            a('v_mov_b32 v222, s7')
            a('v_mov_b32 v223, s6')
        if part & 2:
            nlab[0] += 1
            a('s_cmp_eq_u32 s5, 6')
            a('s_cbranch_scc0 L_xp%d' % nlab[0])
            a('s_mov_b64 exec, 1')
            a('buffer_store_dwordx2 v[222:223], off, s[20:23], s47')
            a('s_mov_b64 exec, -1')
            a.label('L_xp%d' % nlab[0])

    if diag:
        for k in range(1, 15): a('s_mov_b32 s%d, 0' % (64 + 2 * k))
    stamp(0)
    a('s_load_dwordx2 s[8:9], s[0:1], 8')
    a('s_load_dwordx2 s[36:37], s[0:1], 0')
    a('s_load_dwordx2 s[16:17], s[0:1], 24')
    a('s_load_dwordx2 s[12:13], s[0:1], 16')
    a('s_load_dwordx2 s[20:21], s[0:1], 88')
    a('s_cmp_ge_u32 s2, 256')
    a('s_cbranch_scc1 L_end')
    a('v_lshrrev_b32 v3, 6, v0')
    a('v_and_b32 v1, 63, v0')
    a('s_and_b32 s3, s2, 7')
    a('v_readfirstlane_b32 s5, v3')
    a('s_lshr_b32 s4, s2, 3')
    a('s_and_b32 s55, s5, 3')
    a('s_add_u32 s31, s4, 2')
    a('s_lshr_b32 s31, s31, 4')
    if c['swap']:
        a('s_cmp_lg_u32 s31, 0')
        a('s_cselect_b32 s7, 4, 0')
        a('s_xor_b32 s5, s5, s7')
    a('s_cmp_ge_u32 s5, 4')
    a('s_cbranch_scc1 L_v0')

    if c['pf']:
        a('s_getpc_b64 s[46:47]')
        a.label('L_pc')
        a('s_lshl2_add_u32 s7, s4, s55')
        a('s_lshl_b32 s7, s7, 7')
        a('s_addk_i32 s7, 0x300')
        a('s_min_u32 s7, s7, L_end-L_pc')
        a('s_add_u32 s46, s46, s7')
        a('s_addc_u32 s47, s47, 0')
        a('v_mov_b32 v10, s46')
        a('v_mov_b32 v11, s47')
        a('global_load_dword v216, v[10:11], off' + nt('c'))
    kv_addr()
    srd(8, 1 << 26)
    a('s_xor_b32 s45, s44, s55')
    a('s_lshl_b32 s45, s45, 12')
    a('v_and_b32 v10, 0xfc, v0')
    a('v_mov_b32 v11, 0')
    a('ds_write_b32 v10, v11 offset:%d' % L_GATE)
    a('s_cmp_lg_u32 s31, 0')
    a('s_waitcnt lgkmcnt(0)')
    a('s_load_dword s6, s[20:21], 0')
    if c['b1']:
        a('s_cbranch_scc0 L_k1')
        a('s_barrier')
        a.label('L_k1')
    stamp(1)
    GQ = c['gq']
    assert D <= GQ <= 16 and D <= c['ga'] <= 16
    class Stream:
        def __init__(self): self.seq, self.done = [], 0
        def left(self, n): return len(self.seq) - self.seq.index(n) - 1
        def wait(self, n):
            if self.seq.index(n) >= self.done:
                a('s_waitcnt vmcnt(%d)' % self.left(n))
                self.done = self.seq.index(n) + 1
        def throttle(self, n, d):
            if DX and n >= d and self.seq.index(n - d) >= self.done:
                nlab[0] += 1
                a('s_cmp_lg_u32 s30, 0')
                a('s_cbranch_scc1 L_thr%d' % nlab[0])
                a('s_waitcnt vmcnt(%d)' % self.left(n - d))
                a.label('L_thr%d' % nlab[0])
            if n >= d + DX: self.wait(n - d - DX)
    ks = Stream()
    def kload(idx):
        i, t = idx >> 2, idx & 3
        if t == 0 and i > 0: a('s_xor_b32 s45, s45, 0x%x' % ((i ^ (i - 1)) << 14))
        ks.throttle(idx, D)
        a('buffer_load_dwordx4 %s, v%d, s[8:11], s45 offen offset:%d nt' % (vr(vK + 4 * idx), vKO, 128 * t))
        ks.seq.append(idx)
    for idx in range(D): kload(idx)
    if c['b1']:
        a('s_cmp_lg_u32 s31, 0')
        a('s_cbranch_scc1 L_kb')
    a('s_barrier')
    a('s_branch L_kb')
    a.section('k')
    a.label('L_kb')
    common()
    for k in range(8): a('v_mov_b32 v%d, 0' % (vA + 8 + k))
    if c['split3']:
        for k in (0, 1, 4, 5): a('v_mov_b32 v%d, 0' % (vA + 16 + k))
        a('s_mul_i32 s7, s3, %d' % (1024 - 8192))
        a('s_add_u32 s7, s7, 0x%x' % (WS_QX - WS_Q - 2048))
        a('v_add_u32 v14, s7, v8')
    a('v_bfe_u32 v10, v1, 2, 1')
    a('v_lshlrev_b32 v10, 9, v10')
    a('v_lshrrev_b32 v12, 4, v1')
    a('v_lshl_add_u32 v10, v12, 7, v10')
    a('v_and_b32 v11, 3, v1')
    a('v_lshlrev_b32 v217, 2, v11')
    a('v_lshl_add_u32 v10, v11, 5, v10')
    a('v_bfe_u32 v11, v1, 3, 1')
    a('v_lshl_add_u32 v10, v11, 2, v10')
    a('v_lshl_add_u32 v13, s55, 3, v10')
    a('v_and_b32 v10, 31, v1')
    a('v_lshlrev_b32 v218, 7, v10')
    a('v_lshlrev_b32_e64 v221, 2, s55')
    a('v_mov_b32 v220, 1')
    a('v_and_b32 v9, 0x70, v8')
    a('v_and_b32 v12, 0xff, v0')
    a('v_lshlrev_b32 v12, 2, v12')
    a('s_lshl_b32 s46, s3, 12')
    a('s_add_u32 s46, s46, 0x%x' % WS_X)
    a('s_getreg_b32 s44, hwreg(HW_REG_XCC_ID, 0, 4)')
    a('s_lshl2_add_u32 s7, s3, s5')
    a('s_lshl_b32 s7, s7, 11')
    a('s_add_u32 s56, s7, 0x%x' % WS_Q)
    a('s_add_u32 s57, s7, 0x%x' % WS_QB)
    a('s_mov_b32 s58, 0xaaaaaaaa'); a('s_mov_b32 s59, 0xaaaaaaaa')
    a('s_mov_b32 s60, 0xcccccccc'); a('s_mov_b32 s61, 0xcccccccc')
    a('s_mov_b32 s53, %s' % SC)
    if c['ga'] == D: gate_open(0)
    def krange(lo, hi):
        for idx in range(lo, hi):
            if c['qh'] and idx == c['qh']:
                a('s_cmp_lg_u32 s31, 0')
                a('s_cbranch_scc0 L_k2')
                gate_wait(8, 217)
                a.label('L_k2')
            kload(idx)
            if c['ga'] == idx + 1: gate_open(0)
    krange(D, GQ)
    vE = vA + 16
    qx3 = 'buffer_load_dwordx4 %s, v14, s[20:23], s56 offen sc1' % vr(vE) + nt('q')
    if c['split3']:
        a('s_cmp_eq_u32 s5, 1')
        a('s_cbranch_scc0 L_k6')
        a(qx3)
        a.label('L_k6')
    def krest():
        ks.seq += ['q0', 'q1']
        krange(GQ, 16)
        stamp(2)
        a('s_waitcnt lgkmcnt(0)')
        mktag()
        if c['split3']:
            a('s_cmp_eq_u32 s5, 1')
            a('s_cbranch_scc1 L_k7')
            a('v_mov_b32 v%d, s6' % (vE + 3))
            a.label('L_k7')
        if c['wo_at']: wo_setup()
        ks.wait('q1')
        gate_open(1)
    poll('L_pq', ['buffer_load_dwordx4 %s, v8, s[20:23], s56 offen offset:%d sc1' % (vr(vA + 4 * k), 1024 * k) + nt('q') for k in range(2)],
         [vA + 3, vA + 7] + [vE + 3] * c['split3'], between=krest, wait=None, alt=(c['qdual'], 56, 57), extra=[qx3] * c['split3'])
    stamp(3)
    pkadd(vA, vA, vA + 4)
    if c['split3']:
        a('v_permlane32_swap_b32 v%d, v%d' % (vE + 4, vE))
        a('v_permlane32_swap_b32 v%d, v%d' % (vE + 5, vE + 1))
        pkadd(vE, vE, vE + 4)
        pkadd(vA, vA, vE)
    a('v_cvt_pk_bf16_f32 v%d, v%d, v%d' % (vA, vA, vA + 1))
    a('ds_write_b32 v12, v%d offset:%d' % (vA, L_QL))
    gate_open(2)
    gate_wait(2, 217)
    for h in range(2):
        for t in range(4):
            a('ds_read_b128 %s, v9 offset:%d' % (vr(vQ + 16 * h + 4 * t), L_QL + 512 * h + 128 * t))
    if c['wo_at'] == 2: wo_issue_if()
    a('s_waitcnt lgkmcnt(0)')
    stamp(4)
    acc = lambda i, h: vA + 8 + 4 * h + i
    for i in range(4):
        assert c['wo_at'] != 2 or GQ == 16
        ks.wait(4 * i + 3)
        for t in range(4):
            for d in range(4):
                for h in range(2):
                    a('v_dot2c_f32_bf16 v%d, v%d, v%d' % (acc(i, h), vK + 16 * i + 4 * t + d, vQ + 16 * h + 4 * t + d))
    X = acc(0, 0)
    for i in range(4): dpp('v_add_f32', X + i, X + i, X + i, 'row_half_mirror', 'row_mask:0xf bank_mask:0x5')
    for i in range(4): dpp('v_add_f32', X + i, X + 4 + i, X + 4 + i, 'row_half_mirror', 'row_mask:0xf bank_mask:0xa')
    for i in range(4): dpp('v_add_f32', X + i, X + i, X + i, QP1)
    a('v_cndmask_b32_e64 v%d, v%d, v%d, s[58:59]' % (X, X, X + 1))
    a('v_cndmask_b32_e64 v%d, v%d, v%d, s[58:59]' % (X + 2, X + 2, X + 3))
    dpp('v_add_f32', X, X, X, QP2)
    dpp('v_add_f32', X + 2, X + 2, X + 2, QP2)
    a('v_cndmask_b32_e64 v%d, v%d, v%d, s[60:61]' % (X, X, X + 2))
    rnd(X, X)
    a('ds_write_b32 v13, v%d offset:%d' % (X, L_S))
    gate_open(3)
    stamp(5)
    h0_gather()
    def xflag(left):
        a('s_waitcnt vmcnt(%d)' % left)
        a('v_cmp_ne_u32 vcc, s6, v223')
        a('v_cmp_ne_u32_e64 s[96:97], s44, v222')
        a('s_or_b32 s7, vcc_lo, s96')
        a('s_cselect_b32 s7, 2, %d' % (2 if c['force_sc1'] else 1))
        a('v_mov_b32 v219, s7')
        a('ds_write_b32 v217, v219 offset:%d' % (L_GATE + 16 * 7))
    a('s_cmp_eq_u32 s5, 3')
    a('s_cbranch_scc1 L_k3')
    a('s_cmp_ge_u32 s4, 14')
    a('s_cbranch_scc1 L_aux6')
    if c['wo_at'] == 4: gate_wait(4, 221)
    if c['wo_at'] >= 3: wo_issue()
    a('s_waitcnt vmcnt(0)')
    a('s_branch L_wt')

    a.label('L_k3')
    a('s_mov_b32 exec_hi, 0')
    a('buffer_load_dwordx2 v[222:223], v218, s[20:23], s46 offen sc1' + nt('t'))
    a('s_mov_b32 exec_hi, -1')
    a('s_lshl3_add_u32 s45, s54, s46')
    a('s_add_u32 s57, s45, 0x%x' % (WS_XB - WS_X))
    a('v_lshrrev_b32 v10, 5, v1')
    a('v_lshl_add_u32 v14, v10, 4, v8')
    a('v_lshlrev_b32 v10, 3, v10')
    a('s_lshl_b32 s7, s4, 7')
    a('s_add_u32 s46, s46, s7')
    a('v_mov_b32 v13, s6')
    gate_wait(3, 217)
    a('ds_read_b128 %s, v8 offset:%d' % (vr(vA), L_S))
    a('s_waitcnt lgkmcnt(0)')
    softmax_head(vA)
    a('v_rcp_f32 v%d, v%d' % (vA + 5, vA + 6))
    a('v_log_f32 v12, v%d' % (vA + 6))
    for k in range(4): a('v_mul_f32 v%d, v%d, v%d' % (vA + k, vA + k, vA + 5))
    for k in range(4): a('v_cvt_pk_bf16_f32 v%d, v%d, v%d' % (vA + k, vA + k, vA + k))
    a('ds_write_b128 v14, %s offset:%d' % (vr(vA), L_P))
    a('ds_write_b32 v221, v220 offset:%d' % (L_GATE + 16 * 5 - 12))
    a('v_add_f32 v12, v12, v%d' % (vA + 4))
    def lse_store(sc):
        a('s_mov_b32 exec_lo, 1'); a('s_mov_b32 exec_hi, 1')
        a('buffer_store_dwordx2 v[12:13], v10, s[20:23], s46 offen offset:16' + sc)
        a('s_mov_b64 exec, -1')
    lse_store('')
    xflag(1)
    a('s_add_u32 s46, s46, 0x%x' % (WS_XB - WS_X))
    a('s_cmp_ge_u32 s4, 14')
    stamp(6)
    a('s_cbranch_scc0 L_k4')
    lse_store(' sc1' + nt('s'))
    a('s_branch L_aux6')
    a.label('L_k4')
    gate_wait(4, 221)
    late = c['wo_at'] >= 3
    def lrest():
        if late: wo_issue()
        lse_store(' sc1' + nt('s'))
    poll('L_pl', ['buffer_load_dwordx2 v[14:15], v218, s[20:23], s45 offen offset:16 sc1'], [15],
         between=lrest, wait='vmcnt(%d)' % (9 if late else 1), alt=(c['ldual'], 45, 57))
    stamp(7)
    a('v_mov_b32 v16, v14')
    allred32('v_max_f32', 16, 17)
    a('v_sub_f32 v14, v14, v16')
    a('v_exp_f32 v14, v14')
    a('v_and_b32 v10, 0x70, v8')
    a('v_mov_b32 v16, v14')
    allred32('v_add_f32', 16, 17)
    a('v_rcp_f32 v16, v16')
    a('v_bfe_u32 v11, v1, 3, 2')
    a('v_lshl_add_u32 v10, v11, 2, v10')
    a('v_mul_f32 v14, v14, v16')
    a('ds_write_b32 v10, v14 offset:%d' % L_WT)
    a('s_waitcnt vmcnt(1) lgkmcnt(0)')
    a('s_branch L_wt')
    a.label('L_aux6')
    a('s_waitcnt lgkmcnt(0)')
    a('s_cmp_ge_u32 s4, 16')
    a('s_cbranch_scc0 L_aux7')
    a('s_sub_u32 s3, s3, 1')
    a('s_cbranch_scc1 L_fin')
    a('s_sub_u32 s54, s4, 16')
    a('s_lshl4_add_u32 s54, s3, s54')
    a('v_lshrrev_b32 v10, 3, v1')
    dma_voff(8 * 3584)
    a('s_bitcmp1_b32 s4, 0')
    a('s_cselect_b64 s[24:25], s[28:29], s[24:25]')
    a('s_mul_i32 s44, s5, 3584')
    a('s_lshr_b32 s7, s54, 2')
    a('s_lshl_b32 s7, s7, 7')
    a('s_add_u32 s44, s44, s7')
    a('s_bitcmp1_b32 s4, 1')
    for i in range(7):
        r0, r1 = [64 * (x >> 1) + 4 * (x & 1) for x in (i, 7 + i)]
        a('s_mov_b32 s7, %d' % (r0 * 3584))
        a('s_cselect_b32 s%d, %d, s7' % (8 + i, r1 * 3584))
    for i in range(7): a('s_add_u32 s%d, s%d, s44' % (8 + i, 8 + i))
    a('s_lshl_b32 s7, s5, 10')
    a('s_add_u32 m0, s7, %d' % L_T)
    a('s_branch L_ft')
    a.label('L_aux7')
    if c['near']:
        a('s_cmp_eq_u32 s5, 3')
        a('s_cbranch_scc1 L_aux8')
        probe(c['pk'])
        stamp(7)
        a.label('L_aux8')
        gate_open(10)
        a('s_cmp_eq_u32 s5, 0')
        a('s_cbranch_scc0 L_aux9')
        a('s_lshl_b32 s7, s4, 7')
        a('s_add_u32 s46, s46, s7')
        a('v_mov_b32 v13, s6')
        gate_wait(10, 217)
        a('ds_read_b64 v[218:219], v221 offset:%d' % (L_GATE + 16 * 9))
        a('s_waitcnt lgkmcnt(0)')
        a('v_cmp_lt_u32 vcc, v218, v219')
        a('v_cndmask_b32_e64 v12, 0, -1, vcc')
        a('s_mov_b64 exec, 1')
        a('buffer_store_dwordx2 v[12:13], off, s[20:23], s46 offset:32')
        a.label('L_aux9')
    a('s_barrier')
    leave()
    flush_retry()

    a.section('v')
    if c['wo_at'] == 0:
        a.label('L_v1')
        a('s_cmp_ge_u32 s4, 14')
        a('s_cbranch_scc1 L_v')
        wo_setup()
        a('s_waitcnt lgkmcnt(0)')
        wo_issue()
    a.label('L_v')
    common()
    a('s_waitcnt lgkmcnt(0)')
    mktag()
    xpub(3)
    a.label('L_v3')
    kv_addr()
    srd(12, 1 << 26)
    a('s_lshl_b32 s44, s44, 12')
    a('s_lshl_b32 s7, s55, 7')
    a('s_add_u32 s44, s44, s7')
    a('v_lshlrev_b32_e64 v221, 2, s55')
    a('v_mov_b32 v220, 1')
    a('v_and_b32 v10, 3, v1')
    a('v_lshlrev_b32 v217, 2, v10')
    a('v_bfe_u32 v11, v1, 3, 1')
    a('v_lshrrev_b32 v12, 4, v1')
    a('v_mul_u32_u24 v15, 528, v11')
    a('v_lshl_add_u32 v15, v12, 7, v15')
    a('v_lshrrev_b32 v10, 5, v1')
    a('v_bfe_u32 v11, v1, 2, 1')
    a('v_lshl_add_u32 v10, v10, 3, v11')
    a('v_mul_u32_u24 v10, %d, v10' % BLK)
    a('v_and_b32 v11, 3, v1')
    a('v_lshl_add_u32 v10, v11, 4, v10')
    a('v_bfe_u32 v11, v1, 4, 1')
    a('v_lshl_add_u32 v9, v11, 6, v10')
    a('s_lshl3_add_u32 s7, s3, s55')
    a('s_mul_i32 s57, s7, %d' % (2 * BLK))
    a('s_lshl_b32 s7, s4, 7')
    a('s_add_u32 s57, s57, s7')
    a('s_add_u32 s57, s57, 0x%x' % WS_H0)
    if c['touch'] in ('nw', 'wn', 'l'):
        a('v_not_b32 v75, s6')
        a('s_mov_b32 exec_lo, 0x00ff00ff'); a('s_mov_b32 exec_hi, 0x00ff00ff')
        for x in c['touch']:
            if x == 'w': a('buffer_store_dwordx4 v[72:75], v9, s[20:23], s57 offen')
            else: a('buffer_load_dwordx4 v[16:19], v9, s[20:23], s57 offen' + (' nt' if x == 'n' else c['tfl']))
        a('s_mov_b64 exec, -1')
    h0_gather()
    for k in range(8): a('v_mov_b32 v%d, 0' % (vC0 + k))
    a('v_mov_b32 v75, s6')
    NB = c['nb']
    GV = 217 if c['gall'] else 221
    gate_wait(0, GV)
    stamp(2)
    vs = Stream()
    def vload(n):
        if n > 0: a('s_xor_b32 s44, s44, 0x%x' % ((n ^ (n - 1)) << 12))
        a('buffer_load_dwordx4 %s, v%d, s[12:15], s44 offen nt' % (vr(vV + 4 * n), vKO))
        vs.seq.append(n)
        if n == 15:
            stamp(3)
            gate_open(4)
    for n in range(NB):
        if n == c['na']: gate_wait(1, GV)
        vs.throttle(n, DV)
        vload(n)
    stamp(4)
    gate_wait(5, 219)
    for z in range(8): a('ds_read_b128 %s, v15 offset:%d' % (vr(vP + 4 * z), L_P + 16 * z))
    a('s_waitcnt lgkmcnt(0)')
    stamp(6)
    nxt = NB
    if c['prio']: a('s_setprio %d' % c['prio'])
    def pand(k):
        for r in range(4): a('v_and_b32 v%d, v%d, v%d' % (vT + 4 * (k & 3) + r, vP + k, vM + r))
    pand(0); pand(1)
    for k in range(32):
        n = k >> 1
        if k == 26: a('ds_read_b32 v219, v217 offset:%d' % (L_GATE + 16 * 7))
        if k == 30:
            a('s_waitcnt lgkmcnt(0)')
            a.label('L_xf_chk')
            a('v_cmp_eq_u32 vcc, 0, v219')
            a('s_cbranch_vccnz L_xf_retry')
            a('v_cmp_ne_u32 vcc, 1, v219')
            a('s_cmp_eq_u64 vcc, 0')
            a('s_cselect_b32 s47, -1, 0')
            a('s_and_b32 s58, s47, 0x00ff00ff'); a('s_mov_b32 s59, s58')
            a('s_andn2_b32 s60, 0x00ff00ff, s47'); a('s_mov_b32 s61, s60')
        if k & 1 == 0:
            vs.wait(n)
            while nxt < 16 and nxt - 1 - n < c['pvd']:
                vload(nxt); nxt += 1
        mfma(vC1 if k & 1 else vC0, vT + 4 * (k & 3), vV + 4 * n, 1)
        if k < 30: pand(k + 2)
    stamp(7)
    for r in (3, 0, 1, 2): dpp('v_add_f32', vC0 + r, vC1 + r, vC0 + r, 'row_ror:8')
    pack24(72, vC0)
    store2(72, 9, 57)
    a('s_cmp_ge_u32 s4, 14')
    a('s_cbranch_scc1 L_ft0')

    a.label('L_wt')
    a('s_barrier')
    stamp(8)
    WT = 36
    def wsetup():
        a('v_lshrrev_b32 v10, 3, v1')
        a('v_lshlrev_b32 v10, 4, v10')
        a('ds_read_b128 %s, v10 offset:%d' % (vr(WT), L_WT))
        tr_addr()
        tr_read()
        a('v_mul_u32_u24 v13, 144, v11')
        a('v_lshl_add_u32 v13, s5, 4, v13')
        a('v_lshrrev_b32 v10, 2, v1')
        a('v_mul_u32_u24 v14, 144, v10')
        a('v_and_b32 v11, 3, v1')
        a('v_lshl_add_u32 v14, v11, 5, v14')
        a('v_and_b32 v11, 1, v10')
        a('v_lshrrev_b32 v10, 1, v10')
        a('v_lshlrev_b32 v10, 4, v10')
        a('v_lshl_add_u32 v12, v11, 7, v10')
        a('v_and_b32 v11, 1, v1')
        a('v_lshl_add_u32 v12, v11, 13, v12')
        a('s_lshl1_add_u32 s7, s3, s54')
        a('s_and_b32 s44, s7, 3')
        a('s_mul_i32 s44, s44, %d' % (HS - 4096))
        a('s_lshl_b32 s7, s7, 12')
        a('s_add_u32 s44, s44, s7')
        a('s_mul_i32 s45, s54, 7')
        a('s_sub_u32 s45, s4, s45')
        a('s_lshl_b32 s45, s45, 8')
        a('s_add_u32 s44, s44, s45')
        a('s_add_u32 s44, s44, 0x%x' % WS_H1)
        a('s_mov_b32 s58, 0x00010001'); a('s_mov_b32 s59, 0x00010001')
        a('s_mov_b32 s60, 0x%x' % (0x33333333 if c['near'] else 0x11111111)); a('s_mov_b32 s61, s60')
        a('v_mov_b32 v75, s6')
    poll('L_p0', ['buffer_load_dwordx4 %s, v8, s[20:23], s56 offen offset:%d sc1' % (vr(G0 + 4 * k), 1024 * k) for k in range(4)],
         [G0 + 3, G1 + 3, G2 + 3, G3 + 3], between=wsetup, wait='vmcnt(0) lgkmcnt(0)')
    stamp(9)
    unpackn([G0, G1, G2, G3])
    for k in range(4):
        w, hi = WT + (k & 2), k & 1
        for p in (0, 2):
            if k == 0:
                a('v_pk_mul_f32 %s, %s, %s op_sel:[0,0] op_sel_hi:[1,0]' % (vr(G0 + p, 2), vr(G0 + p, 2), vr(w, 2)))
            else:
                a('v_pk_fma_f32 %s, %s, %s, %s op_sel:[0,%d,0] op_sel_hi:[1,%d,1]' % (vr(G0 + p, 2), vr(G0 + 4 * k + p, 2), vr(w, 2), vr(G0 + p, 2), hi, hi))
    scatter4(G0)
    vec32(vAX, G0, 0xf)
    for t in range(4): mfma(vD + 4 * t, vB + 4 * t, vAX, 0)
    a('s_mov_b64 exec, s[58:59]')
    for t in range(4): a('ds_write_b128 v13, %s offset:%d' % (vr(vD + 4 * t), L_RED + 576 * t))
    a('s_mov_b64 exec, -1')
    a('s_cmp_eq_u32 s5, 0')
    a('s_waitcnt lgkmcnt(0)')
    stamp(10)
    a('s_barrier')
    a('s_cbranch_scc0 L_d0')
    a('ds_read_b128 %s, v14 offset:%d' % (vr(G0), L_RED))
    a('ds_read_b128 %s, v14 offset:%d' % (vr(G1), L_RED + 16))
    a('s_waitcnt lgkmcnt(0)')
    pkadd(G0, G0, G1); pkadd(G0 + 2, G0 + 2, G1 + 2)
    for ctl in (QP1, QP2):
        for k in range(4): dpp('v_add_f32', G0 + k, G0 + k, G0 + k, ctl)
    a('s_mov_b64 exec, s[60:61]')
    pack24(72, G0)
    a('buffer_store_dwordx4 v[72:75], v12, s[20:23], s44 offen sc1')
    stamp(12)
    a('s_barrier')
    leave()
    flush_retry()

    a.label('L_xf_retry')
    a('ds_read_b32 v219, v217 offset:%d' % (L_GATE + 16 * 7))
    a('s_waitcnt lgkmcnt(0)')
    a('s_branch L_xf_chk')

    a.label('L_ft0')
    a('s_cmp_ge_u32 s4, 16')
    a('s_cbranch_scc0 L_d1')
    a('s_sub_u32 s3, s3, 1')
    a('s_cbranch_scc0 L_fkv')
    a.label('L_fin')
    a('s_cmp_ge_u32 s4, 30')
    leave_if('scc1')
    a('s_barrier')
    if c['near']: side_load(True)
    a('s_sub_u32 s54, s4, 16')
    line_voff()
    a('v_and_b32 v13, 7, v1')
    a('v_lshl_add_u32 v14, v10, 3, v13')
    a('v_mul_u32_u24 v14, 48, v14')
    a('v_lshl_add_u32 v10, s5, 2, v14')
    line_soff(54)
    a('s_add_u32 s7, s5, 1')
    a('s_and_b32 s7, s7, 7')
    a('s_lshl_b32 s7, s7, 16')
    a('s_add_u32 s44, s44, s7')
    assert WS_H2 == WS_H1 + 0x10000
    side_add('L_sf')
    a('s_cmp_eq_u32 s5, 7')
    a('s_cbranch_scc1 L_fin7')
    two = ['buffer_load_dwordx4 %s, v9, s[20:23], s44 offen sc1' % vr(G0),
           'buffer_load_dwordx4 %s, v9, s[20:23], s45 offen sc1' % vr(G1)]
    if c['h2late']: a('s_barrier')
    poll('L_p2', two, [G0 + 3, G1 + 3])
    stamp(13)
    sum2scatter()
    a('ds_write_b32 v10, v%d offset:%d' % (G0, L_RED))
    a('s_waitcnt lgkmcnt(0)')
    a('s_barrier')
    leave()
    side_retry('L_sf')
    flush_retry()

    a.label('L_fin7')
    a('v_mov_b32 v11, 0')
    a('ds_write_b32 v10, v11 offset:%d' % L_RED)
    a('v_bfe_u32 v11, v1, 3, 1')
    a('v_lshl_add_u32 v14, v11, 4, v14')
    a('s_mov_b32 s58, 0x00ff00ff'); a('s_mov_b32 s59, 0x00ff00ff')
    a('buffer_load_ushort v15, v12, s[36:39], s46 offen' + nt('x'))
    if c['ot']: a('buffer_load_ushort v216, v12, s[40:43], s46 offen')
    poll('L_p3', two, [G0 + 3, G1 + 3])
    if c['h2late']: a('s_barrier')
    stamp(10)
    a('v_mov_b32 v10, s6')
    a('s_cmp_eq_u32 s54, 0')
    a('s_cselect_b64 exec, 1, 0')
    a('buffer_store_dword v10, off, s[20:23], 0')
    a('s_mov_b64 exec, -1')
    sum2scatter()
    a('v_lshlrev_b32 v15, 16, v15')
    rnd(G0, G0)
    a('v_add_f32 v15, v%d, v15' % G0)
    rnd(15, 15)
    a('s_waitcnt lgkmcnt(0)')
    a('s_barrier')
    a('ds_read_b128 %s, v14 offset:%d' % (vr(G0), L_RED))
    a('s_waitcnt lgkmcnt(0)')
    stamp(13)
    pkadd(G0, G0, G0 + 2)
    a('v_add_f32 v%d, v%d, v%d' % (G0, G0, G0 + 1))
    dpp('v_add_f32', G0, G0, G0, 'row_ror:8')
    rnd(G0, G0)
    a('v_add_f32 v%d, v%d, v15' % (G0, G0))
    a('v_cvt_pk_bf16_f32 v%d, v%d, v%d' % (G0, G0, G0))
    a('s_mov_b64 exec, s[58:59]')
    a('buffer_store_short v%d, v12, s[40:43], s46 offen' % G0)
    leave()
    flush_retry()

    a.label('L_fkv')
    a('s_barrier')
    stamp(8)
    a('s_cmp_eq_u32 s5, 7')
    a('s_cbranch_scc0 L_fall')
    for k in range(2): a('v_mov_b32 v%d, 0' % (G0 + k))
    a('v_mul_u32_u24 v14, 80, v1')
    a('ds_write_b64 v14, %s offset:%d' % (vr(G0, 2), L_RED + 56))
    a('ds_write_b32 v%d, v%d offset:%d' % (G0, G0, L_STAT + 28))
    a('ds_write_b32 v%d, v%d offset:%d' % (G0, G0, L_STAT + 60))
    a('s_and_b32 s7, s4, 1')
    a('s_xor_b32 s7, s7, 1')
    a('s_lshl_b32 s7, s7, 5')
    a('v_mov_b32 v13, s7')
    a('v_lshrrev_b32 v10, 4, v1')
    a('v_mul_u32_u24 v10, %d, v10' % GXS)
    a('v_and_b32 v11, 3, v1')
    a('v_lshl_add_u32 v10, v11, 6, v10')
    a('v_bfe_u32 v11, v1, 2, 2')
    a('v_lshl_add_u32 v9, v11, 4, v10')
    a('s_and_b32 s7, s4, 12')
    a('s_lshl4_add_u32 s7, s3, s7')
    a('s_mul_i32 s57, s7, %d' % GXS)
    a('s_and_b32 s7, s4, 3')
    a('s_lshl_b32 s7, s7, 8')
    a('s_add_u32 s57, s57, s7')
    a('s_add_u32 s57, s57, 0x%x' % WS_GX)
    if c['gxt'] == 2:
        a('v_not_b32 v71, s6')
        a('buffer_store_dwordx4 v[68:71], v9, s[20:23], s57 offen')
    if c['gxt']: a('buffer_load_dwordx4 v[64:67], v9, s[20:23], s57 offen' + (' nt' if c['gxt'] > 1 else ''))
    a('s_mov_b32 s58, s47'); a('s_mov_b32 s59, s47')
    a('s_not_b64 s[60:61], s[58:59]')
    a('s_waitcnt lgkmcnt(0)')
    a('s_barrier')
    a('s_barrier')
    for k in range(4): a('ds_read_b128 %s, v14 offset:%d' % (vr(G0 + 4 * k), L_RED + 16 * k))
    for k in range(2): a('ds_read_b128 %s, v13 offset:%d' % (vr(32 + 4 * k), L_STAT + 16 * k))
    a('s_waitcnt lgkmcnt(%d)' % (0 if diag else 4))
    pkadd(G0, G0, G0 + 2); pkadd(G1, G1, G1 + 2)
    if not diag: a('s_waitcnt lgkmcnt(2)')
    pkadd(G2, G2, G2 + 2); pkadd(G3, G3, G3 + 2)
    pkadd(G0, G0, G1); pkadd(G2, G2, G3)
    if not diag: a('s_waitcnt lgkmcnt(0)')
    pkadd(32, 32, 34); pkadd(36, 36, 38)
    pkadd(72, G0, G2)
    pkadd(32, 32, 36)
    a('v_add_f32 v74, v32, v33')
    store2(72, 9, 57)
    stamp(11)
    leave()

    a.label('L_ft')
    a('s_barrier')
    stamp(8)
    for i in range(7):
        a('buffer_load_dwordx4 v2, s[24:27], s%d offen nt lds' % (8 + i))
        if i < 6: a('s_add_u32 m0, m0, 0x1000')
    a.label('L_fall')
    line_voff()
    a('s_bfe_u32 s7, s4, 0x10001')
    a('s_mul_i32 s7, s7, 7')
    a('s_add_u32 s55, s7, s5')
    line_soff(55)
    a('buffer_load_ushort v15, v12, s[36:39], s46 offen' + nt('x'))
    if c['near']: side_load(True)
    tr_addr()
    for k in range(4): a('v_mov_b32 v%d, 0x3f803f80' % (vAX + k))
    a('v_and_b32 v10, 15, v1')
    a('v_lshrrev_b32 v11, 5, v1')
    a('v_mul_u32_u24 v13, 80, v10')
    a('v_lshl_add_u32 v13, v11, 2, v13')
    a('v_lshl_add_u32 v13, s5, 3, v13')
    a('v_add_u32 v13, %d, v13' % L_RED)
    a('v_lshl_add_u32 v14, v10, 1, v11')
    a('v_lshlrev_b32 v14, 5, v14')
    a('v_lshl_add_u32 v14, s5, 2, v14')
    a('s_mov_b32 s60, 0xffff'); a('s_mov_b32 s61, 0xffff')
    side_add('L_sd')
    a('s_barrier')
    stamp(9)
    poll('L_p1', two, [G0 + 3, G1 + 3], between=tr_read, wait='vmcnt(0) lgkmcnt(0)')
    stamp(10)
    a('v_lshlrev_b32 v15, 16, v15')
    sum2scatter()
    rnd(G0, G0)
    a('v_add_f32 v%d, v%d, v15' % (G0, G0))
    vec32(vAX, G0, 0x3)
    for t in range(4): mfma(vD + 4 * t, vAX, vB + 4 * t, 0)
    mfma(vD + 16, vAX, vAX, 0)
    a('s_mov_b64 exec, s[60:61]')
    a('ds_write2st64_b32 v13, v%d, v%d offset0:0 offset1:5' % (vD, vD + 4))
    a('ds_write2st64_b32 v13, v%d, v%d offset0:10 offset1:15' % (vD + 8, vD + 12))
    a('ds_write_b32 v14, v%d offset:%d' % (vD + 16, L_STAT))
    a('s_waitcnt lgkmcnt(0)')
    a('s_barrier')
    leave()
    side_retry('L_sd')
    flush_retry()

    a.label('L_d0')
    a('s_cmp_ge_u32 s5, 4')
    if diag:
        a('s_cbranch_scc1 L_d1')
        a('s_barrier')
    leave_if('scc0')
    a.label('L_d1')
    a('s_sub_u32 s3, s3, 1')
    a('s_barrier')
    leave_if('scc1')
    a('s_lshl4_add_u32 s54, s3, s4')
    a('v_lshrrev_b32 v12, 4, v1')
    a('v_mul_u32_u24 v10, 896, v12')
    a('v_and_b32 v11, 15, v1')
    a('v_lshl_add_u32 v11, s55, 4, v11')
    a('v_lshl_add_u32 v3, v11, 4, v10')
    a('v_cmp_gt_u32 vcc, 56, v11')
    a('v_cndmask_b32 v3, 2.0, v3, vcc')
    a('s_mul_i32 s16, s54, %d' % (16 * 896))
    a('s_add_u32 s17, s16, 7168')
    for t in range(4):
        a('buffer_load_dwordx4 %s, v3, s[32:35], s%d offen offset:%d nt' % (vr(vW + 4 * t), 16 + (t >> 1), 3584 * (t & 1)))
    a('v_bfe_u32 v10, v1, 2, 2')
    a('v_lshl_add_u32 v10, v10, 2, v12')
    a('v_and_b32 v11, 0x30, v8')
    a('v_lshl_add_u32 v40, v10, 6, v11')
    a('s_mul_i32 s56, s54, %d' % GXS)
    a('s_add_u32 s56, s56, 0x%x' % WS_GX)
    def dsetup():
        a('v_and_b32 v10, 0x70, v8')
        a('v_bfe_u32 v11, v1, 3, 1')
        a('v_lshl_add_u32 v10, v11, 8, v10')
        a('v_bfe_u32 v11, v1, 4, 1')
        a('v_lshl_add_u32 v10, v11, 7, v10')
        a('v_lshrrev_b32 v11, 5, v1')
        a('v_lshl_add_u32 v41, v11, 13, v10')
        a('s_and_b32 s57, s54, 3')
        a('s_mul_i32 s57, s57, %d' % (HS - 4096))
        a('s_lshl3_add_u32 s7, s54, s55')
        a('s_lshl_b32 s7, s7, 9')
        a('s_add_u32 s57, s57, s7')
        a('s_add_u32 s57, s57, 0x%x' % WS_H2)
        a('s_cmp_eq_u32 s55, 3')
        a('s_cselect_b32 s58, 0x00ff00ff, -1')
        a('s_mov_b32 s59, %s' % ('s58' if c['near'] else '0'))
        k0 = 2 * math.sqrt(2 / math.pi) * math.log2(math.e)
        a('v_mov_b32 v42, %s' % f32(-k0))
        a('v_mov_b32 v43, %s' % f32(1.0 / 448))
        a('s_mov_b32 s18, %s' % f32(1.0 / 448))
        a('s_mov_b32 s19, %s' % f32(-k0 * 0.044715))
        a('v_mov_b32 v75, s6')
        if diag:
            a('s_waitcnt vmcnt(1)')
            stamp(13)
    poll('L_pg', ['buffer_load_dwordx4 %s, v40, s[20:23], s56 offen sc1' % vr(G0)], [G0 + 3], between=dsetup)
    stamp(11)
    V, CS, ST, MU, E2, T = G0, G0 + 1, G0 + 2, G1, G1 + 1, G1 + 2
    dpp('v_add_f32', ST, ST, ST, 'row_ror:8')
    dpp('v_add_f32', V, V, V, 'row_ror:8')
    a('v_mul_f32 v%d, s18, v%d' % (MU, ST))
    a('v_mul_f32 v%d, s18, v%d' % (E2, ST))
    dpp('v_mul_f32', MU, ST, 43, 'row_ror:4', 'row_mask:0xf bank_mask:0xa')
    dpp('v_mul_f32', E2, ST, 43, 'row_ror:4', 'row_mask:0xf bank_mask:0x5')
    dpp('v_add_f32', CS, CS, CS, 'row_ror:8')
    a('v_fma_f32 v%d, -v%d, v%d, v%d' % (E2, MU, MU, E2))
    rnd(MU, MU)
    a('v_max_f32 v%d, 0, v%d' % (E2, E2))
    rnd(E2, E2)
    a('v_add_f32 v%d, %s, v%d' % (E2, f32(1e-5), E2))
    rnd(E2, E2)
    a('v_sqrt_f32 v%d, v%d' % (E2, E2))
    a('v_fma_f32 v%d, -v%d, v%d, v%d' % (V, MU, CS, V))
    rnd(E2, E2)
    a('v_rcp_f32 v%d, v%d' % (E2, E2))
    a('v_mul_f32 v%d, v%d, v%d' % (V, V, E2))
    rnd(V, V)
    a('v_mul_f32 v%d, v%d, v%d' % (T, V, V))
    a('v_fmac_f32 v42, s19, v%d' % T)
    a('v_mul_f32 v%d, v42, v%d' % (T, V))
    a('v_exp_f32 v%d, v%d' % (T, T))
    a('v_add_f32 v%d, 1.0, v%d' % (T, T))
    a('v_rcp_f32 v%d, v%d' % (T, T))
    a('v_mul_f32 v%d, v%d, v%d' % (T, V, T))
    rnd(T, T)
    dpp('v_mul_f32', T, V, T, 'row_ror:4')
    a('v_cvt_pk_bf16_f32 v%d, v%d, v%d' % (T, T, T))
    for t in range(4):
        for r in range(4):
            dpp('v_and_b32', vT + 4 * t + r, T, vM + r, 'row_newbcast:%d' % t)
            if t > 0 and r == 1: mfma(vC0, vT + 4 * t - 4, vW + 4 * t - 4, t > 1)
    mfma(vC0, vT + 12, vW + 12, 1)
    a('s_mov_b64 exec, s[58:59]')
    pack24(72, vC0)
    a('buffer_store_dwordx4 v[72:75], v41, s[20:23], s57 offen sc1')
    stamp(12)
    leave()
    flush_retry()

    a.section('q')
    a.label('L_v0')
    far = 'L_v1' if c['wo_at'] == 0 else 'L_v'
    a('s_cmp_lg_u32 s31, 0')
    a('s_cbranch_scc1 L_qw')
    a('s_waitcnt lgkmcnt(0)')
    a('s_load_dword s6, s[20:21], 0')
    a('s_barrier')
    a('s_branch %s' % far)
    a.label('L_qw')
    vWQ, vXN = 16, 128
    srd(16, 448 * 8192)
    srd(36, 896)
    a('v_lshlrev_b32 v8, 4, v1')
    a('v_lshrrev_b32 v12, 3, v1')
    a('v_mul_u32_u24 v3, %d, v12' % (28 * 8192))
    a('v_and_b32 v10, 0x70, v8')
    a('v_add_u32 v3, v3, v10')
    a('s_bfe_u32 s54, s4, 0x30001')
    if c['split3']:
        a('s_cmp_eq_u32 s54, 3')
        a('s_cselect_b32 vcc_hi, 0, -1')
        a('s_cmp_ge_u32 s4, 16')
        a('s_cselect_b32 vcc_lo, -1, 0')
        a('s_cselect_b32 s54, s54, 3')
        a('s_lshl3_add_u32 s54, s3, s54')
        a('v_cndmask_b32 v3, 2.0, v3, vcc')
    else:
        a('s_lshl3_add_u32 s54, s3, s54')
        a('s_cmp_ge_u32 s4, 16')
        a('s_cselect_b32 s54, s54, s3')
    a('s_and_b32 s44, s4, 1')
    a('s_lshl_b32 s44, s44, 5')
    a('s_add_u32 s44, s44, s55')
    a('s_mul_i32 s45, s44, %d' % (7 * 64))
    a('s_add_u32 s45, s45, s54')
    a('s_lshl_b32 s45, s45, 7')
    a('s_movk_i32 s46, 0x2000')
    a('s_waitcnt lgkmcnt(0)')
    stamp(1)
    a('buffer_load_dwordx4 %s, v8, s[36:39], 0 offen' % vr(vA) + nt('x'))
    a('s_load_dword s6, s[20:21], 0')
    for n in range(7):
        a('buffer_load_dwordx4 %s, v3, s[16:19], s45 offen nt' % vr(vWQ + 4 * n))
        if n < 6: a('s_add_u32 s45, s45, s46')
    a('s_barrier')
    common(False)
    x, S1, S2 = vA + 8, vA + 4, vA + 5
    a('v_mov_b32 v%d, 0' % S1)
    a('v_mov_b32 v%d, 0' % S2)
    a('v_mov_b32 v%d, 0x3f803f80' % (vA + 6))
    a('v_mov_b32 v%d, %s' % (vA + 7, f32(1.0 / 448)))
    a('v_lshlrev_b32 v13, 5, v1')
    a('v_mul_u32_u24 v14, 112, v12')
    a('s_mul_i32 s7, s44, 28')
    a('s_add_u32 s7, s7, %d' % L_XN)
    a('v_add_u32 v14, s7, v14')
    a('v_lshl_add_u32 v15, s55, 3, v13')
    a('v_and_b32 v10, 3, v1')
    a('v_lshlrev_b32 v217, 2, v10')
    a('v_lshlrev_b32_e64 v221, 2, s55')
    a('v_mov_b32 v220, 1')
    a('v_and_b32 v10, 7, v1')
    a('v_lshlrev_b32 v10, 6, v10')
    a('v_bfe_u32 v11, v1, 4, 1')
    a('v_lshl_add_u32 v10, v11, 5, v10')
    a('v_lshrrev_b32 v11, 5, v1')
    a('v_lshl_add_u32 v9, v11, 4, v10')
    a('s_lshr_b32 s7, s54, 1')
    a('s_and_b32 s44, s4, 1')
    a('s_lshl1_add_u32 s7, s7, s44')
    a('s_and_b32 s45, s54, 1')
    a('s_lshl1_add_u32 s7, s7, s45')
    if c['split3']:
        a('s_lshl1_add_u32 s45, s3, s44')
        a('s_add_u32 s45, s45, 0x%x' % ((WS_QX - WS_Q) >> 9))
        a('s_cmp_ge_u32 s4, 16')
        a('s_cselect_b32 s7, s7, s45')
    a('s_lshl_b32 s57, s7, 9')
    a('s_add_u32 s57, s57, 0x%x' % WS_Q)
    a('s_lshl_b32 s7, s55, 1')
    a('s_lshl_b32 s58, 0x00030003, s7'); a('s_mov_b32 s59, s58')
    qx = 1 if c['qt'] else 0
    if qx:
        a('s_mov_b64 exec, s[58:59]')
        a('buffer_load_dword v216, v9, s[20:23], s57 offen ' + ('sc1' if c['qt'] == 'v' else 'nt'))
        a('s_mov_b64 exec, -1')
    a('s_waitcnt vmcnt(%d)' % (7 + qx))
    for k in range(4):
        a('v_dot2c_f32_bf16 v%d, v%d, v%d' % (S1, vA + k, vA + 6))
        a('v_dot2c_f32_bf16 v%d, v%d, v%d' % (S2, vA + k, vA + k))
    unp = []
    for k in range(4):
        unp.append('v_lshlrev_b32 v%d, 16, v%d' % (x + 2 * k, vA + k))
        unp.append('v_and_b32 v%d, 0xffff0000, v%d' % (x + 2 * k + 1, vA + k))
    a(unp.pop()); a(unp.pop())
    for ctl, m in ((QP1, FULL), (QP2, FULL), ('row_half_mirror', FULL), ('row_mirror', FULL),
                   ('row_bcast:15', 'row_mask:0xa bank_mask:0xf'), ('row_bcast:31', 'row_mask:0xc bank_mask:0xf')):
        dpp('v_add_f32', S1, S1, S1, ctl, m)
        dpp('v_add_f32', S2, S2, S2, ctl, m)
        a(unp.pop())
    a('v_readlane_b32 s62, v%d, 63' % S1)
    a('v_readlane_b32 s63, v%d, 63' % S2)
    a('v_mul_f32 v%d, s62, v%d' % (S1, vA + 7))
    a('v_mul_f32 v%d, s63, v%d' % (S2, vA + 7))
    a('v_fma_f32 v%d, -v%d, v%d, v%d' % (S2, S1, S1, S2))
    rnd(S1, S1)
    a('v_max_f32 v%d, 0, v%d' % (S2, S2))
    rnd(S2, S2)
    a('v_add_f32 v%d, %s, v%d' % (S2, f32(1e-5), S2))
    rnd(S2, S2)
    a('v_sqrt_f32 v%d, v%d' % (S2, S2))
    for k in range(8): a('v_sub_f32 v%d, v%d, v%d' % (x + k, x + k, S1))
    rnd(S2, S2)
    a('v_rcp_f32 v%d, v%d' % (S2, S2))
    for k in range(8): rnd(x + k, x + k)
    for k in range(8): a('v_mul_f32 v%d, v%d, v%d' % (x + k, x + k, S2))
    for k in range(8): a('v_cvt_pk_bf16_f32 v%d, v%d, v%d' % (x + k, x + k, x + k))
    a('ds_write_b128 v13, %s offset:%d' % (vr(x), L_XN))
    a('ds_write_b128 v13, %s offset:%d' % (vr(x + 4), L_XN + 16))
    a('s_waitcnt lgkmcnt(0)')
    for z in range(3): a('ds_read2_b32 %s, v14 offset0:%d offset1:%d' % (vr(vXN + 2 * z, 2), 2 * z, 2 * z + 1))
    a('ds_read_b32 v%d, v14 offset:24' % (vXN + 6))
    mktag()
    qc = vA + 16
    a('v_mov_b32 v%d, s6' % (vA + 22))
    a('v_mov_b32 v%d, s6' % (vA + 23))
    xpub(1)
    a('s_waitcnt lgkmcnt(0)')
    def qand(n):
        for r in range(4): a('v_and_b32 v%d, v%d, v%d' % (vA + 4 * (n & 1) + r, vXN + n, vM + r))
    qand(0)
    for n in range(7):
        if n < 6: qand(n + 1)
        a('s_waitcnt vmcnt(%d)' % (6 + qx - n))
        mfma(qc, vA + 4 * (n & 1), vWQ + 4 * n, n)
    for r in range(4): a('v_mov_b32_dpp v%d, v%d row_ror:8 row_mask:0xc bank_mask:0xf' % (qc + r, qc + r))
    a('v_permlane32_swap_b32 v%d, v%d' % (qc, qc + 2))
    a('v_permlane32_swap_b32 v%d, v%d' % (qc + 1, qc + 3))
    pkadd(qc, qc, qc + 2)
    a('ds_write_b64 v15, %s offset:%d' % (vr(qc, 2), L_T))
    gate_open(6)
    xpub(2)
    gate_wait(6, 217)
    a('ds_read_b128 %s, v13 offset:%d' % (vr(vA), L_T))
    a('ds_read_b128 %s, v13 offset:%d' % (vr(vA + 4), L_T + 16))
    a('s_waitcnt lgkmcnt(0)')
    stamp(5)
    pkadd(vA, vA, vA + 2); pkadd(vA + 4, vA + 4, vA + 6)
    pkadd(vA + 20, vA, vA + 4)
    a('s_mov_b64 exec, s[58:59]')
    a('buffer_store_dwordx4 %s, v9, s[20:23], s57 offen' % vr(vA + 20))
    a('s_add_u32 s57, s57, 0x%x' % (WS_QB - WS_Q))
    a('buffer_store_dwordx4 %s, v9, s[20:23], s57 offen sc1' % vr(vA + 20) + nt('s'))
    gate_open(8)
    a('s_mov_b64 exec, -1')
    a('s_branch L_v3')

    a.section('end')

    a.label('L_exit')
    if c['probe'] and c['probe'][0] == 'skew':
        _, gsel, mult = c['probe']
        a('s_waitcnt lgkmcnt(0)')
        a('s_cmp_eq_u32 s5, 0')
        a('s_cbranch_scc0 L_end')
        a('s_mov_b64 exec, -1')
        a('s_lshl_b32 s7, s3, 5')
        a('s_add_u32 s7, s7, s4')
        a('s_lshl_b32 s7, s7, 7')
        a('s_add_u32 s7, s7, 0x%x' % WS_ST)
        a('v_mov_b32 v16, s64')
        a('buffer_store_dword v16, off, s[20:23], s7 sc1')
        a('s_cmp_eq_u32 s2, 113')
        a('s_cbranch_scc0 L_end')
        a.label('L_spin0')
        a('s_sleep 4')
        a('s_memrealtime s[94:95]')
        a('s_waitcnt lgkmcnt(0)')
        a('s_sub_u32 s44, s94, s64')
        a('s_cmp_lt_u32 s44, 2000')
        a('s_cbranch_scc1 L_spin0')
        a('v_and_b32 v10, 31, v1')
        a('v_lshlrev_b32 v10, 7, v10')
        a('s_mov_b32 s7, 0x%x' % WS_ST)
        for g in range(8):
            a('buffer_load_dword v%d, v10, s[20:23], s7 offen sc1' % (16 + g))
            a('s_add_u32 s7, s7, 4096')
        a('s_waitcnt vmcnt(0)')
        for g in range(8):
            a('v_subrev_u32 v%d, s64, v%d' % (16 + g, 16 + g))
            allred32('v_min_i32', 16 + g, 30)
        a('v_mov_b32 v24, v16'); a('v_mov_b32 v25, v16')
        for g in range(1, 8):
            a('v_min_i32 v24, v24, v%d' % (16 + g))
            a('v_max_i32 v25, v25, v%d' % (16 + g))
        a('v_sub_u32 v26, v%d, v24' % (16 + gsel if gsel < 8 else 25))
        a('v_readfirstlane_b32 s7, v26')
        a('v_readfirstlane_b32 s45, v24')
        a('s_min_u32 s7, s7, 400')
        a('s_mul_i32 s7, s7, %d' % mult)
        a('s_add_u32 s7, s7, s45')
        a('s_add_u32 s7, s7, 3000')
        a.label('L_spin')
        a('s_sleep 4')
        a('s_memrealtime s[94:95]')
        a('s_waitcnt lgkmcnt(0)')
        a('s_sub_u32 s44, s94, s64')
        a('s_cmp_lt_i32 s44, s7')
        a('s_cbranch_scc1 L_spin')
    elif c['probe'] and c['probe'][0] == 'gmax':
        _, k, wmask, gsel, mult = c['probe']
        stamp(14)
        a('s_load_dwordx2 s[96:97], s[0:1], 80')
        a('s_mov_b64 exec, 1')
        a('s_and_b32 s3, s2, 7')
        a('s_lshl_b32 s7, 1, s5')
        a('s_and_b32 s7, s7, 0x%x' % wmask)
        a('s_waitcnt lgkmcnt(0)')
        a('s_cselect_b32 s7, s%d, 0' % (64 + 2 * k))
        a('v_mov_b32 v11, s7')
        a('v_lshlrev_b32_e64 v10, 2, s3')
        a.label('L_spin1')
        a('s_sleep 16')
        a('s_memrealtime s[94:95]')
        a('s_waitcnt lgkmcnt(0)')
        a('s_sub_u32 s44, s94, s64')
        a('s_cmp_lt_u32 s44, 1600')
        a('s_cbranch_scc1 L_spin1')
        a('s_cmp_eq_u32 s7, 0')
        a('s_cbranch_scc1 L_gm1')
        if gsel == 8: a('v_mov_b32 v10, 32')
        a('global_atomic_umax v10, v11, s[96:97] sc1')
        a.label('L_gm1')
        a('s_and_b32 s7, s5, 3')
        a('s_cbranch_scc1 L_end')
        a('v_not_b32 v11, s64')
        a('v_mov_b32 v10, 36')
        a('global_atomic_umax v10, v11, s[96:97] sc1')
        a('s_waitcnt vmcnt(0)')
        a('s_cmp_eq_u32 s5, 0')
        a('s_cbranch_scc0 L_end')
        a('s_cmp_eq_u32 s2, 113')
        a('s_cbranch_scc0 L_end')
        a.label('L_spin0')
        a('s_sleep 4')
        a('s_memrealtime s[94:95]')
        a('s_waitcnt lgkmcnt(0)')
        a('s_sub_u32 s44, s94, s64')
        a('s_cmp_lt_u32 s44, 5000')
        a('s_cbranch_scc1 L_spin0')
        a('v_mov_b32 v10, 0')
        a('global_load_dword v16, v10, s[96:97] offset:%d sc1' % (4 * gsel))
        a('global_load_dword v17, v10, s[96:97] offset:36 sc1')
        a('s_waitcnt vmcnt(0)')
        a('v_not_b32 v17, v17')
        a('v_sub_u32 v16, v16, v17')
        a('s_nop 1')
        a('v_readfirstlane_b32 s7, v16')
        a('v_readfirstlane_b32 s45, v17')
        a('s_min_u32 s7, s7, 2000')
        a('s_mul_i32 s7, s7, %d' % mult)
        a('s_add_u32 s7, s7, 1000')
        a.label('L_spin')
        a('s_sleep 4')
        a('s_memrealtime s[94:95]')
        a('s_waitcnt lgkmcnt(0)')
        a('s_sub_u32 s44, s94, s45')
        a('s_cmp_lt_u32 s44, s7')
        a('s_cbranch_scc1 L_spin')
    elif c['probe'] and c['probe'][0] == 'dirty':
        _, nkb, sc, base = c['probe']
        a('s_mov_b64 exec, -1')
        a('s_lshl3_add_u32 s7, s2, s5')
        a('s_lshl_b32 s7, s7, 13')
        a('s_add_u32 s7, s7, 0x1000000')
        a('v_lshlrev_b32 v8, 4, v1')
        for k in range(nkb):
            a('buffer_store_dwordx4 v[16:19], v8, s[20:23], s7 offen' + sc)
            a('s_add_u32 s7, s7, 1024')
        a('s_waitcnt lgkmcnt(0)')
        a.label('L_spin')
        a('s_sleep 4')
        a('s_memrealtime s[94:95]')
        a('s_waitcnt lgkmcnt(0)')
        a('s_sub_u32 s44, s94, s64')
        a('s_cmp_lt_u32 s44, %d' % base)
        a('s_cbranch_scc1 L_spin')
    elif c['probe']:
        k, base, mult = c['probe']
        stamp(14)
        a('s_waitcnt lgkmcnt(0)')
        a('s_cmp_eq_u32 s%d, 0' % (64 + 2 * k))
        a('s_cbranch_scc1 L_end')
        a('s_sub_u32 s7, s%d, s64' % (64 + 2 * k))
        a('s_min_u32 s7, s7, 10000')
        a('s_mul_i32 s7, s7, %d' % mult)
        a('s_add_u32 s7, s7, %d' % base)
        a.label('L_spin')
        a('s_sleep 4')
        a('s_memrealtime s[94:95]')
        a('s_waitcnt lgkmcnt(0)')
        a('s_sub_u32 s44, s94, s64')
        a('s_cmp_lt_u32 s44, s7')
        a('s_cbranch_scc1 L_spin')
    elif diag:
        stamp(14)
        a('s_sleep 127')
        a('s_mov_b64 exec, 1')
        a('s_lshl3_add_u32 s7, s2, s5')
        a('s_lshl_b32 s7, s7, 6')
        a('s_add_u32 s7, s7, 0x%x' % WS_ST)
        a('s_waitcnt lgkmcnt(0)')
        for k in range(15): a('v_mov_b32 v%d, s%d' % (16 + k, 64 + 2 * k))
        a('s_add_u32 s47, s47, 2')
        a('v_mov_b32 v31, s47')
        for k in range(4): a('buffer_store_dwordx4 %s, off, s[20:23], s7 offset:%d' % (vr(16 + 4 * k), 16 * k))
    a.label('L_end')
    a('s_endpgm')

    ref = open(os.path.join(os.path.dirname(os.path.abspath(__file__)), 'header.txt')).read()
    head = ref + '; @launch grid=(256,1,1) block=(512,1,1) lds=%d\n' % LDS_BYTES
    head += '.amdgcn_target "amdgcn-amd-amdhsa--gfx950"\n.text\n.globl {N}_kernel\n.p2align %d\n.p2align 8\n.type {N}_kernel,@function\n{N}_kernel:\n'.replace('{N}', NAME) % c['align']
    foot = """.section .rodata,"a"
.p2align 6
.amdhsa_kernel {N}_kernel
  .amdhsa_next_free_vgpr 224
  .amdhsa_next_free_sgpr 102
  .amdhsa_accum_offset 224
  .amdhsa_group_segment_fixed_size 0
  .amdhsa_kernarg_size 96
  .amdhsa_float_denorm_mode_32 3
  .amdhsa_user_sgpr_count 2
  .amdhsa_user_sgpr_kernarg_segment_ptr 1
  .amdhsa_system_sgpr_workgroup_id_x 1
.end_amdhsa_kernel
""".replace('{N}', NAME)
    return head + a.text(('main', 'q', 'k', 'v', 'end')) + foot

if __name__ == '__main__':
    out = sys.argv[1] if len(sys.argv) > 1 else 'cdna_kernels/%s.s' % NAME
    kw = eval('dict(%s)' % sys.argv[2]) if len(sys.argv) > 2 else {}
    open(out, 'w').write(gen(**kw))
```

```python
import sys, os, struct, math
sys.path.insert(0, os.path.dirname(os.path.abspath(__file__)))
from emit import Asm

NAME = 'sequential_preLN__sliding_block_cached__geglu_ffn__decode'

WS_X = 0x4000
WS_Q = 0x180000
WS_QX = 0x1e0000
BLK = 4096 + 128
WS_H0 = 0x20000
GXS = 1024 + 128
WS_QB = 0x190000
WS_XB = 0xC000
WS_GX = 0xC0000
HS = 1920
WS_H1 = 0x100000
WS_H2 = 0x110000
WS_R = 0x1a0000
WS_ST = 0x200000

L_QL = 0
L_S = 1024
L_P = 2048
L_XN = 6400
L_WT = 3200
L_GATE = 8448
L_STAT = 8704
L_RED = 9728
L_T = 14848
LDS_BYTES = L_T + 8 * 4096

SPIN = 20000

def f32(x):
    return '0x%08x' % struct.unpack('<I', struct.pack('<f', x))[0]

def vr(a, n=4):
    return 'v[%d:%d]' % (a, a + n - 1)

DEF = dict(depth=6, dv=0, gq=16, ga=16, na=16, nb=16, pvd=6, dx=0, stamps=None, rs=1, rg=0, touch='wn', gxt=0, h2late=1, nts='q', ot=1,
           force_sc1=False, probe=None, wo_at=4, qdual=6, ldual=40, gall=1, deep0=14, deep=28, skipz=1, split3=1, tfl='', b1=1, qh=6, pf=True, qt='', prio=0, align=12, near=1, pk=2, sdn=12, swap=1)

def gen(**kw):
    c = dict(DEF); c.update(kw)
    a = Asm()
    D = c['depth']
    DV = c['dv'] or D
    DX = c['dx']
    diag = bool(c['stamps'])
    def nt(k):
        return ' nt' if k in c['nts'] else ''
    def stamp(k):
        if diag: a('%s s[%d:%d]' % (c['stamps'], 64 + 2 * k, 65 + 2 * k))
    def leave():
        a('s_branch L_exit' if diag else 's_endpgm')
    nlab = [0]
    def leave_if(cond):
        if diag:
            a('s_cbranch_%s L_exit' % cond)
        else:
            nlab[0] += 1
            a('s_cbranch_%s L_stay%d' % ('scc1' if cond == 'scc0' else 'scc0', nlab[0]))
            h = list(a.hist)
            a('s_endpgm')
            a.hist = h
            a.label('L_stay%d' % nlab[0])
    def srd(base, size):
        a('s_mov_b32 s%d, 0x%x' % (base + 2, size))
        a('s_mov_b32 s%d, 0x20000' % (base + 3))
    def mktag():
        a('s_mul_i32 s6, s6, 0x9e3779b1')
        a('s_add_u32 s6, s6, 0x7f4a7c15')
    def rnd(d, s):
        a('v_cvt_pk_bf16_f32 v%d, 0, v%d' % (d, s))
    QP1, QP2 = 'quad_perm:[1,0,3,2]', 'quad_perm:[2,3,0,1]'
    FULL = 'row_mask:0xf bank_mask:0xf'
    def dpp(op, d, s0, s1, ctl, mask=FULL):
        a('%s_dpp v%d, v%d, v%d %s %s' % (op, d, s0, s1, ctl, mask))
    def mfma(d, x, y, acc):
        a('v_mfma_f32_16x16x32_bf16 %s, %s, %s, %s' % (vr(d), vr(x), vr(y), vr(d) if acc else '0'))
    def pkadd(d, x, y):
        a('v_pk_add_f32 %s, %s, %s' % (vr(d, 2), vr(x, 2), vr(y, 2)))
    def masks():
        a('v_and_b32 v10, 1, v1')
        a('v_lshlrev_b32 v10, 4, v10')
        a('s_mov_b32 s7, 0xffff')
        a('v_lshlrev_b32_e64 v10, v10, s7')
        a('v_bfe_u32 v11, v1, 1, 2')
        for r in range(4):
            a('v_cmp_eq_u32 vcc, %d, v11' % r)
            a('v_cndmask_b32 v%d, 0, v10, vcc' % (vM + r))
    def pack24(d, s):
        for k in range(3):
            a('v_perm_b32 v%d, v%d, v%d, s%d' % (d + k, s + k, s + 3, sPK + k))
    def unpackn(gs):
        for g in gs: a('v_perm_b32 v%d, v%d, v%d, s%d' % (g + 3, g + 1, g, sUP))
        for g in gs: a('v_perm_b32 v%d, v%d, v%d, s%d' % (g + 3, g + 2, g + 3, sUP + 1))
    def scatter4(g):
        a('v_permlane32_swap_b32 v%d, v%d' % (g, g + 2))
        a('v_permlane32_swap_b32 v%d, v%d' % (g + 1, g + 3))
        pkadd(g, g, g + 2)
        a('v_permlane16_swap_b32 v%d, v%d' % (g, g + 1))
        a('v_add_f32 v%d, v%d, v%d' % (g, g, g + 1))
        dpp('v_add_f32', g, g, g, 'row_ror:8')
    def sum2scatter():
        unpackn([G0, G1])
        pkadd(G0, G0, G1); pkadd(G0 + 2, G0 + 2, G1 + 2)
        scatter4(G0)
    def vec32(d, s, banks):
        rnd(s + 1, s)
        a('v_cvt_pk_bf16_f32 v%d, v%d, 0' % (s, s))
        dpp('v_or_b32', s, s + 1, s, 'quad_perm:[1,1,3,3]')
        for k in range(4):
            a('v_mov_b32_dpp v%d, v%d row_newbcast:%d row_mask:0xf bank_mask:0x%x' % (d + k, s, 2 * k, banks))
    retry = []
    def poll(name, loads, tags, between=None, wait='vmcnt(0)', alt=None, half=False, extra=[]):
        for t in loads[:-1]: a(t)
        if half: a('s_mov_b32 exec_hi, 0')
        a(loads[-1])
        if half: a('s_mov_b32 exec_hi, -1')
        if between: between()
        a('s_mov_b32 s7, 0')
        if wait: a('s_waitcnt ' + wait)
        a.label(name + '_chk')
        a('v_cmp_ne_u32 vcc, s6, v%d' % tags[0])
        if len(tags) > 1:
            for i, t in enumerate(tags[1:]):
                a('v_cmp_ne_u32_e64 s[%d:%d], s6, v%d' % (96 + 2 * i, 97 + 2 * i, t))
            if half: a('s_and_b32 s%d, s%d, 0' % (93 + 2 * len(tags), 93 + 2 * len(tags)))
            for i, t in enumerate(tags[1:]):
                a('s_or_b64 s[62:63], %s, s[%d:%d]' % ('s[62:63]' if i else 'vcc', 96 + 2 * i, 97 + 2 * i))
            a('s_cbranch_scc1 %s_retry' % name)
        else:
            a('s_cbranch_vccnz %s_retry' % name)
        a.label(name + '_ok')
        retry.append((name, loads + extra, alt))
    def flush_retry():
        for name, loads, alt in retry:
            a.label(name + '_retry')
            if alt:
                a('s_cmp_eq_u32 s7, %d' % alt[0])
                a('s_cselect_b32 s%d, s%d, s%d' % (alt[1], alt[2], alt[1]))
            for i, t in enumerate(loads):
                a('s_mov_b64 exec, %s' % ('s[%d:%d]' % (94 + 2 * i, 95 + 2 * i) if i else 'vcc'))
                skip = c['skipz'] and len(loads) > 2
                if skip: a('s_cbranch_execz %s_z%d' % (name, i))
                a(t)
                if skip: a.label('%s_z%d' % (name, i))
            a('s_mov_b64 exec, -1')
            a('s_add_u32 s7, s7, 1')
            a('s_cmp_ge_u32 s7, %d' % SPIN)
            a('s_waitcnt vmcnt(0)')
            a('s_cbranch_scc0 %s_chk' % name)
            a('s_branch %s_ok' % name)
        del retry[:]
    def common(x=True):
        if x: srd(36, 896)
        a('s_load_dwordx2 s[24:25], s[0:1], 48')
        a('s_load_dwordx2 s[28:29], s[0:1], 56')
        a('s_load_dwordx2 s[32:33], s[0:1], 64')
        a('s_load_dwordx2 s[40:41], s[0:1], 72')
        srd(20, 1 << 28)
        srd(24, 448 * 3584)
        srd(32, 1792 * 896)
        srd(40, 896)
        for k in range(3):
            a('s_mov_b32 s%d, 0x0706050%d' % (sPK + k, 1 + k))
        a('s_mov_b32 s%d, 0x0c04000c' % sUP)
        a('s_mov_b32 s%d, 0x04020100' % (sUP + 1))
        if DX:
            a('s_cmp_eq_u32 s3, 0')
            a('s_cselect_b32 s30, %d, %d' % (c['deep0'], c['deep']))
            a('s_cmp_ge_u32 s4, s30')
            a('s_cselect_b32 s30, 1, 0')
        masks()
        a('v_lshlrev_b32 v8, 4, v1')
    def gate_open(k):
        a('ds_write_b32 v221, v220 offset:%d' % (L_GATE + 16 * k))
    def gate_wait(k, vaddr):
        nlab[0] += 1
        if vaddr == 219: a('v_mov_b32 v219, 0')
        a.label('L_gate%d' % nlab[0])
        a('ds_read_b32 v219, v%d offset:%d' % (vaddr, L_GATE + 16 * k))
        a('s_waitcnt lgkmcnt(0)')
        a('v_cmp_ne_u32 vcc, 1, v219')
        a('s_cbranch_vccnz L_gate%d' % nlab[0])
    def store2(data, voff, soff):
        a('s_mov_b64 exec, s[58:59]')
        a('buffer_store_dwordx4 %s, v%d, s[20:23], s%d offen' % (vr(data), voff, soff))
        a('s_mov_b64 exec, s[60:61]')
        a('buffer_store_dwordx4 %s, v%d, s[20:23], s%d offen sc1' % (vr(data), voff, soff))
        a('s_mov_b64 exec, -1')
    def dma_voff(rowexpr_pitch):
        a('v_bfe_u32 v11, v1, 3, 2')
        a('v_lshlrev_b32 v11, 1, v11')
        a('v_xor_b32 v11, v11, v1')
        a('v_and_b32 v11, 7, v11')
        a('v_mul_u32_u24 v10, %d, v10' % rowexpr_pitch)
        a('v_lshl_add_u32 v2, v11, 4, v10')
    def tr_addr():
        a('v_bfe_u32 v10, v1, 2, 2')
        a('v_mul_u32_u24 v10, 160, v10')
        a('v_and_b32 v11, 3, v1')
        a('v_lshl_add_u32 v10, v11, 3, v10')
        a('v_lshrrev_b32 v11, 4, v1')
        a('v_lshl_add_u32 v10, v11, 10, v10')
        a('v_lshl_add_u32 v32, s5, 12, v10')
        for t in range(1, 4): a('v_xor_b32 v%d, %d, v32' % (32 + t, 32 * t))
    def tr_read():
        for t in range(4):
            for u in range(2):
                a('ds_read_b64_tr_b16 %s, v%d offset:%d' % (vr(vB + 4 * t + 2 * u, 2), 32 + t, L_T + 512 * u))
    def line_voff():
        a('v_bfe_u32 v10, v1, 3, 2')
        a('v_mul_u32_u24 v10, %d, v10' % HS)
        a('v_lshrrev_b32 v11, 5, v1')
        a('v_lshl_add_u32 v10, v11, 14, v10')
        a('v_and_b32 v11, 0x70, v8')
        a('v_add_u32 v9, v10, v11')
        a('v_lshrrev_b32 v10, 4, v1')
        a('v_lshl_add_u32 v12, v10, 1, v11')
    def line_soff(sl):
        a('s_lshl_b32 s44, s%d, 7' % sl)
        a('s_add_u32 s44, s44, 0x%x' % WS_H1)
        a('s_lshr_b32 s46, s%d, 1' % sl)
        a('s_lshl_b32 s46, s46, 7')
        a('s_and_b32 s7, s%d, 1' % sl)
        a('s_lshl3_add_u32 s46, s7, s46')
    def softmax_head(r):
        mx, t1, ls = r + 4, r + 5, r + 6
        a('v_max3_f32 v%d, v%d, v%d, v%d' % (mx, r, r + 1, r + 2))
        a('v_max_f32 v%d, v%d, v%d' % (mx, mx, r + 3))
        allred32('v_max_f32', mx, t1)
        a('v_mul_f32 v%d, s53, v%d' % (mx, mx))
        for k in range(4): a('v_fma_f32 v%d, v%d, s53, -v%d' % (r + k, r + k, mx))
        for k in range(4): a('v_exp_f32 v%d, v%d' % (r + k, r + k))
        a('v_add_f32 v%d, v%d, v%d' % (ls, r, r + 1))
        a('v_add_f32 v%d, v%d, v%d' % (t1, r + 2, r + 3))
        a('v_add_f32 v%d, v%d, v%d' % (ls, ls, t1))
        allred32('v_add_f32', ls, t1)
    def allred32(op, r, t1):
        for ctl in (QP1, QP2, 'row_half_mirror', 'row_mirror'): dpp(op, r, r, r, ctl)
        a('v_mov_b32 v%d, v%d' % (t1, r))
        a('v_permlane16_swap_b32 v%d, v%d' % (r, t1))
        a('%s v%d, v%d, v%d' % (op, r, r, t1))

    vM = 4
    vKO = 2
    vK, vV, vQ, vW = 16, 80, 144, 176
    vA = 192
    vP = 16
    vT = 48
    vC0, vC1 = 64, 68
    G0, G1, G2, G3 = 16, 20, 24, 28
    vB, vAX, vD = 80, 96, 100
    sPK, sUP = 48, 51
    SC = f32(math.log2(math.e) / 16)

    def wo_setup():
        a('s_load_dwordx2 s[16:17], s[0:1], 32')
        srd(16, 448 * 8192)
        a('v_bfe_u32 v10, v1, 3, 2')
        a('v_lshrrev_b32 v11, 5, v1')
        a('v_lshl_add_u32 v10, v10, 1, v11')
        dma_voff(4 * 896)
        a('s_cmp_ge_u32 s4, 7')
        a('s_cselect_b32 s54, 1, 0')
        a('s_lshl1_add_u32 s7, s3, s54')
        a('s_lshl_b32 s7, s7, 8')
        a('s_add_u32 s7, s7, s55')
        a('s_sub_u32 s7, s7, s54')
        a('s_mul_i32 s7, s7, 7')
        a('s_add_u32 s7, s7, s4')
        a('s_lshl_b32 s10, s7, 7')
        a('s_lshl_b32 s7, s55, 10')
        a('s_add_u32 m0, s7, %d' % L_T)
        a('s_movk_i32 s11, %d' % (32 * 896))
    def wo_issue():
        for i in range(8):
            a('buffer_load_dwordx4 v2, s[16:19], s10 offen nt lds')
            if i < 7:
                a('s_add_u32 m0, m0, 0x1000')
                a('s_add_u32 s10, s10, s11')
    def wo_issue_if():
        nlab[0] += 1
        a('s_cmp_ge_u32 s4, 14')
        a('s_cbranch_scc1 L_nowo%d' % nlab[0])
        wo_issue()
        a.label('L_nowo%d' % nlab[0])
    def kv_addr():
        a('v_and_b32 v10, 7, v1')
        a('v_lshrrev_b32 v11, 3, v1')
        a('v_lshlrev_b32 v10, 4, v10')
        a('v_lshl_add_u32 v%d, v11, 9, v10' % vKO)
        a('s_lshl_b32 s7, s3, 7')
        a('s_add_u32 s7, s7, s4')
        a('s_add_u32 s7, s7, 96')
        a('s_lshl_b32 s44, s7, 4')
        if c['rs'] == 1 and not c['rg']:
            a('s_and_b32 s7, s4, 15')
        else:
            a('s_mul_i32 s7, s4, %d' % c['rs'])
            a('s_mul_i32 s62, s3, %d' % c['rg'])
            a('s_add_u32 s7, s7, s62')
            a('s_and_b32 s7, s7, 15')
        a('s_or_b32 s44, s44, s7')
    def h0_gather():
        a('s_cmp_ge_u32 s4, 7')
        a('s_cselect_b32 s54, 1, 0')
        a('s_lshl1_add_u32 s7, s3, s54')
        a('s_lshl3_add_u32 s56, s7, s5')
        a('s_mul_i32 s56, s56, %d' % BLK)
        a('s_add_u32 s56, s56, 0x%x' % WS_H0)

    def probe_addr():
        a('s_lshr_b32 s98, s2, 5')
        a('s_lshl_b32 s98, s98, 3')
        a('s_and_b32 s7, s55, 2')
        a('s_lshl1_add_u32 s98, s7, s98')
        a('s_and_b32 s7, s55, 1')
        a('s_add_u32 s98, s98, s7')
        a('s_lshl_b32 s98, s98, 5')
        a('s_and_b32 s7, s2, 31')
        a('s_add_u32 s98, s98, s7')
        a('s_lshl_b32 s98, s98, 7')
        a('s_add_u32 s98, s98, 0x%x' % WS_R)
    def probe(n):
        probe_addr()
        a('s_and_b32 s7, s55, 1')
        a('v_xor_b32 v10, s7, v1')
        a('v_lshlrev_b32 v10, 2, v10')
        a('s_lshl_b32 s7, s7, 13')
        a('s_xor_b32 s98, s98, s7')
        a('s_xor_b32 s99, s98, 0x2000')
        a('s_mov_b64 s[12:13], 0')
        a('s_mov_b32 s96, 0')
        a('s_buffer_load_dword s62, s[20:23], s98 glc')
        a('s_buffer_load_dword s63, s[20:23], s99 glc')
        a('s_waitcnt lgkmcnt(0)')
        a.label('L_probe')
        a('s_memtime s[14:15]')
        a('s_buffer_load_dword s7, s[20:23], s98 glc')
        a('s_waitcnt lgkmcnt(0)')
        a('s_memtime s[100:101]')
        a('s_buffer_load_dword s7, s[20:23], s99 glc')
        a('s_waitcnt lgkmcnt(0)')
        a('s_memtime s[62:63]')
        a('s_sub_u32 s14, s14, s100')
        a('s_max_u32 s12, s12, s14')
        a('s_add_u32 s96, s96, 1')
        a('s_waitcnt lgkmcnt(0)')
        a('s_sub_u32 s100, s100, s62')
        a('s_max_u32 s13, s13, s100')
        a('s_cmp_lt_u32 s96, %d' % n)
        a('s_cbranch_scc1 L_probe')
        a('v_mov_b32 v11, s12')
        a('v_writelane_b32 v11, s13, 1')
        a('s_mov_b64 exec, 3')
        a('ds_max_u32 v10, v11 offset:%d' % (L_GATE + 16 * 9))
        a('s_mov_b64 exec, -1')
    def side_load(first):
        if first:
            a('v_lshlrev_b32 v217, 7, v1')
            a('s_lshl_b32 s45, s3, 12')
            a('s_add_u32 s45, s45, 0x%x' % (WS_X + 4096))
            a('s_mov_b32 s62, 0')
        a('s_mov_b64 exec, 3')
        a('buffer_load_dwordx2 v[218:219], v217, s[20:23], s45 offen offset:%d sc1' % (14 * 128 + 32))
        a('s_mov_b64 exec, -1')
    def side_add(name):
        if c['near']:
            a.label(name + '_wait')
            a('s_waitcnt vmcnt(0)')
            a('v_cmp_eq_u32 vcc, s6, v219')
            a('s_and_b32 s7, vcc_lo, 3')
            a('s_cbranch_scc0 %s_retry' % name)
            a('s_ff1_i32_b32 s7, s7')
            a('v_readlane_b32 s7, v218, s7')
            a('s_and_b32 s7, s7, 0x2000')
            a('s_add_u32 s44, s44, s7')
            a.label(name + '_ok')
            if diag: a('s_add_u32 s47, s7, 0x100')
        else:
            a('s_waitcnt vmcnt(0)')
        a('s_add_u32 s45, s44, 0x8000')
    def side_retry(name):
        if c['near']:
            a.label(name + '_retry')
            a('s_add_u32 s62, s62, 1')
            a('s_cmp_ge_u32 s62, %d' % c['sdn'])
            a('s_cbranch_scc1 %s_ok' % name)
            side_load(False)
            a('s_branch %s_wait' % name)
    def xpub(part):
        if part & 1:
            a('s_lshl_b32 s7, s3, 5')
            a('s_add_u32 s7, s7, s4')
            a('s_lshl_b32 s7, s7, 7')
            a('s_add_u32 s47, s7, 0x%x' % WS_X)
            a('s_getreg_b32 s7, hwreg(HW_REG_XCC_ID, 0, 4)')
            a('v_mov_b32 v222, s7')
            a('v_mov_b32 v223, s6')
        if part & 2:
            nlab[0] += 1
            a('s_cmp_eq_u32 s5, 6')
            a('s_cbranch_scc0 L_xp%d' % nlab[0])
            a('s_mov_b64 exec, 1')
            a('buffer_store_dwordx2 v[222:223], off, s[20:23], s47')
            a('s_mov_b64 exec, -1')
            a.label('L_xp%d' % nlab[0])

    if diag:
        for k in range(1, 15): a('s_mov_b32 s%d, 0' % (64 + 2 * k))
    stamp(0)
    a('s_load_dwordx2 s[8:9], s[0:1], 8')
    a('s_load_dwordx2 s[36:37], s[0:1], 0')
    a('s_load_dwordx2 s[16:17], s[0:1], 24')
    a('s_load_dwordx2 s[12:13], s[0:1], 16')
    a('s_load_dwordx2 s[20:21], s[0:1], 88')
    a('s_cmp_ge_u32 s2, 256')
    a('s_cbranch_scc1 L_end')
    a('v_lshrrev_b32 v3, 6, v0')
    a('v_and_b32 v1, 63, v0')
    a('s_and_b32 s3, s2, 7')
    a('v_readfirstlane_b32 s5, v3')
    a('s_lshr_b32 s4, s2, 3')
    a('s_and_b32 s55, s5, 3')
    a('s_add_u32 s31, s4, 2')
    a('s_lshr_b32 s31, s31, 4')
    if c['swap']:
        a('s_cmp_lg_u32 s31, 0')
        a('s_cselect_b32 s7, 4, 0')
        a('s_xor_b32 s5, s5, s7')
    a('s_cmp_ge_u32 s5, 4')
    a('s_cbranch_scc1 L_v0')

    if c['pf']:
        a('s_getpc_b64 s[46:47]')
        a.label('L_pc')
        a('s_lshl2_add_u32 s7, s4, s55')
        a('s_lshl_b32 s7, s7, 7')
        a('s_addk_i32 s7, 0x300')
        a('s_min_u32 s7, s7, L_end-L_pc')
        a('s_add_u32 s46, s46, s7')
        a('s_addc_u32 s47, s47, 0')
        a('v_mov_b32 v10, s46')
        a('v_mov_b32 v11, s47')
        a('global_load_dword v216, v[10:11], off' + nt('c'))
    kv_addr()
    srd(8, 1 << 26)
    a('s_xor_b32 s45, s44, s55')
    a('s_lshl_b32 s45, s45, 12')
    a('v_and_b32 v10, 0xfc, v0')
    a('v_mov_b32 v11, 0')
    a('ds_write_b32 v10, v11 offset:%d' % L_GATE)
    a('s_cmp_lg_u32 s31, 0')
    a('s_waitcnt lgkmcnt(0)')
    a('s_load_dword s6, s[20:21], 0')
    if c['b1']:
        a('s_cbranch_scc0 L_k1')
        a('s_barrier')
        a.label('L_k1')
    stamp(1)
    GQ = c['gq']
    assert D <= GQ <= 16 and D <= c['ga'] <= 16
    class Stream:
        def __init__(self): self.seq, self.done = [], 0
        def left(self, n): return len(self.seq) - self.seq.index(n) - 1
        def wait(self, n):
            if self.seq.index(n) >= self.done:
                a('s_waitcnt vmcnt(%d)' % self.left(n))
                self.done = self.seq.index(n) + 1
        def throttle(self, n, d):
            if DX and n >= d and self.seq.index(n - d) >= self.done:
                nlab[0] += 1
                a('s_cmp_lg_u32 s30, 0')
                a('s_cbranch_scc1 L_thr%d' % nlab[0])
                a('s_waitcnt vmcnt(%d)' % self.left(n - d))
                a.label('L_thr%d' % nlab[0])
            if n >= d + DX: self.wait(n - d - DX)
    ks = Stream()
    def kload(idx):
        i, t = idx >> 2, idx & 3
        if t == 0 and i > 0: a('s_xor_b32 s45, s45, 0x%x' % ((i ^ (i - 1)) << 14))
        ks.throttle(idx, D)
        a('buffer_load_dwordx4 %s, v%d, s[8:11], s45 offen offset:%d nt' % (vr(vK + 4 * idx), vKO, 128 * t))
        ks.seq.append(idx)
    for idx in range(D): kload(idx)
    if c['b1']:
        a('s_cmp_lg_u32 s31, 0')
        a('s_cbranch_scc1 L_kb')
    a('s_barrier')
    a('s_branch L_kb')
    a.section('k')
    a.label('L_kb')
    common()
    for k in range(8): a('v_mov_b32 v%d, 0' % (vA + 8 + k))
    if c['split3']:
        for k in (0, 1, 4, 5): a('v_mov_b32 v%d, 0' % (vA + 16 + k))
        a('s_mul_i32 s7, s3, %d' % (1024 - 8192))
        a('s_add_u32 s7, s7, 0x%x' % (WS_QX - WS_Q - 2048))
        a('v_add_u32 v14, s7, v8')
    a('v_bfe_u32 v10, v1, 2, 1')
    a('v_lshlrev_b32 v10, 9, v10')
    a('v_lshrrev_b32 v12, 4, v1')
    a('v_lshl_add_u32 v10, v12, 7, v10')
    a('v_and_b32 v11, 3, v1')
    a('v_lshlrev_b32 v217, 2, v11')
    a('v_lshl_add_u32 v10, v11, 5, v10')
    a('v_bfe_u32 v11, v1, 3, 1')
    a('v_lshl_add_u32 v10, v11, 2, v10')
    a('v_lshl_add_u32 v13, s55, 3, v10')
    a('v_and_b32 v10, 31, v1')
    a('v_lshlrev_b32 v218, 7, v10')
    a('v_lshlrev_b32_e64 v221, 2, s55')
    a('v_mov_b32 v220, 1')
    a('v_and_b32 v9, 0x70, v8')
    a('v_and_b32 v12, 0xff, v0')
    a('v_lshlrev_b32 v12, 2, v12')
    a('s_lshl_b32 s46, s3, 12')
    a('s_add_u32 s46, s46, 0x%x' % WS_X)
    a('s_getreg_b32 s44, hwreg(HW_REG_XCC_ID, 0, 4)')
    a('s_lshl2_add_u32 s7, s3, s5')
    a('s_lshl_b32 s7, s7, 11')
    a('s_add_u32 s56, s7, 0x%x' % WS_Q)
    a('s_add_u32 s57, s7, 0x%x' % WS_QB)
    a('s_mov_b32 s58, 0xaaaaaaaa'); a('s_mov_b32 s59, 0xaaaaaaaa')
    a('s_mov_b32 s60, 0xcccccccc'); a('s_mov_b32 s61, 0xcccccccc')
    a('s_mov_b32 s53, %s' % SC)
    if c['ga'] == D: gate_open(0)
    def krange(lo, hi):
        for idx in range(lo, hi):
            if c['qh'] and idx == c['qh']:
                a('s_cmp_lg_u32 s31, 0')
                a('s_cbranch_scc0 L_k2')
                gate_wait(8, 217)
                a.label('L_k2')
            kload(idx)
            if c['ga'] == idx + 1: gate_open(0)
    krange(D, GQ)
    vE = vA + 16
    qx3 = 'buffer_load_dwordx4 %s, v14, s[20:23], s56 offen sc1' % vr(vE) + nt('q')
    if c['split3']:
        a('s_cmp_eq_u32 s5, 1')
        a('s_cbranch_scc0 L_k6')
        a(qx3)
        a.label('L_k6')
    def krest():
        ks.seq += ['q0', 'q1']
        krange(GQ, 16)
        stamp(2)
        a('s_waitcnt lgkmcnt(0)')
        mktag()
        if c['split3']:
            a('s_cmp_eq_u32 s5, 1')
            a('s_cbranch_scc1 L_k7')
            a('v_mov_b32 v%d, s6' % (vE + 3))
            a.label('L_k7')
        if c['wo_at']: wo_setup()
        ks.wait('q1')
        gate_open(1)
    poll('L_pq', ['buffer_load_dwordx4 %s, v8, s[20:23], s56 offen offset:%d sc1' % (vr(vA + 4 * k), 1024 * k) + nt('q') for k in range(2)],
         [vA + 3, vA + 7] + [vE + 3] * c['split3'], between=krest, wait=None, alt=(c['qdual'], 56, 57), extra=[qx3] * c['split3'])
    stamp(3)
    pkadd(vA, vA, vA + 4)
    if c['split3']:
        a('v_permlane32_swap_b32 v%d, v%d' % (vE + 4, vE))
        a('v_permlane32_swap_b32 v%d, v%d' % (vE + 5, vE + 1))
        pkadd(vE, vE, vE + 4)
        pkadd(vA, vA, vE)
    a('v_cvt_pk_bf16_f32 v%d, v%d, v%d' % (vA, vA, vA + 1))
    a('ds_write_b32 v12, v%d offset:%d' % (vA, L_QL))
    gate_open(2)
    gate_wait(2, 217)
    for h in range(2):
        for t in range(4):
            a('ds_read_b128 %s, v9 offset:%d' % (vr(vQ + 16 * h + 4 * t), L_QL + 512 * h + 128 * t))
    if c['wo_at'] == 2: wo_issue_if()
    a('s_waitcnt lgkmcnt(0)')
    stamp(4)
    acc = lambda i, h: vA + 8 + 4 * h + i
    for i in range(4):
        assert c['wo_at'] != 2 or GQ == 16
        ks.wait(4 * i + 3)
        for t in range(4):
            for d in range(4):
                for h in range(2):
                    a('v_dot2c_f32_bf16 v%d, v%d, v%d' % (acc(i, h), vK + 16 * i + 4 * t + d, vQ + 16 * h + 4 * t + d))
    X = acc(0, 0)
    for i in range(4): dpp('v_add_f32', X + i, X + i, X + i, 'row_half_mirror', 'row_mask:0xf bank_mask:0x5')
    for i in range(4): dpp('v_add_f32', X + i, X + 4 + i, X + 4 + i, 'row_half_mirror', 'row_mask:0xf bank_mask:0xa')
    for i in range(4): dpp('v_add_f32', X + i, X + i, X + i, QP1)
    a('v_cndmask_b32_e64 v%d, v%d, v%d, s[58:59]' % (X, X, X + 1))
    a('v_cndmask_b32_e64 v%d, v%d, v%d, s[58:59]' % (X + 2, X + 2, X + 3))
    dpp('v_add_f32', X, X, X, QP2)
    dpp('v_add_f32', X + 2, X + 2, X + 2, QP2)
    a('v_cndmask_b32_e64 v%d, v%d, v%d, s[60:61]' % (X, X, X + 2))
    rnd(X, X)
    a('ds_write_b32 v13, v%d offset:%d' % (X, L_S))
    gate_open(3)
    stamp(5)
    h0_gather()
    def xflag(left):
        a('s_waitcnt vmcnt(%d)' % left)
        a('v_cmp_ne_u32 vcc, s6, v223')
        a('v_cmp_ne_u32_e64 s[96:97], s44, v222')
        a('s_or_b32 s7, vcc_lo, s96')
        a('s_cselect_b32 s7, 2, %d' % (2 if c['force_sc1'] else 1))
        a('v_mov_b32 v219, s7')
        a('ds_write_b32 v217, v219 offset:%d' % (L_GATE + 16 * 7))
    a('s_cmp_eq_u32 s5, 3')
    a('s_cbranch_scc1 L_k3')
    a('s_cmp_ge_u32 s4, 14')
    a('s_cbranch_scc1 L_aux6')
    if c['wo_at'] == 4: gate_wait(4, 221)
    if c['wo_at'] >= 3: wo_issue()
    a('s_waitcnt vmcnt(0)')
    a('s_branch L_wt')

    a.label('L_k3')
    a('s_mov_b32 exec_hi, 0')
    a('buffer_load_dwordx2 v[222:223], v218, s[20:23], s46 offen sc1' + nt('t'))
    a('s_mov_b32 exec_hi, -1')
    a('s_lshl3_add_u32 s45, s54, s46')
    a('s_add_u32 s57, s45, 0x%x' % (WS_XB - WS_X))
    a('v_lshrrev_b32 v10, 5, v1')
    a('v_lshl_add_u32 v14, v10, 4, v8')
    a('v_lshlrev_b32 v10, 3, v10')
    a('s_lshl_b32 s7, s4, 7')
    a('s_add_u32 s46, s46, s7')
    a('v_mov_b32 v13, s6')
    gate_wait(3, 217)
    a('ds_read_b128 %s, v8 offset:%d' % (vr(vA), L_S))
    a('s_waitcnt lgkmcnt(0)')
    softmax_head(vA)
    a('v_rcp_f32 v%d, v%d' % (vA + 5, vA + 6))
    a('v_log_f32 v12, v%d' % (vA + 6))
    for k in range(4): a('v_mul_f32 v%d, v%d, v%d' % (vA + k, vA + k, vA + 5))
    for k in range(4): a('v_cvt_pk_bf16_f32 v%d, v%d, v%d' % (vA + k, vA + k, vA + k))
    a('ds_write_b128 v14, %s offset:%d' % (vr(vA), L_P))
    a('ds_write_b32 v221, v220 offset:%d' % (L_GATE + 16 * 5 - 12))
    a('v_add_f32 v12, v12, v%d' % (vA + 4))
    def lse_store(sc):
        a('s_mov_b32 exec_lo, 1'); a('s_mov_b32 exec_hi, 1')
        a('buffer_store_dwordx2 v[12:13], v10, s[20:23], s46 offen offset:16' + sc)
        a('s_mov_b64 exec, -1')
    lse_store('')
    xflag(1)
    a('s_add_u32 s46, s46, 0x%x' % (WS_XB - WS_X))
    a('s_cmp_ge_u32 s4, 14')
    stamp(6)
    a('s_cbranch_scc0 L_k4')
    lse_store(' sc1' + nt('s'))
    a('s_branch L_aux6')
    a.label('L_k4')
    gate_wait(4, 221)
    late = c['wo_at'] >= 3
    def lrest():
        if late: wo_issue()
        lse_store(' sc1' + nt('s'))
    poll('L_pl', ['buffer_load_dwordx2 v[14:15], v218, s[20:23], s45 offen offset:16 sc1'], [15],
         between=lrest, wait='vmcnt(%d)' % (9 if late else 1), alt=(c['ldual'], 45, 57))
    stamp(7)
    a('v_mov_b32 v16, v14')
    allred32('v_max_f32', 16, 17)
    a('v_sub_f32 v14, v14, v16')
    a('v_exp_f32 v14, v14')
    a('v_and_b32 v10, 0x70, v8')
    a('v_mov_b32 v16, v14')
    allred32('v_add_f32', 16, 17)
    a('v_rcp_f32 v16, v16')
    a('v_bfe_u32 v11, v1, 3, 2')
    a('v_lshl_add_u32 v10, v11, 2, v10')
    a('v_mul_f32 v14, v14, v16')
    a('ds_write_b32 v10, v14 offset:%d' % L_WT)
    a('s_waitcnt vmcnt(1) lgkmcnt(0)')
    a('s_branch L_wt')
    a.label('L_aux6')
    a('s_waitcnt lgkmcnt(0)')
    a('s_cmp_ge_u32 s4, 16')
    a('s_cbranch_scc0 L_aux7')
    a('s_sub_u32 s3, s3, 1')
    a('s_cbranch_scc1 L_fin')
    a('s_sub_u32 s54, s4, 16')
    a('s_lshl4_add_u32 s54, s3, s54')
    a('v_lshrrev_b32 v10, 3, v1')
    dma_voff(8 * 3584)
    a('s_bitcmp1_b32 s4, 0')
    a('s_cselect_b64 s[24:25], s[28:29], s[24:25]')
    a('s_mul_i32 s44, s5, 3584')
    a('s_lshr_b32 s7, s54, 2')
    a('s_lshl_b32 s7, s7, 7')
    a('s_add_u32 s44, s44, s7')
    a('s_bitcmp1_b32 s4, 1')
    for i in range(7):
        r0, r1 = [64 * (x >> 1) + 4 * (x & 1) for x in (i, 7 + i)]
        a('s_mov_b32 s7, %d' % (r0 * 3584))
        a('s_cselect_b32 s%d, %d, s7' % (8 + i, r1 * 3584))
    for i in range(7): a('s_add_u32 s%d, s%d, s44' % (8 + i, 8 + i))
    a('s_lshl_b32 s7, s5, 10')
    a('s_add_u32 m0, s7, %d' % L_T)
    a('s_branch L_ft')
    a.label('L_aux7')
    if c['near']:
        a('s_cmp_eq_u32 s5, 3')
        a('s_cbranch_scc1 L_aux8')
        probe(c['pk'])
        stamp(7)
        a.label('L_aux8')
        gate_open(10)
        a('s_cmp_eq_u32 s5, 0')
        a('s_cbranch_scc0 L_aux9')
        a('s_lshl_b32 s7, s4, 7')
        a('s_add_u32 s46, s46, s7')
        a('v_mov_b32 v13, s6')
        gate_wait(10, 217)
        a('ds_read_b64 v[218:219], v221 offset:%d' % (L_GATE + 16 * 9))
        a('s_waitcnt lgkmcnt(0)')
        a('v_cmp_lt_u32 vcc, v218, v219')
        a('v_cndmask_b32_e64 v12, 0, -1, vcc')
        a('s_mov_b64 exec, 1')
        a('buffer_store_dwordx2 v[12:13], off, s[20:23], s46 offset:32')
        a.label('L_aux9')
    a('s_barrier')
    leave()
    flush_retry()

    a.section('v')
    if c['wo_at'] == 0:
        a.label('L_v1')
        a('s_cmp_ge_u32 s4, 14')
        a('s_cbranch_scc1 L_v')
        wo_setup()
        a('s_waitcnt lgkmcnt(0)')
        wo_issue()
    a.label('L_v')
    common()
    a('s_waitcnt lgkmcnt(0)')
    mktag()
    xpub(3)
    a.label('L_v3')
    kv_addr()
    srd(12, 1 << 26)
    a('s_lshl_b32 s44, s44, 12')
    a('s_lshl_b32 s7, s55, 7')
    a('s_add_u32 s44, s44, s7')
    a('v_lshlrev_b32_e64 v221, 2, s55')
    a('v_mov_b32 v220, 1')
    a('v_and_b32 v10, 3, v1')
    a('v_lshlrev_b32 v217, 2, v10')
    a('v_bfe_u32 v11, v1, 3, 1')
    a('v_lshrrev_b32 v12, 4, v1')
    a('v_mul_u32_u24 v15, 528, v11')
    a('v_lshl_add_u32 v15, v12, 7, v15')
    a('v_lshrrev_b32 v10, 5, v1')
    a('v_bfe_u32 v11, v1, 2, 1')
    a('v_lshl_add_u32 v10, v10, 3, v11')
    a('v_mul_u32_u24 v10, %d, v10' % BLK)
    a('v_and_b32 v11, 3, v1')
    a('v_lshl_add_u32 v10, v11, 4, v10')
    a('v_bfe_u32 v11, v1, 4, 1')
    a('v_lshl_add_u32 v9, v11, 6, v10')
    a('s_lshl3_add_u32 s7, s3, s55')
    a('s_mul_i32 s57, s7, %d' % (2 * BLK))
    a('s_lshl_b32 s7, s4, 7')
    a('s_add_u32 s57, s57, s7')
    a('s_add_u32 s57, s57, 0x%x' % WS_H0)
    if c['touch'] in ('nw', 'wn', 'l'):
        a('v_not_b32 v75, s6')
        a('s_mov_b32 exec_lo, 0x00ff00ff'); a('s_mov_b32 exec_hi, 0x00ff00ff')
        for x in c['touch']:
            if x == 'w': a('buffer_store_dwordx4 v[72:75], v9, s[20:23], s57 offen')
            else: a('buffer_load_dwordx4 v[16:19], v9, s[20:23], s57 offen' + (' nt' if x == 'n' else c['tfl']))
        a('s_mov_b64 exec, -1')
    h0_gather()
    for k in range(8): a('v_mov_b32 v%d, 0' % (vC0 + k))
    a('v_mov_b32 v75, s6')
    NB = c['nb']
    GV = 217 if c['gall'] else 221
    gate_wait(0, GV)
    stamp(2)
    vs = Stream()
    def vload(n):
        if n > 0: a('s_xor_b32 s44, s44, 0x%x' % ((n ^ (n - 1)) << 12))
        a('buffer_load_dwordx4 %s, v%d, s[12:15], s44 offen nt' % (vr(vV + 4 * n), vKO))
        vs.seq.append(n)
        if n == 15:
            stamp(3)
            gate_open(4)
    for n in range(NB):
        if n == c['na']: gate_wait(1, GV)
        vs.throttle(n, DV)
        vload(n)
    stamp(4)
    gate_wait(5, 219)
    for z in range(8): a('ds_read_b128 %s, v15 offset:%d' % (vr(vP + 4 * z), L_P + 16 * z))
    a('s_waitcnt lgkmcnt(0)')
    stamp(6)
    nxt = NB
    if c['prio']: a('s_setprio %d' % c['prio'])
    def pand(k):
        for r in range(4): a('v_and_b32 v%d, v%d, v%d' % (vT + 4 * (k & 3) + r, vP + k, vM + r))
    pand(0); pand(1)
    for k in range(32):
        n = k >> 1
        if k == 26: a('ds_read_b32 v219, v217 offset:%d' % (L_GATE + 16 * 7))
        if k == 30:
            a('s_waitcnt lgkmcnt(0)')
            a.label('L_xf_chk')
            a('v_cmp_eq_u32 vcc, 0, v219')
            a('s_cbranch_vccnz L_xf_retry')
            a('v_cmp_ne_u32 vcc, 1, v219')
            a('s_cmp_eq_u64 vcc, 0')
            a('s_cselect_b32 s47, -1, 0')
            a('s_and_b32 s58, s47, 0x00ff00ff'); a('s_mov_b32 s59, s58')
            a('s_andn2_b32 s60, 0x00ff00ff, s47'); a('s_mov_b32 s61, s60')
        if k & 1 == 0:
            vs.wait(n)
            while nxt < 16 and nxt - 1 - n < c['pvd']:
                vload(nxt); nxt += 1
        mfma(vC1 if k & 1 else vC0, vT + 4 * (k & 3), vV + 4 * n, 1)
        if k < 30: pand(k + 2)
    stamp(7)
    for r in (3, 0, 1, 2): dpp('v_add_f32', vC0 + r, vC1 + r, vC0 + r, 'row_ror:8')
    pack24(72, vC0)
    store2(72, 9, 57)
    a('s_cmp_ge_u32 s4, 14')
    a('s_cbranch_scc1 L_ft0')

    a.label('L_wt')
    a('s_barrier')
    stamp(8)
    WT = 36
    def wsetup():
        a('v_lshrrev_b32 v10, 3, v1')
        a('v_lshlrev_b32 v10, 4, v10')
        a('ds_read_b128 %s, v10 offset:%d' % (vr(WT), L_WT))
        tr_addr()
        tr_read()
        a('v_mul_u32_u24 v13, 144, v11')
        a('v_lshl_add_u32 v13, s5, 4, v13')
        a('v_lshrrev_b32 v10, 2, v1')
        a('v_mul_u32_u24 v14, 144, v10')
        a('v_and_b32 v11, 3, v1')
        a('v_lshl_add_u32 v14, v11, 5, v14')
        a('v_and_b32 v11, 1, v10')
        a('v_lshrrev_b32 v10, 1, v10')
        a('v_lshlrev_b32 v10, 4, v10')
        a('v_lshl_add_u32 v12, v11, 7, v10')
        a('v_and_b32 v11, 1, v1')
        a('v_lshl_add_u32 v12, v11, 13, v12')
        a('s_lshl1_add_u32 s7, s3, s54')
        a('s_and_b32 s44, s7, 3')
        a('s_mul_i32 s44, s44, %d' % (HS - 4096))
        a('s_lshl_b32 s7, s7, 12')
        a('s_add_u32 s44, s44, s7')
        a('s_mul_i32 s45, s54, 7')
        a('s_sub_u32 s45, s4, s45')
        a('s_lshl_b32 s45, s45, 8')
        a('s_add_u32 s44, s44, s45')
        a('s_add_u32 s44, s44, 0x%x' % WS_H1)
        a('s_mov_b32 s58, 0x00010001'); a('s_mov_b32 s59, 0x00010001')
        a('s_mov_b32 s60, 0x%x' % (0x33333333 if c['near'] else 0x11111111)); a('s_mov_b32 s61, s60')
        a('v_mov_b32 v75, s6')
    poll('L_p0', ['buffer_load_dwordx4 %s, v8, s[20:23], s56 offen offset:%d sc1' % (vr(G0 + 4 * k), 1024 * k) for k in range(4)],
         [G0 + 3, G1 + 3, G2 + 3, G3 + 3], between=wsetup, wait='vmcnt(0) lgkmcnt(0)')
    stamp(9)
    unpackn([G0, G1, G2, G3])
    for k in range(4):
        w, hi = WT + (k & 2), k & 1
        for p in (0, 2):
            if k == 0:
                a('v_pk_mul_f32 %s, %s, %s op_sel:[0,0] op_sel_hi:[1,0]' % (vr(G0 + p, 2), vr(G0 + p, 2), vr(w, 2)))
            else:
                a('v_pk_fma_f32 %s, %s, %s, %s op_sel:[0,%d,0] op_sel_hi:[1,%d,1]' % (vr(G0 + p, 2), vr(G0 + 4 * k + p, 2), vr(w, 2), vr(G0 + p, 2), hi, hi))
    scatter4(G0)
    vec32(vAX, G0, 0xf)
    for t in range(4): mfma(vD + 4 * t, vB + 4 * t, vAX, 0)
    a('s_mov_b64 exec, s[58:59]')
    for t in range(4): a('ds_write_b128 v13, %s offset:%d' % (vr(vD + 4 * t), L_RED + 576 * t))
    a('s_mov_b64 exec, -1')
    a('s_cmp_eq_u32 s5, 0')
    a('s_waitcnt lgkmcnt(0)')
    stamp(10)
    a('s_barrier')
    a('s_cbranch_scc0 L_d0')
    a('ds_read_b128 %s, v14 offset:%d' % (vr(G0), L_RED))
    a('ds_read_b128 %s, v14 offset:%d' % (vr(G1), L_RED + 16))
    a('s_waitcnt lgkmcnt(0)')
    pkadd(G0, G0, G1); pkadd(G0 + 2, G0 + 2, G1 + 2)
    for ctl in (QP1, QP2):
        for k in range(4): dpp('v_add_f32', G0 + k, G0 + k, G0 + k, ctl)
    a('s_mov_b64 exec, s[60:61]')
    pack24(72, G0)
    a('buffer_store_dwordx4 v[72:75], v12, s[20:23], s44 offen sc1')
    stamp(12)
    a('s_barrier')
    leave()
    flush_retry()

    a.label('L_xf_retry')
    a('ds_read_b32 v219, v217 offset:%d' % (L_GATE + 16 * 7))
    a('s_waitcnt lgkmcnt(0)')
    a('s_branch L_xf_chk')

    a.label('L_ft0')
    a('s_cmp_ge_u32 s4, 16')
    a('s_cbranch_scc0 L_d1')
    a('s_sub_u32 s3, s3, 1')
    a('s_cbranch_scc0 L_fkv')
    a.label('L_fin')
    a('s_cmp_ge_u32 s4, 30')
    leave_if('scc1')
    a('s_barrier')
    if c['near']: side_load(True)
    a('s_sub_u32 s54, s4, 16')
    line_voff()
    a('v_and_b32 v13, 7, v1')
    a('v_lshl_add_u32 v14, v10, 3, v13')
    a('v_mul_u32_u24 v14, 48, v14')
    a('v_lshl_add_u32 v10, s5, 2, v14')
    line_soff(54)
    a('s_add_u32 s7, s5, 1')
    a('s_and_b32 s7, s7, 7')
    a('s_lshl_b32 s7, s7, 16')
    a('s_add_u32 s44, s44, s7')
    assert WS_H2 == WS_H1 + 0x10000
    side_add('L_sf')
    a('s_cmp_eq_u32 s5, 7')
    a('s_cbranch_scc1 L_fin7')
    two = ['buffer_load_dwordx4 %s, v9, s[20:23], s44 offen sc1' % vr(G0),
           'buffer_load_dwordx4 %s, v9, s[20:23], s45 offen sc1' % vr(G1)]
    if c['h2late']: a('s_barrier')
    poll('L_p2', two, [G0 + 3, G1 + 3])
    stamp(13)
    sum2scatter()
    a('ds_write_b32 v10, v%d offset:%d' % (G0, L_RED))
    a('s_waitcnt lgkmcnt(0)')
    a('s_barrier')
    leave()
    side_retry('L_sf')
    flush_retry()

    a.label('L_fin7')
    a('v_mov_b32 v11, 0')
    a('ds_write_b32 v10, v11 offset:%d' % L_RED)
    a('v_bfe_u32 v11, v1, 3, 1')
    a('v_lshl_add_u32 v14, v11, 4, v14')
    a('s_mov_b32 s58, 0x00ff00ff'); a('s_mov_b32 s59, 0x00ff00ff')
    a('buffer_load_ushort v15, v12, s[36:39], s46 offen' + nt('x'))
    if c['ot']: a('buffer_load_ushort v216, v12, s[40:43], s46 offen')
    poll('L_p3', two, [G0 + 3, G1 + 3])
    if c['h2late']: a('s_barrier')
    stamp(10)
    a('v_mov_b32 v10, s6')
    a('s_cmp_eq_u32 s54, 0')
    a('s_cselect_b64 exec, 1, 0')
    a('buffer_store_dword v10, off, s[20:23], 0')
    a('s_mov_b64 exec, -1')
    sum2scatter()
    a('v_lshlrev_b32 v15, 16, v15')
    rnd(G0, G0)
    a('v_add_f32 v15, v%d, v15' % G0)
    rnd(15, 15)
    a('s_waitcnt lgkmcnt(0)')
    a('s_barrier')
    a('ds_read_b128 %s, v14 offset:%d' % (vr(G0), L_RED))
    a('s_waitcnt lgkmcnt(0)')
    stamp(13)
    pkadd(G0, G0, G0 + 2)
    a('v_add_f32 v%d, v%d, v%d' % (G0, G0, G0 + 1))
    dpp('v_add_f32', G0, G0, G0, 'row_ror:8')
    rnd(G0, G0)
    a('v_add_f32 v%d, v%d, v15' % (G0, G0))
    a('v_cvt_pk_bf16_f32 v%d, v%d, v%d' % (G0, G0, G0))
    a('s_mov_b64 exec, s[58:59]')
    a('buffer_store_short v%d, v12, s[40:43], s46 offen' % G0)
    leave()
    flush_retry()

    a.label('L_fkv')
    a('s_barrier')
    stamp(8)
    a('s_cmp_eq_u32 s5, 7')
    a('s_cbranch_scc0 L_fall')
    for k in range(2): a('v_mov_b32 v%d, 0' % (G0 + k))
    a('v_mul_u32_u24 v14, 80, v1')
    a('ds_write_b64 v14, %s offset:%d' % (vr(G0, 2), L_RED + 56))
    a('ds_write_b32 v%d, v%d offset:%d' % (G0, G0, L_STAT + 28))
    a('ds_write_b32 v%d, v%d offset:%d' % (G0, G0, L_STAT + 60))
    a('s_and_b32 s7, s4, 1')
    a('s_xor_b32 s7, s7, 1')
    a('s_lshl_b32 s7, s7, 5')
    a('v_mov_b32 v13, s7')
    a('v_lshrrev_b32 v10, 4, v1')
    a('v_mul_u32_u24 v10, %d, v10' % GXS)
    a('v_and_b32 v11, 3, v1')
    a('v_lshl_add_u32 v10, v11, 6, v10')
    a('v_bfe_u32 v11, v1, 2, 2')
    a('v_lshl_add_u32 v9, v11, 4, v10')
    a('s_and_b32 s7, s4, 12')
    a('s_lshl4_add_u32 s7, s3, s7')
    a('s_mul_i32 s57, s7, %d' % GXS)
    a('s_and_b32 s7, s4, 3')
    a('s_lshl_b32 s7, s7, 8')
    a('s_add_u32 s57, s57, s7')
    a('s_add_u32 s57, s57, 0x%x' % WS_GX)
    if c['gxt'] == 2:
        a('v_not_b32 v71, s6')
        a('buffer_store_dwordx4 v[68:71], v9, s[20:23], s57 offen')
    if c['gxt']: a('buffer_load_dwordx4 v[64:67], v9, s[20:23], s57 offen' + (' nt' if c['gxt'] > 1 else ''))
    a('s_mov_b32 s58, s47'); a('s_mov_b32 s59, s47')
    a('s_not_b64 s[60:61], s[58:59]')
    a('s_waitcnt lgkmcnt(0)')
    a('s_barrier')
    a('s_barrier')
    for k in range(4): a('ds_read_b128 %s, v14 offset:%d' % (vr(G0 + 4 * k), L_RED + 16 * k))
    for k in range(2): a('ds_read_b128 %s, v13 offset:%d' % (vr(32 + 4 * k), L_STAT + 16 * k))
    a('s_waitcnt lgkmcnt(%d)' % (0 if diag else 4))
    pkadd(G0, G0, G0 + 2); pkadd(G1, G1, G1 + 2)
    if not diag: a('s_waitcnt lgkmcnt(2)')
    pkadd(G2, G2, G2 + 2); pkadd(G3, G3, G3 + 2)
    pkadd(G0, G0, G1); pkadd(G2, G2, G3)
    if not diag: a('s_waitcnt lgkmcnt(0)')
    pkadd(32, 32, 34); pkadd(36, 36, 38)
    pkadd(72, G0, G2)
    pkadd(32, 32, 36)
    a('v_add_f32 v74, v32, v33')
    store2(72, 9, 57)
    stamp(11)
    leave()

    a.label('L_ft')
    a('s_barrier')
    stamp(8)
    for i in range(7):
        a('buffer_load_dwordx4 v2, s[24:27], s%d offen nt lds' % (8 + i))
        if i < 6: a('s_add_u32 m0, m0, 0x1000')
    a.label('L_fall')
    line_voff()
    a('s_bfe_u32 s7, s4, 0x10001')
    a('s_mul_i32 s7, s7, 7')
    a('s_add_u32 s55, s7, s5')
    line_soff(55)
    a('buffer_load_ushort v15, v12, s[36:39], s46 offen' + nt('x'))
    if c['near']: side_load(True)
    tr_addr()
    for k in range(4): a('v_mov_b32 v%d, 0x3f803f80' % (vAX + k))
    a('v_and_b32 v10, 15, v1')
    a('v_lshrrev_b32 v11, 5, v1')
    a('v_mul_u32_u24 v13, 80, v10')
    a('v_lshl_add_u32 v13, v11, 2, v13')
    a('v_lshl_add_u32 v13, s5, 3, v13')
    a('v_add_u32 v13, %d, v13' % L_RED)
    a('v_lshl_add_u32 v14, v10, 1, v11')
    a('v_lshlrev_b32 v14, 5, v14')
    a('v_lshl_add_u32 v14, s5, 2, v14')
    a('s_mov_b32 s60, 0xffff'); a('s_mov_b32 s61, 0xffff')
    side_add('L_sd')
    a('s_barrier')
    stamp(9)
    poll('L_p1', two, [G0 + 3, G1 + 3], between=tr_read, wait='vmcnt(0) lgkmcnt(0)')
    stamp(10)
    a('v_lshlrev_b32 v15, 16, v15')
    sum2scatter()
    rnd(G0, G0)
    a('v_add_f32 v%d, v%d, v15' % (G0, G0))
    vec32(vAX, G0, 0x3)
    for t in range(4): mfma(vD + 4 * t, vAX, vB + 4 * t, 0)
    mfma(vD + 16, vAX, vAX, 0)
    a('s_mov_b64 exec, s[60:61]')
    a('ds_write2st64_b32 v13, v%d, v%d offset0:0 offset1:5' % (vD, vD + 4))
    a('ds_write2st64_b32 v13, v%d, v%d offset0:10 offset1:15' % (vD + 8, vD + 12))
    a('ds_write_b32 v14, v%d offset:%d' % (vD + 16, L_STAT))
    a('s_waitcnt lgkmcnt(0)')
    a('s_barrier')
    leave()
    side_retry('L_sd')
    flush_retry()

    a.label('L_d0')
    a('s_cmp_ge_u32 s5, 4')
    if diag:
        a('s_cbranch_scc1 L_d1')
        a('s_barrier')
    leave_if('scc0')
    a.label('L_d1')
    a('s_sub_u32 s3, s3, 1')
    a('s_barrier')
    leave_if('scc1')
    a('s_lshl4_add_u32 s54, s3, s4')
    a('v_lshrrev_b32 v12, 4, v1')
    a('v_mul_u32_u24 v10, 896, v12')
    a('v_and_b32 v11, 15, v1')
    a('v_lshl_add_u32 v11, s55, 4, v11')
    a('v_lshl_add_u32 v3, v11, 4, v10')
    a('v_cmp_gt_u32 vcc, 56, v11')
    a('v_cndmask_b32 v3, 2.0, v3, vcc')
    a('s_mul_i32 s16, s54, %d' % (16 * 896))
    a('s_add_u32 s17, s16, 7168')
    for t in range(4):
        a('buffer_load_dwordx4 %s, v3, s[32:35], s%d offen offset:%d nt' % (vr(vW + 4 * t), 16 + (t >> 1), 3584 * (t & 1)))
    a('v_bfe_u32 v10, v1, 2, 2')
    a('v_lshl_add_u32 v10, v10, 2, v12')
    a('v_and_b32 v11, 0x30, v8')
    a('v_lshl_add_u32 v40, v10, 6, v11')
    a('s_mul_i32 s56, s54, %d' % GXS)
    a('s_add_u32 s56, s56, 0x%x' % WS_GX)
    def dsetup():
        a('v_and_b32 v10, 0x70, v8')
        a('v_bfe_u32 v11, v1, 3, 1')
        a('v_lshl_add_u32 v10, v11, 8, v10')
        a('v_bfe_u32 v11, v1, 4, 1')
        a('v_lshl_add_u32 v10, v11, 7, v10')
        a('v_lshrrev_b32 v11, 5, v1')
        a('v_lshl_add_u32 v41, v11, 13, v10')
        a('s_and_b32 s57, s54, 3')
        a('s_mul_i32 s57, s57, %d' % (HS - 4096))
        a('s_lshl3_add_u32 s7, s54, s55')
        a('s_lshl_b32 s7, s7, 9')
        a('s_add_u32 s57, s57, s7')
        a('s_add_u32 s57, s57, 0x%x' % WS_H2)
        a('s_cmp_eq_u32 s55, 3')
        a('s_cselect_b32 s58, 0x00ff00ff, -1')
        a('s_mov_b32 s59, %s' % ('s58' if c['near'] else '0'))
        k0 = 2 * math.sqrt(2 / math.pi) * math.log2(math.e)
        a('v_mov_b32 v42, %s' % f32(-k0))
        a('v_mov_b32 v43, %s' % f32(1.0 / 448))
        a('s_mov_b32 s18, %s' % f32(1.0 / 448))
        a('s_mov_b32 s19, %s' % f32(-k0 * 0.044715))
        a('v_mov_b32 v75, s6')
        if diag:
            a('s_waitcnt vmcnt(1)')
            stamp(13)
    poll('L_pg', ['buffer_load_dwordx4 %s, v40, s[20:23], s56 offen sc1' % vr(G0)], [G0 + 3], between=dsetup)
    stamp(11)
    V, CS, ST, MU, E2, T = G0, G0 + 1, G0 + 2, G1, G1 + 1, G1 + 2
    dpp('v_add_f32', ST, ST, ST, 'row_ror:8')
    dpp('v_add_f32', V, V, V, 'row_ror:8')
    a('v_mul_f32 v%d, s18, v%d' % (MU, ST))
    a('v_mul_f32 v%d, s18, v%d' % (E2, ST))
    dpp('v_mul_f32', MU, ST, 43, 'row_ror:4', 'row_mask:0xf bank_mask:0xa')
    dpp('v_mul_f32', E2, ST, 43, 'row_ror:4', 'row_mask:0xf bank_mask:0x5')
    dpp('v_add_f32', CS, CS, CS, 'row_ror:8')
    a('v_fma_f32 v%d, -v%d, v%d, v%d' % (E2, MU, MU, E2))
    rnd(MU, MU)
    a('v_max_f32 v%d, 0, v%d' % (E2, E2))
    rnd(E2, E2)
    a('v_add_f32 v%d, %s, v%d' % (E2, f32(1e-5), E2))
    rnd(E2, E2)
    a('v_sqrt_f32 v%d, v%d' % (E2, E2))
    a('v_fma_f32 v%d, -v%d, v%d, v%d' % (V, MU, CS, V))
    rnd(E2, E2)
    a('v_rcp_f32 v%d, v%d' % (E2, E2))
    a('v_mul_f32 v%d, v%d, v%d' % (V, V, E2))
    rnd(V, V)
    a('v_mul_f32 v%d, v%d, v%d' % (T, V, V))
    a('v_fmac_f32 v42, s19, v%d' % T)
    a('v_mul_f32 v%d, v42, v%d' % (T, V))
    a('v_exp_f32 v%d, v%d' % (T, T))
    a('v_add_f32 v%d, 1.0, v%d' % (T, T))
    a('v_rcp_f32 v%d, v%d' % (T, T))
    a('v_mul_f32 v%d, v%d, v%d' % (T, V, T))
    rnd(T, T)
    dpp('v_mul_f32', T, V, T, 'row_ror:4')
    a('v_cvt_pk_bf16_f32 v%d, v%d, v%d' % (T, T, T))
    for t in range(4):
        for r in range(4):
            dpp('v_and_b32', vT + 4 * t + r, T, vM + r, 'row_newbcast:%d' % t)
            if t > 0 and r == 1: mfma(vC0, vT + 4 * t - 4, vW + 4 * t - 4, t > 1)
    mfma(vC0, vT + 12, vW + 12, 1)
    a('s_mov_b64 exec, s[58:59]')
    pack24(72, vC0)
    a('buffer_store_dwordx4 v[72:75], v41, s[20:23], s57 offen sc1')
    stamp(12)
    leave()
    flush_retry()

    a.section('q')
    a.label('L_v0')
    far = 'L_v1' if c['wo_at'] == 0 else 'L_v'
    a('s_cmp_lg_u32 s31, 0')
    a('s_cbranch_scc1 L_qw')
    a('s_waitcnt lgkmcnt(0)')
    a('s_load_dword s6, s[20:21], 0')
    a('s_barrier')
    a('s_branch %s' % far)
    a.label('L_qw')
    vWQ, vXN = 16, 128
    srd(16, 448 * 8192)
    srd(36, 896)
    a('v_lshlrev_b32 v8, 4, v1')
    a('v_lshrrev_b32 v12, 3, v1')
    a('v_mul_u32_u24 v3, %d, v12' % (28 * 8192))
    a('v_and_b32 v10, 0x70, v8')
    a('v_add_u32 v3, v3, v10')
    a('s_bfe_u32 s54, s4, 0x30001')
    if c['split3']:
        a('s_cmp_eq_u32 s54, 3')
        a('s_cselect_b32 vcc_hi, 0, -1')
        a('s_cmp_ge_u32 s4, 16')
        a('s_cselect_b32 vcc_lo, -1, 0')
        a('s_cselect_b32 s54, s54, 3')
        a('s_lshl3_add_u32 s54, s3, s54')
        a('v_cndmask_b32 v3, 2.0, v3, vcc')
    else:
        a('s_lshl3_add_u32 s54, s3, s54')
        a('s_cmp_ge_u32 s4, 16')
        a('s_cselect_b32 s54, s54, s3')
    a('s_and_b32 s44, s4, 1')
    a('s_lshl_b32 s44, s44, 5')
    a('s_add_u32 s44, s44, s55')
    a('s_mul_i32 s45, s44, %d' % (7 * 64))
    a('s_add_u32 s45, s45, s54')
    a('s_lshl_b32 s45, s45, 7')
    a('s_movk_i32 s46, 0x2000')
    a('s_waitcnt lgkmcnt(0)')
    stamp(1)
    a('buffer_load_dwordx4 %s, v8, s[36:39], 0 offen' % vr(vA) + nt('x'))
    a('s_load_dword s6, s[20:21], 0')
    for n in range(7):
        a('buffer_load_dwordx4 %s, v3, s[16:19], s45 offen nt' % vr(vWQ + 4 * n))
        if n < 6: a('s_add_u32 s45, s45, s46')
    a('s_barrier')
    common(False)
    x, S1, S2 = vA + 8, vA + 4, vA + 5
    a('v_mov_b32 v%d, 0' % S1)
    a('v_mov_b32 v%d, 0' % S2)
    a('v_mov_b32 v%d, 0x3f803f80' % (vA + 6))
    a('v_mov_b32 v%d, %s' % (vA + 7, f32(1.0 / 448)))
    a('v_lshlrev_b32 v13, 5, v1')
    a('v_mul_u32_u24 v14, 112, v12')
    a('s_mul_i32 s7, s44, 28')
    a('s_add_u32 s7, s7, %d' % L_XN)
    a('v_add_u32 v14, s7, v14')
    a('v_lshl_add_u32 v15, s55, 3, v13')
    a('v_and_b32 v10, 3, v1')
    a('v_lshlrev_b32 v217, 2, v10')
    a('v_lshlrev_b32_e64 v221, 2, s55')
    a('v_mov_b32 v220, 1')
    a('v_and_b32 v10, 7, v1')
    a('v_lshlrev_b32 v10, 6, v10')
    a('v_bfe_u32 v11, v1, 4, 1')
    a('v_lshl_add_u32 v10, v11, 5, v10')
    a('v_lshrrev_b32 v11, 5, v1')
    a('v_lshl_add_u32 v9, v11, 4, v10')
    a('s_lshr_b32 s7, s54, 1')
    a('s_and_b32 s44, s4, 1')
    a('s_lshl1_add_u32 s7, s7, s44')
    a('s_and_b32 s45, s54, 1')
    a('s_lshl1_add_u32 s7, s7, s45')
    if c['split3']:
        a('s_lshl1_add_u32 s45, s3, s44')
        a('s_add_u32 s45, s45, 0x%x' % ((WS_QX - WS_Q) >> 9))
        a('s_cmp_ge_u32 s4, 16')
        a('s_cselect_b32 s7, s7, s45')
    a('s_lshl_b32 s57, s7, 9')
    a('s_add_u32 s57, s57, 0x%x' % WS_Q)
    a('s_lshl_b32 s7, s55, 1')
    a('s_lshl_b32 s58, 0x00030003, s7'); a('s_mov_b32 s59, s58')
    qx = 1 if c['qt'] else 0
    if qx:
        a('s_mov_b64 exec, s[58:59]')
        a('buffer_load_dword v216, v9, s[20:23], s57 offen ' + ('sc1' if c['qt'] == 'v' else 'nt'))
        a('s_mov_b64 exec, -1')
    a('s_waitcnt vmcnt(%d)' % (7 + qx))
    for k in range(4):
        a('v_dot2c_f32_bf16 v%d, v%d, v%d' % (S1, vA + k, vA + 6))
        a('v_dot2c_f32_bf16 v%d, v%d, v%d' % (S2, vA + k, vA + k))
    unp = []
    for k in range(4):
        unp.append('v_lshlrev_b32 v%d, 16, v%d' % (x + 2 * k, vA + k))
        unp.append('v_and_b32 v%d, 0xffff0000, v%d' % (x + 2 * k + 1, vA + k))
    a(unp.pop()); a(unp.pop())
    for ctl, m in ((QP1, FULL), (QP2, FULL), ('row_half_mirror', FULL), ('row_mirror', FULL),
                   ('row_bcast:15', 'row_mask:0xa bank_mask:0xf'), ('row_bcast:31', 'row_mask:0xc bank_mask:0xf')):
        dpp('v_add_f32', S1, S1, S1, ctl, m)
        dpp('v_add_f32', S2, S2, S2, ctl, m)
        a(unp.pop())
    a('v_readlane_b32 s62, v%d, 63' % S1)
    a('v_readlane_b32 s63, v%d, 63' % S2)
    a('v_mul_f32 v%d, s62, v%d' % (S1, vA + 7))
    a('v_mul_f32 v%d, s63, v%d' % (S2, vA + 7))
    a('v_fma_f32 v%d, -v%d, v%d, v%d' % (S2, S1, S1, S2))
    rnd(S1, S1)
    a('v_max_f32 v%d, 0, v%d' % (S2, S2))
    rnd(S2, S2)
    a('v_add_f32 v%d, %s, v%d' % (S2, f32(1e-5), S2))
    rnd(S2, S2)
    a('v_sqrt_f32 v%d, v%d' % (S2, S2))
    for k in range(8): a('v_sub_f32 v%d, v%d, v%d' % (x + k, x + k, S1))
    rnd(S2, S2)
    a('v_rcp_f32 v%d, v%d' % (S2, S2))
    for k in range(8): rnd(x + k, x + k)
    for k in range(8): a('v_mul_f32 v%d, v%d, v%d' % (x + k, x + k, S2))
    for k in range(8): a('v_cvt_pk_bf16_f32 v%d, v%d, v%d' % (x + k, x + k, x + k))
    a('ds_write_b128 v13, %s offset:%d' % (vr(x), L_XN))
    a('ds_write_b128 v13, %s offset:%d' % (vr(x + 4), L_XN + 16))
    a('s_waitcnt lgkmcnt(0)')
    for z in range(3): a('ds_read2_b32 %s, v14 offset0:%d offset1:%d' % (vr(vXN + 2 * z, 2), 2 * z, 2 * z + 1))
    a('ds_read_b32 v%d, v14 offset:24' % (vXN + 6))
    mktag()
    qc = vA + 16
    a('v_mov_b32 v%d, s6' % (vA + 22))
    a('v_mov_b32 v%d, s6' % (vA + 23))
    xpub(1)
    a('s_waitcnt lgkmcnt(0)')
    def qand(n):
        for r in range(4): a('v_and_b32 v%d, v%d, v%d' % (vA + 4 * (n & 1) + r, vXN + n, vM + r))
    qand(0)
    for n in range(7):
        if n < 6: qand(n + 1)
        a('s_waitcnt vmcnt(%d)' % (6 + qx - n))
        mfma(qc, vA + 4 * (n & 1), vWQ + 4 * n, n)
    for r in range(4): a('v_mov_b32_dpp v%d, v%d row_ror:8 row_mask:0xc bank_mask:0xf' % (qc + r, qc + r))
    a('v_permlane32_swap_b32 v%d, v%d' % (qc, qc + 2))
    a('v_permlane32_swap_b32 v%d, v%d' % (qc + 1, qc + 3))
    pkadd(qc, qc, qc + 2)
    a('ds_write_b64 v15, %s offset:%d' % (vr(qc, 2), L_T))
    gate_open(6)
    xpub(2)
    gate_wait(6, 217)
    a('ds_read_b128 %s, v13 offset:%d' % (vr(vA), L_T))
    a('ds_read_b128 %s, v13 offset:%d' % (vr(vA + 4), L_T + 16))
    a('s_waitcnt lgkmcnt(0)')
    stamp(5)
    pkadd(vA, vA, vA + 2); pkadd(vA + 4, vA + 4, vA + 6)
    pkadd(vA + 20, vA, vA + 4)
    a('s_mov_b64 exec, s[58:59]')
    a('buffer_store_dwordx4 %s, v9, s[20:23], s57 offen' % vr(vA + 20))
    a('s_add_u32 s57, s57, 0x%x' % (WS_QB - WS_Q))
    a('buffer_store_dwordx4 %s, v9, s[20:23], s57 offen sc1' % vr(vA + 20) + nt('s'))
    gate_open(8)
    a('s_mov_b64 exec, -1')
    a('s_branch L_v3')

    a.section('end')

    a.label('L_exit')
    if c['probe'] and c['probe'][0] == 'skew':
        _, gsel, mult = c['probe']
        a('s_waitcnt lgkmcnt(0)')
        a('s_cmp_eq_u32 s5, 0')
        a('s_cbranch_scc0 L_end')
        a('s_mov_b64 exec, -1')
        a('s_lshl_b32 s7, s3, 5')
        a('s_add_u32 s7, s7, s4')
        a('s_lshl_b32 s7, s7, 7')
        a('s_add_u32 s7, s7, 0x%x' % WS_ST)
        a('v_mov_b32 v16, s64')
        a('buffer_store_dword v16, off, s[20:23], s7 sc1')
        a('s_cmp_eq_u32 s2, 113')
        a('s_cbranch_scc0 L_end')
        a.label('L_spin0')
        a('s_sleep 4')
        a('s_memrealtime s[94:95]')
        a('s_waitcnt lgkmcnt(0)')
        a('s_sub_u32 s44, s94, s64')
        a('s_cmp_lt_u32 s44, 2000')
        a('s_cbranch_scc1 L_spin0')
        a('v_and_b32 v10, 31, v1')
        a('v_lshlrev_b32 v10, 7, v10')
        a('s_mov_b32 s7, 0x%x' % WS_ST)
        for g in range(8):
            a('buffer_load_dword v%d, v10, s[20:23], s7 offen sc1' % (16 + g))
            a('s_add_u32 s7, s7, 4096')
        a('s_waitcnt vmcnt(0)')
        for g in range(8):
            a('v_subrev_u32 v%d, s64, v%d' % (16 + g, 16 + g))
            allred32('v_min_i32', 16 + g, 30)
        a('v_mov_b32 v24, v16'); a('v_mov_b32 v25, v16')
        for g in range(1, 8):
            a('v_min_i32 v24, v24, v%d' % (16 + g))
            a('v_max_i32 v25, v25, v%d' % (16 + g))
        a('v_sub_u32 v26, v%d, v24' % (16 + gsel if gsel < 8 else 25))
        a('v_readfirstlane_b32 s7, v26')
        a('v_readfirstlane_b32 s45, v24')
        a('s_min_u32 s7, s7, 400')
        a('s_mul_i32 s7, s7, %d' % mult)
        a('s_add_u32 s7, s7, s45')
        a('s_add_u32 s7, s7, 3000')
        a.label('L_spin')
        a('s_sleep 4')
        a('s_memrealtime s[94:95]')
        a('s_waitcnt lgkmcnt(0)')
        a('s_sub_u32 s44, s94, s64')
        a('s_cmp_lt_i32 s44, s7')
        a('s_cbranch_scc1 L_spin')
    elif c['probe'] and c['probe'][0] == 'gmax':
        _, k, wmask, gsel, mult = c['probe']
        stamp(14)
        a('s_load_dwordx2 s[96:97], s[0:1], 80')
        a('s_mov_b64 exec, 1')
        a('s_and_b32 s3, s2, 7')
        a('s_lshl_b32 s7, 1, s5')
        a('s_and_b32 s7, s7, 0x%x' % wmask)
        a('s_waitcnt lgkmcnt(0)')
        a('s_cselect_b32 s7, s%d, 0' % (64 + 2 * k))
        a('v_mov_b32 v11, s7')
        a('v_lshlrev_b32_e64 v10, 2, s3')
        a.label('L_spin1')
        a('s_sleep 16')
        a('s_memrealtime s[94:95]')
        a('s_waitcnt lgkmcnt(0)')
        a('s_sub_u32 s44, s94, s64')
        a('s_cmp_lt_u32 s44, 1600')
        a('s_cbranch_scc1 L_spin1')
        a('s_cmp_eq_u32 s7, 0')
        a('s_cbranch_scc1 L_gm1')
        if gsel == 8: a('v_mov_b32 v10, 32')
        a('global_atomic_umax v10, v11, s[96:97] sc1')
        a.label('L_gm1')
        a('s_and_b32 s7, s5, 3')
        a('s_cbranch_scc1 L_end')
        a('v_not_b32 v11, s64')
        a('v_mov_b32 v10, 36')
        a('global_atomic_umax v10, v11, s[96:97] sc1')
        a('s_waitcnt vmcnt(0)')
        a('s_cmp_eq_u32 s5, 0')
        a('s_cbranch_scc0 L_end')
        a('s_cmp_eq_u32 s2, 113')
        a('s_cbranch_scc0 L_end')
        a.label('L_spin0')
        a('s_sleep 4')
        a('s_memrealtime s[94:95]')
        a('s_waitcnt lgkmcnt(0)')
        a('s_sub_u32 s44, s94, s64')
        a('s_cmp_lt_u32 s44, 5000')
        a('s_cbranch_scc1 L_spin0')
        a('v_mov_b32 v10, 0')
        a('global_load_dwordx4 v[20:23], v10, s[96:97] sc1')
        a('global_load_dwordx4 v[24:27], v10, s[96:97] offset:16 sc1')
        a('global_load_dwordx2 v[28:29], v10, s[96:97] offset:32 sc1')
        a('s_waitcnt vmcnt(0)')
        a('v_not_b32 v17, v29')
        for g in range(9): a('v_sub_u32 v%d, v%d, v17' % (20 + g, 20 + g))
        if isinstance(gsel, int):
            a('v_mov_b32 v16, v%d' % (20 + gsel))
        else:
            g0 = int(gsel[1:] or 0)
            oth = [20 + g for g in range(8) if g != g0 or gsel[0] in 'cd']
            a('v_mov_b32 v30, 0'); a('v_mov_b32 v31, 0')
            for r in oth:
                a('v_max_u32 v30, v30, v%d' % r)
                a('v_add_u32 v31, v31, v%d' % r)
            a('v_mul_u32_u24 v31, %d, v31' % (65536 // len(oth)))
            a('v_lshrrev_b32 v31, 16, v31')
            x, y = {'a': (20 + g0, 30), 'b': (20 + g0, 31), 'c': (30, 31), 'd': (31, 10)}[gsel[0]]
            a('v_sub_u32 v16, v%d, v%d' % (x, y))
            if gsel[0] != 'd': a('v_add_u32 v16, 300, v16')
        a('s_nop 1')
        a('v_readfirstlane_b32 s7, v16')
        a('v_readfirstlane_b32 s45, v17')
        a('s_min_u32 s7, s7, 2000')
        a('s_mul_i32 s7, s7, %d' % mult)
        a('s_add_u32 s7, s7, 1000')
        a.label('L_spin')
        a('s_sleep 4')
        a('s_memrealtime s[94:95]')
        a('s_waitcnt lgkmcnt(0)')
        a('s_sub_u32 s44, s94, s45')
        a('s_cmp_lt_u32 s44, s7')
        a('s_cbranch_scc1 L_spin')
    elif c['probe'] and c['probe'][0] == 'dirty':
        _, nkb, sc, base = c['probe']
        a('s_mov_b64 exec, -1')
        a('s_lshl3_add_u32 s7, s2, s5')
        a('s_lshl_b32 s7, s7, 13')
        a('s_add_u32 s7, s7, 0x1000000')
        a('v_lshlrev_b32 v8, 4, v1')
        for k in range(nkb):
            a('buffer_store_dwordx4 v[16:19], v8, s[20:23], s7 offen' + sc)
            a('s_add_u32 s7, s7, 1024')
        a('s_waitcnt lgkmcnt(0)')
        a.label('L_spin')
        a('s_sleep 4')
        a('s_memrealtime s[94:95]')
        a('s_waitcnt lgkmcnt(0)')
        a('s_sub_u32 s44, s94, s64')
        a('s_cmp_lt_u32 s44, %d' % base)
        a('s_cbranch_scc1 L_spin')
    elif c['probe']:
        k, base, mult = c['probe']
        stamp(14)
        a('s_waitcnt lgkmcnt(0)')
        a('s_cmp_eq_u32 s%d, 0' % (64 + 2 * k))
        a('s_cbranch_scc1 L_end')
        a('s_sub_u32 s7, s%d, s64' % (64 + 2 * k))
        a('s_min_u32 s7, s7, 10000')
        a('s_mul_i32 s7, s7, %d' % mult)
        a('s_add_u32 s7, s7, %d' % base)
        a.label('L_spin')
        a('s_sleep 4')
        a('s_memrealtime s[94:95]')
        a('s_waitcnt lgkmcnt(0)')
        a('s_sub_u32 s44, s94, s64')
        a('s_cmp_lt_u32 s44, s7')
        a('s_cbranch_scc1 L_spin')
    elif diag:
        stamp(14)
        a('s_sleep 127')
        a('s_mov_b64 exec, 1')
        a('s_lshl3_add_u32 s7, s2, s5')
        a('s_lshl_b32 s7, s7, 6')
        a('s_add_u32 s7, s7, 0x%x' % WS_ST)
        a('s_waitcnt lgkmcnt(0)')
        for k in range(15): a('v_mov_b32 v%d, s%d' % (16 + k, 64 + 2 * k))
        a('s_add_u32 s47, s47, 2')
        a('v_mov_b32 v31, s47')
        for k in range(4): a('buffer_store_dwordx4 %s, off, s[20:23], s7 offset:%d' % (vr(16 + 4 * k), 16 * k))
    a.label('L_end')
    a('s_endpgm')

    ref = open(os.path.join(os.path.dirname(os.path.abspath(__file__)), 'header.txt')).read()
    head = ref + '; @launch grid=(256,1,1) block=(512,1,1) lds=%d\n' % LDS_BYTES
    head += '.amdgcn_target "amdgcn-amd-amdhsa--gfx950"\n.text\n.globl {N}_kernel\n.p2align %d\n.p2align 8\n.type {N}_kernel,@function\n{N}_kernel:\n'.replace('{N}', NAME) % c['align']
    foot = """.section .rodata,"a"
.p2align 6
.amdhsa_kernel {N}_kernel
  .amdhsa_next_free_vgpr 224
  .amdhsa_next_free_sgpr 102
  .amdhsa_accum_offset 224
  .amdhsa_group_segment_fixed_size 0
  .amdhsa_kernarg_size 96
  .amdhsa_float_denorm_mode_32 3
  .amdhsa_user_sgpr_count 2
  .amdhsa_user_sgpr_kernarg_segment_ptr 1
  .amdhsa_system_sgpr_workgroup_id_x 1
.end_amdhsa_kernel
""".replace('{N}', NAME)
    return head + a.text(('main', 'q', 'k', 'v', 'end')) + foot

if __name__ == '__main__':
    out = sys.argv[1] if len(sys.argv) > 1 else 'cdna_kernels/%s.s' % NAME
    kw = eval('dict(%s)' % sys.argv[2]) if len(sys.argv) > 2 else {}
    open(out, 'w').write(gen(**kw))
```

```python
import sys, os, struct, math
sys.path.insert(0, os.path.dirname(os.path.abspath(__file__)))
from emit import Asm

NAME = 'sequential_preLN__sliding_block_cached__geglu_ffn__decode'

WS_X = 0x4000
WS_Q = 0x180000
WS_QX = 0x1e0000
BLK = 4096 + 128
WS_H0 = 0x20000
GXS = 2048 + 128
WS_QB = 0x190000
WS_XB = 0xC000
WS_GX = 0xA4000
HS = 1920
WS_H1 = 0x100000
WS_H2 = 0x110000
WS_R = 0xC8000
WS_ST = 0x200000

L_QL = 0
L_S = 1024
L_P = 2048
L_XN = 6400
L_WT = 3200
L_GATE = 8448
L_STAT = 8704
L_RED = 9728
L_T = 14848
LDS_BYTES = L_T + 8 * 4096

SPIN = 20000

def f32(x):
    return '0x%08x' % struct.unpack('<I', struct.pack('<f', x))[0]

def vr(a, n=4):
    return 'v[%d:%d]' % (a, a + n - 1)

DEF = dict(depth=6, dv=0, gq=16, ga=16, na=16, nb=16, pvd=6, dx=0, stamps=None, rs=1, rg=0, touch='wn', gxt=0, h2late=1, nts='q', ot=1,
           force_sc1=False, probe=None, wo_at=4, qdual=6, ldual=40, gall=1, deep0=14, deep=28, skipz=1, split3=1, tfl='', b1=1, qh=6, pf=True, qt='', prio=0, align=12, near=1, pk=2, sdn=12, swap=1, dt=0, dl=1, gf='s', dw=0, ep=1, es=0, sl=1)

def gen(**kw):
    c = dict(DEF); c.update(kw)
    a = Asm()
    D = c['depth']
    DV = c['dv'] or D
    DX = c['dx']
    diag = bool(c['stamps'])
    def nt(k):
        return ' nt' if k in c['nts'] else ''
    def stamp(k):
        if diag: a('%s s[%d:%d]' % (c['stamps'], 64 + 2 * k, 65 + 2 * k))
    def leave():
        a('s_branch L_exit' if diag else 's_endpgm')
    nlab = [0]
    def leave_if(cond):
        if diag:
            a('s_cbranch_%s L_exit' % cond)
        else:
            nlab[0] += 1
            a('s_cbranch_%s L_stay%d' % ('scc1' if cond == 'scc0' else 'scc0', nlab[0]))
            h = list(a.hist)
            a('s_endpgm')
            a.hist = h
            a.label('L_stay%d' % nlab[0])
    def srd(base, size):
        a('s_mov_b32 s%d, 0x%x' % (base + 2, size))
        a('s_mov_b32 s%d, 0x20000' % (base + 3))
    def mktag():
        a('s_mul_i32 s6, s6, 0x9e3779b1')
        a('s_add_u32 s6, s6, 0x7f4a7c15')
    def rnd(d, s):
        a('v_cvt_pk_bf16_f32 v%d, 0, v%d' % (d, s))
    QP1, QP2 = 'quad_perm:[1,0,3,2]', 'quad_perm:[2,3,0,1]'
    FULL = 'row_mask:0xf bank_mask:0xf'
    def dpp(op, d, s0, s1, ctl, mask=FULL):
        a('%s_dpp v%d, v%d, v%d %s %s' % (op, d, s0, s1, ctl, mask))
    def mfma(d, x, y, acc):
        a('v_mfma_f32_16x16x32_bf16 %s, %s, %s, %s' % (vr(d), vr(x), vr(y), vr(d) if acc else '0'))
    def pkadd(d, x, y):
        a('v_pk_add_f32 %s, %s, %s' % (vr(d, 2), vr(x, 2), vr(y, 2)))
    def masks():
        a('v_and_b32 v10, 1, v1')
        a('v_lshlrev_b32 v10, 4, v10')
        a('s_mov_b32 s7, 0xffff')
        a('v_lshlrev_b32_e64 v10, v10, s7')
        a('v_bfe_u32 v11, v1, 1, 2')
        for r in range(4):
            a('v_cmp_eq_u32 vcc, %d, v11' % r)
            a('v_cndmask_b32 v%d, 0, v10, vcc' % (vM + r))
    def pack24(d, s):
        for k in range(3):
            a('v_perm_b32 v%d, v%d, v%d, s%d' % (d + k, s + k, s + 3, sPK + k))
    def unpackn(gs):
        for g in gs: a('v_perm_b32 v%d, v%d, v%d, s%d' % (g + 3, g + 1, g, sUP))
        for g in gs: a('v_perm_b32 v%d, v%d, v%d, s%d' % (g + 3, g + 2, g + 3, sUP + 1))
    def scatter4(g):
        a('v_permlane32_swap_b32 v%d, v%d' % (g, g + 2))
        a('v_permlane32_swap_b32 v%d, v%d' % (g + 1, g + 3))
        pkadd(g, g, g + 2)
        a('v_permlane16_swap_b32 v%d, v%d' % (g, g + 1))
        a('v_add_f32 v%d, v%d, v%d' % (g, g, g + 1))
        dpp('v_add_f32', g, g, g, 'row_ror:8')
    def sum2scatter(x=16, y=20):
        unpackn([x, y])
        pkadd(x, x, y); pkadd(x + 2, x + 2, y + 2)
        scatter4(x)
    def vec32(d, s, banks):
        rnd(s + 1, s)
        a('v_cvt_pk_bf16_f32 v%d, v%d, 0' % (s, s))
        dpp('v_or_b32', s, s + 1, s, 'quad_perm:[1,1,3,3]')
        for k in range(4):
            a('v_mov_b32_dpp v%d, v%d row_newbcast:%d row_mask:0xf bank_mask:0x%x' % (d + k, s, 2 * k, banks))
    retry = []
    def poll(name, loads, tags, between=None, wait='vmcnt(0)', alt=None, half=False, extra=[], also=[]):
        for t in loads[:-1]: a(t)
        if half: a('s_mov_b32 exec_hi, 0')
        if loads: a(loads[-1])
        if half: a('s_mov_b32 exec_hi, -1')
        if between: between()
        a('s_mov_b32 s7, 0')
        if wait: a('s_waitcnt ' + wait)
        a.label(name + '_chk')
        a('v_cmp_ne_u32 vcc, s6, v%d' % tags[0])
        if len(tags) > 1:
            for i, t in enumerate(tags[1:]):
                a('v_cmp_ne_u32_e64 s[%d:%d], s6, v%d' % (96 + 2 * i, 97 + 2 * i, t))
            if half: a('s_and_b32 s%d, s%d, 0' % (93 + 2 * len(tags), 93 + 2 * len(tags)))
            for i, t in enumerate(tags[1:]):
                a('s_or_b64 s[62:63], %s, s[%d:%d]' % ('s[62:63]' if i else 'vcc', 96 + 2 * i, 97 + 2 * i))
            a('s_cbranch_scc1 %s_retry' % name)
        else:
            a('s_cbranch_vccnz %s_retry' % name)
        a.label(name + '_ok')
        retry.append((name, loads + extra, alt, also))
    def flush_retry():
        for name, loads, alt, also in retry:
            a.label(name + '_retry')
            if alt:
                a('s_cmp_eq_u32 s7, %d' % alt[0])
                a('s_cselect_b32 s%d, s%d, s%d' % (alt[1], alt[2], alt[1]))
            for i, t in enumerate(loads):
                a('s_mov_b64 exec, %s' % ('s[%d:%d]' % (94 + 2 * i, 95 + 2 * i) if i else 'vcc'))
                skip = c['skipz'] and len(loads) > 2
                if skip: a('s_cbranch_execz %s_z%d' % (name, i))
                a(t)
                if skip: a.label('%s_z%d' % (name, i))
            a('s_mov_b64 exec, -1')
            for t in also: a(t)
            a('s_add_u32 s7, s7, 1')
            a('s_cmp_ge_u32 s7, %d' % SPIN)
            a('s_waitcnt vmcnt(0)')
            a('s_cbranch_scc0 %s_chk' % name)
            a('s_branch %s_ok' % name)
        del retry[:]
    def common(x=True):
        if x: srd(36, 896)
        a('s_load_dwordx2 s[24:25], s[0:1], 48')
        a('s_load_dwordx2 s[28:29], s[0:1], 56')
        a('s_load_dwordx2 s[32:33], s[0:1], 64')
        a('s_load_dwordx2 s[40:41], s[0:1], 72')
        srd(20, 1 << 28)
        srd(24, 448 * 3584)
        srd(32, 1792 * 896)
        srd(40, 896)
        for k in range(3):
            a('s_mov_b32 s%d, 0x0706050%d' % (sPK + k, 1 + k))
        a('s_mov_b32 s%d, 0x0c04000c' % sUP)
        a('s_mov_b32 s%d, 0x04020100' % (sUP + 1))
        if DX:
            a('s_cmp_eq_u32 s3, 0')
            a('s_cselect_b32 s30, %d, %d' % (c['deep0'], c['deep']))
            a('s_cmp_ge_u32 s4, s30')
            a('s_cselect_b32 s30, 1, 0')
        masks()
        a('v_lshlrev_b32 v8, 4, v1')
    def gate_open(k):
        a('ds_write_b32 v221, v220 offset:%d' % (L_GATE + 16 * k))
    def gate_wait(k, vaddr):
        nlab[0] += 1
        if vaddr == 219: a('v_mov_b32 v219, 0')
        a.label('L_gate%d' % nlab[0])
        a('ds_read_b32 v219, v%d offset:%d' % (vaddr, L_GATE + 16 * k))
        a('s_waitcnt lgkmcnt(0)')
        a('v_cmp_ne_u32 vcc, 1, v219')
        a('s_cbranch_vccnz L_gate%d' % nlab[0])
    def store2(data, voff, soff, m=58):
        a('s_mov_b64 exec, s[%d:%d]' % (m, m + 1))
        a('buffer_store_dwordx4 %s, v%d, s[20:23], s%d offen' % (vr(data), voff, soff))
        a('s_mov_b64 exec, s[%d:%d]' % (m + 2, m + 3))
        a('buffer_store_dwordx4 %s, v%d, s[20:23], s%d offen sc1' % (vr(data), voff, soff))
        a('s_mov_b64 exec, -1')
    def dma_voff(rowexpr_pitch, d=2):
        a('v_bfe_u32 v11, v1, 3, 2')
        a('v_lshlrev_b32 v11, 1, v11')
        a('v_xor_b32 v11, v11, v1')
        a('v_and_b32 v11, 7, v11')
        a('v_mul_u32_u24 v10, %d, v10' % rowexpr_pitch)
        a('v_lshl_add_u32 v%d, v11, 4, v10' % d)
    def tr_addr(sh=12):
        a('v_bfe_u32 v10, v1, 2, 2')
        a('v_mul_u32_u24 v10, 160, v10')
        a('v_and_b32 v11, 3, v1')
        a('v_lshl_add_u32 v10, v11, 3, v10')
        a('v_lshrrev_b32 v11, 4, v1')
        a('v_lshl_add_u32 v10, v11, 10, v10')
        a('v_lshl_add_u32 v32, s5, %d, v10' % sh)
        for t in range(1, 4): a('v_xor_b32 v%d, %d, v32' % (32 + t, 32 * t))
    def tr_read():
        for t in range(4):
            for u in range(2):
                a('ds_read_b64_tr_b16 %s, v%d offset:%d' % (vr(vB + 4 * t + 2 * u, 2), 32 + t, L_T + 512 * u))
    def gran_row(e):
        a('v_and_b32 v10, 0x77, v%d' % e)
        a('v_and_b32 v3, 7, v%d' % e)
        a('v_add_u32 v10, v10, v3')
        a('v_bfe_u32 v3, v%d, 3, 1' % e)
        a('v_add_lshl_u32 v10, v10, v3, 2')
    def line_voff():
        a('v_bfe_u32 v10, v1, 3, 2')
        a('v_mul_u32_u24 v10, %d, v10' % HS)
        a('v_lshrrev_b32 v11, 5, v1')
        a('v_lshl_add_u32 v10, v11, 14, v10')
        a('v_and_b32 v11, 0x70, v8')
        a('v_add_u32 v9, v10, v11')
        a('v_lshrrev_b32 v10, 4, v1')
        a('v_lshl_add_u32 v12, v10, 1, v11')
    def line_soff(sl):
        a('s_lshl_b32 s44, s%d, 7' % sl)
        a('s_add_u32 s44, s44, 0x%x' % WS_H1)
        a('s_lshr_b32 s46, s%d, 1' % sl)
        a('s_lshl_b32 s46, s46, 7')
        a('s_and_b32 s7, s%d, 1' % sl)
        a('s_lshl3_add_u32 s46, s7, s46')
    def softmax_head(r):
        mx, t1, ls = r + 4, r + 5, r + 6
        a('v_max3_f32 v%d, v%d, v%d, v%d' % (mx, r, r + 1, r + 2))
        a('v_max_f32 v%d, v%d, v%d' % (mx, mx, r + 3))
        allred32('v_max_f32', mx, t1)
        a('v_mul_f32 v%d, s53, v%d' % (mx, mx))
        for k in range(4): a('v_fma_f32 v%d, v%d, s53, -v%d' % (r + k, r + k, mx))
        for k in range(4): a('v_exp_f32 v%d, v%d' % (r + k, r + k))
        a('v_add_f32 v%d, v%d, v%d' % (ls, r, r + 1))
        a('v_add_f32 v%d, v%d, v%d' % (t1, r + 2, r + 3))
        a('v_add_f32 v%d, v%d, v%d' % (ls, ls, t1))
        allred32('v_add_f32', ls, t1)
    def allred32(op, r, t1):
        for ctl in (QP1, QP2, 'row_half_mirror', 'row_mirror'): dpp(op, r, r, r, ctl)
        a('v_mov_b32 v%d, v%d' % (t1, r))
        a('v_permlane16_swap_b32 v%d, v%d' % (r, t1))
        a('%s v%d, v%d, v%d' % (op, r, r, t1))

    vM = 4
    vKO = 2
    vK, vV, vQ, vW = 16, 80, 144, 176
    vA = 192
    vP = 16
    vT = 48
    vC0, vC1 = 64, 68
    G0, G1, G2, G3 = 16, 20, 24, 28
    vB, vAX, vD = 80, 96, 100
    sPK, sUP = 48, 51
    SC = f32(math.log2(math.e) / 16)

    def wo_setup():
        a('s_load_dwordx2 s[16:17], s[0:1], 32')
        srd(16, 448 * 8192)
        a('v_bfe_u32 v10, v1, 3, 2')
        a('v_lshrrev_b32 v11, 5, v1')
        a('v_lshl_add_u32 v10, v10, 1, v11')
        dma_voff(4 * 896)
        a('s_cmp_ge_u32 s4, 7')
        a('s_cselect_b32 s54, 1, 0')
        a('s_lshl1_add_u32 s7, s3, s54')
        a('s_lshl_b32 s7, s7, 8')
        a('s_add_u32 s7, s7, s55')
        a('s_sub_u32 s7, s7, s54')
        a('s_mul_i32 s7, s7, 7')
        a('s_add_u32 s7, s7, s4')
        a('s_lshl_b32 s10, s7, 7')
        a('s_lshl_b32 s7, s55, 10')
        a('s_add_u32 m0, s7, %d' % L_T)
        a('s_movk_i32 s11, %d' % (32 * 896))
    def wo_issue():
        for i in range(8):
            a('buffer_load_dwordx4 v2, s[16:19], s10 offen nt lds')
            if i < 7:
                a('s_add_u32 m0, m0, 0x1000')
                a('s_add_u32 s10, s10, s11')
    def wo_issue_if():
        nlab[0] += 1
        a('s_cmp_ge_u32 s4, 14')
        a('s_cbranch_scc1 L_nowo%d' % nlab[0])
        wo_issue()
        a.label('L_nowo%d' % nlab[0])
    def kv_addr():
        a('v_and_b32 v10, 7, v1')
        a('v_lshrrev_b32 v11, 3, v1')
        a('v_lshlrev_b32 v10, 4, v10')
        a('v_lshl_add_u32 v%d, v11, 9, v10' % vKO)
        a('s_lshl_b32 s7, s3, 7')
        a('s_add_u32 s7, s7, s4')
        a('s_add_u32 s7, s7, 96')
        a('s_lshl_b32 s44, s7, 4')
        if c['rs'] == 1 and not c['rg']:
            a('s_and_b32 s7, s4, 15')
        else:
            a('s_mul_i32 s7, s4, %d' % c['rs'])
            a('s_mul_i32 s62, s3, %d' % c['rg'])
            a('s_add_u32 s7, s7, s62')
            a('s_and_b32 s7, s7, 15')
        a('s_or_b32 s44, s44, s7')
    def h0_gather():
        a('s_cmp_ge_u32 s4, 7')
        a('s_cselect_b32 s54, 1, 0')
        a('s_lshl1_add_u32 s7, s3, s54')
        a('s_lshl3_add_u32 s56, s7, s5')
        a('s_mul_i32 s56, s56, %d' % BLK)
        a('s_add_u32 s56, s56, 0x%x' % WS_H0)

    def probe_addr():
        a('s_lshr_b32 s98, s2, 5')
        a('s_lshl_b32 s98, s98, 3')
        a('s_and_b32 s7, s55, 2')
        a('s_lshl1_add_u32 s98, s7, s98')
        a('s_and_b32 s7, s55, 1')
        a('s_add_u32 s98, s98, s7')
        a('s_lshl_b32 s98, s98, 5')
        a('s_and_b32 s7, s2, 31')
        a('s_add_u32 s98, s98, s7')
        a('s_lshl_b32 s98, s98, 7')
        a('s_add_u32 s98, s98, 0x%x' % WS_R)
    def probe(n):
        probe_addr()
        a('s_and_b32 s7, s55, 1')
        a('v_xor_b32 v10, s7, v1')
        a('v_lshlrev_b32 v10, 2, v10')
        a('s_lshl_b32 s7, s7, 13')
        a('s_xor_b32 s98, s98, s7')
        a('s_xor_b32 s99, s98, 0x2000')
        a('s_mov_b64 s[12:13], 0')
        a('s_mov_b32 s96, 0')
        a('s_buffer_load_dword s62, s[20:23], s98 glc')
        a('s_buffer_load_dword s63, s[20:23], s99 glc')
        a('s_waitcnt lgkmcnt(0)')
        a.label('L_probe')
        a('s_memtime s[14:15]')
        a('s_buffer_load_dword s7, s[20:23], s98 glc')
        a('s_waitcnt lgkmcnt(0)')
        a('s_memtime s[100:101]')
        a('s_buffer_load_dword s7, s[20:23], s99 glc')
        a('s_waitcnt lgkmcnt(0)')
        a('s_memtime s[62:63]')
        a('s_sub_u32 s14, s14, s100')
        a('s_max_u32 s12, s12, s14')
        a('s_add_u32 s96, s96, 1')
        a('s_waitcnt lgkmcnt(0)')
        a('s_sub_u32 s100, s100, s62')
        a('s_max_u32 s13, s13, s100')
        a('s_cmp_lt_u32 s96, %d' % n)
        a('s_cbranch_scc1 L_probe')
        a('v_mov_b32 v11, s12')
        a('v_writelane_b32 v11, s13, 1')
        a('s_mov_b64 exec, 3')
        a('ds_max_u32 v10, v11 offset:%d' % (L_GATE + 16 * 9))
        a('s_mov_b64 exec, -1')
    def side_load(first):
        if first:
            a('v_lshlrev_b32 v217, 7, v1')
            a('s_lshl_b32 s45, s3, 12')
            a('s_add_u32 s45, s45, 0x%x' % (WS_X + 4096))
            a('s_mov_b32 s62, 0')
        a('s_mov_b64 exec, 3')
        a('buffer_load_dwordx2 v[218:219], v217, s[20:23], s45 offen offset:%d sc1' % (14 * 128 + 32))
        a('s_mov_b64 exec, -1')
    def side_add(name):
        if c['near']:
            a.label(name + '_wait')
            a('s_waitcnt vmcnt(0)')
            a('v_cmp_eq_u32 vcc, s6, v219')
            a('s_and_b32 s7, vcc_lo, 3')
            a('s_cbranch_scc0 %s_retry' % name)
            a('s_ff1_i32_b32 s7, s7')
            a('v_readlane_b32 s7, v218, s7')
            a('s_and_b32 s7, s7, 0x2000')
            a('s_add_u32 s44, s44, s7')
            a.label(name + '_ok')
            if diag: a('s_add_u32 s47, s7, 0x100')
        else:
            a('s_waitcnt vmcnt(0)')
        a('s_add_u32 s45, s44, 0x8000')
    def side_retry(name):
        if c['near']:
            a.label(name + '_retry')
            a('s_add_u32 s62, s62, 1')
            a('s_cmp_ge_u32 s62, %d' % c['sdn'])
            a('s_cbranch_scc1 %s_ok' % name)
            side_load(False)
            a('s_branch %s_wait' % name)
    def xpub(part):
        if part & 1:
            a('s_lshl_b32 s7, s3, 5')
            a('s_add_u32 s7, s7, s4')
            a('s_lshl_b32 s7, s7, 7')
            a('s_add_u32 s47, s7, 0x%x' % WS_X)
            a('s_getreg_b32 s7, hwreg(HW_REG_XCC_ID, 0, 4)')
            a('v_mov_b32 v222, s7')
            a('v_mov_b32 v223, s6')
        if part & 2:
            nlab[0] += 1
            a('s_cmp_eq_u32 s5, 6')
            a('s_cbranch_scc0 L_xp%d' % nlab[0])
            a('s_mov_b64 exec, 1')
            a('buffer_store_dwordx2 v[222:223], off, s[20:23], s47')
            a('s_mov_b64 exec, -1')
            a.label('L_xp%d' % nlab[0])

    if diag:
        for k in range(1, 15): a('s_mov_b32 s%d, 0' % (64 + 2 * k))
    stamp(0)
    a('s_load_dwordx2 s[8:9], s[0:1], 8')
    a('s_load_dwordx2 s[36:37], s[0:1], 0')
    a('s_load_dwordx2 s[16:17], s[0:1], 24')
    a('s_load_dwordx2 s[12:13], s[0:1], 16')
    a('s_load_dwordx2 s[20:21], s[0:1], 88')
    a('s_cmp_ge_u32 s2, 256')
    a('s_cbranch_scc1 L_end')
    a('v_lshrrev_b32 v3, 6, v0')
    a('v_and_b32 v1, 63, v0')
    a('s_and_b32 s3, s2, 7')
    a('v_readfirstlane_b32 s5, v3')
    a('s_lshr_b32 s4, s2, 3')
    a('s_and_b32 s55, s5, 3')
    a('s_add_u32 s31, s4, 2')
    a('s_lshr_b32 s31, s31, 4')
    if c['swap']:
        a('s_cmp_lg_u32 s31, 0')
        a('s_cselect_b32 s7, 4, 0')
        a('s_xor_b32 s5, s5, s7')
    a('s_cmp_ge_u32 s5, 4')
    a('s_cbranch_scc1 L_v0')

    if c['pf']:
        a('s_getpc_b64 s[46:47]')
        a.label('L_pc')
        a('s_lshl2_add_u32 s7, s4, s55')
        a('s_lshl_b32 s7, s7, 7')
        a('s_addk_i32 s7, 0x300')
        a('s_min_u32 s7, s7, L_end-L_pc')
        a('s_add_u32 s46, s46, s7')
        a('s_addc_u32 s47, s47, 0')
        a('v_mov_b32 v10, s46')
        a('v_mov_b32 v11, s47')
        a('global_load_dword v216, v[10:11], off' + nt('c'))
    kv_addr()
    srd(8, 1 << 26)
    a('s_xor_b32 s45, s44, s55')
    a('s_lshl_b32 s45, s45, 12')
    a('v_and_b32 v10, 0xfc, v0')
    a('v_mov_b32 v11, 0')
    a('ds_write_b32 v10, v11 offset:%d' % L_GATE)
    a('s_cmp_lg_u32 s31, 0')
    a('s_waitcnt lgkmcnt(0)')
    a('s_load_dword s6, s[20:21], 0')
    if c['b1']:
        a('s_cbranch_scc0 L_k1')
        a('s_barrier')
        a.label('L_k1')
    stamp(1)
    GQ = c['gq']
    assert D <= GQ <= 16 and D <= c['ga'] <= 16
    class Stream:
        def __init__(self): self.seq, self.done = [], 0
        def left(self, n): return len(self.seq) - self.seq.index(n) - 1
        def wait(self, n):
            if self.seq.index(n) >= self.done:
                a('s_waitcnt vmcnt(%d)' % self.left(n))
                self.done = self.seq.index(n) + 1
        def throttle(self, n, d):
            if DX and n >= d and self.seq.index(n - d) >= self.done:
                nlab[0] += 1
                a('s_cmp_lg_u32 s30, 0')
                a('s_cbranch_scc1 L_thr%d' % nlab[0])
                a('s_waitcnt vmcnt(%d)' % self.left(n - d))
                a.label('L_thr%d' % nlab[0])
            if n >= d + DX: self.wait(n - d - DX)
    ks = Stream()
    def kload(idx):
        i, t = idx >> 2, idx & 3
        if t == 0 and i > 0: a('s_xor_b32 s45, s45, 0x%x' % ((i ^ (i - 1)) << 14))
        ks.throttle(idx, D)
        a('buffer_load_dwordx4 %s, v%d, s[8:11], s45 offen offset:%d nt' % (vr(vK + 4 * idx), vKO, 128 * t))
        ks.seq.append(idx)
    for idx in range(D): kload(idx)
    if c['b1']:
        a('s_cmp_lg_u32 s31, 0')
        a('s_cbranch_scc1 L_kb')
    a('s_barrier')
    a('s_branch L_kb')
    a.section('k')
    a.label('L_kb')
    common()
    for k in range(8): a('v_mov_b32 v%d, 0' % (vA + 8 + k))
    if c['split3']:
        for k in (0, 1, 4, 5): a('v_mov_b32 v%d, 0' % (vA + 16 + k))
        a('s_mul_i32 s7, s3, %d' % (1024 - 8192))
        a('s_add_u32 s7, s7, 0x%x' % (WS_QX - WS_Q - 2048))
        a('v_add_u32 v14, s7, v8')
    a('v_bfe_u32 v10, v1, 2, 1')
    a('v_lshlrev_b32 v10, 9, v10')
    a('v_lshrrev_b32 v12, 4, v1')
    a('v_lshl_add_u32 v10, v12, 7, v10')
    a('v_and_b32 v11, 3, v1')
    a('v_lshlrev_b32 v217, 2, v11')
    a('v_lshl_add_u32 v10, v11, 5, v10')
    a('v_bfe_u32 v11, v1, 3, 1')
    a('v_lshl_add_u32 v10, v11, 2, v10')
    a('v_lshl_add_u32 v13, s55, 3, v10')
    a('v_and_b32 v10, 31, v1')
    a('v_lshlrev_b32 v218, 7, v10')
    a('v_lshlrev_b32_e64 v221, 2, s55')
    a('v_mov_b32 v220, 1')
    a('v_and_b32 v9, 0x70, v8')
    a('v_and_b32 v12, 0xff, v0')
    a('v_lshlrev_b32 v12, 2, v12')
    a('s_lshl_b32 s46, s3, 12')
    a('s_add_u32 s46, s46, 0x%x' % WS_X)
    a('s_getreg_b32 s44, hwreg(HW_REG_XCC_ID, 0, 4)')
    a('s_lshl2_add_u32 s7, s3, s5')
    a('s_lshl_b32 s7, s7, 11')
    a('s_add_u32 s56, s7, 0x%x' % WS_Q)
    a('s_add_u32 s57, s7, 0x%x' % WS_QB)
    a('s_mov_b32 s58, 0xaaaaaaaa'); a('s_mov_b32 s59, 0xaaaaaaaa')
    a('s_mov_b32 s60, 0xcccccccc'); a('s_mov_b32 s61, 0xcccccccc')
    a('s_mov_b32 s53, %s' % SC)
    if c['ga'] == D: gate_open(0)
    def krange(lo, hi):
        for idx in range(lo, hi):
            if c['qh'] and idx == c['qh']:
                a('s_cmp_lg_u32 s31, 0')
                a('s_cbranch_scc0 L_k2')
                gate_wait(8, 217)
                a.label('L_k2')
            kload(idx)
            if c['ga'] == idx + 1: gate_open(0)
    krange(D, GQ)
    vE = vA + 16
    qx3 = 'buffer_load_dwordx4 %s, v14, s[20:23], s56 offen sc1' % vr(vE) + nt('q')
    if c['split3']:
        a('s_cmp_eq_u32 s5, 1')
        a('s_cbranch_scc0 L_k6')
        a(qx3)
        a.label('L_k6')
    def krest():
        ks.seq += ['q0', 'q1']
        krange(GQ, 16)
        stamp(2)
        a('s_waitcnt lgkmcnt(0)')
        mktag()
        if c['split3']:
            a('s_cmp_eq_u32 s5, 1')
            a('s_cbranch_scc1 L_k7')
            a('v_mov_b32 v%d, s6' % (vE + 3))
            a.label('L_k7')
        if c['wo_at']: wo_setup()
        ks.wait('q1')
        gate_open(1)
    poll('L_pq', ['buffer_load_dwordx4 %s, v8, s[20:23], s56 offen offset:%d sc1' % (vr(vA + 4 * k), 1024 * k) + nt('q') for k in range(2)],
         [vA + 3, vA + 7] + [vE + 3] * c['split3'], between=krest, wait=None, alt=(c['qdual'], 56, 57), extra=[qx3] * c['split3'])
    stamp(3)
    pkadd(vA, vA, vA + 4)
    if c['split3']:
        a('v_permlane32_swap_b32 v%d, v%d' % (vE + 4, vE))
        a('v_permlane32_swap_b32 v%d, v%d' % (vE + 5, vE + 1))
        pkadd(vE, vE, vE + 4)
        pkadd(vA, vA, vE)
    a('v_cvt_pk_bf16_f32 v%d, v%d, v%d' % (vA, vA, vA + 1))
    a('ds_write_b32 v12, v%d offset:%d' % (vA, L_QL))
    gate_open(2)
    gate_wait(2, 217)
    for h in range(2):
        for t in range(4):
            a('ds_read_b128 %s, v9 offset:%d' % (vr(vQ + 16 * h + 4 * t), L_QL + 512 * h + 128 * t))
    if c['wo_at'] == 2: wo_issue_if()
    a('s_waitcnt lgkmcnt(0)')
    stamp(4)
    acc = lambda i, h: vA + 8 + 4 * h + i
    for i in range(4):
        assert c['wo_at'] != 2 or GQ == 16
        ks.wait(4 * i + 3)
        for t in range(4):
            for d in range(4):
                for h in range(2):
                    a('v_dot2c_f32_bf16 v%d, v%d, v%d' % (acc(i, h), vK + 16 * i + 4 * t + d, vQ + 16 * h + 4 * t + d))
    X = acc(0, 0)
    for i in range(4): dpp('v_add_f32', X + i, X + i, X + i, 'row_half_mirror', 'row_mask:0xf bank_mask:0x5')
    for i in range(4): dpp('v_add_f32', X + i, X + 4 + i, X + 4 + i, 'row_half_mirror', 'row_mask:0xf bank_mask:0xa')
    for i in range(4): dpp('v_add_f32', X + i, X + i, X + i, QP1)
    a('v_cndmask_b32_e64 v%d, v%d, v%d, s[58:59]' % (X, X, X + 1))
    a('v_cndmask_b32_e64 v%d, v%d, v%d, s[58:59]' % (X + 2, X + 2, X + 3))
    dpp('v_add_f32', X, X, X, QP2)
    dpp('v_add_f32', X + 2, X + 2, X + 2, QP2)
    a('v_cndmask_b32_e64 v%d, v%d, v%d, s[60:61]' % (X, X, X + 2))
    rnd(X, X)
    a('ds_write_b32 v13, v%d offset:%d' % (X, L_S))
    gate_open(3)
    stamp(5)
    h0_gather()
    def xflag(left):
        a('s_waitcnt vmcnt(%d)' % left)
        a('v_cmp_ne_u32 vcc, s6, v223')
        a('v_cmp_ne_u32_e64 s[96:97], s44, v222')
        a('s_or_b32 s7, vcc_lo, s96')
        a('s_cselect_b32 s7, 2, %d' % (2 if c['force_sc1'] else 1))
        a('v_mov_b32 v219, s7')
        a('ds_write_b32 v217, v219 offset:%d' % (L_GATE + 16 * 7))
    a('s_cmp_eq_u32 s5, 3')
    a('s_cbranch_scc1 L_k3')
    a('s_cmp_ge_u32 s4, 14')
    a('s_cbranch_scc1 L_aux6')
    if c['wo_at'] == 4: gate_wait(4, 221)
    if c['wo_at'] >= 3: wo_issue()
    a('s_waitcnt vmcnt(0)')
    a('s_branch L_wt')

    a.label('L_k3')
    a('s_mov_b32 exec_hi, 0')
    a('buffer_load_dwordx2 v[222:223], v218, s[20:23], s46 offen sc1' + nt('t'))
    a('s_mov_b32 exec_hi, -1')
    a('s_lshl3_add_u32 s45, s54, s46')
    a('s_add_u32 s57, s45, 0x%x' % (WS_XB - WS_X))
    a('v_lshrrev_b32 v10, 5, v1')
    a('v_lshl_add_u32 v14, v10, 4, v8')
    a('v_lshlrev_b32 v10, 3, v10')
    a('s_lshl_b32 s7, s4, 7')
    a('s_add_u32 s46, s46, s7')
    a('v_mov_b32 v13, s6')
    gate_wait(3, 217)
    a('ds_read_b128 %s, v8 offset:%d' % (vr(vA), L_S))
    a('s_waitcnt lgkmcnt(0)')
    softmax_head(vA)
    a('v_rcp_f32 v%d, v%d' % (vA + 5, vA + 6))
    a('v_log_f32 v12, v%d' % (vA + 6))
    for k in range(4): a('v_mul_f32 v%d, v%d, v%d' % (vA + k, vA + k, vA + 5))
    for k in range(4): a('v_cvt_pk_bf16_f32 v%d, v%d, v%d' % (vA + k, vA + k, vA + k))
    a('ds_write_b128 v14, %s offset:%d' % (vr(vA), L_P))
    a('ds_write_b32 v221, v220 offset:%d' % (L_GATE + 16 * 5 - 12))
    a('v_add_f32 v12, v12, v%d' % (vA + 4))
    def lse_store(sc):
        a('s_mov_b32 exec_lo, 1'); a('s_mov_b32 exec_hi, 1')
        a('buffer_store_dwordx2 v[12:13], v10, s[20:23], s46 offen offset:16' + sc)
        a('s_mov_b64 exec, -1')
    lse_store('')
    xflag(1)
    a('s_add_u32 s46, s46, 0x%x' % (WS_XB - WS_X))
    a('s_cmp_ge_u32 s4, 14')
    stamp(6)
    a('s_cbranch_scc0 L_k4')
    lse_store(' sc1' + nt('s'))
    a('s_branch L_aux6')
    a.label('L_k4')
    gate_wait(4, 221)
    late = c['wo_at'] >= 3
    def lrest():
        if late: wo_issue()
        lse_store(' sc1' + nt('s'))
    poll('L_pl', ['buffer_load_dwordx2 v[14:15], v218, s[20:23], s45 offen offset:16 sc1'], [15],
         between=lrest, wait='vmcnt(%d)' % (9 if late else 1), alt=(c['ldual'], 45, 57))
    stamp(7)
    a('v_mov_b32 v16, v14')
    allred32('v_max_f32', 16, 17)
    a('v_sub_f32 v14, v14, v16')
    a('v_exp_f32 v14, v14')
    a('v_and_b32 v10, 0x70, v8')
    a('v_mov_b32 v16, v14')
    allred32('v_add_f32', 16, 17)
    a('v_rcp_f32 v16, v16')
    a('v_bfe_u32 v11, v1, 3, 2')
    a('v_lshl_add_u32 v10, v11, 2, v10')
    a('v_mul_f32 v14, v14, v16')
    a('ds_write_b32 v10, v14 offset:%d' % L_WT)
    a('s_waitcnt vmcnt(1) lgkmcnt(0)')
    a('s_branch L_wt')
    a.label('L_aux6')
    a('s_waitcnt lgkmcnt(0)')
    a('s_cmp_ge_u32 s4, 16')
    a('s_cbranch_scc0 L_aux7')
    a('s_sub_u32 s3, s3, 1')
    a('s_cbranch_scc1 L_fin')
    vF, vFA, vFD = 80, 112, 120
    a('s_bitcmp1_b32 s4, 0')
    a('s_cselect_b64 s[24:25], s[28:29], s[24:25]')
    a('v_lshrrev_b32 v12, 3, v1')
    a('v_and_b32 v13, 0x70, v8')
    a('v_lshl_add_u32 v13, v12, 10, v13')
    a('v_lshl_add_u32 v13, s5, 13, v13')
    for k in range(4): a('v_mov_b32 v%d, 0' % (G0 + k))
    a('ds_write_b128 v13, %s offset:%d' % (vr(G0), L_T + 896))
    a('s_and_b32 s7, s4, 14')
    a('s_mul_i32 s7, s7, 7')
    a('v_add_u32 v12, s7, v12')
    gran_row(12)
    dma_voff(3584)
    a('v_add_u32 v12, 7, v12')
    gran_row(12)
    dma_voff(3584, 42)
    a('s_lshl2_add_u32 s57, s3, s5')
    a('s_lshl_b32 s8, s57, 7')
    for k in range(1, 4): a('s_add_u32 s%d, s8, %d' % (8 + k, 3584 * k))
    a('s_lshl_b32 s7, s5, 13')
    a('s_add_u32 m0, s7, %d' % L_T)
    tr_addr(13)
    a('v_lshlrev_b32 v38, 4, v11')
    a('v_lshrrev_b32 v10, 2, v1')
    a('v_mul_u32_u24 v10, %d, v10' % (GXS - 64))
    a('v_add_u32 v13, v10, v8')
    for r in range(4): a('v_mov_b32 v%d, 0x3f803f80' % (vFA + r))
    a('s_mul_i32 s57, s57, %d' % (4 * GXS))
    a('s_lshl_b32 s7, s4, 7')
    a('s_add_u32 s57, s57, s7')
    a('s_add_u32 s57, s57, 0x%x' % (WS_GX - 2048))
    a('s_add_u32 s56, s57, 64')
    a('v_mov_b32 v75, s6')
    a('s_mov_b32 exec_hi, 0x00ffffff')
    a('s_branch L_ft')
    a.label('L_aux7')
    if c['near']:
        a('s_cmp_eq_u32 s5, 3')
        a('s_cbranch_scc1 L_aux8')
        probe(c['pk'])
        stamp(7)
        a.label('L_aux8')
        gate_open(10)
        a('s_cmp_eq_u32 s5, 0')
        a('s_cbranch_scc0 L_aux9')
        a('s_lshl_b32 s7, s4, 7')
        a('s_add_u32 s46, s46, s7')
        a('v_mov_b32 v13, s6')
        gate_wait(10, 217)
        a('ds_read_b64 v[218:219], v221 offset:%d' % (L_GATE + 16 * 9))
        a('s_waitcnt lgkmcnt(0)')
        a('v_cmp_lt_u32 vcc, v218, v219')
        a('v_cndmask_b32_e64 v12, 0, -1, vcc')
        a('s_mov_b64 exec, 1')
        a('buffer_store_dwordx2 v[12:13], off, s[20:23], s46 offset:32')
        a.label('L_aux9')
    a('s_barrier')
    leave()
    flush_retry()

    a.section('v')
    if c['wo_at'] == 0:
        a.label('L_v1')
        a('s_cmp_ge_u32 s4, 14')
        a('s_cbranch_scc1 L_v')
        wo_setup()
        a('s_waitcnt lgkmcnt(0)')
        wo_issue()
    a.label('L_v')
    common()
    a('s_waitcnt lgkmcnt(0)')
    mktag()
    xpub(3)
    a.label('L_v3')
    kv_addr()
    srd(12, 1 << 26)
    a('s_lshl_b32 s44, s44, 12')
    a('s_lshl_b32 s7, s55, 7')
    a('s_add_u32 s44, s44, s7')
    a('v_lshlrev_b32_e64 v221, 2, s55')
    a('v_mov_b32 v220, 1')
    a('v_and_b32 v10, 3, v1')
    a('v_lshlrev_b32 v217, 2, v10')
    a('v_bfe_u32 v11, v1, 3, 1')
    a('v_lshrrev_b32 v12, 4, v1')
    a('v_mul_u32_u24 v15, 528, v11')
    a('v_lshl_add_u32 v15, v12, 7, v15')
    a('v_lshrrev_b32 v10, 5, v1')
    a('v_bfe_u32 v11, v1, 2, 1')
    a('v_lshl_add_u32 v10, v10, 3, v11')
    a('v_mul_u32_u24 v10, %d, v10' % BLK)
    a('v_and_b32 v11, 3, v1')
    a('v_lshl_add_u32 v10, v11, 4, v10')
    a('v_bfe_u32 v11, v1, 4, 1')
    a('v_lshl_add_u32 v9, v11, 6, v10')
    a('s_lshl3_add_u32 s7, s3, s55')
    a('s_mul_i32 s57, s7, %d' % (2 * BLK))
    a('s_lshl_b32 s7, s4, 7')
    a('s_add_u32 s57, s57, s7')
    a('s_add_u32 s57, s57, 0x%x' % WS_H0)
    if c['touch'] in ('nw', 'wn', 'l'):
        a('v_not_b32 v75, s6')
        a('s_mov_b32 exec_lo, 0x00ff00ff'); a('s_mov_b32 exec_hi, 0x00ff00ff')
        for x in c['touch']:
            if x == 'w': a('buffer_store_dwordx4 v[72:75], v9, s[20:23], s57 offen')
            else: a('buffer_load_dwordx4 v[16:19], v9, s[20:23], s57 offen' + (' nt' if x == 'n' else c['tfl']))
        a('s_mov_b64 exec, -1')
    h0_gather()
    for k in range(8): a('v_mov_b32 v%d, 0' % (vC0 + k))
    a('v_mov_b32 v75, s6')
    NB = c['nb']
    GV = 217 if c['gall'] else 221
    gate_wait(0, GV)
    stamp(2)
    vs = Stream()
    def vload(n):
        if n > 0: a('s_xor_b32 s44, s44, 0x%x' % ((n ^ (n - 1)) << 12))
        a('buffer_load_dwordx4 %s, v%d, s[12:15], s44 offen nt' % (vr(vV + 4 * n), vKO))
        vs.seq.append(n)
        if n == 15:
            stamp(3)
            gate_open(4)
    for n in range(NB):
        if n == c['na']: gate_wait(1, GV)
        vs.throttle(n, DV)
        vload(n)
    stamp(4)
    gate_wait(5, 219)
    for z in range(8): a('ds_read_b128 %s, v15 offset:%d' % (vr(vP + 4 * z), L_P + 16 * z))
    a('s_waitcnt lgkmcnt(0)')
    stamp(6)
    nxt = NB
    if c['prio']: a('s_setprio %d' % c['prio'])
    def pand(k):
        for r in range(4): a('v_and_b32 v%d, v%d, v%d' % (vT + 4 * (k & 3) + r, vP + k, vM + r))
    pand(0); pand(1)
    for k in range(32):
        n = k >> 1
        if k == 26: a('ds_read_b32 v219, v217 offset:%d' % (L_GATE + 16 * 7))
        if k == 30:
            a('s_waitcnt lgkmcnt(0)')
            a.label('L_xf_chk')
            a('v_cmp_eq_u32 vcc, 0, v219')
            a('s_cbranch_vccnz L_xf_retry')
            a('v_cmp_ne_u32 vcc, 1, v219')
            a('s_cmp_eq_u64 vcc, 0')
            a('s_cselect_b32 s47, -1, 0')
            a('s_and_b32 s58, s47, 0x00ff00ff'); a('s_mov_b32 s59, s58')
            a('s_andn2_b32 s60, 0x00ff00ff, s47'); a('s_mov_b32 s61, s60')
        if k & 1 == 0:
            vs.wait(n)
            while nxt < 16 and nxt - 1 - n < c['pvd']:
                vload(nxt); nxt += 1
        mfma(vC1 if k & 1 else vC0, vT + 4 * (k & 3), vV + 4 * n, 1)
        if k < 30: pand(k + 2)
    stamp(7)
    for r in (3, 0, 1, 2): dpp('v_add_f32', vC0 + r, vC1 + r, vC0 + r, 'row_ror:8')
    pack24(72, vC0)
    store2(72, 9, 57)
    a('s_cmp_ge_u32 s4, 14')
    a('s_cbranch_scc1 L_ft0')

    a.label('L_wt')
    a('s_barrier')
    stamp(8)
    WT = 36
    def wsetup():
        a('v_lshrrev_b32 v10, 3, v1')
        a('v_lshlrev_b32 v10, 4, v10')
        a('ds_read_b128 %s, v10 offset:%d' % (vr(WT), L_WT))
        tr_addr()
        tr_read()
        a('v_mul_u32_u24 v13, 144, v11')
        a('v_lshl_add_u32 v13, s5, 4, v13')
        a('v_lshrrev_b32 v10, 2, v1')
        a('v_mul_u32_u24 v14, 144, v10')
        a('v_and_b32 v11, 3, v1')
        a('v_lshl_add_u32 v14, v11, 5, v14')
        a('v_and_b32 v11, 1, v10')
        a('v_lshrrev_b32 v10, 1, v10')
        a('v_lshlrev_b32 v10, 4, v10')
        a('v_lshl_add_u32 v12, v11, 7, v10')
        a('v_and_b32 v11, 1, v1')
        a('v_lshl_add_u32 v12, v11, 13, v12')
        a('s_lshl1_add_u32 s7, s3, s54')
        a('s_and_b32 s44, s7, 3')
        a('s_mul_i32 s44, s44, %d' % (HS - 4096))
        a('s_lshl_b32 s7, s7, 12')
        a('s_add_u32 s44, s44, s7')
        a('s_mul_i32 s45, s54, 7')
        a('s_sub_u32 s45, s4, s45')
        a('s_lshl_b32 s45, s45, 8')
        a('s_add_u32 s44, s44, s45')
        a('s_add_u32 s44, s44, 0x%x' % WS_H1)
        a('s_mov_b32 s58, 0x00010001'); a('s_mov_b32 s59, 0x00010001')
        a('s_mov_b32 s60, 0x%x' % (0x33333333 if c['near'] else 0x11111111)); a('s_mov_b32 s61, s60')
        a('v_mov_b32 v75, s6')
    poll('L_p0', ['buffer_load_dwordx4 %s, v8, s[20:23], s56 offen offset:%d sc1' % (vr(G0 + 4 * k), 1024 * k) for k in range(4)],
         [G0 + 3, G1 + 3, G2 + 3, G3 + 3], between=wsetup, wait='vmcnt(0) lgkmcnt(0)')
    stamp(9)
    unpackn([G0, G1, G2, G3])
    for k in range(4):
        w, hi = WT + (k & 2), k & 1
        for p in (0, 2):
            if k == 0:
                a('v_pk_mul_f32 %s, %s, %s op_sel:[0,0] op_sel_hi:[1,0]' % (vr(G0 + p, 2), vr(G0 + p, 2), vr(w, 2)))
            else:
                a('v_pk_fma_f32 %s, %s, %s, %s op_sel:[0,%d,0] op_sel_hi:[1,%d,1]' % (vr(G0 + p, 2), vr(G0 + 4 * k + p, 2), vr(w, 2), vr(G0 + p, 2), hi, hi))
    scatter4(G0)
    vec32(vAX, G0, 0xf)
    for t in range(4): mfma(vD + 4 * t, vB + 4 * t, vAX, 0)
    a('s_mov_b64 exec, s[58:59]')
    for t in range(4): a('ds_write_b128 v13, %s offset:%d' % (vr(vD + 4 * t), L_RED + 576 * t))
    a('s_mov_b64 exec, -1')
    a('s_cmp_eq_u32 s5, 0')
    a('s_waitcnt lgkmcnt(0)')
    stamp(10)
    a('s_barrier')
    a('s_cbranch_scc0 L_d0')
    a('ds_read_b128 %s, v14 offset:%d' % (vr(G0), L_RED))
    a('ds_read_b128 %s, v14 offset:%d' % (vr(G1), L_RED + 16))
    a('s_waitcnt lgkmcnt(0)')
    pkadd(G0, G0, G1); pkadd(G0 + 2, G0 + 2, G1 + 2)
    for ctl in (QP1, QP2):
        for k in range(4): dpp('v_add_f32', G0 + k, G0 + k, G0 + k, ctl)
    a('s_mov_b64 exec, s[60:61]')
    pack24(72, G0)
    a('buffer_store_dwordx4 v[72:75], v12, s[20:23], s44 offen sc1')
    stamp(12)
    if c['dl']: a('s_barrier')
    leave()
    flush_retry()

    a.label('L_xf_retry')
    a('ds_read_b32 v219, v217 offset:%d' % (L_GATE + 16 * 7))
    a('s_waitcnt lgkmcnt(0)')
    a('s_branch L_xf_chk')

    a.label('L_ft0')
    a('s_cmp_ge_u32 s4, 16')
    a('s_cbranch_scc0 L_d1')
    a('s_sub_u32 s3, s3, 1')
    a('s_cbranch_scc0 L_fkv')
    a.label('L_fin')
    a('s_cmp_ge_u32 s4, 30')
    leave_if('scc1')
    a('s_barrier')
    if c['near']: side_load(True)
    a('s_sub_u32 s54, s4, 16')
    line_voff()
    a('v_and_b32 v13, 7, v1')
    a('v_lshl_add_u32 v14, v10, 3, v13')
    a('v_mul_u32_u24 v14, 48, v14')
    a('v_lshl_add_u32 v10, s5, 2, v14')
    line_soff(54)
    a('s_add_u32 s7, s5, 1')
    a('s_and_b32 s7, s7, 7')
    a('s_lshl_b32 s7, s7, 16')
    a('s_add_u32 s44, s44, s7')
    assert WS_H2 == WS_H1 + 0x10000
    side_add('L_sf')
    a('s_cmp_eq_u32 s5, 7')
    a('s_cbranch_scc1 L_fin7')
    two = ['buffer_load_dwordx4 %s, v9, s[20:23], s44 offen sc1' % vr(G0),
           'buffer_load_dwordx4 %s, v9, s[20:23], s45 offen sc1' % vr(G1)]
    if c['h2late']: a('s_barrier')
    poll('L_p2', two, [G0 + 3, G1 + 3])
    stamp(13)
    sum2scatter()
    a('ds_write_b32 v10, v%d offset:%d' % (G0, L_RED))
    a('s_waitcnt lgkmcnt(0)')
    a('s_barrier')
    leave()
    side_retry('L_sf')
    flush_retry()

    a.label('L_fin7')
    a('v_mov_b32 v11, 0')
    a('ds_write_b32 v10, v11 offset:%d' % L_RED)
    a('v_bfe_u32 v11, v1, 3, 1')
    a('v_lshl_add_u32 v14, v11, 4, v14')
    a('s_mov_b32 s58, 0x00ff00ff'); a('s_mov_b32 s59, 0x00ff00ff')
    a('buffer_load_ushort v15, v12, s[36:39], s46 offen' + nt('x'))
    if c['ot']: a('buffer_load_ushort v216, v12, s[40:43], s46 offen')
    poll('L_p3', two, [G0 + 3, G1 + 3])
    if c['h2late']: a('s_barrier')
    stamp(10)
    a('v_mov_b32 v10, s6')
    a('s_cmp_eq_u32 s54, 0')
    a('s_cselect_b64 exec, 1, 0')
    a('buffer_store_dword v10, off, s[20:23], 0')
    a('s_mov_b64 exec, -1')
    sum2scatter()
    a('v_lshlrev_b32 v15, 16, v15')
    rnd(G0, G0)
    a('v_add_f32 v15, v%d, v15' % G0)
    rnd(15, 15)
    a('s_waitcnt lgkmcnt(0)')
    a('s_barrier')
    a('ds_read_b128 %s, v14 offset:%d' % (vr(G0), L_RED))
    a('s_waitcnt lgkmcnt(0)')
    stamp(13)
    pkadd(G0, G0, G0 + 2)
    a('v_add_f32 v%d, v%d, v%d' % (G0, G0, G0 + 1))
    dpp('v_add_f32', G0, G0, G0, 'row_ror:8')
    rnd(G0, G0)
    a('v_add_f32 v%d, v%d, v15' % (G0, G0))
    a('v_cvt_pk_bf16_f32 v%d, v%d, v%d' % (G0, G0, G0))
    a('s_mov_b64 exec, s[58:59]')
    a('buffer_store_short v%d, v12, s[40:43], s46 offen' % G0)
    leave()
    flush_retry()

    a.label('L_ft')
    a('s_barrier')
    for i in range(8):
        a('buffer_load_dwordx4 v%d, s[24:27], s%d offen nt lds' % (42 if i >> 2 else 2, 8 + (i & 3)))
        if i < 7: a('s_add_u32 m0, m0, 0x400')
    if c['gf']:
        a('s_mov_b64 exec, 0x1111')
        a('buffer_load_dword v44, v13, s[20:23], s57 offen' + {'l': '', 's': ' sc1'}[c['gf']])
    a('s_mov_b64 exec, -1')
    stamp(8)
    a('ds_read_b32 v36, v217 offset:%d' % (L_GATE + 16 * 7))
    a('s_waitcnt lgkmcnt(0)')
    a('v_cmp_eq_u32 vcc, 1, v36')
    a('s_and_b64 s[58:59], vcc, 0xffff')
    a('s_andn2_b64 s[60:61], 0xffff, vcc')
    def packt():
        for k in range(3): a('v_perm_b32 v%d, v%d, v%d, s%d' % (72 + k, vFD + 4 * k, vFD + 12, sPK + k))
    for z in range(2):
        a('s_waitcnt vmcnt(%d)' % (4 - 4 * z + len(c['gf'])))
        if z:
            if not c['ep']: a('s_barrier')
            stamp(9)
        for t in range(4):
            for u in range(2):
                a('ds_read_b64_tr_b16 %s, v%d offset:%d' % (vr(vF + 16 * z + 4 * t + 2 * u, 2), 32 + t, L_T + 4096 * z + 512 * u))
        for t in range(4):
            a('s_waitcnt lgkmcnt(%d)' % (6 - 2 * t))
            mfma(vFD + 4 * t, vFA, vF + 16 * z + 4 * t, z)
    packt()
    store2(72, 13, 56)
    a('s_barrier')
    for z in range(2): a('ds_read_b128 %s, v38 offset:%d' % (vr(vFA + 4 * z), L_STAT + 64 * z))
    for z in range(2):
        a('s_waitcnt lgkmcnt(%d)' % (1 - z))
        for t in (3, 0, 1, 2): mfma(vFD + 4 * t, vFA + 4 * z, vF + 16 * z + 4 * t, z)
    a('s_mov_b64 exec, 0xffff')
    a('s_cbranch_scc1 L_fa4')
    h = list(a.hist)
    packt()
    a('buffer_store_dwordx4 v[72:75], v13, s[20:23], s57 offen')
    stamp(11)
    leave()
    a.label('L_fa4')
    a.hist = h
    packt()
    a('buffer_store_dwordx4 v[72:75], v13, s[20:23], s57 offen sc1')
    stamp(11)
    leave()

    a.label('L_fa5')
    a('s_or_b32 s7, s4, s5')
    a('s_bitcmp1_b32 s7, 0')
    if diag or c['es']: a('s_barrier')
    if diag:
        a('s_cbranch_scc0 L_fa6')
        if not c['ep']: a('s_barrier')
        a('s_barrier')
        leave()
        a.label('L_fa6')
    else:
        leave_if('scc1')
    for r in range(8): a('v_mov_b32 v%d, 0x3f803f80' % (vFA + r))
    a('v_lshrrev_b32 v11, 4, v1')
    a('v_lshlrev_b32 v38, 4, v11')
    if c['sl']:
        a('v_mul_u32_u24 v13, %d, v1' % GXS)
        a('s_mul_i32 s46, s3, %d' % (16 * GXS))
        a('s_lshl3_add_u32 s46, s4, s46')
        a('s_add_u32 s46, s46, 0x%x' % (WS_GX + 2048 - 128))
        a('s_mov_b64 exec, 0xffff')
        a('buffer_load_dword v44, v13, s[20:23], s46 offen sc1')
        a('s_and_b32 s58, s47, 0xffff'); a('s_andn2_b32 s60, 0xffff, s47')
        a('s_mov_b32 s59, 0'); a('s_mov_b32 s61, 0')
    else:
        a('s_lshl_b32 s46, s3, 5')
        a('s_add_u32 s46, s46, s4')
        a('s_lshl_b32 s46, s46, 7')
        a('s_add_u32 s46, s46, 0x%x' % (WS_X + 4096 + 48))
        a('s_and_b64 s[58:59], s[58:59], 1')
        a('s_and_b64 s[60:61], s[60:61], 1')
    a('s_mov_b32 exec_lo, 0xfffdfffd'); a('s_mov_b32 exec_hi, 0xfffdfffd')
    if not c['ep']: a('s_barrier')
    a('s_barrier')
    for z in range(2): a('ds_read_b128 %s, v38 offset:%d' % (vr(vFA + 4 * z), L_STAT + 64 * z))
    a('s_mov_b64 exec, -1')
    for z in range(2):
        a('s_waitcnt lgkmcnt(%d)' % (1 - z))
        mfma(68 if c['sl'] else 72, vFA + 4 * z, vFA + 4 * z, z)
    if c['sl']:
        for k in range(2): a('v_mov_b32_dpp v%d, v%d row_newbcast:0 row_mask:0xf bank_mask:0xf' % (72 + k, 68 + k))
        store2(72, 13, 46)
    else:
        a('v_mov_b32 v75, s6')
        store2(72, 8, 46)
    stamp(11)
    leave()

    a.label('L_fkv')
    a('s_cmp_ge_u32 s5, 6')
    if not (diag or c['es']): a('s_barrier')
    a('s_cbranch_scc1 L_fa5')
    if diag and not c['es']: a('s_barrier')
    if c['near']: side_load(True)
    if c['es']: a('s_barrier')
    stamp(8)
    a('v_and_b32 v12, 7, v1')
    a('v_cmp_gt_u32 vcc, 7, v12')
    a('v_min_u32 v11, 6, v12')
    a('v_bfe_u32 v10, v1, 3, 2')
    a('v_mul_u32_u24 v10, %d, v10' % HS)
    a('v_lshl_add_u32 v10, v11, 4, v10')
    a('v_lshrrev_b32 v11, 5, v1')
    a('v_lshl_add_u32 v9, v11, 14, v10')
    a('v_lshrrev_b32 v11, 4, v1')
    a('v_lshl_add_u32 v37, s55, 2, v11')
    a('v_lshl_add_u32 v37, v37, 3, v12')
    a('v_lshlrev_b32 v37, 1, v37')
    a('s_and_b32 s7, s4, 14')
    a('s_add_u32 s7, s7, s55')
    a('s_mul_i32 s7, s7, 7')
    a('v_add_u32 v12, s7, v12')
    gran_row(12)
    a('v_add_lshl_u32 v12, v10, v11, 1')
    a('v_cndmask_b32 v12, 2.0, v12, vcc')
    a('v_cndmask_b32_e64 v14, 0, 1.0, vcc')
    xload = 'buffer_load_ushort v15, v12, s[36:39], 0 offen' + nt('x')
    if not c['es']: a(xload)
    a('s_lshl_b32 s44, s7, 4')
    a('s_add_u32 s44, s44, 0x%x' % WS_H1)
    side_add('L_sd')
    if c['es']: a(xload)
    if not c['ep']: a('s_barrier')
    stamp(9)
    def xly():
        a('s_waitcnt vmcnt(2)')
        a('v_lshlrev_b32 v15, 16, v15')
    poll('L_p1', two, [G0 + 3, G1 + 3], between=xly)
    stamp(10)
    sum2scatter()
    rnd(G0, G0)
    a('v_fma_f32 v%d, v%d, v14, v15' % (G0, G0))
    a('v_cvt_pk_bf16_f32 v%d, v%d, v%d' % (G0, G0, G0))
    a('ds_write_b16 v37, v%d offset:%d' % (G0, L_STAT))
    a('s_waitcnt lgkmcnt(0)')
    a('s_barrier')
    leave()
    side_retry('L_sd')
    flush_retry()

    a.label('L_d2')
    if diag and c['dl']: a('s_barrier')
    leave()
    if not c['dl']:
        a.label('L_d1')
        a('s_barrier')
    a.label('L_d0')
    a('s_cmp_ge_u32 s5, 4')
    a('s_cbranch_scc0 L_d2')
    if c['dl']: a.label('L_d1')
    a('s_sub_u32 s3, s3, 1')
    a('s_cbranch_scc1 L_d2')
    a('s_lshl4_add_u32 s54, s3, s4')
    a('v_lshrrev_b32 v12, 4, v1')
    a('v_mul_u32_u24 v10, %d, v12' % (16 * 896))
    a('v_and_b32 v11, 15, v1')
    a('v_lshl_add_u32 v11, s55, 4, v11')
    a('v_lshl_add_u32 v3, v11, 4, v10')
    a('v_cmp_gt_u32 vcc, 56, v11')
    a('s_and_b32 s7, s54, 0x7c')
    a('s_lshl1_add_u32 s7, s7, s7')
    a('s_add_u32 s7, s7, s54')
    a('v_cndmask_b32 v3, 2.0, v3, vcc')
    a('s_mul_i32 s16, s7, %d' % (4 * 896))
    a('v_and_b32 v10, 0x3c0, v8')
    a('v_add_u32 v43, v10, v8')
    a('v_and_b32 v10, 7, v1')
    a('v_lshlrev_b32 v40, %d, v10' % (4 if c['sl'] else 8))
    a('s_mul_i32 s56, s54, %d' % GXS)
    a('s_add_u32 s56, s56, 0x%x' % WS_GX)
    if c['sl']:
        a('s_add_u32 s45, s56, 2048')
    else:
        a('s_lshl_b32 s45, s3, 12')
        a('s_add_u32 s45, s45, 0x%x' % (WS_X + 4096 + 2048 + 48))
    if c['dl']: a('s_barrier')
    for t in range(4):
        a('buffer_load_dwordx4 %s, v3, s[32:35], s16 offen offset:%d nt' % (vr(vW + 4 * t), 896 * t))
    def dsetup():
        a('v_and_b32 v10, 0x70, v8')
        a('v_bfe_u32 v11, v1, 3, 1')
        a('v_lshl_add_u32 v10, v11, 8, v10')
        a('v_bfe_u32 v11, v1, 4, 1')
        a('v_lshl_add_u32 v10, v11, 7, v10')
        a('v_lshrrev_b32 v11, 5, v1')
        a('v_lshl_add_u32 v41, v11, 13, v10')
        a('s_and_b32 s57, s54, 3')
        a('s_mul_i32 s57, s57, %d' % (HS - 4096))
        a('s_lshl3_add_u32 s7, s54, s55')
        a('s_lshl_b32 s7, s7, 9')
        a('s_add_u32 s57, s57, s7')
        a('s_add_u32 s57, s57, 0x%x' % WS_H2)
        a('s_cmp_eq_u32 s55, 3')
        a('s_cselect_b32 s58, 0x00ff00ff, -1')
        a('s_mov_b32 s59, %s' % ('s58' if c['near'] else '0'))
        k0 = 2 * math.sqrt(2 / math.pi) * math.log2(math.e)
        a('v_mov_b32 v42, %s' % f32(-k0))
        a('s_mov_b32 s18, %s' % f32(1.0 / 448))
        a('s_mov_b32 s19, %s' % f32(-k0 * 0.044715))
        a('v_mov_b32 v75, s6')
    def drest():
        if c['dt']:
            for t in gload: a(t)
        if not c['dw']: dsetup()
        if diag:
            a('s_waitcnt vmcnt(%d)' % (3 if c['dt'] else 1))
            stamp(13)
    gload = ['buffer_load_dwordx4 %s, v43, s[20:23], s56 offen sc1' % vr(G0), 'buffer_load_dwordx4 v[36:39], v40, s[20:23], s45 offen sc1']
    if c['dw']:
        dsetup()
        a('s_waitcnt vmcnt(%d)' % (4 - c['dw']))
    poll('L_pc', ['buffer_load_dwordx4 %s, v43, s[20:23], s56 offen offset:64 sc1' % vr(G2)], [G2 + 3], between=drest, also=gload if c['dt'] else [])
    stamp(10)
    def red1(g):
        unpackn([g]); scatter4(g)
    if c['dt']:
        poll('L_pg', [], [G0 + 3, 39], between=lambda: red1(G2), wait=None, extra=gload)
    else:
        poll('L_pg', gload, [G0 + 3, 39], between=lambda: red1(G2))
    stamp(11)
    V, CS, MU, E2, T = G0, G2, 37, 36, G1 + 2
    keep = a
    class Rec(list):
        def __call__(self, t): self.append(t)
    a = Rec(); red1(G0); red = a; a = keep
    for z in (4, 2, 1):
        dpp('v_add_f32', MU, MU, MU, 'row_ror:%d' % z)
        dpp('v_add_f32', E2, E2, E2, 'row_ror:%d' % z)
        a(red.pop(0))
    a('v_mul_f32 v%d, s18, v%d' % (MU, MU))
    a(red.pop(0))
    a('v_mul_f32 v%d, s18, v%d' % (E2, E2))
    a(red.pop(0))
    a('v_fma_f32 v%d, -v%d, v%d, v%d' % (E2, MU, MU, E2))
    rnd(MU, MU)
    a('v_max_f32 v%d, 0, v%d' % (E2, E2))
    a(red.pop(0))
    rnd(E2, E2)
    a(red.pop(0))
    a('v_add_f32 v%d, %s, v%d' % (E2, f32(1e-5), E2))
    a('v_mul_f32 v%d, v%d, v%d' % (CS, MU, CS))
    rnd(E2, E2)
    a('v_sqrt_f32 v%d, v%d' % (E2, E2))
    a(red.pop(0))
    assert not red
    rnd(E2, E2)
    a('v_rcp_f32 v%d, v%d' % (E2, E2))
    a('v_sub_f32 v%d, v%d, v%d' % (V, V, CS))
    a('v_mul_f32 v%d, v%d, v%d' % (V, V, E2))
    rnd(V, V)
    a('v_mul_f32 v%d, v%d, v%d' % (T, V, V))
    a('v_fmac_f32 v42, s19, v%d' % T)
    a('v_mul_f32 v%d, v42, v%d' % (T, V))
    a('v_exp_f32 v%d, v%d' % (T, T))
    a('v_add_f32 v%d, 1.0, v%d' % (T, T))
    a('v_rcp_f32 v%d, v%d' % (T, T))
    a('v_mul_f32 v%d, v%d, v%d' % (T, V, T))
    rnd(T, T)
    dpp('v_mul_f32', T, V, T, 'row_ror:4')
    a('v_cvt_pk_bf16_f32 v%d, v%d, v%d' % (T, T, T))
    for t in range(4):
        for r in range(4):
            dpp('v_and_b32', vT + 4 * t + r, T, vM + r, 'row_newbcast:%d' % t)
            if t > 0 and r == 1: mfma(vC0, vT + 4 * t - 4, vW + 4 * t - 4, t > 1)
    mfma(vC0, vT + 12, vW + 12, 1)
    a('s_mov_b64 exec, s[58:59]')
    pack24(72, vC0)
    a('buffer_store_dwordx4 v[72:75], v41, s[20:23], s57 offen sc1')
    stamp(12)
    leave()
    flush_retry()

    a.section('q')
    a.label('L_v0')
    far = 'L_v1' if c['wo_at'] == 0 else 'L_v'
    a('s_cmp_lg_u32 s31, 0')
    a('s_cbranch_scc1 L_qw')
    a('s_waitcnt lgkmcnt(0)')
    a('s_load_dword s6, s[20:21], 0')
    a('s_barrier')
    a('s_branch %s' % far)
    a.label('L_qw')
    vWQ, vXN = 16, 128
    srd(16, 448 * 8192)
    srd(36, 896)
    a('v_lshlrev_b32 v8, 4, v1')
    a('v_lshrrev_b32 v12, 3, v1')
    a('v_mul_u32_u24 v3, %d, v12' % (28 * 8192))
    a('v_and_b32 v10, 0x70, v8')
    a('v_add_u32 v3, v3, v10')
    a('s_bfe_u32 s54, s4, 0x30001')
    if c['split3']:
        a('s_cmp_eq_u32 s54, 3')
        a('s_cselect_b32 vcc_hi, 0, -1')
        a('s_cmp_ge_u32 s4, 16')
        a('s_cselect_b32 vcc_lo, -1, 0')
        a('s_cselect_b32 s54, s54, 3')
        a('s_lshl3_add_u32 s54, s3, s54')
        a('v_cndmask_b32 v3, 2.0, v3, vcc')
    else:
        a('s_lshl3_add_u32 s54, s3, s54')
        a('s_cmp_ge_u32 s4, 16')
        a('s_cselect_b32 s54, s54, s3')
    a('s_and_b32 s44, s4, 1')
    a('s_lshl_b32 s44, s44, 5')
    a('s_add_u32 s44, s44, s55')
    a('s_mul_i32 s45, s44, %d' % (7 * 64))
    a('s_add_u32 s45, s45, s54')
    a('s_lshl_b32 s45, s45, 7')
    a('s_movk_i32 s46, 0x2000')
    a('s_waitcnt lgkmcnt(0)')
    stamp(1)
    a('buffer_load_dwordx4 %s, v8, s[36:39], 0 offen' % vr(vA) + nt('x'))
    a('s_load_dword s6, s[20:21], 0')
    for n in range(7):
        a('buffer_load_dwordx4 %s, v3, s[16:19], s45 offen nt' % vr(vWQ + 4 * n))
        if n < 6: a('s_add_u32 s45, s45, s46')
    a('s_barrier')
    common(False)
    x, S1, S2 = vA + 8, vA + 4, vA + 5
    a('v_mov_b32 v%d, 0' % S1)
    a('v_mov_b32 v%d, 0' % S2)
    a('v_mov_b32 v%d, 0x3f803f80' % (vA + 6))
    a('v_mov_b32 v%d, %s' % (vA + 7, f32(1.0 / 448)))
    a('v_lshlrev_b32 v13, 5, v1')
    a('v_mul_u32_u24 v14, 112, v12')
    a('s_mul_i32 s7, s44, 28')
    a('s_add_u32 s7, s7, %d' % L_XN)
    a('v_add_u32 v14, s7, v14')
    a('v_lshl_add_u32 v15, s55, 3, v13')
    a('v_and_b32 v10, 3, v1')
    a('v_lshlrev_b32 v217, 2, v10')
    a('v_lshlrev_b32_e64 v221, 2, s55')
    a('v_mov_b32 v220, 1')
    a('v_and_b32 v10, 7, v1')
    a('v_lshlrev_b32 v10, 6, v10')
    a('v_bfe_u32 v11, v1, 4, 1')
    a('v_lshl_add_u32 v10, v11, 5, v10')
    a('v_lshrrev_b32 v11, 5, v1')
    a('v_lshl_add_u32 v9, v11, 4, v10')
    a('s_lshr_b32 s7, s54, 1')
    a('s_and_b32 s44, s4, 1')
    a('s_lshl1_add_u32 s7, s7, s44')
    a('s_and_b32 s45, s54, 1')
    a('s_lshl1_add_u32 s7, s7, s45')
    if c['split3']:
        a('s_lshl1_add_u32 s45, s3, s44')
        a('s_add_u32 s45, s45, 0x%x' % ((WS_QX - WS_Q) >> 9))
        a('s_cmp_ge_u32 s4, 16')
        a('s_cselect_b32 s7, s7, s45')
    a('s_lshl_b32 s57, s7, 9')
    a('s_add_u32 s57, s57, 0x%x' % WS_Q)
    a('s_lshl_b32 s7, s55, 1')
    a('s_lshl_b32 s58, 0x00030003, s7'); a('s_mov_b32 s59, s58')
    qx = 1 if c['qt'] else 0
    if qx:
        a('s_mov_b64 exec, s[58:59]')
        a('buffer_load_dword v216, v9, s[20:23], s57 offen ' + ('sc1' if c['qt'] == 'v' else 'nt'))
        a('s_mov_b64 exec, -1')
    a('s_waitcnt vmcnt(%d)' % (7 + qx))
    for k in range(4):
        a('v_dot2c_f32_bf16 v%d, v%d, v%d' % (S1, vA + k, vA + 6))
        a('v_dot2c_f32_bf16 v%d, v%d, v%d' % (S2, vA + k, vA + k))
    unp = []
    for k in range(4):
        unp.append('v_lshlrev_b32 v%d, 16, v%d' % (x + 2 * k, vA + k))
        unp.append('v_and_b32 v%d, 0xffff0000, v%d' % (x + 2 * k + 1, vA + k))
    a(unp.pop()); a(unp.pop())
    for ctl, m in ((QP1, FULL), (QP2, FULL), ('row_half_mirror', FULL), ('row_mirror', FULL),
                   ('row_bcast:15', 'row_mask:0xa bank_mask:0xf'), ('row_bcast:31', 'row_mask:0xc bank_mask:0xf')):
        dpp('v_add_f32', S1, S1, S1, ctl, m)
        dpp('v_add_f32', S2, S2, S2, ctl, m)
        a(unp.pop())
    a('v_readlane_b32 s62, v%d, 63' % S1)
    a('v_readlane_b32 s63, v%d, 63' % S2)
    a('v_mul_f32 v%d, s62, v%d' % (S1, vA + 7))
    a('v_mul_f32 v%d, s63, v%d' % (S2, vA + 7))
    a('v_fma_f32 v%d, -v%d, v%d, v%d' % (S2, S1, S1, S2))
    rnd(S1, S1)
    a('v_max_f32 v%d, 0, v%d' % (S2, S2))
    rnd(S2, S2)
    a('v_add_f32 v%d, %s, v%d' % (S2, f32(1e-5), S2))
    rnd(S2, S2)
    a('v_sqrt_f32 v%d, v%d' % (S2, S2))
    for k in range(8): a('v_sub_f32 v%d, v%d, v%d' % (x + k, x + k, S1))
    rnd(S2, S2)
    a('v_rcp_f32 v%d, v%d' % (S2, S2))
    for k in range(8): rnd(x + k, x + k)
    for k in range(8): a('v_mul_f32 v%d, v%d, v%d' % (x + k, x + k, S2))
    for k in range(8): a('v_cvt_pk_bf16_f32 v%d, v%d, v%d' % (x + k, x + k, x + k))
    a('ds_write_b128 v13, %s offset:%d' % (vr(x), L_XN))
    a('ds_write_b128 v13, %s offset:%d' % (vr(x + 4), L_XN + 16))
    a('s_waitcnt lgkmcnt(0)')
    for z in range(3): a('ds_read2_b32 %s, v14 offset0:%d offset1:%d' % (vr(vXN + 2 * z, 2), 2 * z, 2 * z + 1))
    a('ds_read_b32 v%d, v14 offset:24' % (vXN + 6))
    mktag()
    qc = vA + 16
    a('v_mov_b32 v%d, s6' % (vA + 22))
    a('v_mov_b32 v%d, s6' % (vA + 23))
    xpub(1)
    a('s_waitcnt lgkmcnt(0)')
    def qand(n):
        for r in range(4): a('v_and_b32 v%d, v%d, v%d' % (vA + 4 * (n & 1) + r, vXN + n, vM + r))
    qand(0)
    for n in range(7):
        if n < 6: qand(n + 1)
        a('s_waitcnt vmcnt(%d)' % (6 + qx - n))
        mfma(qc, vA + 4 * (n & 1), vWQ + 4 * n, n)
    for r in range(4): a('v_mov_b32_dpp v%d, v%d row_ror:8 row_mask:0xc bank_mask:0xf' % (qc + r, qc + r))
    a('v_permlane32_swap_b32 v%d, v%d' % (qc, qc + 2))
    a('v_permlane32_swap_b32 v%d, v%d' % (qc + 1, qc + 3))
    pkadd(qc, qc, qc + 2)
    a('ds_write_b64 v15, %s offset:%d' % (vr(qc, 2), L_T))
    gate_open(6)
    xpub(2)
    gate_wait(6, 217)
    a('ds_read_b128 %s, v13 offset:%d' % (vr(vA), L_T))
    a('ds_read_b128 %s, v13 offset:%d' % (vr(vA + 4), L_T + 16))
    a('s_waitcnt lgkmcnt(0)')
    stamp(5)
    pkadd(vA, vA, vA + 2); pkadd(vA + 4, vA + 4, vA + 6)
    pkadd(vA + 20, vA, vA + 4)
    a('s_mov_b64 exec, s[58:59]')
    a('buffer_store_dwordx4 %s, v9, s[20:23], s57 offen' % vr(vA + 20))
    a('s_add_u32 s57, s57, 0x%x' % (WS_QB - WS_Q))
    a('buffer_store_dwordx4 %s, v9, s[20:23], s57 offen sc1' % vr(vA + 20) + nt('s'))
    gate_open(8)
    a('s_mov_b64 exec, -1')
    a('s_branch L_v3')

    a.section('end')

    a.label('L_exit')
    if c['probe'] and c['probe'][0] == 'skew':
        _, gsel, mult = c['probe']
        a('s_waitcnt lgkmcnt(0)')
        a('s_cmp_eq_u32 s5, 0')
        a('s_cbranch_scc0 L_end')
        a('s_mov_b64 exec, -1')
        a('s_lshl_b32 s7, s3, 5')
        a('s_add_u32 s7, s7, s4')
        a('s_lshl_b32 s7, s7, 7')
        a('s_add_u32 s7, s7, 0x%x' % WS_ST)
        a('v_mov_b32 v16, s64')
        a('buffer_store_dword v16, off, s[20:23], s7 sc1')
        a('s_cmp_eq_u32 s2, 113')
        a('s_cbranch_scc0 L_end')
        a.label('L_spin0')
        a('s_sleep 4')
        a('s_memrealtime s[94:95]')
        a('s_waitcnt lgkmcnt(0)')
        a('s_sub_u32 s44, s94, s64')
        a('s_cmp_lt_u32 s44, 2000')
        a('s_cbranch_scc1 L_spin0')
        a('v_and_b32 v10, 31, v1')
        a('v_lshlrev_b32 v10, 7, v10')
        a('s_mov_b32 s7, 0x%x' % WS_ST)
        for g in range(8):
            a('buffer_load_dword v%d, v10, s[20:23], s7 offen sc1' % (16 + g))
            a('s_add_u32 s7, s7, 4096')
        a('s_waitcnt vmcnt(0)')
        for g in range(8):
            a('v_subrev_u32 v%d, s64, v%d' % (16 + g, 16 + g))
            allred32('v_min_i32', 16 + g, 30)
        a('v_mov_b32 v24, v16'); a('v_mov_b32 v25, v16')
        for g in range(1, 8):
            a('v_min_i32 v24, v24, v%d' % (16 + g))
            a('v_max_i32 v25, v25, v%d' % (16 + g))
        a('v_sub_u32 v26, v%d, v24' % (16 + gsel if gsel < 8 else 25))
        a('v_readfirstlane_b32 s7, v26')
        a('v_readfirstlane_b32 s45, v24')
        a('s_min_u32 s7, s7, 400')
        a('s_mul_i32 s7, s7, %d' % mult)
        a('s_add_u32 s7, s7, s45')
        a('s_add_u32 s7, s7, 3000')
        a.label('L_spin')
        a('s_sleep 4')
        a('s_memrealtime s[94:95]')
        a('s_waitcnt lgkmcnt(0)')
        a('s_sub_u32 s44, s94, s64')
        a('s_cmp_lt_i32 s44, s7')
        a('s_cbranch_scc1 L_spin')
    elif c['probe'] and c['probe'][0] == 'gmax':
        _, k, wmask, gsel, mult = c['probe']
        stamp(14)
        a('s_load_dwordx2 s[96:97], s[0:1], 80')
        a('s_mov_b64 exec, 1')
        a('s_and_b32 s3, s2, 7')
        a('s_lshl_b32 s7, 1, s5')
        a('s_and_b32 s7, s7, 0x%x' % wmask)
        a('s_waitcnt lgkmcnt(0)')
        a('s_cselect_b32 s7, s%d, 0' % (64 + 2 * k))
        a('v_mov_b32 v11, s7')
        a('v_lshlrev_b32_e64 v10, 2, s3')
        a.label('L_spin1')
        a('s_sleep 16')
        a('s_memrealtime s[94:95]')
        a('s_waitcnt lgkmcnt(0)')
        a('s_sub_u32 s44, s94, s64')
        a('s_cmp_lt_u32 s44, 1600')
        a('s_cbranch_scc1 L_spin1')
        a('s_cmp_eq_u32 s7, 0')
        a('s_cbranch_scc1 L_gm1')
        if gsel == 8: a('v_mov_b32 v10, 32')
        a('global_atomic_umax v10, v11, s[96:97] sc1')
        a.label('L_gm1')
        a('s_and_b32 s7, s5, 3')
        a('s_cbranch_scc1 L_end')
        a('v_not_b32 v11, s64')
        a('v_mov_b32 v10, 36')
        a('global_atomic_umax v10, v11, s[96:97] sc1')
        a('s_waitcnt vmcnt(0)')
        a('s_cmp_eq_u32 s5, 0')
        a('s_cbranch_scc0 L_end')
        a('s_cmp_eq_u32 s2, 113')
        a('s_cbranch_scc0 L_end')
        a.label('L_spin0')
        a('s_sleep 4')
        a('s_memrealtime s[94:95]')
        a('s_waitcnt lgkmcnt(0)')
        a('s_sub_u32 s44, s94, s64')
        a('s_cmp_lt_u32 s44, 5000')
        a('s_cbranch_scc1 L_spin0')
        a('v_mov_b32 v10, 0')
        a('global_load_dwordx4 v[20:23], v10, s[96:97] sc1')
        a('global_load_dwordx4 v[24:27], v10, s[96:97] offset:16 sc1')
        a('global_load_dwordx2 v[28:29], v10, s[96:97] offset:32 sc1')
        a('s_waitcnt vmcnt(0)')
        a('v_not_b32 v17, v29')
        for g in range(9): a('v_sub_u32 v%d, v%d, v17' % (20 + g, 20 + g))
        if isinstance(gsel, int):
            a('v_mov_b32 v16, v%d' % (20 + gsel))
        else:
            g0 = int(gsel[1:] or 0)
            oth = [20 + g for g in range(8) if g != g0 or gsel[0] in 'cd']
            a('v_mov_b32 v30, 0'); a('v_mov_b32 v31, 0')
            for r in oth:
                a('v_max_u32 v30, v30, v%d' % r)
                a('v_add_u32 v31, v31, v%d' % r)
            a('v_mul_u32_u24 v31, %d, v31' % (65536 // len(oth)))
            a('v_lshrrev_b32 v31, 16, v31')
            x, y = {'a': (20 + g0, 30), 'b': (20 + g0, 31), 'c': (30, 31), 'd': (31, 10), 'z': (31, 31)}[gsel[0]]
            a('v_sub_u32 v16, v%d, v%d' % (x, y))
            if gsel[0] != 'd': a('v_add_u32 v16, 300, v16')
        a('s_nop 1')
        a('v_readfirstlane_b32 s7, v16')
        a('v_readfirstlane_b32 s45, v17')
        a('s_min_u32 s7, s7, 2000')
        a('s_mul_i32 s7, s7, %d' % mult)
        a('s_add_u32 s7, s7, 1000')
        a.label('L_spin')
        a('s_sleep 4')
        a('s_memrealtime s[94:95]')
        a('s_waitcnt lgkmcnt(0)')
        a('s_sub_u32 s44, s94, s45')
        a('s_cmp_lt_u32 s44, s7')
        a('s_cbranch_scc1 L_spin')
    elif c['probe'] and c['probe'][0] == 'gdiff':
        _, ka, ma, kb, mb, mult = c['probe']
        stamp(14)
        a('s_load_dwordx2 s[96:97], s[0:1], 80')
        a('s_mov_b64 exec, 1')
        a('s_lshl_b32 s3, 1, s5')
        a.label('L_spin1')
        a('s_sleep 16')
        a('s_memrealtime s[94:95]')
        a('s_waitcnt lgkmcnt(0)')
        a('s_sub_u32 s44, s94, s64')
        a('s_cmp_lt_u32 s44, 1600')
        a('s_cbranch_scc1 L_spin1')
        a('s_not_b32 s65, s64')
        for i, (r, m) in enumerate(((64 + 2 * ka, ma), (64 + 2 * kb, mb), (65, 0x11))):
            a('s_and_b32 s7, s3, 0x%x' % m)
            a('s_cselect_b32 s7, s%d, 0' % r)
            a('s_cmp_eq_u32 s7, 0')
            a('s_cbranch_scc1 L_gd%d' % i)
            a('v_mov_b32 v10, %d' % (4 * i))
            a('v_mov_b32 v11, s7')
            a('global_atomic_umax v10, v11, s[96:97] sc1')
            a('s_waitcnt vmcnt(0)')
            a.label('L_gd%d' % i)
        a('s_cmp_eq_u32 s5, 0')
        a('s_cbranch_scc0 L_end')
        a('s_cmp_eq_u32 s2, 113')
        a('s_cbranch_scc0 L_end')
        a.label('L_spin0')
        a('s_sleep 4')
        a('s_memrealtime s[94:95]')
        a('s_waitcnt lgkmcnt(0)')
        a('s_sub_u32 s44, s94, s64')
        a('s_cmp_lt_u32 s44, 5000')
        a('s_cbranch_scc1 L_spin0')
        a('v_mov_b32 v10, 0')
        a('global_load_dwordx4 v[20:23], v10, s[96:97] sc1')
        a('s_waitcnt vmcnt(0)')
        a('v_not_b32 v17, v22')
        a('v_sub_u32 v16, v20, v%d' % (21 if mb else 17))
        a('s_nop 1')
        a('v_readfirstlane_b32 s7, v16')
        a('v_readfirstlane_b32 s45, v17')
        a('s_min_u32 s7, s7, 2000')
        a('s_mul_i32 s7, s7, %d' % mult)
        a('s_add_u32 s7, s7, 6000')
        a.label('L_spin')
        a('s_sleep 4')
        a('s_memrealtime s[94:95]')
        a('s_waitcnt lgkmcnt(0)')
        a('s_sub_u32 s44, s94, s45')
        a('s_cmp_lt_u32 s44, s7')
        a('s_cbranch_scc1 L_spin')
    elif c['probe'] and c['probe'][0] == 'dirty':
        _, nkb, sc, base = c['probe']
        a('s_mov_b64 exec, -1')
        a('s_lshl3_add_u32 s7, s2, s5')
        a('s_lshl_b32 s7, s7, 13')
        a('s_add_u32 s7, s7, 0x1000000')
        a('v_lshlrev_b32 v8, 4, v1')
        for k in range(nkb):
            a('buffer_store_dwordx4 v[16:19], v8, s[20:23], s7 offen' + sc)
            a('s_add_u32 s7, s7, 1024')
        a('s_waitcnt lgkmcnt(0)')
        a.label('L_spin')
        a('s_sleep 4')
        a('s_memrealtime s[94:95]')
        a('s_waitcnt lgkmcnt(0)')
        a('s_sub_u32 s44, s94, s64')
        a('s_cmp_lt_u32 s44, %d' % base)
        a('s_cbranch_scc1 L_spin')
    elif c['probe']:
        k, base, mult = c['probe']
        stamp(14)
        a('s_waitcnt lgkmcnt(0)')
        a('s_cmp_eq_u32 s%d, 0' % (64 + 2 * k))
        a('s_cbranch_scc1 L_end')
        a('s_sub_u32 s7, s%d, s64' % (64 + 2 * k))
        a('s_min_u32 s7, s7, 10000')
        a('s_mul_i32 s7, s7, %d' % mult)
        a('s_add_u32 s7, s7, %d' % base)
        a.label('L_spin')
        a('s_sleep 4')
        a('s_memrealtime s[94:95]')
        a('s_waitcnt lgkmcnt(0)')
        a('s_sub_u32 s44, s94, s64')
        a('s_cmp_lt_u32 s44, s7')
        a('s_cbranch_scc1 L_spin')
    elif diag:
        stamp(14)
        a('s_sleep 127')
        a('s_mov_b64 exec, 1')
        a('s_lshl3_add_u32 s7, s2, s5')
        a('s_lshl_b32 s7, s7, 6')
        a('s_add_u32 s7, s7, 0x%x' % WS_ST)
        a('s_waitcnt lgkmcnt(0)')
        for k in range(15): a('v_mov_b32 v%d, s%d' % (16 + k, 64 + 2 * k))
        a('s_add_u32 s47, s47, 2')
        a('v_mov_b32 v31, s47')
        for k in range(4): a('buffer_store_dwordx4 %s, off, s[20:23], s7 offset:%d' % (vr(16 + 4 * k), 16 * k))
    a.label('L_end')
    a('s_endpgm')

    ref = open(os.path.join(os.path.dirname(os.path.abspath(__file__)), 'header.txt')).read()
    head = ref + '; @launch grid=(256,1,1) block=(512,1,1) lds=%d\n' % LDS_BYTES
    head += '.amdgcn_target "amdgcn-amd-amdhsa--gfx950"\n.text\n.globl {N}_kernel\n.p2align %d\n.p2align 8\n.type {N}_kernel,@function\n{N}_kernel:\n'.replace('{N}', NAME) % c['align']
    foot = """.section .rodata,"a"
.p2align 6
.amdhsa_kernel {N}_kernel
  .amdhsa_next_free_vgpr 224
  .amdhsa_next_free_sgpr 102
  .amdhsa_accum_offset 224
  .amdhsa_group_segment_fixed_size 0
  .amdhsa_kernarg_size 96
  .amdhsa_float_denorm_mode_32 3
  .amdhsa_user_sgpr_count 2
  .amdhsa_user_sgpr_kernarg_segment_ptr 1
  .amdhsa_system_sgpr_workgroup_id_x 1
.end_amdhsa_kernel
""".replace('{N}', NAME)
    return head + a.text(('main', 'q', 'k', 'v', 'end')) + foot

if __name__ == '__main__':
    out = sys.argv[1] if len(sys.argv) > 1 else 'cdna_kernels/%s.s' % NAME
    kw = eval('dict(%s)' % sys.argv[2]) if len(sys.argv) > 2 else {}
    open(out, 'w').write(gen(**kw))
```

```python
import sys, os, struct, math
sys.path.insert(0, os.path.dirname(os.path.abspath(__file__)))
from emit import Asm

NAME = 'sequential_preLN__sliding_block_cached__geglu_ffn__decode'

WS_X = 0x4000
WS_Q = 0x180000
WS_QX = 0x1e0000
BLK = 4096 + 128
WS_H0 = 0x20000
GXS = 2048 + 128
WS_QB = 0x190000
WS_XB = 0xC000
WS_GX = 0xA4000
HS = 1920
WS_H1 = 0x1a0000
WS_H2 = 0x110000
WS_R = 0xC8000
WS_C = 0x1000
WS_ST = 0x200000

L_QL = 0
L_S = 1024
L_P = 2048
L_XN = 6400
L_WT = 3200
L_GATE = 8448
L_STAT = 8704
L_RED = 9728
L_T = 14848
LDS_BYTES = L_T + 8 * 4096

SPIN = 20000

def f32(x):
    return '0x%08x' % struct.unpack('<I', struct.pack('<f', x))[0]

def vr(a, n=4):
    return 'v[%d:%d]' % (a, a + n - 1)

DEF = dict(depth=6, dv=0, gq=16, ga=16, na=16, nb=16, pvd=6, dx=0, stamps=None, rs=1, rg=0, touch='wn', gxt=0, h2late=1, nts='q', ot=1,
           force_sc1=False, probe=None, wo_at=4, qdual=6, ldual=40, gall=1, deep0=14, deep=28, skipz=1, split3=1, tfl='', b1=1, qh=6, pf=True, qt='', prio=0, align=12, near=1, pk=2, sdn=12, swap=1, dt=0, dl=1, gf='s', dw=1, ep=0, es=0, sl=1, p1=0, p2=0, n1=1, n2=2, m1='sc1', m2='sc1', f28=0, fx=0, hw='', nc=1, oc=0, s7=1)

def gen(**kw):
    c = dict(DEF); c.update(kw)
    a = Asm()
    D = c['depth']
    DV = c['dv'] or D
    DX = c['dx']
    diag = bool(c['stamps'])
    def nt(k):
        return ' nt' if k in c['nts'] else ''
    def stamp(k):
        if diag: a('%s s[%d:%d]' % (c['stamps'], 64 + 2 * k, 65 + 2 * k))
    def leave():
        a('s_branch L_exit' if diag else 's_endpgm')
    nlab = [0]
    def leave_if(cond):
        if diag:
            a('s_cbranch_%s L_exit' % cond)
        else:
            nlab[0] += 1
            a('s_cbranch_%s L_stay%d' % ('scc1' if cond == 'scc0' else 'scc0', nlab[0]))
            h = list(a.hist)
            a('s_endpgm')
            a.hist = h
            a.label('L_stay%d' % nlab[0])
    def srd(base, size):
        a('s_mov_b32 s%d, 0x%x' % (base + 2, size))
        a('s_mov_b32 s%d, 0x20000' % (base + 3))
    def mktag():
        a('s_mul_i32 s6, s6, 0x9e3779b1')
        a('s_add_u32 s6, s6, 0x7f4a7c15')
    def rnd(d, s):
        a('v_cvt_pk_bf16_f32 v%d, 0, v%d' % (d, s))
    QP1, QP2 = 'quad_perm:[1,0,3,2]', 'quad_perm:[2,3,0,1]'
    FULL = 'row_mask:0xf bank_mask:0xf'
    def dpp(op, d, s0, s1, ctl, mask=FULL):
        a('%s_dpp v%d, v%d, v%d %s %s' % (op, d, s0, s1, ctl, mask))
    def mfma(d, x, y, acc):
        a('v_mfma_f32_16x16x32_bf16 %s, %s, %s, %s' % (vr(d), vr(x), vr(y), vr(d) if acc else '0'))
    def pkadd(d, x, y):
        a('v_pk_add_f32 %s, %s, %s' % (vr(d, 2), vr(x, 2), vr(y, 2)))
    def masks():
        a('v_and_b32 v10, 1, v1')
        a('v_lshlrev_b32 v10, 4, v10')
        a('s_mov_b32 s7, 0xffff')
        a('v_lshlrev_b32_e64 v10, v10, s7')
        a('v_bfe_u32 v11, v1, 1, 2')
        for r in range(4):
            a('v_cmp_eq_u32 vcc, %d, v11' % r)
            a('v_cndmask_b32 v%d, 0, v10, vcc' % (vM + r))
    def pack24(d, s):
        for k in range(3):
            a('v_perm_b32 v%d, v%d, v%d, s%d' % (d + k, s + k, s + 3, sPK + k))
    def unpackn(gs):
        for g in gs: a('v_perm_b32 v%d, v%d, v%d, s%d' % (g + 3, g + 1, g, sUP))
        for g in gs: a('v_perm_b32 v%d, v%d, v%d, s%d' % (g + 3, g + 2, g + 3, sUP + 1))
    def scatter4(g):
        a('v_permlane32_swap_b32 v%d, v%d' % (g, g + 2))
        a('v_permlane32_swap_b32 v%d, v%d' % (g + 1, g + 3))
        pkadd(g, g, g + 2)
        a('v_permlane16_swap_b32 v%d, v%d' % (g, g + 1))
        a('v_add_f32 v%d, v%d, v%d' % (g, g, g + 1))
        dpp('v_add_f32', g, g, g, 'row_ror:8')
    def sum2scatter(x=16, y=20):
        unpackn([x, y])
        pkadd(x, x, y); pkadd(x + 2, x + 2, y + 2)
        scatter4(x)
    def vec32(d, s, banks):
        rnd(s + 1, s)
        a('v_cvt_pk_bf16_f32 v%d, v%d, 0' % (s, s))
        dpp('v_or_b32', s, s + 1, s, 'quad_perm:[1,1,3,3]')
        for k in range(4):
            a('v_mov_b32_dpp v%d, v%d row_newbcast:%d row_mask:0xf bank_mask:0x%x' % (d + k, s, 2 * k, banks))
    retry = []
    def poll(name, loads, tags, between=None, wait='vmcnt(0)', alt=None, half=False, extra=[], also=[]):
        for t in loads[:-1]: a(t)
        if half: a('s_mov_b32 exec_hi, 0')
        if loads: a(loads[-1])
        if half: a('s_mov_b32 exec_hi, -1')
        if between: between()
        a('s_mov_b32 s7, 0')
        if wait: a('s_waitcnt ' + wait)
        a.label(name + '_chk')
        a('v_cmp_ne_u32 vcc, s6, v%d' % tags[0])
        if len(tags) > 1:
            for i, t in enumerate(tags[1:]):
                a('v_cmp_ne_u32_e64 s[%d:%d], s6, v%d' % (96 + 2 * i, 97 + 2 * i, t))
            if half: a('s_and_b32 s%d, s%d, 0' % (93 + 2 * len(tags), 93 + 2 * len(tags)))
            for i, t in enumerate(tags[1:]):
                a('s_or_b64 s[62:63], %s, s[%d:%d]' % ('s[62:63]' if i else 'vcc', 96 + 2 * i, 97 + 2 * i))
            a('s_cbranch_scc1 %s_retry' % name)
        else:
            a('s_cbranch_vccnz %s_retry' % name)
        a.label(name + '_ok')
        retry.append((name, loads + extra, alt, also))
    def poll2(name, load, sets, gap, tail, first=None):
        n = len(sets)
        for i in range(n - 1):
            for t in load(*sets[i]): a(t)
            if first and i == 0: first()
            if gap: a('s_sleep %d' % gap)
        a('s_mov_b32 s7, 0')
        a('s_mov_b64 vcc, -1')
        m = len(sets[0])
        if m > 1: a('s_mov_b64 s[96:97], -1')
        a.label(name + '_loop')
        for i in range(n):
            l = load(*sets[i - 1])
            a('s_or_b64 exec, vcc, 1')
            a(l[0])
            if m > 1:
                a('s_or_b64 exec, s[96:97], 1')
                a(l[1])
            a('s_mov_b64 exec, -1')
            if gap: a('s_sleep %d' % gap)
            a('s_waitcnt vmcnt(%d)' % (m * n - m))
            a('v_cmp_ne_u32 vcc, s6, v%d' % (sets[i][0] + 3))
            if m > 1:
                a('v_cmp_ne_u32_e64 s[96:97], s6, v%d' % (sets[i][1] + 3))
                a('s_or_b64 s[62:63], vcc, s[96:97]')
                a('s_cbranch_scc0 %s_ok%d' % (name, i))
            else:
                a('s_cbranch_vccz %s_ok%d' % (name, i))
        a('s_add_u32 s7, s7, 1')
        a('s_cmp_ge_u32 s7, %d' % SPIN)
        a('s_cbranch_scc0 %s_loop' % name)
        for i in reversed(range(n)):
            a.label('%s_ok%d' % (name, i))
            tail(*sets[i])
    def flush_retry():
        for name, loads, alt, also in retry:
            a.label(name + '_retry')
            if alt:
                a('s_cmp_eq_u32 s7, %d' % alt[0])
                a('s_cselect_b32 s%d, s%d, s%d' % (alt[1], alt[2], alt[1]))
            for i, t in enumerate(loads):
                a('s_mov_b64 exec, %s' % ('s[%d:%d]' % (94 + 2 * i, 95 + 2 * i) if i else 'vcc'))
                skip = c['skipz'] and len(loads) > 2
                if skip: a('s_cbranch_execz %s_z%d' % (name, i))
                a(t)
                if skip: a.label('%s_z%d' % (name, i))
            a('s_mov_b64 exec, -1')
            for t in also: a(t)
            a('s_add_u32 s7, s7, 1')
            a('s_cmp_ge_u32 s7, %d' % SPIN)
            a('s_waitcnt vmcnt(0)')
            a('s_cbranch_scc0 %s_chk' % name)
            a('s_branch %s_ok' % name)
        del retry[:]
    def common(x=True):
        if x: srd(36, 896)
        a('s_load_dwordx2 s[24:25], s[0:1], 48')
        a('s_load_dwordx2 s[28:29], s[0:1], 56')
        a('s_load_dwordx2 s[32:33], s[0:1], 64')
        a('s_load_dwordx2 s[40:41], s[0:1], 72')
        srd(20, 1 << 28)
        srd(24, 448 * 3584)
        srd(32, 1792 * 896)
        srd(40, 896)
        for k in range(3):
            a('s_mov_b32 s%d, 0x0706050%d' % (sPK + k, 1 + k))
        a('s_mov_b32 s%d, 0x0c04000c' % sUP)
        a('s_mov_b32 s%d, 0x04020100' % (sUP + 1))
        if DX:
            a('s_cmp_eq_u32 s3, 0')
            a('s_cselect_b32 s30, %d, %d' % (c['deep0'], c['deep']))
            a('s_cmp_ge_u32 s4, s30')
            a('s_cselect_b32 s30, 1, 0')
        masks()
        a('v_lshlrev_b32 v8, 4, v1')
    def gate_open(k):
        a('ds_write_b32 v221, v220 offset:%d' % (L_GATE + 16 * k))
    def gate_wait(k, vaddr):
        nlab[0] += 1
        if vaddr == 219: a('v_mov_b32 v219, 0')
        a.label('L_gate%d' % nlab[0])
        a('ds_read_b32 v219, v%d offset:%d' % (vaddr, L_GATE + 16 * k))
        a('s_waitcnt lgkmcnt(0)')
        a('v_cmp_ne_u32 vcc, 1, v219')
        a('s_cbranch_vccnz L_gate%d' % nlab[0])
    def store2(data, voff, soff, m=58):
        a('s_mov_b64 exec, s[%d:%d]' % (m, m + 1))
        a('buffer_store_dwordx4 %s, v%d, s[20:23], s%d offen' % (vr(data), voff, soff))
        a('s_mov_b64 exec, s[%d:%d]' % (m + 2, m + 3))
        a('buffer_store_dwordx4 %s, v%d, s[20:23], s%d offen sc1' % (vr(data), voff, soff))
        a('s_mov_b64 exec, -1')
    def dma_voff(rowexpr_pitch, d=2):
        a('v_bfe_u32 v11, v1, 3, 2')
        a('v_lshlrev_b32 v11, 1, v11')
        a('v_xor_b32 v11, v11, v1')
        a('v_and_b32 v11, 7, v11')
        a('v_mul_u32_u24 v10, %d, v10' % rowexpr_pitch)
        a('v_lshl_add_u32 v%d, v11, 4, v10' % d)
    def tr_addr(sh=12):
        a('v_bfe_u32 v10, v1, 2, 2')
        a('v_mul_u32_u24 v10, 160, v10')
        a('v_and_b32 v11, 3, v1')
        a('v_lshl_add_u32 v10, v11, 3, v10')
        a('v_lshrrev_b32 v11, 4, v1')
        a('v_lshl_add_u32 v10, v11, 10, v10')
        a('v_lshl_add_u32 v32, s5, %d, v10' % sh)
        for t in range(1, 4): a('v_xor_b32 v%d, %d, v32' % (32 + t, 32 * t))
    def tr_read():
        for t in range(4):
            for u in range(2):
                a('ds_read_b64_tr_b16 %s, v%d offset:%d' % (vr(vB + 4 * t + 2 * u, 2), 32 + t, L_T + 512 * u))
    def gran_row(e):
        a('v_and_b32 v10, 0x77, v%d' % e)
        a('v_and_b32 v3, 7, v%d' % e)
        a('v_add_u32 v10, v10, v3')
        a('v_bfe_u32 v3, v%d, 3, 1' % e)
        a('v_add_lshl_u32 v10, v10, v3, 2')
    def h1_copy(d):
        a('s_and_b32 s%d, s2, %d' % (d, c['nc'] - 1))
        a('s_lshl_b32 s%d, s%d, 16' % (d, d))
    def line_voff():
        a('v_bfe_u32 v10, v1, 3, 2')
        a('v_mul_u32_u24 v10, %d, v10' % HS)
        a('v_lshrrev_b32 v11, 5, v1')
        a('v_lshl_add_u32 v10, v11, 14, v10')
        a('v_and_b32 v11, 0x70, v8')
        a('v_add_u32 v9, v10, v11')
        a('v_lshrrev_b32 v10, 4, v1')
        a('v_lshl_add_u32 v12, v10, 1, v11')
    def line_soff(sl):
        a('s_lshl_b32 s44, s%d, 7' % sl)
        a('s_add_u32 s44, s44, 0x%x' % WS_H1)
        a('s_lshr_b32 s46, s%d, 1' % sl)
        a('s_lshl_b32 s46, s46, 7')
        a('s_and_b32 s7, s%d, 1' % sl)
        a('s_lshl3_add_u32 s46, s7, s46')
    def softmax_head(r):
        mx, t1, ls = r + 4, r + 5, r + 6
        a('v_max3_f32 v%d, v%d, v%d, v%d' % (mx, r, r + 1, r + 2))
        a('v_max_f32 v%d, v%d, v%d' % (mx, mx, r + 3))
        allred32('v_max_f32', mx, t1)
        a('v_mul_f32 v%d, s53, v%d' % (mx, mx))
        for k in range(4): a('v_fma_f32 v%d, v%d, s53, -v%d' % (r + k, r + k, mx))
        for k in range(4): a('v_exp_f32 v%d, v%d' % (r + k, r + k))
        a('v_add_f32 v%d, v%d, v%d' % (ls, r, r + 1))
        a('v_add_f32 v%d, v%d, v%d' % (t1, r + 2, r + 3))
        a('v_add_f32 v%d, v%d, v%d' % (ls, ls, t1))
        allred32('v_add_f32', ls, t1)
    def allred32(op, r, t1):
        for ctl in (QP1, QP2, 'row_half_mirror', 'row_mirror'): dpp(op, r, r, r, ctl)
        a('v_mov_b32 v%d, v%d' % (t1, r))
        a('v_permlane16_swap_b32 v%d, v%d' % (r, t1))
        a('%s v%d, v%d, v%d' % (op, r, r, t1))

    vM = 4
    vKO = 2
    vK, vV, vQ, vW = 16, 80, 144, 176
    vA = 192
    vP = 16
    vT = 48
    vC0, vC1 = 64, 68
    G0, G1, G2, G3 = 16, 20, 24, 28
    vB, vAX, vD = 80, 96, 100
    sPK, sUP = 48, 51
    SC = f32(math.log2(math.e) / 16)

    def wo_setup():
        a('s_load_dwordx2 s[16:17], s[0:1], 32')
        srd(16, 448 * 8192)
        a('v_bfe_u32 v10, v1, 3, 2')
        a('v_lshrrev_b32 v11, 5, v1')
        a('v_lshl_add_u32 v10, v10, 1, v11')
        dma_voff(4 * 896)
        a('s_cmp_ge_u32 s4, 7')
        a('s_cselect_b32 s54, 1, 0')
        a('s_lshl1_add_u32 s7, s3, s54')
        a('s_lshl_b32 s7, s7, 8')
        a('s_add_u32 s7, s7, s55')
        a('s_sub_u32 s7, s7, s54')
        a('s_mul_i32 s7, s7, 7')
        a('s_add_u32 s7, s7, s4')
        a('s_lshl_b32 s10, s7, 7')
        a('s_lshl_b32 s7, s55, 10')
        a('s_add_u32 m0, s7, %d' % L_T)
        a('s_movk_i32 s11, %d' % (32 * 896))
    def wo_issue():
        for i in range(8):
            a('buffer_load_dwordx4 v2, s[16:19], s10 offen nt lds')
            if i < 7:
                a('s_add_u32 m0, m0, 0x1000')
                a('s_add_u32 s10, s10, s11')
    def wo_issue_if():
        nlab[0] += 1
        a('s_cmp_ge_u32 s4, 14')
        a('s_cbranch_scc1 L_nowo%d' % nlab[0])
        wo_issue()
        a.label('L_nowo%d' % nlab[0])
    def kv_addr():
        a('v_and_b32 v10, 7, v1')
        a('v_lshrrev_b32 v11, 3, v1')
        a('v_lshlrev_b32 v10, 4, v10')
        a('v_lshl_add_u32 v%d, v11, 9, v10' % vKO)
        a('s_lshl_b32 s7, s3, 7')
        a('s_add_u32 s7, s7, s4')
        a('s_add_u32 s7, s7, 96')
        a('s_lshl_b32 s44, s7, 4')
        if c['rs'] == 1 and not c['rg']:
            a('s_and_b32 s7, s4, 15')
        else:
            a('s_mul_i32 s7, s4, %d' % c['rs'])
            a('s_mul_i32 s62, s3, %d' % c['rg'])
            a('s_add_u32 s7, s7, s62')
            a('s_and_b32 s7, s7, 15')
        a('s_or_b32 s44, s44, s7')
    def h0_gather():
        a('s_cmp_ge_u32 s4, 7')
        a('s_cselect_b32 s54, 1, 0')
        a('s_lshl1_add_u32 s7, s3, s54')
        a('s_lshl3_add_u32 s56, s7, s5')
        a('s_mul_i32 s56, s56, %d' % BLK)
        a('s_add_u32 s56, s56, 0x%x' % WS_H0)

    def probe_addr():
        a('s_lshr_b32 s98, s2, 5')
        a('s_lshl_b32 s98, s98, 3')
        a('s_and_b32 s7, s55, 2')
        a('s_lshl1_add_u32 s98, s7, s98')
        a('s_and_b32 s7, s55, 1')
        a('s_add_u32 s98, s98, s7')
        a('s_lshl_b32 s98, s98, 5')
        a('s_and_b32 s7, s2, 31')
        a('s_add_u32 s98, s98, s7')
        a('s_lshl_b32 s98, s98, 7')
        a('s_add_u32 s98, s98, 0x%x' % WS_R)
    def probe(n):
        probe_addr()
        a('s_and_b32 s7, s55, 1')
        a('v_xor_b32 v10, s7, v1')
        a('v_lshlrev_b32 v10, 2, v10')
        a('s_lshl_b32 s7, s7, 13')
        a('s_xor_b32 s98, s98, s7')
        a('s_xor_b32 s99, s98, 0x2000')
        a('s_mov_b64 s[12:13], 0')
        a('s_mov_b32 s96, 0')
        a('s_buffer_load_dword s62, s[20:23], s98 glc')
        a('s_buffer_load_dword s63, s[20:23], s99 glc')
        a('s_waitcnt lgkmcnt(0)')
        a.label('L_probe')
        a('s_memtime s[14:15]')
        a('s_buffer_load_dword s7, s[20:23], s98 glc')
        a('s_waitcnt lgkmcnt(0)')
        a('s_memtime s[100:101]')
        a('s_buffer_load_dword s7, s[20:23], s99 glc')
        a('s_waitcnt lgkmcnt(0)')
        a('s_memtime s[62:63]')
        a('s_sub_u32 s14, s14, s100')
        a('s_max_u32 s12, s12, s14')
        a('s_add_u32 s96, s96, 1')
        a('s_waitcnt lgkmcnt(0)')
        a('s_sub_u32 s100, s100, s62')
        a('s_max_u32 s13, s13, s100')
        a('s_cmp_lt_u32 s96, %d' % n)
        a('s_cbranch_scc1 L_probe')
        a('v_mov_b32 v11, s12')
        a('v_writelane_b32 v11, s13, 1')
        a('s_mov_b64 exec, 3')
        a('ds_max_u32 v10, v11 offset:%d' % (L_GATE + 16 * 9))
        a('s_mov_b64 exec, -1')
    def side_load(first, fin=False):
        if first:
            if fin:
                a('s_mov_b32 s45, 0x%x' % WS_C)
            else:
                a('v_lshlrev_b32 v217, 7, v1')
                a('s_lshl_b32 s45, s3, 12')
                a('s_add_u32 s45, s45, 0x%x' % (WS_X + 4096))
            a('s_mov_b32 s62, 0')
        a('s_mov_b64 exec, 3')
        if fin: a('buffer_load_dwordx2 v[218:219], off, s[20:23], s45 sc1')
        else: a('buffer_load_dwordx2 v[218:219], v217, s[20:23], s45 offen offset:%d sc1' % (14 * 128 + 32))
        a('s_mov_b64 exec, -1')
    def side_add(name):
        if c['near']:
            a.label(name + '_wait')
            a('s_waitcnt vmcnt(0)')
            a('v_cmp_eq_u32 vcc, s6, v219')
            a('s_and_b32 s7, vcc_lo, 3')
            a('s_cbranch_scc0 %s_retry' % name)
            a('s_ff1_i32_b32 s7, s7')
            a('v_readlane_b32 s7, v218, s7')
            a('s_and_b32 s7, s7, 0x2000')
            a('s_add_u32 s44, s44, s7')
            a.label(name + '_ok')
            if diag: a('s_add_u32 s47, s7, 0x100')
        else:
            a('s_waitcnt vmcnt(0)')
        a('s_add_u32 s45, s44, 0x8000')
    def side_retry(name, fin=False):
        if c['near']:
            a.label(name + '_retry')
            a('s_add_u32 s62, s62, 1')
            a('s_cmp_ge_u32 s62, %d' % (SPIN if fin else c['sdn']))
            a('s_cbranch_scc1 %s_ok' % name)
            side_load(False, fin)
            a('s_branch %s_wait' % name)
    def xpub(part):
        if part & 1:
            a('s_lshl_b32 s7, s3, 5')
            a('s_add_u32 s7, s7, s4')
            a('s_lshl_b32 s7, s7, 7')
            a('s_add_u32 s47, s7, 0x%x' % WS_X)
            a('s_getreg_b32 s7, hwreg(HW_REG_XCC_ID, 0, 4)')
            a('v_mov_b32 v222, s7')
            a('v_mov_b32 v223, s6')
        if part & 2:
            nlab[0] += 1
            a('s_cmp_eq_u32 s5, 6')
            a('s_cbranch_scc0 L_xp%d' % nlab[0])
            a('s_mov_b64 exec, 1')
            a('buffer_store_dwordx2 v[222:223], off, s[20:23], s47')
            a('s_mov_b64 exec, -1')
            a.label('L_xp%d' % nlab[0])

    if diag:
        for k in range(1, 15): a('s_mov_b32 s%d, 0' % (64 + 2 * k))
    stamp(0)
    a('s_load_dwordx2 s[8:9], s[0:1], 8')
    a('s_load_dwordx2 s[36:37], s[0:1], 0')
    a('s_load_dwordx2 s[16:17], s[0:1], 24')
    a('s_load_dwordx2 s[12:13], s[0:1], 16')
    a('s_load_dwordx2 s[20:21], s[0:1], 88')
    a('s_cmp_ge_u32 s2, 256')
    a('s_cbranch_scc1 L_end')
    a('v_lshrrev_b32 v3, 6, v0')
    a('v_and_b32 v1, 63, v0')
    a('s_and_b32 s3, s2, 7')
    a('v_readfirstlane_b32 s5, v3')
    a('s_lshr_b32 s4, s2, 3')
    a('s_and_b32 s55, s5, 3')
    a('s_add_u32 s31, s4, 2')
    a('s_lshr_b32 s31, s31, 4')
    if c['swap']:
        a('s_cmp_lg_u32 s31, 0')
        a('s_cselect_b32 s7, 4, 0')
        a('s_xor_b32 s5, s5, s7')
    a('s_cmp_ge_u32 s5, 4')
    a('s_cbranch_scc1 L_v0')

    if c['pf']:
        a('s_getpc_b64 s[46:47]')
        a.label('L_pc')
        a('s_lshl2_add_u32 s7, s4, s55')
        a('s_lshl_b32 s7, s7, 7')
        a('s_addk_i32 s7, 0x300')
        a('s_min_u32 s7, s7, L_end-L_pc')
        a('s_add_u32 s46, s46, s7')
        a('s_addc_u32 s47, s47, 0')
        a('v_mov_b32 v10, s46')
        a('v_mov_b32 v11, s47')
        a('global_load_dword v216, v[10:11], off' + nt('c'))
    kv_addr()
    srd(8, 1 << 26)
    a('s_xor_b32 s45, s44, s55')
    a('s_lshl_b32 s45, s45, 12')
    a('v_and_b32 v10, 0xfc, v0')
    a('v_mov_b32 v11, 0')
    a('ds_write_b32 v10, v11 offset:%d' % L_GATE)
    a('s_cmp_lg_u32 s31, 0')
    a('s_waitcnt lgkmcnt(0)')
    a('s_load_dword s6, s[20:21], 0')
    if c['b1']:
        a('s_cbranch_scc0 L_k1')
        a('s_barrier')
        a.label('L_k1')
    stamp(1)
    GQ = c['gq']
    assert D <= GQ <= 16 and D <= c['ga'] <= 16
    class Stream:
        def __init__(self): self.seq, self.done = [], 0
        def left(self, n): return len(self.seq) - self.seq.index(n) - 1
        def wait(self, n):
            if self.seq.index(n) >= self.done:
                a('s_waitcnt vmcnt(%d)' % self.left(n))
                self.done = self.seq.index(n) + 1
        def throttle(self, n, d):
            if DX and n >= d and self.seq.index(n - d) >= self.done:
                nlab[0] += 1
                a('s_cmp_lg_u32 s30, 0')
                a('s_cbranch_scc1 L_thr%d' % nlab[0])
                a('s_waitcnt vmcnt(%d)' % self.left(n - d))
                a.label('L_thr%d' % nlab[0])
            if n >= d + DX: self.wait(n - d - DX)
    ks = Stream()
    def kload(idx):
        i, t = idx >> 2, idx & 3
        if t == 0 and i > 0: a('s_xor_b32 s45, s45, 0x%x' % ((i ^ (i - 1)) << 14))
        ks.throttle(idx, D)
        a('buffer_load_dwordx4 %s, v%d, s[8:11], s45 offen offset:%d nt' % (vr(vK + 4 * idx), vKO, 128 * t))
        ks.seq.append(idx)
    for idx in range(D): kload(idx)
    if c['b1']:
        a('s_cmp_lg_u32 s31, 0')
        a('s_cbranch_scc1 L_kb')
    a('s_barrier')
    a('s_branch L_kb')
    a.section('k')
    a.label('L_kb')
    common()
    for k in range(8): a('v_mov_b32 v%d, 0' % (vA + 8 + k))
    if c['split3']:
        for k in (0, 1, 4, 5): a('v_mov_b32 v%d, 0' % (vA + 16 + k))
        a('s_mul_i32 s7, s3, %d' % (1024 - 8192))
        a('s_add_u32 s7, s7, 0x%x' % (WS_QX - WS_Q - 2048))
        a('v_add_u32 v14, s7, v8')
    a('v_bfe_u32 v10, v1, 2, 1')
    a('v_lshlrev_b32 v10, 9, v10')
    a('v_lshrrev_b32 v12, 4, v1')
    a('v_lshl_add_u32 v10, v12, 7, v10')
    a('v_and_b32 v11, 3, v1')
    a('v_lshlrev_b32 v217, 2, v11')
    a('v_lshl_add_u32 v10, v11, 5, v10')
    a('v_bfe_u32 v11, v1, 3, 1')
    a('v_lshl_add_u32 v10, v11, 2, v10')
    a('v_lshl_add_u32 v13, s55, 3, v10')
    a('v_and_b32 v10, 31, v1')
    a('v_lshlrev_b32 v218, 7, v10')
    a('v_lshlrev_b32_e64 v221, 2, s55')
    a('v_mov_b32 v220, 1')
    a('v_and_b32 v9, 0x70, v8')
    a('v_and_b32 v12, 0xff, v0')
    a('v_lshlrev_b32 v12, 2, v12')
    a('s_lshl_b32 s46, s3, 12')
    a('s_add_u32 s46, s46, 0x%x' % WS_X)
    a('s_getreg_b32 s44, hwreg(HW_REG_XCC_ID, 0, 4)')
    a('s_lshl2_add_u32 s7, s3, s5')
    a('s_lshl_b32 s7, s7, 11')
    a('s_add_u32 s56, s7, 0x%x' % WS_Q)
    a('s_add_u32 s57, s7, 0x%x' % WS_QB)
    a('s_mov_b32 s58, 0xaaaaaaaa'); a('s_mov_b32 s59, 0xaaaaaaaa')
    a('s_mov_b32 s60, 0xcccccccc'); a('s_mov_b32 s61, 0xcccccccc')
    a('s_mov_b32 s53, %s' % SC)
    if c['ga'] == D: gate_open(0)
    def krange(lo, hi):
        for idx in range(lo, hi):
            if c['qh'] and idx == c['qh']:
                a('s_cmp_lg_u32 s31, 0')
                a('s_cbranch_scc0 L_k2')
                gate_wait(8, 217)
                a.label('L_k2')
            kload(idx)
            if c['ga'] == idx + 1: gate_open(0)
    krange(D, GQ)
    vE = vA + 16
    qx3 = 'buffer_load_dwordx4 %s, v14, s[20:23], s56 offen sc1' % vr(vE) + nt('q')
    if c['split3']:
        a('s_cmp_eq_u32 s5, 1')
        a('s_cbranch_scc0 L_k6')
        a(qx3)
        a.label('L_k6')
    def krest():
        ks.seq += ['q0', 'q1']
        krange(GQ, 16)
        stamp(2)
        a('s_waitcnt lgkmcnt(0)')
        mktag()
        if c['split3']:
            a('s_cmp_eq_u32 s5, 1')
            a('s_cbranch_scc1 L_k7')
            a('v_mov_b32 v%d, s6' % (vE + 3))
            a.label('L_k7')
        if c['wo_at']: wo_setup()
        ks.wait('q1')
        gate_open(1)
    poll('L_pq', ['buffer_load_dwordx4 %s, v8, s[20:23], s56 offen offset:%d sc1' % (vr(vA + 4 * k), 1024 * k) + nt('q') for k in range(2)],
         [vA + 3, vA + 7] + [vE + 3] * c['split3'], between=krest, wait=None, alt=(c['qdual'], 56, 57), extra=[qx3] * c['split3'])
    stamp(3)
    pkadd(vA, vA, vA + 4)
    if c['split3']:
        a('v_permlane32_swap_b32 v%d, v%d' % (vE + 4, vE))
        a('v_permlane32_swap_b32 v%d, v%d' % (vE + 5, vE + 1))
        pkadd(vE, vE, vE + 4)
        pkadd(vA, vA, vE)
    a('v_cvt_pk_bf16_f32 v%d, v%d, v%d' % (vA, vA, vA + 1))
    a('ds_write_b32 v12, v%d offset:%d' % (vA, L_QL))
    gate_open(2)
    gate_wait(2, 217)
    for h in range(2):
        for t in range(4):
            a('ds_read_b128 %s, v9 offset:%d' % (vr(vQ + 16 * h + 4 * t), L_QL + 512 * h + 128 * t))
    if c['wo_at'] == 2: wo_issue_if()
    a('s_waitcnt lgkmcnt(0)')
    stamp(4)
    acc = lambda i, h: vA + 8 + 4 * h + i
    for i in range(4):
        assert c['wo_at'] != 2 or GQ == 16
        ks.wait(4 * i + 3)
        for t in range(4):
            for d in range(4):
                for h in range(2):
                    a('v_dot2c_f32_bf16 v%d, v%d, v%d' % (acc(i, h), vK + 16 * i + 4 * t + d, vQ + 16 * h + 4 * t + d))
    X = acc(0, 0)
    for i in range(4): dpp('v_add_f32', X + i, X + i, X + i, 'row_half_mirror', 'row_mask:0xf bank_mask:0x5')
    for i in range(4): dpp('v_add_f32', X + i, X + 4 + i, X + 4 + i, 'row_half_mirror', 'row_mask:0xf bank_mask:0xa')
    for i in range(4): dpp('v_add_f32', X + i, X + i, X + i, QP1)
    a('v_cndmask_b32_e64 v%d, v%d, v%d, s[58:59]' % (X, X, X + 1))
    a('v_cndmask_b32_e64 v%d, v%d, v%d, s[58:59]' % (X + 2, X + 2, X + 3))
    dpp('v_add_f32', X, X, X, QP2)
    dpp('v_add_f32', X + 2, X + 2, X + 2, QP2)
    a('v_cndmask_b32_e64 v%d, v%d, v%d, s[60:61]' % (X, X, X + 2))
    rnd(X, X)
    a('ds_write_b32 v13, v%d offset:%d' % (X, L_S))
    gate_open(3)
    stamp(5)
    h0_gather()
    def xflag(left):
        a('s_waitcnt vmcnt(%d)' % left)
        a('v_cmp_ne_u32 vcc, s6, v223')
        a('v_cmp_ne_u32_e64 s[96:97], s44, v222')
        a('s_or_b32 s7, vcc_lo, s96')
        a('s_cselect_b32 s7, 2, %d' % (2 if c['force_sc1'] else 1))
        a('v_mov_b32 v219, s7')
        a('ds_write_b32 v217, v219 offset:%d' % (L_GATE + 16 * 7))
    a('s_cmp_eq_u32 s5, 3')
    a('s_cbranch_scc1 L_k3')
    a('s_cmp_ge_u32 s4, 14')
    a('s_cbranch_scc1 L_aux6')
    if c['wo_at'] == 4: gate_wait(4, 221)
    if c['wo_at'] >= 3: wo_issue()
    a('s_waitcnt vmcnt(0)')
    a('s_branch L_wt')

    a.label('L_k3')
    a('s_mov_b32 exec_hi, 0')
    a('buffer_load_dwordx2 v[222:223], v218, s[20:23], s46 offen sc1' + nt('t'))
    a('s_mov_b32 exec_hi, -1')
    a('s_lshl3_add_u32 s45, s54, s46')
    a('s_add_u32 s57, s45, 0x%x' % (WS_XB - WS_X))
    a('v_lshrrev_b32 v10, 5, v1')
    a('v_lshl_add_u32 v14, v10, 4, v8')
    a('v_lshlrev_b32 v10, 3, v10')
    a('s_lshl_b32 s7, s4, 7')
    a('s_add_u32 s46, s46, s7')
    a('v_mov_b32 v13, s6')
    gate_wait(3, 217)
    a('ds_read_b128 %s, v8 offset:%d' % (vr(vA), L_S))
    a('s_waitcnt lgkmcnt(0)')
    softmax_head(vA)
    a('v_rcp_f32 v%d, v%d' % (vA + 5, vA + 6))
    a('v_log_f32 v12, v%d' % (vA + 6))
    for k in range(4): a('v_mul_f32 v%d, v%d, v%d' % (vA + k, vA + k, vA + 5))
    for k in range(4): a('v_cvt_pk_bf16_f32 v%d, v%d, v%d' % (vA + k, vA + k, vA + k))
    a('ds_write_b128 v14, %s offset:%d' % (vr(vA), L_P))
    a('ds_write_b32 v221, v220 offset:%d' % (L_GATE + 16 * 5 - 12))
    a('v_add_f32 v12, v12, v%d' % (vA + 4))
    def lse_store(sc):
        a('s_mov_b32 exec_lo, 1'); a('s_mov_b32 exec_hi, 1')
        a('buffer_store_dwordx2 v[12:13], v10, s[20:23], s46 offen offset:16' + sc)
        a('s_mov_b64 exec, -1')
    lse_store('')
    xflag(1)
    a('s_add_u32 s46, s46, 0x%x' % (WS_XB - WS_X))
    a('s_cmp_ge_u32 s4, 14')
    stamp(6)
    a('s_cbranch_scc0 L_k4')
    lse_store(' sc1' + nt('s'))
    a('s_branch L_aux6')
    a.label('L_k4')
    gate_wait(4, 221)
    late = c['wo_at'] >= 3
    def lrest():
        if late: wo_issue()
        lse_store(' sc1' + nt('s'))
    poll('L_pl', ['buffer_load_dwordx2 v[14:15], v218, s[20:23], s45 offen offset:16 sc1'], [15],
         between=lrest, wait='vmcnt(%d)' % (9 if late else 1), alt=(c['ldual'], 45, 57))
    stamp(7)
    a('v_mov_b32 v16, v14')
    allred32('v_max_f32', 16, 17)
    a('v_sub_f32 v14, v14, v16')
    a('v_exp_f32 v14, v14')
    a('v_and_b32 v10, 0x70, v8')
    a('v_mov_b32 v16, v14')
    allred32('v_add_f32', 16, 17)
    a('v_rcp_f32 v16, v16')
    a('v_bfe_u32 v11, v1, 3, 2')
    a('v_lshl_add_u32 v10, v11, 2, v10')
    a('v_mul_f32 v14, v14, v16')
    a('ds_write_b32 v10, v14 offset:%d' % L_WT)
    a('s_waitcnt vmcnt(1) lgkmcnt(0)')
    a('s_branch L_wt')
    a.label('L_aux6')
    a('s_waitcnt lgkmcnt(0)')
    a('s_cmp_ge_u32 s4, 16')
    a('s_cbranch_scc0 L_aux7')
    a('s_sub_u32 s3, s3, 1')
    a('s_cbranch_scc1 L_fin')
    vF, vFA, vFD = 80, 112, 120
    a('s_bitcmp1_b32 s4, 0')
    a('s_cselect_b64 s[24:25], s[28:29], s[24:25]')
    a('v_lshrrev_b32 v12, 3, v1')
    a('v_and_b32 v13, 0x70, v8')
    a('v_lshl_add_u32 v13, v12, 10, v13')
    a('v_lshl_add_u32 v13, s5, 13, v13')
    for k in range(4): a('v_mov_b32 v%d, 0' % (G0 + k))
    a('ds_write_b128 v13, %s offset:%d' % (vr(G0), L_T + 896))
    a('s_and_b32 s7, s4, 14')
    a('s_mul_i32 s7, s7, 7')
    a('v_add_u32 v12, s7, v12')
    gran_row(12)
    dma_voff(3584)
    a('v_add_u32 v12, 7, v12')
    gran_row(12)
    dma_voff(3584, 42)
    a('s_lshl2_add_u32 s57, s3, s5')
    a('s_lshl_b32 s8, s57, 7')
    for k in range(1, 4): a('s_add_u32 s%d, s8, %d' % (8 + k, 3584 * k))
    a('s_lshl_b32 s7, s5, 13')
    a('s_add_u32 m0, s7, %d' % L_T)
    tr_addr(13)
    a('v_lshlrev_b32 v38, 4, v11')
    a('v_lshrrev_b32 v10, 2, v1')
    a('v_mul_u32_u24 v10, %d, v10' % (GXS - 64))
    a('v_add_u32 v13, v10, v8')
    for r in range(4): a('v_mov_b32 v%d, 0x3f803f80' % (vFA + r))
    a('s_mul_i32 s57, s57, %d' % (4 * GXS))
    a('s_lshl_b32 s7, s4, 7')
    a('s_add_u32 s57, s57, s7')
    a('s_add_u32 s57, s57, 0x%x' % (WS_GX - 2048))
    a('s_add_u32 s56, s57, 64')
    a('v_mov_b32 v75, s6')
    a('s_mov_b32 exec_hi, 0x00ffffff')
    a('s_branch L_ft')
    a.label('L_aux7')
    if c['near']:
        a('s_cmp_eq_u32 s5, 3')
        a('s_cbranch_scc1 L_aux8')
        probe(c['pk'])
        stamp(7)
        a.label('L_aux8')
        gate_open(10)
        a('s_cmp_eq_u32 s5, 0')
        a('s_cbranch_scc0 L_aux9')
        a('s_lshl_b32 s7, s4, 7')
        a('s_add_u32 s46, s46, s7')
        a('v_mov_b32 v13, s6')
        gate_wait(10, 217)
        a('ds_read_b64 v[218:219], v221 offset:%d' % (L_GATE + 16 * 9))
        a('s_waitcnt lgkmcnt(0)')
        a('v_cmp_lt_u32 vcc, v218, v219')
        a('v_cndmask_b32_e64 v12, 0, -1, vcc')
        a('s_mov_b64 exec, 1')
        a('buffer_store_dwordx2 v[12:13], off, s[20:23], s46 offset:32')
        if c['oc']:
            a('s_cmp_eq_u32 s2, 112')
            a('s_cbranch_scc0 L_aux9')
            a('s_mov_b32 s46, 0x%x' % WS_C)
            a('buffer_store_dwordx2 v[12:13], off, s[20:23], s46 sc1')
        a.label('L_aux9')
    a('s_barrier')
    leave()
    flush_retry()

    a.section('v')
    if c['wo_at'] == 0:
        a.label('L_v1')
        a('s_cmp_ge_u32 s4, 14')
        a('s_cbranch_scc1 L_v')
        wo_setup()
        a('s_waitcnt lgkmcnt(0)')
        wo_issue()
    a.label('L_v')
    common()
    a('s_waitcnt lgkmcnt(0)')
    mktag()
    xpub(3)
    a.label('L_v3')
    kv_addr()
    srd(12, 1 << 26)
    a('s_lshl_b32 s44, s44, 12')
    a('s_lshl_b32 s7, s55, 7')
    a('s_add_u32 s44, s44, s7')
    a('v_lshlrev_b32_e64 v221, 2, s55')
    a('v_mov_b32 v220, 1')
    a('v_and_b32 v10, 3, v1')
    a('v_lshlrev_b32 v217, 2, v10')
    a('v_bfe_u32 v11, v1, 3, 1')
    a('v_lshrrev_b32 v12, 4, v1')
    a('v_mul_u32_u24 v15, 528, v11')
    a('v_lshl_add_u32 v15, v12, 7, v15')
    a('v_lshrrev_b32 v10, 5, v1')
    a('v_bfe_u32 v11, v1, 2, 1')
    a('v_lshl_add_u32 v10, v10, 3, v11')
    a('v_mul_u32_u24 v10, %d, v10' % BLK)
    a('v_and_b32 v11, 3, v1')
    a('v_lshl_add_u32 v10, v11, 4, v10')
    a('v_bfe_u32 v11, v1, 4, 1')
    a('v_lshl_add_u32 v9, v11, 6, v10')
    a('s_lshl3_add_u32 s7, s3, s55')
    a('s_mul_i32 s57, s7, %d' % (2 * BLK))
    a('s_lshl_b32 s7, s4, 7')
    a('s_add_u32 s57, s57, s7')
    a('s_add_u32 s57, s57, 0x%x' % WS_H0)
    if c['touch'] in ('nw', 'wn', 'l'):
        a('v_not_b32 v75, s6')
        a('s_mov_b32 exec_lo, 0x00ff00ff'); a('s_mov_b32 exec_hi, 0x00ff00ff')
        for x in c['touch']:
            if x == 'w': a('buffer_store_dwordx4 v[72:75], v9, s[20:23], s57 offen')
            else: a('buffer_load_dwordx4 v[16:19], v9, s[20:23], s57 offen' + (' nt' if x == 'n' else c['tfl']))
        a('s_mov_b64 exec, -1')
    h0_gather()
    for k in range(8): a('v_mov_b32 v%d, 0' % (vC0 + k))
    a('v_mov_b32 v75, s6')
    NB = c['nb']
    GV = 217 if c['gall'] else 221
    gate_wait(0, GV)
    stamp(2)
    vs = Stream()
    def vload(n):
        if n > 0: a('s_xor_b32 s44, s44, 0x%x' % ((n ^ (n - 1)) << 12))
        a('buffer_load_dwordx4 %s, v%d, s[12:15], s44 offen nt' % (vr(vV + 4 * n), vKO))
        vs.seq.append(n)
        if n == 15:
            stamp(3)
            gate_open(4)
    for n in range(NB):
        if n == c['na']: gate_wait(1, GV)
        vs.throttle(n, DV)
        vload(n)
    stamp(4)
    gate_wait(5, 219)
    for z in range(8): a('ds_read_b128 %s, v15 offset:%d' % (vr(vP + 4 * z), L_P + 16 * z))
    a('s_waitcnt lgkmcnt(0)')
    stamp(6)
    nxt = NB
    if c['prio']: a('s_setprio %d' % c['prio'])
    def pand(k):
        for r in range(4): a('v_and_b32 v%d, v%d, v%d' % (vT + 4 * (k & 3) + r, vP + k, vM + r))
    pand(0); pand(1)
    for k in range(32):
        n = k >> 1
        if k == 26: a('ds_read_b32 v219, v217 offset:%d' % (L_GATE + 16 * 7))
        if k == 30:
            a('s_waitcnt lgkmcnt(0)')
            a.label('L_xf_chk')
            a('v_cmp_eq_u32 vcc, 0, v219')
            a('s_cbranch_vccnz L_xf_retry')
            a('v_cmp_ne_u32 vcc, 1, v219')
            a('s_cmp_eq_u64 vcc, 0')
            a('s_cselect_b32 s47, -1, 0')
            a('s_and_b32 s58, s47, 0x00ff00ff'); a('s_mov_b32 s59, s58')
            a('s_andn2_b32 s60, 0x00ff00ff, s47'); a('s_mov_b32 s61, s60')
        if k & 1 == 0:
            vs.wait(n)
            while nxt < 16 and nxt - 1 - n < c['pvd']:
                vload(nxt); nxt += 1
        mfma(vC1 if k & 1 else vC0, vT + 4 * (k & 3), vV + 4 * n, 1)
        if k < 30: pand(k + 2)
    stamp(7)
    for r in (3, 0, 1, 2): dpp('v_add_f32', vC0 + r, vC1 + r, vC0 + r, 'row_ror:8')
    pack24(72, vC0)
    store2(72, 9, 57)
    a('s_cmp_ge_u32 s4, 14')
    a('s_cbranch_scc1 L_ft0')

    a.label('L_wt')
    a('s_barrier')
    stamp(8)
    WT = 36
    def wsetup():
        a('v_lshrrev_b32 v10, 3, v1')
        a('v_lshlrev_b32 v10, 4, v10')
        a('ds_read_b128 %s, v10 offset:%d' % (vr(WT), L_WT))
        tr_addr()
        tr_read()
        a('v_mul_u32_u24 v13, 144, v11')
        a('v_lshl_add_u32 v13, s5, 4, v13')
        a('v_lshrrev_b32 v10, 2, v1')
        a('v_mul_u32_u24 v14, 144, v10')
        a('v_and_b32 v11, 3, v1')
        a('v_lshl_add_u32 v14, v11, 5, v14')
        a('v_and_b32 v11, 1, v10')
        a('v_lshrrev_b32 v10, 1, v10')
        a('v_lshlrev_b32 v10, 4, v10')
        a('v_lshl_add_u32 v12, v11, 7, v10')
        a('v_and_b32 v11, 1, v1')
        a('v_lshl_add_u32 v12, v11, 13, v12')
        a('v_bfe_u32 v11, v1, 1, 1')
        a('v_lshl_add_u32 v12, v11, 16, v12')
        a('s_lshl1_add_u32 s7, s3, s54')
        a('s_and_b32 s44, s7, 3')
        a('s_mul_i32 s44, s44, %d' % (HS - 4096))
        a('s_lshl_b32 s7, s7, 12')
        a('s_add_u32 s44, s44, s7')
        a('s_mul_i32 s45, s54, 7')
        a('s_sub_u32 s45, s4, s45')
        a('s_lshl_b32 s45, s45, 8')
        a('s_add_u32 s44, s44, s45')
        a('s_add_u32 s44, s44, 0x%x' % WS_H1)
        a('s_mov_b32 s58, 0x00010001'); a('s_mov_b32 s59, 0x00010001')
        a('s_mov_b32 s60, 0x%x' % ((0x33333333 if c['near'] else 0x11111111) * (5 if c['nc'] > 1 else 1))); a('s_mov_b32 s61, s60')
        a('s_add_u32 s45, s44, 0x20000')
        a('v_mov_b32 v75, s6')
    poll('L_p0', ['buffer_load_dwordx4 %s, v8, s[20:23], s56 offen offset:%d sc1' % (vr(G0 + 4 * k), 1024 * k) for k in range(4)],
         [G0 + 3, G1 + 3, G2 + 3, G3 + 3], between=wsetup, wait='vmcnt(0) lgkmcnt(0)')
    stamp(9)
    unpackn([G0, G1, G2, G3])
    for k in range(4):
        w, hi = WT + (k & 2), k & 1
        for p in (0, 2):
            if k == 0:
                a('v_pk_mul_f32 %s, %s, %s op_sel:[0,0] op_sel_hi:[1,0]' % (vr(G0 + p, 2), vr(G0 + p, 2), vr(w, 2)))
            else:
                a('v_pk_fma_f32 %s, %s, %s, %s op_sel:[0,%d,0] op_sel_hi:[1,%d,1]' % (vr(G0 + p, 2), vr(G0 + 4 * k + p, 2), vr(w, 2), vr(G0 + p, 2), hi, hi))
    scatter4(G0)
    vec32(vAX, G0, 0xf)
    for t in range(4): mfma(vD + 4 * t, vB + 4 * t, vAX, 0)
    a('s_mov_b64 exec, s[58:59]')
    for t in range(4): a('ds_write_b128 v13, %s offset:%d' % (vr(vD + 4 * t), L_RED + 576 * t))
    a('s_mov_b64 exec, -1')
    a('s_cmp_eq_u32 s5, 0')
    a('s_waitcnt lgkmcnt(0)')
    stamp(10)
    a('s_barrier')
    a('s_cbranch_scc0 L_d0')
    a('ds_read_b128 %s, v14 offset:%d' % (vr(G0), L_RED))
    a('ds_read_b128 %s, v14 offset:%d' % (vr(G1), L_RED + 16))
    a('s_waitcnt lgkmcnt(0)')
    pkadd(G0, G0, G1); pkadd(G0 + 2, G0 + 2, G1 + 2)
    for ctl in (QP1, QP2):
        for k in range(4): dpp('v_add_f32', G0 + k, G0 + k, G0 + k, ctl)
    a('s_mov_b64 exec, s[60:61]')
    pack24(72, G0)
    a('buffer_store_dwordx4 v[72:75], v12, s[20:23], s44 offen sc1')
    stamp(12)
    if c['nc'] > 2: a('buffer_store_dwordx4 v[72:75], v12, s[20:23], s45 offen sc1')
    if c['f28'] and not c['fx']:
        a('s_mov_b64 exec, -1')
        a('s_sub_u32 s3, s3, 1')
        a('s_cbranch_scc1 L_fin0')
    if c['dl']: a('s_barrier')
    leave()
    flush_retry()

    a.label('L_xf_retry')
    a('ds_read_b32 v219, v217 offset:%d' % (L_GATE + 16 * 7))
    a('s_waitcnt lgkmcnt(0)')
    a('s_branch L_xf_chk')

    a.label('L_ft0')
    a('s_cmp_ge_u32 s4, 16')
    a('s_cbranch_scc0 L_d1')
    a('s_sub_u32 s3, s3, 1')
    a('s_cbranch_scc0 L_fkv')
    a.label('L_fin')
    F28, FX = c['f28'], c['fx']
    LATE = c['h2late'] and not FX
    two = ['buffer_load_dwordx4 %s, v9, s[20:23], s44 offen sc1' % vr(G0),
           'buffer_load_dwordx4 %s, v9, s[20:23], s45 offen sc1' % vr(G1)]
    def wave_soff():
        h1_copy(63)
        a('s_lshl_b32 s7, s5, 16')
        a('s_sub_u32 s7, s7, 0x%x' % (WS_H1 - WS_H2))
        a('s_cmp_eq_u32 s5, 7')
        a('s_cselect_b32 s7, s63, s7')
        a('s_add_u32 s44, s44, s7')
    def is_fin():
        a('s_and_b32 s7, s4, %d' % (9 if F28 else 13))
        a('s_cmp_eq_u32 s7, %d' % (8 if F28 else 12))
    def f_leave():
        if FX:
            is_fin()
            a('s_cbranch_scc1 L_fin0')
        leave()
    if FX and c['hw'] in ('r', 'R'):
        a('s_cmp_ge_u32 s4, 30')
        leave_if('scc1')
        a('s_barrier')
        a('s_sub_u32 s54, s4, 16')
        line_voff(); line_soff(54); wave_soff()
        a('s_add_u32 s45, s44, 0x8000')
        if c['hw'] == 'R':
            a('s_cmp_eq_u32 s5, 7')
            a('s_cbranch_scc0 L_hw1')
            poll('L_p4', two, [G0 + 3, G1 + 3])
            a.label('L_hw1')
            a('s_barrier')
        a('s_mov_b32 exec_lo, 0x01010101'); a('s_mov_b32 exec_hi, 0x01010101')
        for z in range(2):
            a('buffer_load_dword v16, v9, s[20:23], s44 offen sc1')
            a('buffer_load_dword v16, v9, s[20:23], s45 offen sc1')
            if z == 0: a('v_add_u32 v9, 0x2000, v9')
    if FX:
        assert c['ep'] and not c['es']
        leave()
        flush_retry()
        a.label('L_fin0')
        a('s_mov_b64 exec, -1')
        a('s_barrier')
        a.label('L_fin1')
        a('s_bfe_u32 s4, s4, 0x%x' % (0x20001 if F28 else 0x10001))
        a('s_mul_i32 s4, s4, 7')
        a('s_add_u32 s4, s4, s3')
    else:
        a('s_cmp_ge_u32 s4, 30')
        leave_if('scc1')
        a('s_sub_u32 s4, s4, %d' % (2 if F28 else 16))
        a.label('L_fin0')
        a('s_barrier')
    OC = c['oc'] and c['near']
    assert not (OC and FX)
    S7 = c['s7'] and LATE and c['near']
    if c['near'] and not S7: side_load(True, OC)
    if F28:
        a('v_bfe_u32 v10, v1, 2, 2')
        a('v_mul_u32_u24 v11, %d, v10' % HS)
        a('v_lshrrev_b32 v10, 4, v1')
        a('v_lshl_add_u32 v11, v10, 14, v11')
        a('v_and_b32 v12, 0x30, v8')
        a('v_add_u32 v9, v11, v12')
        a('v_lshl_add_u32 v12, v10, 1, v12')
        a('v_and_b32 v13, 3, v1')
        a('v_lshl_add_u32 v14, v10, 2, v13')
        a('s_lshr_b32 s54, s4, 1')
    else:
        line_voff()
        a('v_and_b32 v13, 7, v1')
        a('v_lshl_add_u32 v14, v10, 3, v13')
        a('s_mov_b32 s54, s4')
    a('v_mul_u32_u24 v14, 48, v14')
    a('v_lshl_add_u32 v10, s5, 2, v14')
    line_soff(54)
    if F28:
        a('s_and_b32 s7, s4, 1')
        a('s_lshl_b32 s7, s7, 6')
        a('s_add_u32 s44, s44, s7')
        a('s_add_u32 s46, s46, s7')
    wave_soff()
    if not S7: side_add('L_sf')
    a('s_cmp_eq_u32 s5, 7')
    a('s_cbranch_scc1 L_fin7')
    if S7: a('v_mov_b32 v11, 0')
    if LATE: a('s_barrier')
    if S7:
        a('ds_read_b32 v11, v11 offset:%d' % L_STAT)
        a('s_add_u32 s45, s44, 0x8000')
        a('s_waitcnt lgkmcnt(0)')
        a('v_add_u32 v9, v9, v11')
    twof = lambda m: lambda x, y: ['buffer_load_dwordx4 %s, v9, s[20:23], s44 offen %s' % (vr(x), m),
                                   'buffer_load_dwordx4 %s, v9, s[20:23], s45 offen %s' % (vr(y), m)]
    SETS = [(G0, G1), (G2, G3), (80, 84), (88, 92), (96, 100), (104, 108)]
    onef = lambda x: ['buffer_load_dwordx4 %s, v9, s[20:23], s44 offen %s' % (vr(x), c['m2'])]
    def fin_red(x, y=None):
        if F28:
            unpackn([x]); scatter4(x)
            dpp('v_add_f32', x, x, x, 'row_ror:4')
        else:
            sum2scatter(x, y)
    def fin_tail(x, y=None):
        stamp(13)
        fin_red(x, y)
        a('ds_write_b32 v10, v%d offset:%d' % (x, L_RED))
        a('s_waitcnt lgkmcnt(0)')
        a('s_barrier')
        leave()
    fload, ftags = (onef(G0), [G0 + 3]) if F28 else (twof(c['m2'])(G0, G1), [G0 + 3, G1 + 3])
    if c['n2'] > 1:
        poll2('L_p2', onef if F28 else twof(c['m2']), [x[:2 - F28] for x in SETS[:c['n2']]], c['p2'], fin_tail)
    else:
        poll('L_p2', fload, ftags)
        fin_tail(G0, G1)
    side_retry('L_sf', OC)
    flush_retry()

    a.label('L_fin7')
    a('v_mov_b32 v11, 0')
    a('ds_write_b32 v10, v11 offset:%d' % L_RED)
    if S7:
        side_load(True, OC)
        side_add('L_sf')
        a('s_and_b32 s7, s44, 0x2000')
        a('v_mov_b32 v13, s7')
        a('ds_write_b32 v11, v13 offset:%d' % L_STAT)
    a('v_bfe_u32 v11, v1, 3, 1')
    a('v_lshl_add_u32 v14, v11, 4, v14')
    a('s_mov_b32 s58, 0x%x' % (0x000f000f if F28 else 0x00ff00ff)); a('s_mov_b32 s59, s58')
    a('buffer_load_ushort v15, v12, s[36:39], s46 offen' + nt('x'))
    if c['ot']: a('buffer_load_ushort v216, v12, s[40:43], s46 offen')
    if FX:
        a('s_barrier')
        a('s_barrier')
    poll('L_p3', fload, ftags, wait='vmcnt(0) lgkmcnt(0)')
    if LATE: a('s_barrier')
    stamp(12 if FX else 10)
    a('v_mov_b32 v10, s6')
    a('s_cmp_eq_u32 s4, 0')
    a('s_cselect_b64 exec, 1, 0')
    a('buffer_store_dword v10, off, s[20:23], 0')
    a('s_mov_b64 exec, -1')
    fin_red(G0, G1)
    a('v_lshlrev_b32 v15, 16, v15')
    rnd(G0, G0)
    a('v_add_f32 v15, v%d, v15' % G0)
    rnd(15, 15)
    a('s_waitcnt lgkmcnt(0)')
    a('s_barrier')
    a('ds_read_b128 %s, v14 offset:%d' % (vr(G0), L_RED))
    a('s_waitcnt lgkmcnt(0)')
    stamp(13)
    pkadd(G0, G0, G0 + 2)
    a('v_add_f32 v%d, v%d, v%d' % (G0, G0, G0 + 1))
    dpp('v_add_f32', G0, G0, G0, 'row_ror:8')
    rnd(G0, G0)
    a('v_add_f32 v%d, v%d, v15' % (G0, G0))
    a('v_cvt_pk_bf16_f32 v%d, v%d, v%d' % (G0, G0, G0))
    a('s_mov_b64 exec, s[58:59]')
    a('buffer_store_short v%d, v12, s[40:43], s46 offen' % G0)
    leave()
    flush_retry()

    a.label('L_ft')
    a('s_barrier')
    for i in range(8):
        a('buffer_load_dwordx4 v%d, s[24:27], s%d offen nt lds' % (42 if i >> 2 else 2, 8 + (i & 3)))
        if i < 7: a('s_add_u32 m0, m0, 0x400')
    if c['gf']:
        a('s_mov_b64 exec, 0x1111')
        a('buffer_load_dword v44, v13, s[20:23], s57 offen' + {'l': '', 's': ' sc1'}[c['gf']])
    a('s_mov_b64 exec, -1')
    stamp(8)
    a('ds_read_b32 v36, v217 offset:%d' % (L_GATE + 16 * 7))
    a('s_waitcnt lgkmcnt(0)')
    a('v_cmp_eq_u32 vcc, 1, v36')
    a('s_and_b64 s[58:59], vcc, 0xffff')
    a('s_andn2_b64 s[60:61], 0xffff, vcc')
    def packt():
        for k in range(3): a('v_perm_b32 v%d, v%d, v%d, s%d' % (72 + k, vFD + 4 * k, vFD + 12, sPK + k))
    for z in range(2):
        a('s_waitcnt vmcnt(%d)' % (4 - 4 * z + len(c['gf'])))
        if z:
            if not c['ep']: a('s_barrier')
            stamp(9)
        for t in range(4):
            for u in range(2):
                a('ds_read_b64_tr_b16 %s, v%d offset:%d' % (vr(vF + 16 * z + 4 * t + 2 * u, 2), 32 + t, L_T + 4096 * z + 512 * u))
        for t in range(4):
            a('s_waitcnt lgkmcnt(%d)' % (6 - 2 * t))
            mfma(vFD + 4 * t, vFA, vF + 16 * z + 4 * t, z)
    packt()
    store2(72, 13, 56)
    a('s_barrier')
    for z in range(2): a('ds_read_b128 %s, v38 offset:%d' % (vr(vFA + 4 * z), L_STAT + 64 * z))
    for z in range(2):
        a('s_waitcnt lgkmcnt(%d)' % (1 - z))
        for t in (3, 0, 1, 2): mfma(vFD + 4 * t, vFA + 4 * z, vF + 16 * z + 4 * t, z)
    a('s_mov_b64 exec, 0xffff')
    a('s_cbranch_scc1 L_fa4')
    h = list(a.hist)
    packt()
    a('buffer_store_dwordx4 v[72:75], v13, s[20:23], s57 offen')
    stamp(11)
    f_leave()
    a.label('L_fa4')
    a.hist = h
    packt()
    a('buffer_store_dwordx4 v[72:75], v13, s[20:23], s57 offen sc1')
    stamp(11)
    f_leave()

    a.label('L_fa5')
    a('s_or_b32 s7, s4, s5')
    a('s_bitcmp1_b32 s7, 0')
    if diag or c['es']: a('s_barrier')
    a('s_cbranch_scc0 L_fa6')
    if FX:
        is_fin()
        a('s_cbranch_scc1 L_fin1')
    if diag:
        if not c['ep']: a('s_barrier')
        a('s_barrier')
    leave()
    a.label('L_fa6')
    for r in range(8): a('v_mov_b32 v%d, 0x3f803f80' % (vFA + r))
    a('v_lshrrev_b32 v11, 4, v1')
    a('v_lshlrev_b32 v38, 4, v11')
    if c['sl']:
        a('v_mul_u32_u24 v13, %d, v1' % GXS)
        a('s_mul_i32 s46, s3, %d' % (16 * GXS))
        a('s_lshl3_add_u32 s46, s4, s46')
        a('s_add_u32 s46, s46, 0x%x' % (WS_GX + 2048 - 128))
        a('s_mov_b64 exec, 0xffff')
        a('buffer_load_dword v44, v13, s[20:23], s46 offen sc1')
        a('s_and_b32 s58, s47, 0xffff'); a('s_andn2_b32 s60, 0xffff, s47')
        a('s_mov_b32 s59, 0'); a('s_mov_b32 s61, 0')
    else:
        a('s_lshl_b32 s46, s3, 5')
        a('s_add_u32 s46, s46, s4')
        a('s_lshl_b32 s46, s46, 7')
        a('s_add_u32 s46, s46, 0x%x' % (WS_X + 4096 + 48))
        a('s_and_b64 s[58:59], s[58:59], 1')
        a('s_and_b64 s[60:61], s[60:61], 1')
    a('s_mov_b32 exec_lo, 0xfffdfffd'); a('s_mov_b32 exec_hi, 0xfffdfffd')
    if not c['ep']: a('s_barrier')
    a('s_barrier')
    for z in range(2): a('ds_read_b128 %s, v38 offset:%d' % (vr(vFA + 4 * z), L_STAT + 64 * z))
    a('s_mov_b64 exec, -1')
    for z in range(2):
        a('s_waitcnt lgkmcnt(%d)' % (1 - z))
        mfma(68 if c['sl'] else 72, vFA + 4 * z, vFA + 4 * z, z)
    if c['sl']:
        for k in range(2): a('v_mov_b32_dpp v%d, v%d row_newbcast:0 row_mask:0xf bank_mask:0xf' % (72 + k, 68 + k))
        store2(72, 13, 46)
    else:
        a('v_mov_b32 v75, s6')
        store2(72, 8, 46)
    stamp(11)
    f_leave()

    a.label('L_fkv')
    a('s_cmp_ge_u32 s5, 6')
    if not (diag or c['es']): a('s_barrier')
    a('s_cbranch_scc1 L_fa5')
    if diag and not c['es']: a('s_barrier')
    if c['near']: side_load(True)
    if c['es']: a('s_barrier')
    stamp(8)
    a('v_and_b32 v12, 7, v1')
    a('v_cmp_gt_u32 vcc, 7, v12')
    a('v_min_u32 v11, 6, v12')
    a('v_bfe_u32 v10, v1, 3, 2')
    a('v_mul_u32_u24 v10, %d, v10' % HS)
    a('v_lshl_add_u32 v10, v11, 4, v10')
    a('v_lshrrev_b32 v11, 5, v1')
    a('v_lshl_add_u32 v9, v11, 14, v10')
    a('v_lshrrev_b32 v11, 4, v1')
    a('v_lshl_add_u32 v37, s55, 2, v11')
    a('v_lshl_add_u32 v37, v37, 3, v12')
    a('v_lshlrev_b32 v37, 1, v37')
    a('s_and_b32 s7, s4, 14')
    a('s_add_u32 s7, s7, s55')
    a('s_mul_i32 s7, s7, 7')
    a('v_add_u32 v12, s7, v12')
    gran_row(12)
    a('v_add_lshl_u32 v12, v10, v11, 1')
    a('v_cndmask_b32 v12, 2.0, v12, vcc')
    a('v_cndmask_b32_e64 v14, 0, 1.0, vcc')
    xload = 'buffer_load_ushort v15, v12, s[36:39], 0 offen' + nt('x')
    if not c['es']: a(xload)
    h1_copy(44)
    a('s_lshl4_add_u32 s44, s7, s44')
    a('s_add_u32 s44, s44, 0x%x' % WS_H1)
    side_add('L_sd')
    if c['es']: a(xload)
    if not c['ep']: a('s_barrier')
    stamp(9)
    def xly():
        a('s_waitcnt vmcnt(2)')
        a('v_lshlrev_b32 v15, 16, v15')
    def f_tail(x, y):
        stamp(10)
        sum2scatter(x, y)
        rnd(x, x)
        a('v_fma_f32 v%d, v%d, v14, v15' % (x, x))
        a('v_cvt_pk_bf16_f32 v%d, v%d, v%d' % (x, x, x))
        a('ds_write_b16 v37, v%d offset:%d' % (x, L_STAT))
        a('s_waitcnt lgkmcnt(0)')
        a('s_barrier')
        f_leave()
    if c['n1'] > 1:
        poll2('L_p1', twof(c['m1']), SETS[:c['n1']], c['p1'], f_tail, first=xly)
    else:
        poll('L_p1', twof(c['m1'])(G0, G1), [G0 + 3, G1 + 3], between=xly)
        f_tail(G0, G1)
    side_retry('L_sd')
    flush_retry()

    a.label('L_d2')
    if diag and c['dl']: a('s_barrier')
    leave()
    a.label('L_d1')
    if not c['dl']: a('s_barrier')
    a('s_cmp_eq_u32 s3, 0')
    a('s_cbranch_scc1 L_d2')
    a.label('L_d0')
    a('s_sub_u32 s3, s3, 1')
    a('s_cbranch_scc1 %s' % ('L_fin0' if F28 and not FX else 'L_d2'))
    a('s_cmp_ge_u32 s5, 4')
    a('s_cbranch_scc0 L_d2')
    a('s_lshl4_add_u32 s54, s3, s4')
    a('v_lshrrev_b32 v12, 4, v1')
    a('v_mul_u32_u24 v10, %d, v12' % (16 * 896))
    a('v_and_b32 v11, 15, v1')
    a('v_lshl_add_u32 v11, s55, 4, v11')
    a('v_lshl_add_u32 v3, v11, 4, v10')
    a('v_cmp_gt_u32 vcc, 56, v11')
    a('s_and_b32 s7, s54, 0x7c')
    a('s_lshl1_add_u32 s7, s7, s7')
    a('s_add_u32 s7, s7, s54')
    a('v_cndmask_b32 v3, 2.0, v3, vcc')
    a('s_mul_i32 s16, s7, %d' % (4 * 896))
    a('v_and_b32 v10, 0x3c0, v8')
    a('v_add_u32 v43, v10, v8')
    a('v_and_b32 v10, 7, v1')
    a('v_lshlrev_b32 v40, %d, v10' % (4 if c['sl'] else 8))
    a('s_mul_i32 s56, s54, %d' % GXS)
    a('s_add_u32 s56, s56, 0x%x' % WS_GX)
    if c['sl']:
        a('s_add_u32 s45, s56, 2048')
    else:
        a('s_lshl_b32 s45, s3, 12')
        a('s_add_u32 s45, s45, 0x%x' % (WS_X + 4096 + 2048 + 48))
    if c['dl']: a('s_barrier')
    for t in range(4):
        a('buffer_load_dwordx4 %s, v3, s[32:35], s16 offen offset:%d nt' % (vr(vW + 4 * t), 896 * t))
    HWW = 1 if c['hw'] == 'w' else 0
    def dsetup():
        a('v_and_b32 v10, 0x70, v8')
        a('v_bfe_u32 v11, v1, 3, 1')
        a('v_lshl_add_u32 v10, v11, 8, v10')
        a('v_bfe_u32 v11, v1, 4, 1')
        a('v_lshl_add_u32 v10, v11, 7, v10')
        a('v_lshrrev_b32 v11, 5, v1')
        a('v_lshl_add_u32 v41, v11, 13, v10')
        a('s_and_b32 s57, s54, 3')
        a('s_mul_i32 s57, s57, %d' % (HS - 4096))
        a('s_lshl3_add_u32 s7, s54, s55')
        a('s_lshl_b32 s7, s7, 9')
        a('s_add_u32 s57, s57, s7')
        a('s_add_u32 s57, s57, 0x%x' % WS_H2)
        a('s_cmp_eq_u32 s55, 3')
        a('s_cselect_b32 s58, 0x00ff00ff, -1')
        a('s_mov_b32 s59, %s' % ('s58' if c['near'] else '0'))
        k0 = 2 * math.sqrt(2 / math.pi) * math.log2(math.e)
        a('v_mov_b32 v42, %s' % f32(-k0))
        a('s_mov_b32 s18, %s' % f32(1.0 / 448))
        a('s_mov_b32 s19, %s' % f32(-k0 * 0.044715))
        if HWW:
            a('v_not_b32 v71, s6')
            a('s_mov_b64 exec, s[58:59]')
            a('buffer_store_dwordx4 v[68:71], v41, s[20:23], s57 offen sc1')
            a('s_mov_b64 exec, -1')
        a('v_mov_b32 v75, s6')
    def drest():
        if c['dt']:
            for t in gload: a(t)
        if not c['dw']: dsetup()
        if diag:
            a('s_waitcnt vmcnt(%d)' % ((3 if c['dt'] else 1) + HWW))
            stamp(13)
    gload = ['buffer_load_dwordx4 %s, v43, s[20:23], s56 offen sc1' % vr(G0), 'buffer_load_dwordx4 v[36:39], v40, s[20:23], s45 offen sc1']
    if OC: a('s_load_dwordx2 s[12:13], s[20:21], 0x%x' % WS_C)
    if c['dw']:
        dsetup()
        a('s_waitcnt vmcnt(%d)' % (4 + HWW - c['dw']))
    poll('L_pc', ['buffer_load_dwordx4 %s, v43, s[20:23], s56 offen offset:64 sc1' % vr(G2)], [G2 + 3], between=drest, also=gload if c['dt'] else [])
    stamp(10)
    def red1(g):
        unpackn([g]); scatter4(g)
    def dmid():
        red1(G2)
        if OC:
            a('s_waitcnt lgkmcnt(0)')
            a('s_cmp_eq_u32 s13, s6')
            a('s_cselect_b32 s13, s12, -1')
            a('s_cselect_b32 s12, s12, 0')
            a('s_and_b32 s59, s59, s13')
            a('s_andn2_b32 s58, s58, s12')
    if c['dt']:
        poll('L_pg', [], [G0 + 3, 39], between=dmid, wait=None, extra=gload)
    else:
        poll('L_pg', gload, [G0 + 3, 39], between=dmid)
    stamp(11)
    V, CS, MU, E2, T = G0, G2, 37, 36, G1 + 2
    keep = a
    class Rec(list):
        def __call__(self, t): self.append(t)
    a = Rec(); red1(G0); red = a; a = keep
    for z in (4, 2, 1):
        dpp('v_add_f32', MU, MU, MU, 'row_ror:%d' % z)
        dpp('v_add_f32', E2, E2, E2, 'row_ror:%d' % z)
        a(red.pop(0))
    a('v_mul_f32 v%d, s18, v%d' % (MU, MU))
    a(red.pop(0))
    a('v_mul_f32 v%d, s18, v%d' % (E2, E2))
    a(red.pop(0))
    a('v_fma_f32 v%d, -v%d, v%d, v%d' % (E2, MU, MU, E2))
    rnd(MU, MU)
    a('v_max_f32 v%d, 0, v%d' % (E2, E2))
    a(red.pop(0))
    rnd(E2, E2)
    a(red.pop(0))
    a('v_add_f32 v%d, %s, v%d' % (E2, f32(1e-5), E2))
    a('v_mul_f32 v%d, v%d, v%d' % (CS, MU, CS))
    rnd(E2, E2)
    a('v_sqrt_f32 v%d, v%d' % (E2, E2))
    a(red.pop(0))
    assert not red
    rnd(E2, E2)
    a('v_rcp_f32 v%d, v%d' % (E2, E2))
    a('v_sub_f32 v%d, v%d, v%d' % (V, V, CS))
    a('v_mul_f32 v%d, v%d, v%d' % (V, V, E2))
    rnd(V, V)
    a('v_mul_f32 v%d, v%d, v%d' % (T, V, V))
    a('v_fmac_f32 v42, s19, v%d' % T)
    a('v_mul_f32 v%d, v42, v%d' % (T, V))
    a('v_exp_f32 v%d, v%d' % (T, T))
    a('v_add_f32 v%d, 1.0, v%d' % (T, T))
    a('v_rcp_f32 v%d, v%d' % (T, T))
    a('v_mul_f32 v%d, v%d, v%d' % (T, V, T))
    rnd(T, T)
    dpp('v_mul_f32', T, V, T, 'row_ror:4')
    a('v_cvt_pk_bf16_f32 v%d, v%d, v%d' % (T, T, T))
    for t in range(4):
        for r in range(4):
            dpp('v_and_b32', vT + 4 * t + r, T, vM + r, 'row_newbcast:%d' % t)
            if t > 0 and r == 1: mfma(vC0, vT + 4 * t - 4, vW + 4 * t - 4, t > 1)
    mfma(vC0, vT + 12, vW + 12, 1)
    a('s_mov_b64 exec, s[58:59]')
    pack24(72, vC0)
    a('buffer_store_dwordx4 v[72:75], v41, s[20:23], s57 offen sc1')
    stamp(12)
    leave()
    flush_retry()

    a.section('q')
    a.label('L_v0')
    far = 'L_v1' if c['wo_at'] == 0 else 'L_v'
    a('s_cmp_lg_u32 s31, 0')
    a('s_cbranch_scc1 L_qw')
    a('s_waitcnt lgkmcnt(0)')
    a('s_load_dword s6, s[20:21], 0')
    a('s_barrier')
    a('s_branch %s' % far)
    a.label('L_qw')
    vWQ, vXN = 16, 128
    srd(16, 448 * 8192)
    srd(36, 896)
    a('v_lshlrev_b32 v8, 4, v1')
    a('v_lshrrev_b32 v12, 3, v1')
    a('v_mul_u32_u24 v3, %d, v12' % (28 * 8192))
    a('v_and_b32 v10, 0x70, v8')
    a('v_add_u32 v3, v3, v10')
    a('s_bfe_u32 s54, s4, 0x30001')
    if c['split3']:
        a('s_cmp_eq_u32 s54, 3')
        a('s_cselect_b32 vcc_hi, 0, -1')
        a('s_cmp_ge_u32 s4, 16')
        a('s_cselect_b32 vcc_lo, -1, 0')
        a('s_cselect_b32 s54, s54, 3')
        a('s_lshl3_add_u32 s54, s3, s54')
        a('v_cndmask_b32 v3, 2.0, v3, vcc')
    else:
        a('s_lshl3_add_u32 s54, s3, s54')
        a('s_cmp_ge_u32 s4, 16')
        a('s_cselect_b32 s54, s54, s3')
    a('s_and_b32 s44, s4, 1')
    a('s_lshl_b32 s44, s44, 5')
    a('s_add_u32 s44, s44, s55')
    a('s_mul_i32 s45, s44, %d' % (7 * 64))
    a('s_add_u32 s45, s45, s54')
    a('s_lshl_b32 s45, s45, 7')
    a('s_movk_i32 s46, 0x2000')
    a('s_waitcnt lgkmcnt(0)')
    stamp(1)
    a('buffer_load_dwordx4 %s, v8, s[36:39], 0 offen' % vr(vA) + nt('x'))
    a('s_load_dword s6, s[20:21], 0')
    for n in range(7):
        a('buffer_load_dwordx4 %s, v3, s[16:19], s45 offen nt' % vr(vWQ + 4 * n))
        if n < 6: a('s_add_u32 s45, s45, s46')
    a('s_barrier')
    common(False)
    x, S1, S2 = vA + 8, vA + 4, vA + 5
    a('v_mov_b32 v%d, 0' % S1)
    a('v_mov_b32 v%d, 0' % S2)
    a('v_mov_b32 v%d, 0x3f803f80' % (vA + 6))
    a('v_mov_b32 v%d, %s' % (vA + 7, f32(1.0 / 448)))
    a('v_lshlrev_b32 v13, 5, v1')
    a('v_mul_u32_u24 v14, 112, v12')
    a('s_mul_i32 s7, s44, 28')
    a('s_add_u32 s7, s7, %d' % L_XN)
    a('v_add_u32 v14, s7, v14')
    a('v_lshl_add_u32 v15, s55, 3, v13')
    a('v_and_b32 v10, 3, v1')
    a('v_lshlrev_b32 v217, 2, v10')
    a('v_lshlrev_b32_e64 v221, 2, s55')
    a('v_mov_b32 v220, 1')
    a('v_and_b32 v10, 7, v1')
    a('v_lshlrev_b32 v10, 6, v10')
    a('v_bfe_u32 v11, v1, 4, 1')
    a('v_lshl_add_u32 v10, v11, 5, v10')
    a('v_lshrrev_b32 v11, 5, v1')
    a('v_lshl_add_u32 v9, v11, 4, v10')
    a('s_lshr_b32 s7, s54, 1')
    a('s_and_b32 s44, s4, 1')
    a('s_lshl1_add_u32 s7, s7, s44')
    a('s_and_b32 s45, s54, 1')
    a('s_lshl1_add_u32 s7, s7, s45')
    if c['split3']:
        a('s_lshl1_add_u32 s45, s3, s44')
        a('s_add_u32 s45, s45, 0x%x' % ((WS_QX - WS_Q) >> 9))
        a('s_cmp_ge_u32 s4, 16')
        a('s_cselect_b32 s7, s7, s45')
    a('s_lshl_b32 s57, s7, 9')
    a('s_add_u32 s57, s57, 0x%x' % WS_Q)
    a('s_lshl_b32 s7, s55, 1')
    a('s_lshl_b32 s58, 0x00030003, s7'); a('s_mov_b32 s59, s58')
    qx = 1 if c['qt'] else 0
    if qx:
        a('s_mov_b64 exec, s[58:59]')
        a('buffer_load_dword v216, v9, s[20:23], s57 offen ' + ('sc1' if c['qt'] == 'v' else 'nt'))
        a('s_mov_b64 exec, -1')
    a('s_waitcnt vmcnt(%d)' % (7 + qx))
    for k in range(4):
        a('v_dot2c_f32_bf16 v%d, v%d, v%d' % (S1, vA + k, vA + 6))
        a('v_dot2c_f32_bf16 v%d, v%d, v%d' % (S2, vA + k, vA + k))
    unp = []
    for k in range(4):
        unp.append('v_lshlrev_b32 v%d, 16, v%d' % (x + 2 * k, vA + k))
        unp.append('v_and_b32 v%d, 0xffff0000, v%d' % (x + 2 * k + 1, vA + k))
    a(unp.pop()); a(unp.pop())
    for ctl, m in ((QP1, FULL), (QP2, FULL), ('row_half_mirror', FULL), ('row_mirror', FULL),
                   ('row_bcast:15', 'row_mask:0xa bank_mask:0xf'), ('row_bcast:31', 'row_mask:0xc bank_mask:0xf')):
        dpp('v_add_f32', S1, S1, S1, ctl, m)
        dpp('v_add_f32', S2, S2, S2, ctl, m)
        a(unp.pop())
    a('v_readlane_b32 s62, v%d, 63' % S1)
    a('v_readlane_b32 s63, v%d, 63' % S2)
    a('v_mul_f32 v%d, s62, v%d' % (S1, vA + 7))
    a('v_mul_f32 v%d, s63, v%d' % (S2, vA + 7))
    a('v_fma_f32 v%d, -v%d, v%d, v%d' % (S2, S1, S1, S2))
    rnd(S1, S1)
    a('v_max_f32 v%d, 0, v%d' % (S2, S2))
    rnd(S2, S2)
    a('v_add_f32 v%d, %s, v%d' % (S2, f32(1e-5), S2))
    rnd(S2, S2)
    a('v_sqrt_f32 v%d, v%d' % (S2, S2))
    for k in range(8): a('v_sub_f32 v%d, v%d, v%d' % (x + k, x + k, S1))
    rnd(S2, S2)
    a('v_rcp_f32 v%d, v%d' % (S2, S2))
    for k in range(8): rnd(x + k, x + k)
    for k in range(8): a('v_mul_f32 v%d, v%d, v%d' % (x + k, x + k, S2))
    for k in range(8): a('v_cvt_pk_bf16_f32 v%d, v%d, v%d' % (x + k, x + k, x + k))
    a('ds_write_b128 v13, %s offset:%d' % (vr(x), L_XN))
    a('ds_write_b128 v13, %s offset:%d' % (vr(x + 4), L_XN + 16))
    a('s_waitcnt lgkmcnt(0)')
    for z in range(3): a('ds_read2_b32 %s, v14 offset0:%d offset1:%d' % (vr(vXN + 2 * z, 2), 2 * z, 2 * z + 1))
    a('ds_read_b32 v%d, v14 offset:24' % (vXN + 6))
    mktag()
    qc = vA + 16
    a('v_mov_b32 v%d, s6' % (vA + 22))
    a('v_mov_b32 v%d, s6' % (vA + 23))
    xpub(1)
    a('s_waitcnt lgkmcnt(0)')
    def qand(n):
        for r in range(4): a('v_and_b32 v%d, v%d, v%d' % (vA + 4 * (n & 1) + r, vXN + n, vM + r))
    qand(0)
    for n in range(7):
        if n < 6: qand(n + 1)
        a('s_waitcnt vmcnt(%d)' % (6 + qx - n))
        mfma(qc, vA + 4 * (n & 1), vWQ + 4 * n, n)
    for r in range(4): a('v_mov_b32_dpp v%d, v%d row_ror:8 row_mask:0xc bank_mask:0xf' % (qc + r, qc + r))
    a('v_permlane32_swap_b32 v%d, v%d' % (qc, qc + 2))
    a('v_permlane32_swap_b32 v%d, v%d' % (qc + 1, qc + 3))
    pkadd(qc, qc, qc + 2)
    a('ds_write_b64 v15, %s offset:%d' % (vr(qc, 2), L_T))
    gate_open(6)
    xpub(2)
    gate_wait(6, 217)
    a('ds_read_b128 %s, v13 offset:%d' % (vr(vA), L_T))
    a('ds_read_b128 %s, v13 offset:%d' % (vr(vA + 4), L_T + 16))
    a('s_waitcnt lgkmcnt(0)')
    stamp(5)
    pkadd(vA, vA, vA + 2); pkadd(vA + 4, vA + 4, vA + 6)
    pkadd(vA + 20, vA, vA + 4)
    a('s_mov_b64 exec, s[58:59]')
    a('buffer_store_dwordx4 %s, v9, s[20:23], s57 offen' % vr(vA + 20))
    a('s_add_u32 s57, s57, 0x%x' % (WS_QB - WS_Q))
    a('buffer_store_dwordx4 %s, v9, s[20:23], s57 offen sc1' % vr(vA + 20) + nt('s'))
    gate_open(8)
    a('s_mov_b64 exec, -1')
    a('s_branch L_v3')

    a.section('end')

    a.label('L_exit')
    if c['probe'] and c['probe'][0] == 'skew':
        _, gsel, mult = c['probe']
        a('s_waitcnt lgkmcnt(0)')
        a('s_cmp_eq_u32 s5, 0')
        a('s_cbranch_scc0 L_end')
        a('s_mov_b64 exec, -1')
        a('s_lshl_b32 s7, s3, 5')
        a('s_add_u32 s7, s7, s4')
        a('s_lshl_b32 s7, s7, 7')
        a('s_add_u32 s7, s7, 0x%x' % WS_ST)
        a('v_mov_b32 v16, s64')
        a('buffer_store_dword v16, off, s[20:23], s7 sc1')
        a('s_cmp_eq_u32 s2, 113')
        a('s_cbranch_scc0 L_end')
        a.label('L_spin0')
        a('s_sleep 4')
        a('s_memrealtime s[94:95]')
        a('s_waitcnt lgkmcnt(0)')
        a('s_sub_u32 s44, s94, s64')
        a('s_cmp_lt_u32 s44, 2000')
        a('s_cbranch_scc1 L_spin0')
        a('v_and_b32 v10, 31, v1')
        a('v_lshlrev_b32 v10, 7, v10')
        a('s_mov_b32 s7, 0x%x' % WS_ST)
        for g in range(8):
            a('buffer_load_dword v%d, v10, s[20:23], s7 offen sc1' % (16 + g))
            a('s_add_u32 s7, s7, 4096')
        a('s_waitcnt vmcnt(0)')
        for g in range(8):
            a('v_subrev_u32 v%d, s64, v%d' % (16 + g, 16 + g))
            allred32('v_min_i32', 16 + g, 30)
        a('v_mov_b32 v24, v16'); a('v_mov_b32 v25, v16')
        for g in range(1, 8):
            a('v_min_i32 v24, v24, v%d' % (16 + g))
            a('v_max_i32 v25, v25, v%d' % (16 + g))
        a('v_sub_u32 v26, v%d, v24' % (16 + gsel if gsel < 8 else 25))
        a('v_readfirstlane_b32 s7, v26')
        a('v_readfirstlane_b32 s45, v24')
        a('s_min_u32 s7, s7, 400')
        a('s_mul_i32 s7, s7, %d' % mult)
        a('s_add_u32 s7, s7, s45')
        a('s_add_u32 s7, s7, 3000')
        a.label('L_spin')
        a('s_sleep 4')
        a('s_memrealtime s[94:95]')
        a('s_waitcnt lgkmcnt(0)')
        a('s_sub_u32 s44, s94, s64')
        a('s_cmp_lt_i32 s44, s7')
        a('s_cbranch_scc1 L_spin')
    elif c['probe'] and c['probe'][0] == 'gmax':
        _, k, wmask, gsel, mult = c['probe']
        stamp(14)
        a('s_load_dwordx2 s[96:97], s[0:1], 80')
        a('s_mov_b64 exec, 1')
        a('s_and_b32 s3, s2, 7')
        a('s_lshl_b32 s7, 1, s5')
        a('s_and_b32 s7, s7, 0x%x' % wmask)
        a('s_waitcnt lgkmcnt(0)')
        a('s_cselect_b32 s7, s%d, 0' % (64 + 2 * k))
        a('v_mov_b32 v11, s7')
        a('v_lshlrev_b32_e64 v10, 2, s3')
        a.label('L_spin1')
        a('s_sleep 16')
        a('s_memrealtime s[94:95]')
        a('s_waitcnt lgkmcnt(0)')
        a('s_sub_u32 s44, s94, s64')
        a('s_cmp_lt_u32 s44, 1600')
        a('s_cbranch_scc1 L_spin1')
        a('s_cmp_eq_u32 s7, 0')
        a('s_cbranch_scc1 L_gm1')
        if gsel == 8: a('v_mov_b32 v10, 32')
        a('global_atomic_umax v10, v11, s[96:97] sc1')
        a.label('L_gm1')
        a('s_and_b32 s7, s5, 3')
        a('s_cbranch_scc1 L_end')
        a('v_not_b32 v11, s64')
        a('v_mov_b32 v10, 36')
        a('global_atomic_umax v10, v11, s[96:97] sc1')
        a('s_waitcnt vmcnt(0)')
        a('s_cmp_eq_u32 s5, 0')
        a('s_cbranch_scc0 L_end')
        a('s_cmp_eq_u32 s2, 113')
        a('s_cbranch_scc0 L_end')
        a.label('L_spin0')
        a('s_sleep 4')
        a('s_memrealtime s[94:95]')
        a('s_waitcnt lgkmcnt(0)')
        a('s_sub_u32 s44, s94, s64')
        a('s_cmp_lt_u32 s44, 5000')
        a('s_cbranch_scc1 L_spin0')
        a('v_mov_b32 v10, 0')
        a('global_load_dwordx4 v[20:23], v10, s[96:97] sc1')
        a('global_load_dwordx4 v[24:27], v10, s[96:97] offset:16 sc1')
        a('global_load_dwordx2 v[28:29], v10, s[96:97] offset:32 sc1')
        a('s_waitcnt vmcnt(0)')
        a('v_not_b32 v17, v29')
        for g in range(9): a('v_sub_u32 v%d, v%d, v17' % (20 + g, 20 + g))
        if isinstance(gsel, int):
            a('v_mov_b32 v16, v%d' % (20 + gsel))
        else:
            g0 = int(gsel[1:] or 0)
            oth = [20 + g for g in range(8) if g != g0 or gsel[0] in 'cd']
            a('v_mov_b32 v30, 0'); a('v_mov_b32 v31, 0')
            for r in oth:
                a('v_max_u32 v30, v30, v%d' % r)
                a('v_add_u32 v31, v31, v%d' % r)
            a('v_mul_u32_u24 v31, %d, v31' % (65536 // len(oth)))
            a('v_lshrrev_b32 v31, 16, v31')
            x, y = {'a': (20 + g0, 30), 'b': (20 + g0, 31), 'c': (30, 31), 'd': (31, 10), 'z': (31, 31)}[gsel[0]]
            a('v_sub_u32 v16, v%d, v%d' % (x, y))
            if gsel[0] != 'd': a('v_add_u32 v16, 300, v16')
        a('s_nop 1')
        a('v_readfirstlane_b32 s7, v16')
        a('v_readfirstlane_b32 s45, v17')
        a('s_min_u32 s7, s7, 2000')
        a('s_mul_i32 s7, s7, %d' % mult)
        a('s_add_u32 s7, s7, 1000')
        a.label('L_spin')
        a('s_sleep 4')
        a('s_memrealtime s[94:95]')
        a('s_waitcnt lgkmcnt(0)')
        a('s_sub_u32 s44, s94, s45')
        a('s_cmp_lt_u32 s44, s7')
        a('s_cbranch_scc1 L_spin')
    elif c['probe'] and c['probe'][0] == 'gdiff':
        _, ka, ma, kb, mb, mult = c['probe']
        stamp(14)
        a('s_load_dwordx2 s[96:97], s[0:1], 80')
        a('s_mov_b64 exec, 1')
        a('s_lshl_b32 s3, 1, s5')
        a.label('L_spin1')
        a('s_sleep 16')
        a('s_memrealtime s[94:95]')
        a('s_waitcnt lgkmcnt(0)')
        a('s_sub_u32 s44, s94, s64')
        a('s_cmp_lt_u32 s44, 1600')
        a('s_cbranch_scc1 L_spin1')
        a('s_not_b32 s65, s64')
        for i, (r, m) in enumerate(((64 + 2 * ka, ma), (64 + 2 * kb, mb), (65, 0x11))):
            a('s_and_b32 s7, s3, 0x%x' % m)
            a('s_cselect_b32 s7, s%d, 0' % r)
            a('s_cmp_eq_u32 s7, 0')
            a('s_cbranch_scc1 L_gd%d' % i)
            a('v_mov_b32 v10, %d' % (4 * i))
            a('v_mov_b32 v11, s7')
            a('global_atomic_umax v10, v11, s[96:97] sc1')
            a('s_waitcnt vmcnt(0)')
            a.label('L_gd%d' % i)
        a('s_cmp_eq_u32 s5, 0')
        a('s_cbranch_scc0 L_end')
        a('s_cmp_eq_u32 s2, 113')
        a('s_cbranch_scc0 L_end')
        a.label('L_spin0')
        a('s_sleep 4')
        a('s_memrealtime s[94:95]')
        a('s_waitcnt lgkmcnt(0)')
        a('s_sub_u32 s44, s94, s64')
        a('s_cmp_lt_u32 s44, 5000')
        a('s_cbranch_scc1 L_spin0')
        a('v_mov_b32 v10, 0')
        a('global_load_dwordx4 v[20:23], v10, s[96:97] sc1')
        a('s_waitcnt vmcnt(0)')
        a('v_not_b32 v17, v22')
        a('v_sub_u32 v16, v20, v%d' % (21 if mb else 17))
        a('s_nop 1')
        a('v_readfirstlane_b32 s7, v16')
        a('v_readfirstlane_b32 s45, v17')
        a('s_min_u32 s7, s7, 2000')
        a('s_mul_i32 s7, s7, %d' % mult)
        a('s_add_u32 s7, s7, 6000')
        a.label('L_spin')
        a('s_sleep 4')
        a('s_memrealtime s[94:95]')
        a('s_waitcnt lgkmcnt(0)')
        a('s_sub_u32 s44, s94, s45')
        a('s_cmp_lt_u32 s44, s7')
        a('s_cbranch_scc1 L_spin')
    elif c['probe'] and c['probe'][0] == 'dirty':
        _, nkb, sc, base = c['probe']
        a('s_mov_b64 exec, -1')
        a('s_lshl3_add_u32 s7, s2, s5')
        a('s_lshl_b32 s7, s7, 13')
        a('s_add_u32 s7, s7, 0x1000000')
        a('v_lshlrev_b32 v8, 4, v1')
        for k in range(nkb):
            a('buffer_store_dwordx4 v[16:19], v8, s[20:23], s7 offen' + sc)
            a('s_add_u32 s7, s7, 1024')
        a('s_waitcnt lgkmcnt(0)')
        a.label('L_spin')
        a('s_sleep 4')
        a('s_memrealtime s[94:95]')
        a('s_waitcnt lgkmcnt(0)')
        a('s_sub_u32 s44, s94, s64')
        a('s_cmp_lt_u32 s44, %d' % base)
        a('s_cbranch_scc1 L_spin')
    elif c['probe']:
        k, base, mult = c['probe']
        stamp(14)
        a('s_waitcnt lgkmcnt(0)')
        a('s_cmp_eq_u32 s%d, 0' % (64 + 2 * k))
        a('s_cbranch_scc1 L_end')
        a('s_sub_u32 s7, s%d, s64' % (64 + 2 * k))
        a('s_min_u32 s7, s7, 10000')
        a('s_mul_i32 s7, s7, %d' % mult)
        a('s_add_u32 s7, s7, %d' % base)
        a.label('L_spin')
        a('s_sleep 4')
        a('s_memrealtime s[94:95]')
        a('s_waitcnt lgkmcnt(0)')
        a('s_sub_u32 s44, s94, s64')
        a('s_cmp_lt_u32 s44, s7')
        a('s_cbranch_scc1 L_spin')
    elif diag:
        stamp(14)
        a('s_sleep 127')
        a('s_mov_b64 exec, 1')
        a('s_lshl3_add_u32 s7, s2, s5')
        a('s_lshl_b32 s7, s7, 6')
        a('s_add_u32 s7, s7, 0x%x' % WS_ST)
        a('s_waitcnt lgkmcnt(0)')
        for k in range(15): a('v_mov_b32 v%d, s%d' % (16 + k, 64 + 2 * k))
        a('s_add_u32 s47, s47, 2')
        a('v_mov_b32 v31, s47')
        for k in range(4): a('buffer_store_dwordx4 %s, off, s[20:23], s7 offset:%d' % (vr(16 + 4 * k), 16 * k))
    a.label('L_end')
    a('s_endpgm')

    ref = open(os.path.join(os.path.dirname(os.path.abspath(__file__)), 'header.txt')).read()
    head = ref + '; @launch grid=(256,1,1) block=(512,1,1) lds=%d\n' % LDS_BYTES
    head += '.amdgcn_target "amdgcn-amd-amdhsa--gfx950"\n.text\n.globl {N}_kernel\n.p2align %d\n.p2align 8\n.type {N}_kernel,@function\n{N}_kernel:\n'.replace('{N}', NAME) % c['align']
    foot = """.section .rodata,"a"
.p2align 6
.amdhsa_kernel {N}_kernel
  .amdhsa_next_free_vgpr 224
  .amdhsa_next_free_sgpr 102
  .amdhsa_accum_offset 224
  .amdhsa_group_segment_fixed_size 0
  .amdhsa_kernarg_size 96
  .amdhsa_float_denorm_mode_32 3
  .amdhsa_user_sgpr_count 2
  .amdhsa_user_sgpr_kernarg_segment_ptr 1
  .amdhsa_system_sgpr_workgroup_id_x 1
.end_amdhsa_kernel
""".replace('{N}', NAME)
    return head + a.text(('main', 'q', 'k', 'v', 'end')) + foot

if __name__ == '__main__':
    out = sys.argv[1] if len(sys.argv) > 1 else 'cdna_kernels/%s.s' % NAME
    kw = eval('dict(%s)' % sys.argv[2]) if len(sys.argv) > 2 else {}
    open(out, 'w').write(gen(**kw))
```

```python
import sys, os, struct, math
sys.path.insert(0, os.path.dirname(os.path.abspath(__file__)))
from emit import Asm

NAME = 'sequential_preLN__sliding_block_cached__geglu_ffn__decode'

WS_X = 0x4000
WS_Q = 0x180000
WS_QX = 0x1e0000
BLK = 4096 + 128
WS_H0 = 0x20000
GXS = 2048 + 128
WS_QB = 0x190000
WS_XB = 0xC000
WS_GX = 0xA4000
HS = 1920
WS_H1 = 0x1a0000
WS_H2 = 0x110000
WS_R = 0xC8000
WS_C = 0x1000
WS_ST = 0x200000

L_QL = 0
L_S = 1024
L_P = 2048
L_XN = 6400
L_WT = 3200
L_GATE = 8448
L_STAT = 8704
L_RED = 9728
L_T = 14848
LDS_BYTES = L_T + 8 * 4096

SPIN = 20000

def f32(x):
    return '0x%08x' % struct.unpack('<I', struct.pack('<f', x))[0]

def vr(a, n=4):
    return 'v[%d:%d]' % (a, a + n - 1)

DEF = dict(depth=6, dv=0, gq=16, ga=16, na=16, nb=16, pvd=6, dx=0, stamps=None, rs=1, rg=0, touch='nw', gxt=0, h2late=1, nts='q', ot=1,
           force_sc1=False, probe=None, wo_at=4, qdual=24, ldual=40, gall=1, deep0=14, deep=28, skipz=1, split3=1, tfl='', b1=1, qh=0, pf=True, qt='', prio=0, align=12, near=1, pk=2, sdn=12, swap=1, dt=0, dl=1, gf='s', dw=1, ep=0, es=0, sl=1, p1=0, p2=0, n1=1, n2=2, m1='sc1', m2='sc1', f28=0, fx=0, hw='', nc=1, oc=0, s7=1, ws1=0, eg=0, en=1, dd=0, h1w=0, qb=2, xb=2, qn=64, fl=0, dxc='ge', wog=15, dxk=1, dxv=1)

def gen(**kw):
    c = dict(DEF); c.update(kw)
    a = Asm()
    D = c['depth']
    DV = c['dv'] or D
    DX = c['dx']
    diag = bool(c['stamps'])
    def nt(k):
        return ' nt' if k in c['nts'] else ''
    def stamp(k):
        if diag: a('%s s[%d:%d]' % (c['stamps'], 64 + 2 * k, 65 + 2 * k))
    def leave():
        a('s_branch L_exit' if diag else 's_endpgm')
    nlab = [0]
    def leave_if(cond):
        if diag:
            a('s_cbranch_%s L_exit' % cond)
        else:
            nlab[0] += 1
            a('s_cbranch_%s L_stay%d' % ('scc1' if cond == 'scc0' else 'scc0', nlab[0]))
            h = list(a.hist)
            a('s_endpgm')
            a.hist = h
            a.label('L_stay%d' % nlab[0])
    def srd(base, size):
        a('s_mov_b32 s%d, 0x%x' % (base + 2, size))
        a('s_mov_b32 s%d, 0x20000' % (base + 3))
    def mktag():
        a('s_mul_i32 s6, s6, 0x9e3779b1')
        a('s_add_u32 s6, s6, 0x7f4a7c15')
    def rnd(d, s):
        a('v_cvt_pk_bf16_f32 v%d, 0, v%d' % (d, s))
    QP1, QP2 = 'quad_perm:[1,0,3,2]', 'quad_perm:[2,3,0,1]'
    FULL = 'row_mask:0xf bank_mask:0xf'
    def dpp(op, d, s0, s1, ctl, mask=FULL):
        a('%s_dpp v%d, v%d, v%d %s %s' % (op, d, s0, s1, ctl, mask))
    def mfma(d, x, y, acc):
        a('v_mfma_f32_16x16x32_bf16 %s, %s, %s, %s' % (vr(d), vr(x), vr(y), vr(d) if acc else '0'))
    def pkadd(d, x, y):
        a('v_pk_add_f32 %s, %s, %s' % (vr(d, 2), vr(x, 2), vr(y, 2)))
    def masks():
        a('v_and_b32 v10, 1, v1')
        a('v_lshlrev_b32 v10, 4, v10')
        a('s_mov_b32 s7, 0xffff')
        a('v_lshlrev_b32_e64 v10, v10, s7')
        a('v_bfe_u32 v11, v1, 1, 2')
        for r in range(4):
            a('v_cmp_eq_u32 vcc, %d, v11' % r)
            a('v_cndmask_b32 v%d, 0, v10, vcc' % (vM + r))
    def pack24(d, s):
        for k in range(3):
            a('v_perm_b32 v%d, v%d, v%d, s%d' % (d + k, s + k, s + 3, sPK + k))
    def unpackn(gs):
        for g in gs: a('v_perm_b32 v%d, v%d, v%d, s%d' % (g + 3, g + 1, g, sUP))
        for g in gs: a('v_perm_b32 v%d, v%d, v%d, s%d' % (g + 3, g + 2, g + 3, sUP + 1))
    def scatter4(g):
        a('v_permlane32_swap_b32 v%d, v%d' % (g, g + 2))
        a('v_permlane32_swap_b32 v%d, v%d' % (g + 1, g + 3))
        pkadd(g, g, g + 2)
        a('v_permlane16_swap_b32 v%d, v%d' % (g, g + 1))
        a('v_add_f32 v%d, v%d, v%d' % (g, g, g + 1))
        dpp('v_add_f32', g, g, g, 'row_ror:8')
    def sum2scatter(x=16, y=20):
        unpackn([x, y])
        pkadd(x, x, y); pkadd(x + 2, x + 2, y + 2)
        scatter4(x)
    def vec32(d, s, banks):
        rnd(s + 1, s)
        a('v_cvt_pk_bf16_f32 v%d, v%d, 0' % (s, s))
        dpp('v_or_b32', s, s + 1, s, 'quad_perm:[1,1,3,3]')
        for k in range(4):
            a('v_mov_b32_dpp v%d, v%d row_newbcast:%d row_mask:0xf bank_mask:0x%x' % (d + k, s, 2 * k, banks))
    retry = []
    def poll(name, loads, tags, between=None, wait='vmcnt(0)', alt=None, half=False, extra=[], also=[]):
        for t in loads[:-1]: a(t)
        if half: a('s_mov_b32 exec_hi, 0')
        if loads: a(loads[-1])
        if half: a('s_mov_b32 exec_hi, -1')
        if between: between()
        a('s_mov_b32 s7, 0')
        if wait: a('s_waitcnt ' + wait)
        a.label(name + '_chk')
        a('v_cmp_ne_u32 vcc, s6, v%d' % tags[0])
        if len(tags) > 1:
            for i, t in enumerate(tags[1:]):
                a('v_cmp_ne_u32_e64 s[%d:%d], s6, v%d' % (96 + 2 * i, 97 + 2 * i, t))
            if half: a('s_and_b32 s%d, s%d, 0' % (93 + 2 * len(tags), 93 + 2 * len(tags)))
            for i, t in enumerate(tags[1:]):
                a('s_or_b64 s[62:63], %s, s[%d:%d]' % ('s[62:63]' if i else 'vcc', 96 + 2 * i, 97 + 2 * i))
            a('s_cbranch_scc1 %s_retry' % name)
        else:
            a('s_cbranch_vccnz %s_retry' % name)
        a.label(name + '_ok')
        retry.append((name, loads + extra, alt, also))
    def poll2(name, load, sets, gap, tail, first=None):
        n = len(sets)
        for i in range(n - 1):
            for t in load(*sets[i]): a(t)
            if first and i == 0: first()
            if gap: a('s_sleep %d' % gap)
        a('s_mov_b32 s7, 0')
        a('s_mov_b64 vcc, -1')
        m = len(sets[0])
        if m > 1: a('s_mov_b64 s[96:97], -1')
        a.label(name + '_loop')
        for i in range(n):
            l = load(*sets[i - 1])
            a('s_or_b64 exec, vcc, 1')
            a(l[0])
            if m > 1:
                a('s_or_b64 exec, s[96:97], 1')
                a(l[1])
            a('s_mov_b64 exec, -1')
            if gap: a('s_sleep %d' % gap)
            a('s_waitcnt vmcnt(%d)' % (m * n - m))
            a('v_cmp_ne_u32 vcc, s6, v%d' % (sets[i][0] + 3))
            if m > 1:
                a('v_cmp_ne_u32_e64 s[96:97], s6, v%d' % (sets[i][1] + 3))
                a('s_or_b64 s[62:63], vcc, s[96:97]')
                a('s_cbranch_scc0 %s_ok%d' % (name, i))
            else:
                a('s_cbranch_vccz %s_ok%d' % (name, i))
        a('s_add_u32 s7, s7, 1')
        a('s_cmp_ge_u32 s7, %d' % SPIN)
        a('s_cbranch_scc0 %s_loop' % name)
        for i in reversed(range(n)):
            a.label('%s_ok%d' % (name, i))
            tail(*sets[i])
    def flush_retry():
        for name, loads, alt, also in retry:
            a.label(name + '_retry')
            if alt:
                a('s_cmp_ge_u32 s7, %d' % alt[0])
                a('s_cselect_b32 s62, s%d, 0' % alt[2])
                a('s_xor_b32 s%d, s%d, s62' % (alt[1], alt[1]))
            for i, t in enumerate(loads):
                a('s_mov_b64 exec, %s' % ('s[%d:%d]' % (94 + 2 * i, 95 + 2 * i) if i else 'vcc'))
                skip = c['skipz'] and len(loads) > 2
                if skip: a('s_cbranch_execz %s_z%d' % (name, i))
                a(t)
                if skip: a.label('%s_z%d' % (name, i))
            a('s_mov_b64 exec, -1')
            for t in also: a(t)
            a('s_add_u32 s7, s7, 1')
            a('s_cmp_ge_u32 s7, %d' % SPIN)
            a('s_waitcnt vmcnt(0)')
            a('s_cbranch_scc0 %s_chk' % name)
            a('s_branch %s_ok' % name)
        del retry[:]
    def common(x=True):
        if x: srd(36, 896)
        a('s_load_dwordx2 s[24:25], s[0:1], 48')
        a('s_load_dwordx2 s[28:29], s[0:1], 56')
        a('s_load_dwordx2 s[32:33], s[0:1], 64')
        a('s_load_dwordx2 s[40:41], s[0:1], 72')
        srd(20, 1 << 28)
        srd(24, 448 * 3584)
        srd(32, 1792 * 896)
        srd(40, 896)
        for k in range(3):
            a('s_mov_b32 s%d, 0x0706050%d' % (sPK + k, 1 + k))
        a('s_mov_b32 s%d, 0x0c04000c' % sUP)
        a('s_mov_b32 s%d, 0x04020100' % (sUP + 1))
        if DX:
            a('s_cmp_eq_u32 s3, 0')
            a('s_cselect_b32 s30, %d, %d' % (c['deep0'], c['deep']))
            a('s_cmp_%s_u32 s4, s30' % c['dxc'])
            a('s_cselect_b32 s30, 1, 0')
        masks()
        a('v_lshlrev_b32 v8, 4, v1')
    def gate_open(k):
        a('ds_write_b32 v221, v220 offset:%d' % (L_GATE + 16 * k))
    def gate_wait(k, vaddr):
        nlab[0] += 1
        if vaddr == 219: a('v_mov_b32 v219, 0')
        a.label('L_gate%d' % nlab[0])
        a('ds_read_b32 v219, v%d offset:%d' % (vaddr, L_GATE + 16 * k))
        a('s_waitcnt lgkmcnt(0)')
        a('v_cmp_ne_u32 vcc, 1, v219')
        a('s_cbranch_vccnz L_gate%d' % nlab[0])
    def store2(data, voff, soff, m=58):
        a('s_mov_b64 exec, s[%d:%d]' % (m, m + 1))
        a('buffer_store_dwordx4 %s, v%d, s[20:23], s%d offen' % (vr(data), voff, soff))
        a('s_mov_b64 exec, s[%d:%d]' % (m + 2, m + 3))
        a('buffer_store_dwordx4 %s, v%d, s[20:23], s%d offen sc1' % (vr(data), voff, soff))
        a('s_mov_b64 exec, -1')
    def dma_voff(rowexpr_pitch, d=2):
        a('v_bfe_u32 v11, v1, 3, 2')
        a('v_lshlrev_b32 v11, 1, v11')
        a('v_xor_b32 v11, v11, v1')
        a('v_and_b32 v11, 7, v11')
        a('v_mul_u32_u24 v10, %d, v10' % rowexpr_pitch)
        a('v_lshl_add_u32 v%d, v11, 4, v10' % d)
    def tr_addr(sh=12):
        a('v_bfe_u32 v10, v1, 2, 2')
        a('v_mul_u32_u24 v10, 160, v10')
        a('v_and_b32 v11, 3, v1')
        a('v_lshl_add_u32 v10, v11, 3, v10')
        a('v_lshrrev_b32 v11, 4, v1')
        a('v_lshl_add_u32 v10, v11, 10, v10')
        a('v_lshl_add_u32 v32, s5, %d, v10' % sh)
        for t in range(1, 4): a('v_xor_b32 v%d, %d, v32' % (32 + t, 32 * t))
    def tr_read():
        for t in range(4):
            for u in range(2):
                a('ds_read_b64_tr_b16 %s, v%d offset:%d' % (vr(vB + 4 * t + 2 * u, 2), 32 + t, L_T + 512 * u))
    def gran_row(e):
        a('v_and_b32 v10, 0x77, v%d' % e)
        a('v_and_b32 v3, 7, v%d' % e)
        a('v_add_u32 v10, v10, v3')
        a('v_bfe_u32 v3, v%d, 3, 1' % e)
        a('v_add_lshl_u32 v10, v10, v3, 2')
    def h1_copy(d):
        a('s_and_b32 s%d, s2, %d' % (d, c['nc'] - 1))
        a('s_lshl_b32 s%d, s%d, 16' % (d, d))
    def line_voff():
        a('v_bfe_u32 v10, v1, 3, 2')
        a('v_mul_u32_u24 v10, %d, v10' % HS)
        a('v_lshrrev_b32 v11, 5, v1')
        a('v_lshl_add_u32 v10, v11, 14, v10')
        a('v_and_b32 v11, 0x70, v8')
        a('v_add_u32 v9, v10, v11')
        a('v_lshrrev_b32 v10, 4, v1')
        a('v_lshl_add_u32 v12, v10, 1, v11')
    def line_soff(sl):
        a('s_lshl_b32 s44, s%d, 7' % sl)
        a('s_add_u32 s44, s44, 0x%x' % WS_H1)
        a('s_lshr_b32 s46, s%d, 1' % sl)
        a('s_lshl_b32 s46, s46, 7')
        a('s_and_b32 s7, s%d, 1' % sl)
        a('s_lshl3_add_u32 s46, s7, s46')
    def softmax_head(r):
        mx, t1, ls = r + 4, r + 5, r + 6
        a('v_max3_f32 v%d, v%d, v%d, v%d' % (mx, r, r + 1, r + 2))
        a('v_max_f32 v%d, v%d, v%d' % (mx, mx, r + 3))
        allred32('v_max_f32', mx, t1)
        a('v_mul_f32 v%d, s53, v%d' % (mx, mx))
        for k in range(4): a('v_fma_f32 v%d, v%d, s53, -v%d' % (r + k, r + k, mx))
        for k in range(4): a('v_exp_f32 v%d, v%d' % (r + k, r + k))
        a('v_add_f32 v%d, v%d, v%d' % (ls, r, r + 1))
        a('v_add_f32 v%d, v%d, v%d' % (t1, r + 2, r + 3))
        a('v_add_f32 v%d, v%d, v%d' % (ls, ls, t1))
        allred32('v_add_f32', ls, t1)
    def allred32(op, r, t1):
        for ctl in (QP1, QP2, 'row_half_mirror', 'row_mirror'): dpp(op, r, r, r, ctl)
        a('v_mov_b32 v%d, v%d' % (t1, r))
        a('v_permlane16_swap_b32 v%d, v%d' % (r, t1))
        a('%s v%d, v%d, v%d' % (op, r, r, t1))

    vM = 4
    vKO = 2
    vK, vV, vQ, vW = 16, 80, 144, 176
    vA = 192
    vP = 16
    vT = 48
    vC0, vC1 = 64, 68
    G0, G1, G2, G3 = 16, 20, 24, 28
    vB, vAX, vD = 80, 96, 100
    sPK, sUP = 48, 51
    SC = f32(math.log2(math.e) / 16)

    def wo_setup():
        a('s_load_dwordx2 s[16:17], s[0:1], 32')
        srd(16, 448 * 8192)
        a('v_bfe_u32 v10, v1, 3, 2')
        a('v_lshrrev_b32 v11, 5, v1')
        a('v_lshl_add_u32 v10, v10, 1, v11')
        dma_voff(4 * 896)
        a('s_cmp_ge_u32 s4, 7')
        a('s_cselect_b32 s54, 1, 0')
        a('s_lshl1_add_u32 s7, s3, s54')
        a('s_lshl_b32 s7, s7, 8')
        a('s_add_u32 s7, s7, s55')
        a('s_sub_u32 s7, s7, s54')
        a('s_mul_i32 s7, s7, 7')
        a('s_add_u32 s7, s7, s4')
        a('s_lshl_b32 s10, s7, 7')
        a('s_lshl_b32 s7, s55, 10')
        a('s_add_u32 m0, s7, %d' % L_T)
        a('s_movk_i32 s11, %d' % (32 * 896))
    def wo_issue():
        for i in range(8):
            a('buffer_load_dwordx4 v2, s[16:19], s10 offen nt lds')
            if i < 7:
                a('s_add_u32 m0, m0, 0x1000')
                a('s_add_u32 s10, s10, s11')
    def wo_issue_if():
        nlab[0] += 1
        a('s_cmp_ge_u32 s4, 14')
        a('s_cbranch_scc1 L_nowo%d' % nlab[0])
        wo_issue()
        a.label('L_nowo%d' % nlab[0])
    def kv_addr():
        a('v_and_b32 v10, 7, v1')
        a('v_lshrrev_b32 v11, 3, v1')
        a('v_lshlrev_b32 v10, 4, v10')
        a('v_lshl_add_u32 v%d, v11, 9, v10' % vKO)
        a('s_lshl_b32 s7, s3, 7')
        a('s_add_u32 s7, s7, s4')
        a('s_add_u32 s7, s7, 96')
        a('s_lshl_b32 s44, s7, 4')
        if c['rs'] == 1 and not c['rg']:
            a('s_and_b32 s7, s4, 15')
        else:
            a('s_mul_i32 s7, s4, %d' % c['rs'])
            a('s_mul_i32 s62, s3, %d' % c['rg'])
            a('s_add_u32 s7, s7, s62')
            a('s_and_b32 s7, s7, 15')
        a('s_or_b32 s44, s44, s7')
    def h0_gather():
        a('s_cmp_ge_u32 s4, 7')
        a('s_cselect_b32 s54, 1, 0')
        a('s_lshl1_add_u32 s7, s3, s54')
        a('s_lshl3_add_u32 s56, s7, s5')
        a('s_mul_i32 s56, s56, %d' % BLK)
        a('s_add_u32 s56, s56, 0x%x' % WS_H0)

    def probe_addr():
        a('s_lshr_b32 s98, s2, 5')
        a('s_lshl_b32 s98, s98, 3')
        a('s_and_b32 s7, s55, 2')
        a('s_lshl1_add_u32 s98, s7, s98')
        a('s_and_b32 s7, s55, 1')
        a('s_add_u32 s98, s98, s7')
        a('s_lshl_b32 s98, s98, 5')
        a('s_and_b32 s7, s2, 31')
        a('s_add_u32 s98, s98, s7')
        a('s_lshl_b32 s98, s98, 7')
        a('s_add_u32 s98, s98, 0x%x' % WS_R)
    def probe(n):
        probe_addr()
        a('s_and_b32 s7, s55, 1')
        a('v_xor_b32 v10, s7, v1')
        a('v_lshlrev_b32 v10, 2, v10')
        a('s_lshl_b32 s7, s7, 13')
        a('s_xor_b32 s98, s98, s7')
        a('s_xor_b32 s99, s98, 0x2000')
        a('s_mov_b64 s[12:13], 0')
        a('s_mov_b32 s96, 0')
        a('s_buffer_load_dword s62, s[20:23], s98 glc')
        a('s_buffer_load_dword s63, s[20:23], s99 glc')
        a('s_waitcnt lgkmcnt(0)')
        a.label('L_probe')
        a('s_memtime s[14:15]')
        a('s_buffer_load_dword s7, s[20:23], s98 glc')
        a('s_waitcnt lgkmcnt(0)')
        a('s_memtime s[100:101]')
        a('s_buffer_load_dword s7, s[20:23], s99 glc')
        a('s_waitcnt lgkmcnt(0)')
        a('s_memtime s[62:63]')
        a('s_sub_u32 s14, s14, s100')
        a('s_max_u32 s12, s12, s14')
        a('s_add_u32 s96, s96, 1')
        a('s_waitcnt lgkmcnt(0)')
        a('s_sub_u32 s100, s100, s62')
        a('s_max_u32 s13, s13, s100')
        a('s_cmp_lt_u32 s96, %d' % n)
        a('s_cbranch_scc1 L_probe')
        a('v_mov_b32 v11, s12')
        a('v_writelane_b32 v11, s13, 1')
        a('s_mov_b64 exec, 3')
        a('ds_max_u32 v10, v11 offset:%d' % (L_GATE + 16 * 9))
        a('s_mov_b64 exec, -1')
    def side_load(first, fin=False):
        if first:
            if fin:
                a('s_mov_b32 s45, 0x%x' % WS_C)
            else:
                a('v_lshlrev_b32 v217, 7, v1')
                a('s_lshl_b32 s45, s3, 12')
                a('s_add_u32 s45, s45, 0x%x' % (WS_X + 4096))
            a('s_mov_b32 s62, 0')
        a('s_mov_b64 exec, 3')
        if fin: a('buffer_load_dwordx2 v[218:219], off, s[20:23], s45 sc1')
        else: a('buffer_load_dwordx2 v[218:219], v217, s[20:23], s45 offen offset:%d sc1' % (14 * 128 + 32))
        a('s_mov_b64 exec, -1')
    def side_add(name):
        if c['near']:
            a.label(name + '_wait')
            a('s_waitcnt vmcnt(0)')
            a('v_cmp_eq_u32 vcc, s6, v219')
            a('s_and_b32 s7, vcc_lo, 3')
            a('s_cbranch_scc0 %s_retry' % name)
            a('s_ff1_i32_b32 s7, s7')
            a('v_readlane_b32 s7, v218, s7')
            a('s_and_b32 s7, s7, 0x2000')
            a('s_add_u32 s44, s44, s7')
            a.label(name + '_ok')
            if diag: a('s_add_u32 s47, s7, 0x100')
        else:
            a('s_waitcnt vmcnt(0)')
        a('s_add_u32 s45, s44, 0x8000')
    def side_retry(name, fin=False):
        if c['near']:
            a.label(name + '_retry')
            a('s_add_u32 s62, s62, 1')
            a('s_cmp_ge_u32 s62, %d' % (SPIN if fin else c['sdn']))
            a('s_cbranch_scc1 %s_ok' % name)
            side_load(False, fin)
            a('s_branch %s_wait' % name)
    def xpub(part):
        if part & 1:
            a('s_lshl_b32 s7, s3, 5')
            a('s_add_u32 s7, s7, s4')
            a('s_lshl_b32 s7, s7, 7')
            a('s_add_u32 s47, s7, 0x%x' % WS_X)
            a('s_getreg_b32 s7, hwreg(HW_REG_XCC_ID, 0, 4)')
            a('v_mov_b32 v222, s7')
            a('v_mov_b32 v223, s6')
        if part & 2:
            nlab[0] += 1
            a('s_cmp_eq_u32 s5, 6')
            a('s_cbranch_scc0 L_xp%d' % nlab[0])
            a('s_mov_b64 exec, 1')
            a('buffer_store_dwordx2 v[222:223], off, s[20:23], s47')
            a('s_mov_b64 exec, -1')
            a.label('L_xp%d' % nlab[0])

    if diag:
        for k in range(1, 15): a('s_mov_b32 s%d, 0' % (64 + 2 * k))
    stamp(0)
    a('s_load_dwordx2 s[8:9], s[0:1], 8')
    a('s_load_dwordx2 s[36:37], s[0:1], 0')
    a('s_load_dwordx2 s[16:17], s[0:1], 24')
    a('s_load_dwordx2 s[12:13], s[0:1], 16')
    a('s_load_dwordx2 s[20:21], s[0:1], 88')
    a('s_cmp_ge_u32 s2, 256')
    a('s_cbranch_scc1 L_end')
    a('v_lshrrev_b32 v3, 6, v0')
    a('v_and_b32 v1, 63, v0')
    a('s_and_b32 s3, s2, 7')
    a('v_readfirstlane_b32 s5, v3')
    a('s_lshr_b32 s4, s2, 3')
    a('s_and_b32 s55, s5, 3')
    a('s_add_u32 s31, s4, 2')
    a('s_lshr_b32 s31, s31, 4')
    if c['swap']:
        a('s_cmp_lg_u32 s31, 0')
        a('s_cselect_b32 s7, 4, 0')
        a('s_xor_b32 s5, s5, s7')
    a('s_cmp_ge_u32 s5, 4')
    a('s_cbranch_scc1 L_v0')

    if c['pf']:
        a('s_getpc_b64 s[46:47]')
        a.label('L_pc')
        a('s_lshl2_add_u32 s7, s4, s55')
        a('s_lshl_b32 s7, s7, 7')
        a('s_addk_i32 s7, 0x300')
        a('s_min_u32 s7, s7, L_end-L_pc')
        a('s_add_u32 s46, s46, s7')
        a('s_addc_u32 s47, s47, 0')
        a('v_mov_b32 v10, s46')
        a('v_mov_b32 v11, s47')
        a('global_load_dword v216, v[10:11], off' + nt('c'))
    kv_addr()
    srd(8, 1 << 26)
    a('s_xor_b32 s45, s44, s55')
    a('s_lshl_b32 s45, s45, 12')
    a('v_and_b32 v10, 0xfc, v0')
    a('v_mov_b32 v11, 0')
    a('ds_write_b32 v10, v11 offset:%d' % L_GATE)
    a('s_cmp_lg_u32 s31, 0')
    a('s_waitcnt lgkmcnt(0)')
    a('s_load_dword s6, s[20:21], 0')
    if c['b1']:
        a('s_cbranch_scc0 L_k1')
        a('s_barrier')
        a.label('L_k1')
    stamp(1)
    GQ = c['gq']
    assert D <= GQ <= 16 and D <= c['ga'] <= 16
    class Stream:
        def __init__(self): self.seq, self.done = [], 0
        def left(self, n): return len(self.seq) - self.seq.index(n) - 1
        def wait(self, n):
            if self.seq.index(n) >= self.done:
                a('s_waitcnt vmcnt(%d)' % self.left(n))
                self.done = self.seq.index(n) + 1
        def throttle(self, n, d, DX):
            if DX and n >= d and self.seq.index(n - d) >= self.done:
                nlab[0] += 1
                a('s_cmp_lg_u32 s30, 0')
                a('s_cbranch_scc1 L_thr%d' % nlab[0])
                a('s_waitcnt vmcnt(%d)' % self.left(n - d))
                a.label('L_thr%d' % nlab[0])
            if n >= d + DX: self.wait(n - d - DX)
    ks = Stream()
    def kload(idx):
        i, t = idx >> 2, idx & 3
        if t == 0 and i > 0: a('s_xor_b32 s45, s45, 0x%x' % ((i ^ (i - 1)) << 14))
        ks.throttle(idx, D, DX * c['dxk'])
        a('buffer_load_dwordx4 %s, v%d, s[8:11], s45 offen offset:%d nt' % (vr(vK + 4 * idx), vKO, 128 * t))
        ks.seq.append(idx)
    for idx in range(D): kload(idx)
    if c['b1']:
        a('s_cmp_lg_u32 s31, 0')
        a('s_cbranch_scc1 L_kb')
    a('s_barrier')
    a('s_branch L_kb')
    a.section('k')
    a.label('L_kb')
    common()
    for k in range(8): a('v_mov_b32 v%d, 0' % (vA + 8 + k))
    if c['split3']:
        for k in (0, 1, 4, 5): a('v_mov_b32 v%d, 0' % (vA + 16 + k))
        a('s_mul_i32 s7, s3, %d' % (1024 - 8192))
        a('s_add_u32 s7, s7, 0x%x' % (WS_QX - WS_Q - 2048))
        a('v_add_u32 v14, s7, v8')
    a('v_bfe_u32 v10, v1, 2, 1')
    a('v_lshlrev_b32 v10, 9, v10')
    a('v_lshrrev_b32 v12, 4, v1')
    a('v_lshl_add_u32 v10, v12, 7, v10')
    a('v_and_b32 v11, 3, v1')
    a('v_lshlrev_b32 v217, 2, v11')
    a('v_lshl_add_u32 v10, v11, 5, v10')
    a('v_bfe_u32 v11, v1, 3, 1')
    a('v_lshl_add_u32 v10, v11, 2, v10')
    a('v_lshl_add_u32 v13, s55, 3, v10')
    a('v_and_b32 v10, 31, v1')
    a('v_lshlrev_b32 v218, 7, v10')
    a('v_lshlrev_b32_e64 v221, 2, s55')
    a('v_mov_b32 v220, 1')
    a('v_and_b32 v9, 0x70, v8')
    a('v_and_b32 v12, 0xff, v0')
    a('v_lshlrev_b32 v12, 2, v12')
    a('s_lshl_b32 s46, s3, 12')
    a('s_add_u32 s46, s46, 0x%x' % WS_X)
    a('s_getreg_b32 s44, hwreg(HW_REG_XCC_ID, 0, 4)')
    a('s_lshl2_add_u32 s7, s3, s5')
    a('s_lshl_b32 s7, s7, 11')
    a('s_add_u32 s56, s7, 0x%x' % WS_Q)
    a('s_mov_b32 s57, 0x%x' % (WS_Q ^ WS_QB))
    a('s_mov_b32 s58, 0xaaaaaaaa'); a('s_mov_b32 s59, 0xaaaaaaaa')
    a('s_mov_b32 s60, 0xcccccccc'); a('s_mov_b32 s61, 0xcccccccc')
    a('s_mov_b32 s53, %s' % SC)
    if c['ga'] == D: gate_open(0)
    def krange(lo, hi):
        for idx in range(lo, hi):
            if c['qh'] and idx == c['qh']:
                a('s_cmp_lg_u32 s31, 0')
                a('s_cbranch_scc0 L_k2')
                gate_wait(8, 217)
                a.label('L_k2')
            kload(idx)
            if c['ga'] == idx + 1: gate_open(0)
    krange(D, GQ)
    vE = vA + 16
    qx3 = 'buffer_load_dwordx4 %s, v14, s[20:23], s56 offen sc1' % vr(vE) + nt('q')
    if c['split3']:
        a('s_cmp_eq_u32 s5, 1')
        a('s_cbranch_scc0 L_k6')
        a(qx3)
        a.label('L_k6')
    def krest():
        ks.seq += ['q0', 'q1']
        krange(GQ, 16)
        stamp(2)
        a('s_waitcnt lgkmcnt(0)')
        mktag()
        if c['split3']:
            a('s_cmp_eq_u32 s5, 1')
            a('s_cbranch_scc1 L_k7')
            a('v_mov_b32 v%d, s6' % (vE + 3))
            a.label('L_k7')
        if c['wo_at']: wo_setup()
        ks.wait('q1')
        gate_open(1)
    poll('L_pq', ['buffer_load_dwordx4 %s, v8, s[20:23], s56 offen offset:%d sc1' % (vr(vA + 4 * k), 1024 * k) + nt('q') for k in range(2)],
         [vA + 3, vA + 7] + [vE + 3] * c['split3'], between=krest, wait=None, alt=(c['qdual'], 56, 57), extra=[qx3] * c['split3'])
    stamp(3)
    pkadd(vA, vA, vA + 4)
    if c['split3']:
        a('v_permlane32_swap_b32 v%d, v%d' % (vE + 4, vE))
        a('v_permlane32_swap_b32 v%d, v%d' % (vE + 5, vE + 1))
        pkadd(vE, vE, vE + 4)
        pkadd(vA, vA, vE)
    a('v_cvt_pk_bf16_f32 v%d, v%d, v%d' % (vA, vA, vA + 1))
    a('ds_write_b32 v12, v%d offset:%d' % (vA, L_QL))
    gate_open(2)
    gate_wait(2, 217)
    for h in range(2):
        for t in range(4):
            a('ds_read_b128 %s, v9 offset:%d' % (vr(vQ + 16 * h + 4 * t), L_QL + 512 * h + 128 * t))
    if c['wo_at'] == 2: wo_issue_if()
    a('s_waitcnt lgkmcnt(0)')
    stamp(4)
    acc = lambda i, h: vA + 8 + 4 * h + i
    for i in range(4):
        assert c['wo_at'] != 2 or GQ == 16
        ks.wait(4 * i + 3)
        for t in range(4):
            for d in range(4):
                for h in range(2):
                    a('v_dot2c_f32_bf16 v%d, v%d, v%d' % (acc(i, h), vK + 16 * i + 4 * t + d, vQ + 16 * h + 4 * t + d))
    X = acc(0, 0)
    for i in range(4): dpp('v_add_f32', X + i, X + i, X + i, 'row_half_mirror', 'row_mask:0xf bank_mask:0x5')
    for i in range(4): dpp('v_add_f32', X + i, X + 4 + i, X + 4 + i, 'row_half_mirror', 'row_mask:0xf bank_mask:0xa')
    for i in range(4): dpp('v_add_f32', X + i, X + i, X + i, QP1)
    a('v_cndmask_b32_e64 v%d, v%d, v%d, s[58:59]' % (X, X, X + 1))
    a('v_cndmask_b32_e64 v%d, v%d, v%d, s[58:59]' % (X + 2, X + 2, X + 3))
    dpp('v_add_f32', X, X, X, QP2)
    dpp('v_add_f32', X + 2, X + 2, X + 2, QP2)
    a('v_cndmask_b32_e64 v%d, v%d, v%d, s[60:61]' % (X, X, X + 2))
    rnd(X, X)
    a('ds_write_b32 v13, v%d offset:%d' % (X, L_S))
    gate_open(3)
    stamp(5)
    h0_gather()
    def xflag(left):
        a('s_waitcnt vmcnt(%d)' % left)
        a('v_cmp_ne_u32 vcc, s6, v223')
        a('v_cmp_ne_u32_e64 s[96:97], s44, v222')
        a('s_or_b32 s7, vcc_lo, s96')
        a('s_cselect_b32 s7, 2, %d' % (2 if c['force_sc1'] else 1))
        a('v_mov_b32 v219, s7')
        a('ds_write_b32 v217, v219 offset:%d' % (L_GATE + 16 * 7))
    a('s_cmp_eq_u32 s5, 3')
    a('s_cbranch_scc1 L_k3')
    a('s_cmp_ge_u32 s4, 14')
    a('s_cbranch_scc1 L_aux6')
    a('v_bfe_u32 v10, v1, 4, 1')
    a('v_and_b32 v12, 7, v1')
    a('v_lshl_add_u32 v10, v10, 3, v12')
    a('v_mul_u32_u24 v14, 144, v10')
    a('v_lshlrev_b32 v12, 4, v10')
    a('v_bfe_u32 v10, v1, 3, 1')
    a('v_lshl_add_u32 v14, v10, 6, v14')
    a('v_lshl_add_u32 v12, v10, 13, v12')
    if c['nc'] > 1:
        a('v_lshrrev_b32 v11, 5, v1')
        a('v_lshl_add_u32 v12, v11, 16, v12')
    a('s_and_b32 s44, s7, 3')
    a('s_mul_i32 s44, s44, %d' % (HS - 4096))
    a('s_lshl_b32 s7, s7, 12')
    a('s_add_u32 s44, s44, s7')
    a('s_mul_i32 s45, s54, 7')
    a('s_sub_u32 s45, s4, s45')
    a('s_lshl_b32 s45, s45, 8')
    a('s_add_u32 s44, s44, s45')
    a('s_add_u32 s44, s44, 0x%x' % WS_H1)
    a('s_mov_b32 s60, -1'); a('s_mov_b32 s61, %d' % (-1 if c['nc'] > 1 else 0))
    if c['nc'] > 2: a('s_add_u32 s45, s44, 0x20000')
    if c['h1w']:
        a('v_not_b32 v71, s6')
        a('s_cmp_eq_u32 s5, 0')
        a('s_cselect_b64 exec, s[60:61], 0')
        a('buffer_store_dwordx4 v[68:71], v12, s[20:23], s44 offen sc1')
        if c['nc'] > 2: a('buffer_store_dwordx4 v[68:71], v12, s[20:23], s45 offen sc1')
        a('s_mov_b64 exec, -1')
    a('v_mov_b32 v75, s6')
    if c['wo_at'] == 4: gate_wait(4, 221)
    if c['wo_at'] >= 3: wo_issue()
    a('s_waitcnt vmcnt(%d)' % (8 - c['en'] if c['eg'] else 0))
    if c['eg'] == 2: gate_open(11)
    a('s_branch L_wt')

    a.label('L_k3')
    a('s_mov_b32 exec_hi, 0')
    a('buffer_load_dwordx2 v[222:223], v218, s[20:23], s46 offen sc1' + nt('t'))
    a('s_mov_b32 exec_hi, -1')
    a('s_lshl3_add_u32 s45, s54, s46')
    a('s_add_u32 s57, s45, 0x%x' % (WS_XB - WS_X))
    a('s_xor_b32 s57, s57, s45')
    a('v_lshrrev_b32 v10, 5, v1')
    a('v_lshl_add_u32 v14, v10, 4, v8')
    a('v_lshlrev_b32 v10, 3, v10')
    a('s_lshl_b32 s7, s4, 7')
    a('s_add_u32 s46, s46, s7')
    a('v_mov_b32 v13, s6')
    gate_wait(3, 217)
    a('ds_read_b128 %s, v8 offset:%d' % (vr(vA), L_S))
    a('s_waitcnt lgkmcnt(0)')
    softmax_head(vA)
    a('v_rcp_f32 v%d, v%d' % (vA + 5, vA + 6))
    a('v_log_f32 v12, v%d' % (vA + 6))
    for k in range(4): a('v_mul_f32 v%d, v%d, v%d' % (vA + k, vA + k, vA + 5))
    for k in range(4): a('v_cvt_pk_bf16_f32 v%d, v%d, v%d' % (vA + k, vA + k, vA + k))
    a('ds_write_b128 v14, %s offset:%d' % (vr(vA), L_P))
    a('ds_write_b32 v221, v220 offset:%d' % (L_GATE + 16 * 5 - 12))
    a('v_add_f32 v12, v12, v%d' % (vA + 4))
    def lse_store(sc):
        m = 's47' if sc and c['xb'] == 2 else '1'
        a('s_mov_b32 exec_lo, ' + m); a('s_mov_b32 exec_hi, ' + m)
        a('buffer_store_dwordx2 v[12:13], v10, s[20:23], s46 offen offset:16' + sc)
        a('s_mov_b64 exec, -1')
    lse_store('')
    xflag(1)
    if c['xb'] == 2: a('s_lshr_b32 s47, s7, 1')
    a('s_add_u32 s46, s46, 0x%x' % (WS_XB - WS_X))
    a('s_cmp_ge_u32 s4, 14')
    stamp(6)
    a('s_cbranch_scc0 L_k4')
    lse_store(' sc1' + nt('s'))
    if c['fl']:
        a('s_cmp_ge_u32 s4, 16')
        a('s_cbranch_scc0 L_aux6')
        if c['fl'] == 2: gate_wait(4, 217)
        poll('L_pf', ['buffer_load_dwordx2 v[14:15], v218, s[20:23], s45 offen offset:16 sc1'], [15], alt=(c['ldual'], 45, 57))
        stamp(7)
    a('s_branch L_aux6')
    a.label('L_k4')
    gate_wait(4, 221)
    late = c['wo_at'] >= 3
    def lrest():
        if late: wo_issue()
        lse_store(' sc1' + nt('s'))
    poll('L_pl', ['buffer_load_dwordx2 v[14:15], v218, s[20:23], s45 offen offset:16 sc1'], [15],
         between=lrest, wait='vmcnt(%d)' % (9 if late else 1), alt=(c['ldual'], 45, 57))
    stamp(7)
    a('v_mov_b32 v16, v14')
    allred32('v_max_f32', 16, 17)
    a('v_sub_f32 v14, v14, v16')
    a('v_exp_f32 v14, v14')
    a('v_and_b32 v10, 0x70, v8')
    a('v_mov_b32 v16, v14')
    allred32('v_add_f32', 16, 17)
    a('v_rcp_f32 v16, v16')
    a('v_bfe_u32 v11, v1, 3, 2')
    a('v_lshl_add_u32 v10, v11, 2, v10')
    a('v_mul_f32 v14, v14, v16')
    a('ds_write_b32 v10, v14 offset:%d' % L_WT)
    a('s_waitcnt vmcnt(%d) lgkmcnt(0)' % (9 - c['en'] if c['eg'] else 1))
    a('s_branch L_wt')
    a.label('L_aux6')
    a('s_waitcnt lgkmcnt(0)')
    a('s_cmp_ge_u32 s4, 16')
    a('s_cbranch_scc0 L_aux7')
    a('s_sub_u32 s3, s3, 1')
    a('s_cbranch_scc1 L_fin')
    vF, vFA, vFD = 80, 112, 120
    a('s_bitcmp1_b32 s4, 0')
    a('s_cselect_b64 s[24:25], s[28:29], s[24:25]')
    a('v_lshrrev_b32 v12, 3, v1')
    a('v_and_b32 v13, 0x70, v8')
    a('v_lshl_add_u32 v13, v12, 10, v13')
    a('v_lshl_add_u32 v13, s5, 13, v13')
    for k in range(4): a('v_mov_b32 v%d, 0' % (G0 + k))
    a('ds_write_b128 v13, %s offset:%d' % (vr(G0), L_T + 896))
    a('s_and_b32 s7, s4, 14')
    a('s_mul_i32 s7, s7, 7')
    a('v_add_u32 v12, s7, v12')
    gran_row(12)
    dma_voff(3584)
    a('v_add_u32 v12, 7, v12')
    gran_row(12)
    dma_voff(3584, 42)
    a('s_lshl2_add_u32 s57, s3, s5')
    a('s_lshl_b32 s8, s57, 7')
    for k in range(1, 4): a('s_add_u32 s%d, s8, %d' % (8 + k, 3584 * k))
    a('s_lshl_b32 s7, s5, 13')
    a('s_add_u32 m0, s7, %d' % L_T)
    tr_addr(13)
    a('v_lshlrev_b32 v38, 4, v11')
    a('v_lshrrev_b32 v10, 2, v1')
    a('v_mul_u32_u24 v10, %d, v10' % (GXS - 64))
    a('v_add_u32 v13, v10, v8')
    for r in range(4): a('v_mov_b32 v%d, 0x3f803f80' % (vFA + r))
    a('s_mul_i32 s57, s57, %d' % (4 * GXS))
    a('s_lshl_b32 s7, s4, 7')
    a('s_add_u32 s57, s57, s7')
    a('s_add_u32 s57, s57, 0x%x' % (WS_GX - 2048))
    a('s_add_u32 s56, s57, 64')
    a('v_mov_b32 v75, s6')
    a('s_mov_b32 exec_hi, 0x00ffffff')
    a('s_branch L_ft')
    a.label('L_aux7')
    if c['near']:
        a('s_cmp_eq_u32 s5, 3')
        a('s_cbranch_scc1 L_aux8')
        probe(c['pk'])
        stamp(7)
        a.label('L_aux8')
        gate_open(10)
        a('s_cmp_eq_u32 s5, 0')
        a('s_cbranch_scc0 L_aux9')
        a('s_lshl_b32 s7, s4, 7')
        a('s_add_u32 s46, s46, s7')
        a('v_mov_b32 v13, s6')
        gate_wait(10, 217)
        a('ds_read_b64 v[218:219], v221 offset:%d' % (L_GATE + 16 * 9))
        a('s_waitcnt lgkmcnt(0)')
        a('v_cmp_lt_u32 vcc, v218, v219')
        a('v_cndmask_b32_e64 v12, 0, -1, vcc')
        a('s_mov_b64 exec, 1')
        a('buffer_store_dwordx2 v[12:13], off, s[20:23], s46 offset:32')
        if c['oc']:
            a('s_cmp_eq_u32 s2, 112')
            a('s_cbranch_scc0 L_aux9')
            a('s_mov_b32 s46, 0x%x' % WS_C)
            a('buffer_store_dwordx2 v[12:13], off, s[20:23], s46 sc1')
        a.label('L_aux9')
    a('s_barrier')
    leave()
    flush_retry()

    a.section('v')
    if c['wo_at'] == 0:
        a.label('L_v1')
        a('s_cmp_ge_u32 s4, 14')
        a('s_cbranch_scc1 L_v')
        wo_setup()
        a('s_waitcnt lgkmcnt(0)')
        wo_issue()
    a.label('L_v')
    common()
    if c['qb'] == 2:
        a('v_mov_b32 v%d, 0' % (vA + 19))
        a('s_mov_b32 s100, 0x%x' % WS_QB)
        a('s_mov_b64 s[98:99], 0')
    a('s_waitcnt lgkmcnt(0)')
    mktag()
    xpub(3)
    a.label('L_v3')
    kv_addr()
    srd(12, 1 << 26)
    a('s_lshl_b32 s44, s44, 12')
    a('s_lshl_b32 s7, s55, 7')
    a('s_add_u32 s44, s44, s7')
    a('v_lshlrev_b32_e64 v221, 2, s55')
    a('v_mov_b32 v220, 1')
    a('v_and_b32 v10, 3, v1')
    a('v_lshlrev_b32 v217, 2, v10')
    a('v_bfe_u32 v11, v1, 3, 1')
    a('v_lshrrev_b32 v12, 4, v1')
    a('v_mul_u32_u24 v15, 528, v11')
    a('v_lshl_add_u32 v15, v12, 7, v15')
    a('v_lshrrev_b32 v10, 5, v1')
    a('v_bfe_u32 v11, v1, 2, 1')
    a('v_lshl_add_u32 v10, v10, 3, v11')
    a('v_mul_u32_u24 v10, %d, v10' % BLK)
    a('v_and_b32 v11, 3, v1')
    a('v_lshl_add_u32 v10, v11, 4, v10')
    a('v_bfe_u32 v11, v1, 4, 1')
    a('v_lshl_add_u32 v9, v11, 6, v10')
    a('s_lshl3_add_u32 s7, s3, s55')
    a('s_mul_i32 s57, s7, %d' % (2 * BLK))
    a('s_lshl_b32 s7, s4, 7')
    a('s_add_u32 s57, s57, s7')
    a('s_add_u32 s57, s57, 0x%x' % WS_H0)
    if c['touch'] in ('nw', 'wn', 'l'):
        a('v_not_b32 v75, s6')
        a('s_mov_b32 exec_lo, 0x00ff00ff'); a('s_mov_b32 exec_hi, 0x00ff00ff')
        for x in c['touch']:
            if x == 'w': a('buffer_store_dwordx4 v[72:75], v9, s[20:23], s57 offen')
            else: a('buffer_load_dwordx4 v[16:19], v9, s[20:23], s57 offen' + (' nt' if x == 'n' else c['tfl']))
        a('s_mov_b64 exec, -1')
    h0_gather()
    for k in range(8): a('v_mov_b32 v%d, 0' % (vC0 + k))
    a('v_mov_b32 v75, s6')
    NB = c['nb']
    GV = 217 if c['gall'] else 221
    gate_wait(0, GV)
    stamp(2)
    vs = Stream()
    def vload(n):
        if n > 0: a('s_xor_b32 s44, s44, 0x%x' % ((n ^ (n - 1)) << 12))
        a('buffer_load_dwordx4 %s, v%d, s[12:15], s44 offen nt' % (vr(vV + 4 * n), vKO))
        vs.seq.append(n)
        if n == 15: stamp(3)
        if n == c['wog']: gate_open(4)
    for n in range(NB):
        if n == c['na']: gate_wait(1, GV)
        vs.throttle(n, DV, DX * c['dxv'])
        vload(n)
    stamp(4)
    if c['qb'] == 2:
        a('v_mov_b32 v219, 0')
        a('s_mov_b32 s7, 0')
        a.label('L_g5')
        a('ds_read_b32 v219, v219 offset:%d' % (L_GATE + 16 * 5))
        a('s_add_u32 s7, s7, 1')
        a('s_cmp_eq_u32 s7, %d' % c['qn'])
        a('s_cbranch_scc1 L_qb5')
        a.label('L_qb5_ret')
        a('s_waitcnt lgkmcnt(0)')
        a('v_cmp_ne_u32 vcc, 1, v219')
        a('s_cbranch_vccnz L_g5')
    else:
        gate_wait(5, 219)
    for z in range(8): a('ds_read_b128 %s, v15 offset:%d' % (vr(vP + 4 * z), L_P + 16 * z))
    a('s_waitcnt lgkmcnt(0)')
    stamp(6)
    nxt = NB
    if c['prio']: a('s_setprio %d' % c['prio'])
    def pand(k):
        for r in range(4): a('v_and_b32 v%d, v%d, v%d' % (vT + 4 * (k & 3) + r, vP + k, vM + r))
    pand(0); pand(1)
    for k in range(32):
        n = k >> 1
        if k == 26: a('ds_read_b32 v219, v217 offset:%d' % (L_GATE + 16 * 7))
        if k == 30:
            a('s_waitcnt lgkmcnt(0)')
            a.label('L_xf_chk')
            a('v_cmp_eq_u32 vcc, 0, v219')
            a('s_cbranch_vccnz L_xf_retry')
            a('v_cmp_ne_u32 vcc, 1, v219')
            a('s_cmp_eq_u64 vcc, 0')
            a('s_cselect_b32 s47, -1, 0')
            if c['qb'] == 2:
                a('s_cbranch_scc0 L_qb7')
                a.label('L_qb7_ret')
            sm = 47
            if c['ws1']:
                sm = 7
                a('s_cmp_ge_u32 s4, 14')
                a('s_cselect_b32 s7, s47, 0')
            a('s_and_b32 s58, s%d, 0x00ff00ff' % sm); a('s_mov_b32 s59, s58')
            a('s_andn2_b32 s60, 0x00ff00ff, s%d' % sm); a('s_mov_b32 s61, s60')
        if k & 1 == 0:
            vs.wait(n)
            while nxt < 16 and nxt - 1 - n < c['pvd']:
                vload(nxt); nxt += 1
        mfma(vC1 if k & 1 else vC0, vT + 4 * (k & 3), vV + 4 * n, 1)
        if k < 30: pand(k + 2)
    stamp(7)
    for r in (3, 0, 1, 2): dpp('v_add_f32', vC0 + r, vC1 + r, vC0 + r, 'row_ror:8')
    pack24(72, vC0)
    store2(72, 9, 57)
    a('s_cmp_ge_u32 s4, 14')
    a('s_cbranch_scc1 L_ft0')

    if c['eg'] == 2: gate_wait(11, 219)
    a.label('L_wt')
    if not c['eg']:
        a('s_barrier')
        stamp(8)
    WT = 36
    def wsetup():
        def wlds():
            a('ds_read_b128 %s, v15 offset:%d' % (vr(WT), L_WT))
            tr_read()
        a('v_lshrrev_b32 v10, 3, v1')
        a('v_lshlrev_b32 v15, 4, v10')
        tr_addr()
        if not c['eg']: wlds()
        a('v_bfe_u32 v10, v1, 4, 1')
        a('v_lshrrev_b32 v11, 5, v1')
        a('v_lshl_add_u32 v13, v10, 3, v11')
        a('v_mul_u32_u24 v13, 144, v13')
        a('v_lshl_add_u32 v13, s5, 4, v13')
        a('s_mov_b32 s58, 0x00010001'); a('s_mov_b32 s59, 0x00010001')
        if c['eg']:
            a('s_waitcnt vmcnt(4)')
            a('s_barrier')
            stamp(8)
            wlds()
    poll('L_p0', ['buffer_load_dwordx4 %s, v8, s[20:23], s56 offen offset:%d sc1' % (vr(G0 + 4 * k), 1024 * k) for k in range(4)],
         [G0 + 3, G1 + 3, G2 + 3, G3 + 3], between=wsetup, wait='vmcnt(0) lgkmcnt(0)')
    stamp(9)
    unpackn([G0, G1, G2, G3])
    for k in range(4):
        w, hi = WT + (k & 2), k & 1
        for p in (0, 2):
            if k == 0:
                a('v_pk_mul_f32 %s, %s, %s op_sel:[0,0] op_sel_hi:[1,0]' % (vr(G0 + p, 2), vr(G0 + p, 2), vr(w, 2)))
            else:
                a('v_pk_fma_f32 %s, %s, %s, %s op_sel:[0,%d,0] op_sel_hi:[1,%d,1]' % (vr(G0 + p, 2), vr(G0 + 4 * k + p, 2), vr(w, 2), vr(G0 + p, 2), hi, hi))
    scatter4(G0)
    vec32(vAX, G0, 0xf)
    for t in range(4): mfma(vD + 4 * t, vB + 4 * t, vAX, 0)
    a('s_mov_b64 exec, s[58:59]')
    for t in range(4): a('ds_write_b128 v13, %s offset:%d' % (vr(vD + 4 * t), L_RED + 288 * t))
    a('s_cmp_eq_u32 s5, 0')
    a('s_cselect_b64 exec, s[60:61], -1')
    a('s_waitcnt lgkmcnt(0)')
    stamp(10)
    a('s_barrier')
    a('s_cbranch_scc0 L_d0')
    for k in range(4): a('ds_read_b128 %s, v14 offset:%d' % (vr(G0 + 4 * k), L_RED + 16 * k))
    a('s_waitcnt lgkmcnt(2)')
    pkadd(G0, G0, G1); pkadd(G0 + 2, G0 + 2, G1 + 2)
    a('s_waitcnt lgkmcnt(0)')
    pkadd(G2 + 2, G2 + 2, G3 + 2); pkadd(G2, G2, G3)
    pkadd(G0 + 2, G0 + 2, G2 + 2); pkadd(G0, G0, G2)
    for k in (3, 2, 0, 1): dpp('v_add_f32', G0 + k, G0 + k, G0 + k, 'row_ror:8')
    pack24(72, G0)
    a('buffer_store_dwordx4 v[72:75], v12, s[20:23], s44 offen sc1')
    stamp(12)
    if c['nc'] > 2: a('buffer_store_dwordx4 v[72:75], v12, s[20:23], s45 offen sc1')
    if c['f28'] and not c['fx']:
        a('s_mov_b64 exec, -1')
        a('s_sub_u32 s3, s3, 1')
        a('s_cbranch_scc1 L_fin0')
    if c['dl']: a('s_barrier')
    leave()
    flush_retry()

    if c['qb'] == 2:
        for nm in ('L_qb5', 'L_qb7'):
            a.label(nm)
            a('s_cmp_eq_u32 s31, 0')
            a('s_cbranch_scc1 %s_ret' % nm)
            a('s_mov_b64 exec, s[98:99]')
            a('buffer_store_dwordx4 %s, v%d, s[20:23], s100 offen sc1' % (vr(vA + 20), vA + 19))
            a('s_mov_b64 exec, -1')
            a('s_branch %s_ret' % nm)
    a.label('L_xf_retry')
    a('ds_read_b32 v219, v217 offset:%d' % (L_GATE + 16 * 7))
    a('s_waitcnt lgkmcnt(0)')
    a('s_branch L_xf_chk')

    a.label('L_ft0')
    a('s_cmp_ge_u32 s4, 16')
    a('s_cbranch_scc0 L_d1')
    a('s_sub_u32 s3, s3, 1')
    a('s_cbranch_scc0 L_fkv')
    a.label('L_fin')
    F28, FX = c['f28'], c['fx']
    LATE = c['h2late'] and not FX
    two = ['buffer_load_dwordx4 %s, v9, s[20:23], s44 offen sc1' % vr(G0),
           'buffer_load_dwordx4 %s, v9, s[20:23], s45 offen sc1' % vr(G1)]
    def wave_soff():
        h1_copy(63)
        a('s_lshl_b32 s7, s5, 16')
        a('s_sub_u32 s7, s7, 0x%x' % (WS_H1 - WS_H2))
        a('s_cmp_eq_u32 s5, 7')
        a('s_cselect_b32 s7, s63, s7')
        a('s_add_u32 s44, s44, s7')
    def is_fin():
        a('s_and_b32 s7, s4, %d' % (9 if F28 else 13))
        a('s_cmp_eq_u32 s7, %d' % (8 if F28 else 12))
    def f_leave():
        if FX:
            is_fin()
            a('s_cbranch_scc1 L_fin0')
        leave()
    if FX and c['hw'] in ('r', 'R'):
        a('s_cmp_ge_u32 s4, 30')
        leave_if('scc1')
        a('s_barrier')
        a('s_sub_u32 s54, s4, 16')
        line_voff(); line_soff(54); wave_soff()
        a('s_add_u32 s45, s44, 0x8000')
        if c['hw'] == 'R':
            a('s_cmp_eq_u32 s5, 7')
            a('s_cbranch_scc0 L_hw1')
            poll('L_p4', two, [G0 + 3, G1 + 3])
            a.label('L_hw1')
            a('s_barrier')
        a('s_mov_b32 exec_lo, 0x01010101'); a('s_mov_b32 exec_hi, 0x01010101')
        for z in range(2):
            a('buffer_load_dword v16, v9, s[20:23], s44 offen sc1')
            a('buffer_load_dword v16, v9, s[20:23], s45 offen sc1')
            if z == 0: a('v_add_u32 v9, 0x2000, v9')
    if FX:
        assert c['ep'] and not c['es']
        leave()
        flush_retry()
        a.label('L_fin0')
        a('s_mov_b64 exec, -1')
        a('s_barrier')
        a.label('L_fin1')
        a('s_bfe_u32 s4, s4, 0x%x' % (0x20001 if F28 else 0x10001))
        a('s_mul_i32 s4, s4, 7')
        a('s_add_u32 s4, s4, s3')
    else:
        a('s_cmp_ge_u32 s4, 30')
        leave_if('scc1')
        a('s_sub_u32 s4, s4, %d' % (2 if F28 else 16))
        a.label('L_fin0')
        a('s_barrier')
    OC = c['oc'] and c['near']
    assert not (OC and FX)
    S7 = c['s7'] and LATE and c['near']
    if c['near'] and not S7: side_load(True, OC)
    if F28:
        a('v_bfe_u32 v10, v1, 2, 2')
        a('v_mul_u32_u24 v11, %d, v10' % HS)
        a('v_lshrrev_b32 v10, 4, v1')
        a('v_lshl_add_u32 v11, v10, 14, v11')
        a('v_and_b32 v12, 0x30, v8')
        a('v_add_u32 v9, v11, v12')
        a('v_lshl_add_u32 v12, v10, 1, v12')
        a('v_and_b32 v13, 3, v1')
        a('v_lshl_add_u32 v14, v10, 2, v13')
        a('s_lshr_b32 s54, s4, 1')
    else:
        line_voff()
        a('v_and_b32 v13, 7, v1')
        a('v_lshl_add_u32 v14, v10, 3, v13')
        a('s_mov_b32 s54, s4')
    a('v_mul_u32_u24 v14, 48, v14')
    a('v_lshl_add_u32 v10, s5, 2, v14')
    line_soff(54)
    if F28:
        a('s_and_b32 s7, s4, 1')
        a('s_lshl_b32 s7, s7, 6')
        a('s_add_u32 s44, s44, s7')
        a('s_add_u32 s46, s46, s7')
    wave_soff()
    if not S7: side_add('L_sf')
    a('s_cmp_eq_u32 s5, 7')
    a('s_cbranch_scc1 L_fin7')
    if S7: a('v_mov_b32 v11, 0')
    if LATE: a('s_barrier')
    if S7:
        a('ds_read_b32 v11, v11 offset:%d' % L_STAT)
        a('s_add_u32 s45, s44, 0x8000')
        a('s_waitcnt lgkmcnt(0)')
        a('v_add_u32 v9, v9, v11')
    twof = lambda m: lambda x, y: ['buffer_load_dwordx4 %s, v9, s[20:23], s44 offen %s' % (vr(x), m),
                                   'buffer_load_dwordx4 %s, v9, s[20:23], s45 offen %s' % (vr(y), m)]
    SETS = [(G0, G1), (G2, G3), (80, 84), (88, 92), (96, 100), (104, 108)]
    onef = lambda x: ['buffer_load_dwordx4 %s, v9, s[20:23], s44 offen %s' % (vr(x), c['m2'])]
    def fin_red(x, y=None):
        if F28:
            unpackn([x]); scatter4(x)
            dpp('v_add_f32', x, x, x, 'row_ror:4')
        else:
            sum2scatter(x, y)
    def fin_tail(x, y=None):
        stamp(13)
        fin_red(x, y)
        a('ds_write_b32 v10, v%d offset:%d' % (x, L_RED))
        a('s_waitcnt lgkmcnt(0)')
        a('s_barrier')
        leave()
    fload, ftags = (onef(G0), [G0 + 3]) if F28 else (twof(c['m2'])(G0, G1), [G0 + 3, G1 + 3])
    if c['n2'] > 1:
        poll2('L_p2', onef if F28 else twof(c['m2']), [x[:2 - F28] for x in SETS[:c['n2']]], c['p2'], fin_tail)
    else:
        poll('L_p2', fload, ftags)
        fin_tail(G0, G1)
    side_retry('L_sf', OC)
    flush_retry()

    a.label('L_fin7')
    a('v_mov_b32 v11, 0')
    a('ds_write_b32 v10, v11 offset:%d' % L_RED)
    if S7:
        side_load(True, OC)
        side_add('L_sf')
        a('s_and_b32 s7, s44, 0x2000')
        a('v_mov_b32 v13, s7')
        a('ds_write_b32 v11, v13 offset:%d' % L_STAT)
    a('v_bfe_u32 v11, v1, 3, 1')
    a('v_lshl_add_u32 v14, v11, 4, v14')
    a('s_mov_b32 s58, 0x%x' % (0x000f000f if F28 else 0x00ff00ff)); a('s_mov_b32 s59, s58')
    a('buffer_load_ushort v15, v12, s[36:39], s46 offen' + nt('x'))
    if c['ot']: a('buffer_load_ushort v216, v12, s[40:43], s46 offen')
    if FX:
        a('s_barrier')
        a('s_barrier')
    poll('L_p3', fload, ftags, wait='vmcnt(0) lgkmcnt(0)')
    if LATE: a('s_barrier')
    stamp(12 if FX else 10)
    a('v_mov_b32 v10, s6')
    a('s_cmp_eq_u32 s4, 0')
    a('s_cselect_b64 exec, 1, 0')
    a('buffer_store_dword v10, off, s[20:23], 0')
    a('s_mov_b64 exec, -1')
    fin_red(G0, G1)
    a('v_lshlrev_b32 v15, 16, v15')
    rnd(G0, G0)
    a('v_add_f32 v15, v%d, v15' % G0)
    rnd(15, 15)
    a('s_waitcnt lgkmcnt(0)')
    a('s_barrier')
    a('ds_read_b128 %s, v14 offset:%d' % (vr(G0), L_RED))
    a('s_waitcnt lgkmcnt(0)')
    stamp(13)
    pkadd(G0, G0, G0 + 2)
    a('v_add_f32 v%d, v%d, v%d' % (G0, G0, G0 + 1))
    dpp('v_add_f32', G0, G0, G0, 'row_ror:8')
    rnd(G0, G0)
    a('v_add_f32 v%d, v%d, v15' % (G0, G0))
    a('v_cvt_pk_bf16_f32 v%d, v%d, v%d' % (G0, G0, G0))
    a('s_mov_b64 exec, s[58:59]')
    a('buffer_store_short v%d, v12, s[40:43], s46 offen' % G0)
    leave()
    flush_retry()

    a.label('L_ft')
    a('s_barrier')
    for i in range(8):
        a('buffer_load_dwordx4 v%d, s[24:27], s%d offen nt lds' % (42 if i >> 2 else 2, 8 + (i & 3)))
        if i < 7: a('s_add_u32 m0, m0, 0x400')
    if c['gf']:
        a('s_mov_b64 exec, 0x1111')
        a('buffer_load_dword v44, v13, s[20:23], s57 offen' + {'l': '', 's': ' sc1'}[c['gf']])
    a('s_mov_b64 exec, -1')
    stamp(8)
    a('ds_read_b32 v36, v217 offset:%d' % (L_GATE + 16 * 7))
    a('s_waitcnt lgkmcnt(0)')
    a('v_cmp_eq_u32 vcc, 1, v36')
    a('s_and_b64 s[58:59], vcc, 0xffff')
    a('s_andn2_b64 s[60:61], 0xffff, vcc')
    def packt():
        for k in range(3): a('v_perm_b32 v%d, v%d, v%d, s%d' % (72 + k, vFD + 4 * k, vFD + 12, sPK + k))
    for z in range(2):
        a('s_waitcnt vmcnt(%d)' % (4 - 4 * z + len(c['gf'])))
        if z:
            if not c['ep']: a('s_barrier')
            stamp(9)
        for t in range(4):
            for u in range(2):
                a('ds_read_b64_tr_b16 %s, v%d offset:%d' % (vr(vF + 16 * z + 4 * t + 2 * u, 2), 32 + t, L_T + 4096 * z + 512 * u))
        for t in range(4):
            a('s_waitcnt lgkmcnt(%d)' % (6 - 2 * t))
            mfma(vFD + 4 * t, vFA, vF + 16 * z + 4 * t, z)
    packt()
    store2(72, 13, 56)
    a('s_barrier')
    for z in range(2): a('ds_read_b128 %s, v38 offset:%d' % (vr(vFA + 4 * z), L_STAT + 64 * z))
    for z in range(2):
        a('s_waitcnt lgkmcnt(%d)' % (1 - z))
        for t in (3, 0, 1, 2): mfma(vFD + 4 * t, vFA + 4 * z, vF + 16 * z + 4 * t, z)
    a('s_mov_b64 exec, 0xffff')
    a('s_cbranch_scc1 L_fa4')
    h = list(a.hist)
    packt()
    a('buffer_store_dwordx4 v[72:75], v13, s[20:23], s57 offen')
    stamp(11)
    f_leave()
    a.label('L_fa4')
    a.hist = h
    packt()
    a('buffer_store_dwordx4 v[72:75], v13, s[20:23], s57 offen sc1')
    stamp(11)
    f_leave()

    a.label('L_fa5')
    a('s_or_b32 s7, s4, s5')
    a('s_bitcmp1_b32 s7, 0')
    if diag or c['es']: a('s_barrier')
    a('s_cbranch_scc0 L_fa6')
    if FX:
        is_fin()
        a('s_cbranch_scc1 L_fin1')
    if diag:
        if not c['ep']: a('s_barrier')
        a('s_barrier')
    leave()
    a.label('L_fa6')
    for r in range(8): a('v_mov_b32 v%d, 0x3f803f80' % (vFA + r))
    a('v_lshrrev_b32 v11, 4, v1')
    a('v_lshlrev_b32 v38, 4, v11')
    if c['sl']:
        a('v_mul_u32_u24 v13, %d, v1' % GXS)
        a('s_mul_i32 s46, s3, %d' % (16 * GXS))
        a('s_lshl3_add_u32 s46, s4, s46')
        a('s_add_u32 s46, s46, 0x%x' % (WS_GX + 2048 - 128))
        a('s_mov_b64 exec, 0xffff')
        a('buffer_load_dword v44, v13, s[20:23], s46 offen sc1')
        a('s_and_b32 s58, s47, 0xffff'); a('s_andn2_b32 s60, 0xffff, s47')
        a('s_mov_b32 s59, 0'); a('s_mov_b32 s61, 0')
    else:
        a('s_lshl_b32 s46, s3, 5')
        a('s_add_u32 s46, s46, s4')
        a('s_lshl_b32 s46, s46, 7')
        a('s_add_u32 s46, s46, 0x%x' % (WS_X + 4096 + 48))
        a('s_and_b64 s[58:59], s[58:59], 1')
        a('s_and_b64 s[60:61], s[60:61], 1')
    a('s_mov_b32 exec_lo, 0xfffdfffd'); a('s_mov_b32 exec_hi, 0xfffdfffd')
    if not c['ep']: a('s_barrier')
    a('s_barrier')
    for z in range(2): a('ds_read_b128 %s, v38 offset:%d' % (vr(vFA + 4 * z), L_STAT + 64 * z))
    a('s_mov_b64 exec, -1')
    for z in range(2):
        a('s_waitcnt lgkmcnt(%d)' % (1 - z))
        mfma(68 if c['sl'] else 72, vFA + 4 * z, vFA + 4 * z, z)
    if c['sl']:
        for k in range(2): a('v_mov_b32_dpp v%d, v%d row_newbcast:0 row_mask:0xf bank_mask:0xf' % (72 + k, 68 + k))
        store2(72, 13, 46)
    else:
        a('v_mov_b32 v75, s6')
        store2(72, 8, 46)
    stamp(11)
    f_leave()

    a.label('L_fkv')
    a('s_cmp_ge_u32 s5, 6')
    if not (diag or c['es']): a('s_barrier')
    a('s_cbranch_scc1 L_fa5')
    if diag and not c['es']: a('s_barrier')
    if c['near']: side_load(True)
    if c['es']: a('s_barrier')
    stamp(8)
    a('v_and_b32 v12, 7, v1')
    a('v_cmp_gt_u32 vcc, 7, v12')
    a('v_min_u32 v11, 6, v12')
    a('v_bfe_u32 v10, v1, 3, 2')
    a('v_mul_u32_u24 v10, %d, v10' % HS)
    a('v_lshl_add_u32 v10, v11, 4, v10')
    a('v_lshrrev_b32 v11, 5, v1')
    a('v_lshl_add_u32 v9, v11, 14, v10')
    a('v_lshrrev_b32 v11, 4, v1')
    a('v_lshl_add_u32 v37, s55, 2, v11')
    a('v_lshl_add_u32 v37, v37, 3, v12')
    a('v_lshlrev_b32 v37, 1, v37')
    a('s_and_b32 s7, s4, 14')
    a('s_add_u32 s7, s7, s55')
    a('s_mul_i32 s7, s7, 7')
    a('v_add_u32 v12, s7, v12')
    gran_row(12)
    a('v_add_lshl_u32 v12, v10, v11, 1')
    a('v_cndmask_b32 v12, 2.0, v12, vcc')
    a('v_cndmask_b32_e64 v14, 0, 1.0, vcc')
    xload = 'buffer_load_ushort v15, v12, s[36:39], 0 offen' + nt('x')
    if not c['es']: a(xload)
    h1_copy(44)
    a('s_lshl4_add_u32 s44, s7, s44')
    a('s_add_u32 s44, s44, 0x%x' % WS_H1)
    side_add('L_sd')
    if c['es']: a(xload)
    if not c['ep']: a('s_barrier')
    stamp(9)
    def xly():
        a('s_waitcnt vmcnt(2)')
        a('v_lshlrev_b32 v15, 16, v15')
    def f_tail(x, y):
        stamp(10)
        sum2scatter(x, y)
        rnd(x, x)
        a('v_fma_f32 v%d, v%d, v14, v15' % (x, x))
        a('v_cvt_pk_bf16_f32 v%d, v%d, v%d' % (x, x, x))
        a('ds_write_b16 v37, v%d offset:%d' % (x, L_STAT))
        a('s_waitcnt lgkmcnt(0)')
        a('s_barrier')
        f_leave()
    if c['n1'] > 1:
        poll2('L_p1', twof(c['m1']), SETS[:c['n1']], c['p1'], f_tail, first=xly)
    else:
        poll('L_p1', twof(c['m1'])(G0, G1), [G0 + 3, G1 + 3], between=xly)
        f_tail(G0, G1)
    side_retry('L_sd')
    flush_retry()

    a.label('L_d2')
    if diag and c['dl']: a('s_barrier')
    leave()
    a.label('L_d1')
    if not c['dl']: a('s_barrier')
    a('s_cmp_eq_u32 s3, 0')
    a('s_cbranch_scc1 L_d2')
    a.label('L_d0')
    a('s_sub_u32 s3, s3, 1')
    a('s_cbranch_scc1 %s' % ('L_fin0' if F28 and not FX else 'L_d2'))
    a('s_cmp_ge_u32 s5, 4')
    a('s_cbranch_scc0 L_d2')
    a('s_lshl4_add_u32 s54, s3, s4')
    a('v_lshrrev_b32 v12, 4, v1')
    a('v_mul_u32_u24 v10, %d, v12' % (16 * 896))
    a('v_and_b32 v11, 15, v1')
    a('v_lshl_add_u32 v11, s55, 4, v11')
    a('v_lshl_add_u32 v3, v11, 4, v10')
    a('v_cmp_gt_u32 vcc, 56, v11')
    a('s_and_b32 s7, s54, 0x7c')
    a('s_lshl1_add_u32 s7, s7, s7')
    a('s_add_u32 s7, s7, s54')
    a('v_cndmask_b32 v3, 2.0, v3, vcc')
    a('s_mul_i32 s16, s7, %d' % (4 * 896))
    a('v_and_b32 v10, 0x3c0, v8')
    a('v_add_u32 v43, v10, v8')
    a('v_and_b32 v10, 7, v1')
    a('v_lshlrev_b32 v40, %d, v10' % (4 if c['sl'] else 8))
    a('s_mul_i32 s56, s54, %d' % GXS)
    a('s_add_u32 s56, s56, 0x%x' % WS_GX)
    if c['sl']:
        a('s_add_u32 s45, s56, 2048')
    else:
        a('s_lshl_b32 s45, s3, 12')
        a('s_add_u32 s45, s45, 0x%x' % (WS_X + 4096 + 2048 + 48))
    if c['dl']: a('s_barrier')
    def dload():
        for t in range(4):
            a('buffer_load_dwordx4 %s, v3, s[32:35], s16 offen offset:%d nt' % (vr(vW + 4 * t), 896 * t))
    if not c['dd']: dload()
    HWW = 1 if c['hw'] == 'w' else 0
    def dsetup():
        a('v_and_b32 v10, 0x70, v8')
        a('v_bfe_u32 v11, v1, 3, 1')
        a('v_lshl_add_u32 v10, v11, 8, v10')
        a('v_bfe_u32 v11, v1, 4, 1')
        a('v_lshl_add_u32 v10, v11, 7, v10')
        a('v_lshrrev_b32 v11, 5, v1')
        a('v_lshl_add_u32 v41, v11, 13, v10')
        a('s_and_b32 s57, s54, 3')
        a('s_mul_i32 s57, s57, %d' % (HS - 4096))
        a('s_lshl3_add_u32 s7, s54, s55')
        a('s_lshl_b32 s7, s7, 9')
        a('s_add_u32 s57, s57, s7')
        a('s_add_u32 s57, s57, 0x%x' % WS_H2)
        a('s_cmp_eq_u32 s55, 3')
        a('s_cselect_b32 s58, 0x00ff00ff, -1')
        a('s_mov_b32 s59, %s' % ('s58' if c['near'] else '0'))
        k0 = 2 * math.sqrt(2 / math.pi) * math.log2(math.e)
        a('v_mov_b32 v42, %s' % f32(-k0))
        a('s_mov_b32 s18, %s' % f32(1.0 / 448))
        a('s_mov_b32 s19, %s' % f32(-k0 * 0.044715))
        if HWW:
            a('v_not_b32 v71, s6')
            a('s_mov_b64 exec, s[58:59]')
            a('buffer_store_dwordx4 v[68:71], v41, s[20:23], s57 offen sc1')
            a('s_mov_b64 exec, -1')
        a('v_mov_b32 v75, s6')
    def drest():
        if c['dt']:
            for t in gload: a(t)
        if not c['dw']: dsetup()
        if diag:
            a('s_waitcnt vmcnt(%d)' % ((3 if c['dt'] else 1) + HWW))
            stamp(13)
    gload = ['buffer_load_dwordx4 %s, v43, s[20:23], s56 offen sc1' % vr(G0), 'buffer_load_dwordx4 v[36:39], v40, s[20:23], s45 offen sc1']
    if OC: a('s_load_dwordx2 s[12:13], s[20:21], 0x%x' % WS_C)
    if c['dw']:
        dsetup()
        a('s_waitcnt vmcnt(%d)' % (4 + HWW - c['dw']))
    poll('L_pc', ['buffer_load_dwordx4 %s, v43, s[20:23], s56 offen offset:64 sc1' % vr(G2)], [G2 + 3], between=drest, also=gload if c['dt'] else [])
    stamp(10)
    def red1(g):
        unpackn([g]); scatter4(g)
    def dmid():
        red1(G2)
        if OC:
            a('s_waitcnt lgkmcnt(0)')
            a('s_cmp_eq_u32 s13, s6')
            a('s_cselect_b32 s13, s12, -1')
            a('s_cselect_b32 s12, s12, 0')
            a('s_and_b32 s59, s59, s13')
            a('s_andn2_b32 s58, s58, s12')
    if c['dt']:
        poll('L_pg', [], [G0 + 3, 39], between=dmid, wait=None, extra=gload)
    else:
        poll('L_pg', gload, [G0 + 3, 39], between=dmid)
    stamp(11)
    if c['dd']:
        dload()
        a('s_waitcnt vmcnt(0)')
    V, CS, MU, E2, T = G0, G2, 37, 36, G1 + 2
    keep = a
    class Rec(list):
        def __call__(self, t): self.append(t)
    a = Rec(); red1(G0); red = a; a = keep
    for z in (4, 2, 1):
        dpp('v_add_f32', MU, MU, MU, 'row_ror:%d' % z)
        dpp('v_add_f32', E2, E2, E2, 'row_ror:%d' % z)
        a(red.pop(0))
    a('v_mul_f32 v%d, s18, v%d' % (MU, MU))
    a(red.pop(0))
    a('v_mul_f32 v%d, s18, v%d' % (E2, E2))
    a(red.pop(0))
    a('v_fma_f32 v%d, -v%d, v%d, v%d' % (E2, MU, MU, E2))
    rnd(MU, MU)
    a('v_max_f32 v%d, 0, v%d' % (E2, E2))
    a(red.pop(0))
    rnd(E2, E2)
    a(red.pop(0))
    a('v_add_f32 v%d, %s, v%d' % (E2, f32(1e-5), E2))
    a('v_mul_f32 v%d, v%d, v%d' % (CS, MU, CS))
    rnd(E2, E2)
    a('v_sqrt_f32 v%d, v%d' % (E2, E2))
    a(red.pop(0))
    assert not red
    rnd(E2, E2)
    a('v_rcp_f32 v%d, v%d' % (E2, E2))
    a('v_sub_f32 v%d, v%d, v%d' % (V, V, CS))
    a('v_mul_f32 v%d, v%d, v%d' % (V, V, E2))
    rnd(V, V)
    a('v_mul_f32 v%d, v%d, v%d' % (T, V, V))
    a('v_fmac_f32 v42, s19, v%d' % T)
    a('v_mul_f32 v%d, v42, v%d' % (T, V))
    a('v_exp_f32 v%d, v%d' % (T, T))
    a('v_add_f32 v%d, 1.0, v%d' % (T, T))
    a('v_rcp_f32 v%d, v%d' % (T, T))
    a('v_mul_f32 v%d, v%d, v%d' % (T, V, T))
    rnd(T, T)
    dpp('v_mul_f32', T, V, T, 'row_ror:4')
    a('v_cvt_pk_bf16_f32 v%d, v%d, v%d' % (T, T, T))
    for t in range(4):
        for r in range(4):
            dpp('v_and_b32', vT + 4 * t + r, T, vM + r, 'row_newbcast:%d' % t)
            if t > 0 and r == 1: mfma(vC0, vT + 4 * t - 4, vW + 4 * t - 4, t > 1)
    mfma(vC0, vT + 12, vW + 12, 1)
    a('s_mov_b64 exec, s[58:59]')
    pack24(72, vC0)
    a('buffer_store_dwordx4 v[72:75], v41, s[20:23], s57 offen sc1')
    stamp(12)
    leave()
    flush_retry()

    a.section('q')
    a.label('L_v0')
    far = 'L_v1' if c['wo_at'] == 0 else 'L_v'
    a('s_cmp_lg_u32 s31, 0')
    a('s_cbranch_scc1 L_qw')
    a('s_waitcnt lgkmcnt(0)')
    a('s_load_dword s6, s[20:21], 0')
    a('s_barrier')
    a('s_branch %s' % far)
    a.label('L_qw')
    vWQ, vXN = 16, 128
    srd(16, 448 * 8192)
    srd(36, 896)
    a('v_lshlrev_b32 v8, 4, v1')
    a('v_lshrrev_b32 v12, 3, v1')
    a('v_mul_u32_u24 v3, %d, v12' % (28 * 8192))
    a('v_and_b32 v10, 0x70, v8')
    a('v_add_u32 v3, v3, v10')
    a('s_bfe_u32 s54, s4, 0x30001')
    if c['split3']:
        a('s_cmp_eq_u32 s54, 3')
        a('s_cselect_b32 vcc_hi, 0, -1')
        a('s_cmp_ge_u32 s4, 16')
        a('s_cselect_b32 vcc_lo, -1, 0')
        a('s_cselect_b32 s54, s54, 3')
        a('s_lshl3_add_u32 s54, s3, s54')
        a('v_cndmask_b32 v3, 2.0, v3, vcc')
    else:
        a('s_lshl3_add_u32 s54, s3, s54')
        a('s_cmp_ge_u32 s4, 16')
        a('s_cselect_b32 s54, s54, s3')
    a('s_and_b32 s44, s4, 1')
    a('s_lshl_b32 s44, s44, 5')
    a('s_add_u32 s44, s44, s55')
    a('s_mul_i32 s45, s44, %d' % (7 * 64))
    a('s_add_u32 s45, s45, s54')
    a('s_lshl_b32 s45, s45, 7')
    a('s_movk_i32 s46, 0x2000')
    a('s_waitcnt lgkmcnt(0)')
    stamp(1)
    a('buffer_load_dwordx4 %s, v8, s[36:39], 0 offen' % vr(vA) + nt('x'))
    a('s_load_dword s6, s[20:21], 0')
    for n in range(7):
        a('buffer_load_dwordx4 %s, v3, s[16:19], s45 offen nt' % vr(vWQ + 4 * n))
        if n < 6: a('s_add_u32 s45, s45, s46')
    a('s_barrier')
    common(False)
    x, S1, S2 = vA + 8, vA + 4, vA + 5
    a('v_mov_b32 v%d, 0' % S1)
    a('v_mov_b32 v%d, 0' % S2)
    a('v_mov_b32 v%d, 0x3f803f80' % (vA + 6))
    a('v_mov_b32 v%d, %s' % (vA + 7, f32(1.0 / 448)))
    a('v_lshlrev_b32 v13, 5, v1')
    a('v_mul_u32_u24 v14, 112, v12')
    a('s_mul_i32 s7, s44, 28')
    a('s_add_u32 s7, s7, %d' % L_XN)
    a('v_add_u32 v14, s7, v14')
    a('v_lshl_add_u32 v15, s55, 3, v13')
    a('v_and_b32 v10, 3, v1')
    a('v_lshlrev_b32 v217, 2, v10')
    a('v_lshlrev_b32_e64 v221, 2, s55')
    a('v_mov_b32 v220, 1')
    a('v_and_b32 v10, 7, v1')
    a('v_lshlrev_b32 v10, 6, v10')
    a('v_bfe_u32 v11, v1, 4, 1')
    a('v_lshl_add_u32 v10, v11, 5, v10')
    a('v_lshrrev_b32 v11, 5, v1')
    a('v_lshl_add_u32 v9, v11, 4, v10')
    a('s_lshr_b32 s7, s54, 1')
    a('s_and_b32 s44, s4, 1')
    a('s_lshl1_add_u32 s7, s7, s44')
    a('s_and_b32 s45, s54, 1')
    a('s_lshl1_add_u32 s7, s7, s45')
    if c['split3']:
        a('s_lshl1_add_u32 s45, s3, s44')
        a('s_add_u32 s45, s45, 0x%x' % ((WS_QX - WS_Q) >> 9))
        a('s_cmp_ge_u32 s4, 16')
        a('s_cselect_b32 s7, s7, s45')
    a('s_lshl_b32 s57, s7, 9')
    a('s_add_u32 s57, s57, 0x%x' % WS_Q)
    a('s_lshl_b32 s7, s55, 1')
    a('s_lshl_b32 s58, 0x00030003, s7'); a('s_mov_b32 s59, s58')
    qx = 1 if c['qt'] else 0
    if qx:
        a('s_mov_b64 exec, s[58:59]')
        a('buffer_load_dword v216, v9, s[20:23], s57 offen ' + ('sc1' if c['qt'] == 'v' else 'nt'))
        a('s_mov_b64 exec, -1')
    a('s_waitcnt vmcnt(%d)' % (7 + qx))
    for k in range(4):
        a('v_dot2c_f32_bf16 v%d, v%d, v%d' % (S1, vA + k, vA + 6))
        a('v_dot2c_f32_bf16 v%d, v%d, v%d' % (S2, vA + k, vA + k))
    unp = []
    for k in range(4):
        unp.append('v_lshlrev_b32 v%d, 16, v%d' % (x + 2 * k, vA + k))
        unp.append('v_and_b32 v%d, 0xffff0000, v%d' % (x + 2 * k + 1, vA + k))
    a(unp.pop()); a(unp.pop())
    for ctl, m in ((QP1, FULL), (QP2, FULL), ('row_half_mirror', FULL), ('row_mirror', FULL),
                   ('row_bcast:15', 'row_mask:0xa bank_mask:0xf'), ('row_bcast:31', 'row_mask:0xc bank_mask:0xf')):
        dpp('v_add_f32', S1, S1, S1, ctl, m)
        dpp('v_add_f32', S2, S2, S2, ctl, m)
        a(unp.pop())
    a('v_readlane_b32 s62, v%d, 63' % S1)
    a('v_readlane_b32 s63, v%d, 63' % S2)
    a('v_mul_f32 v%d, s62, v%d' % (S1, vA + 7))
    a('v_mul_f32 v%d, s63, v%d' % (S2, vA + 7))
    a('v_fma_f32 v%d, -v%d, v%d, v%d' % (S2, S1, S1, S2))
    rnd(S1, S1)
    a('v_max_f32 v%d, 0, v%d' % (S2, S2))
    rnd(S2, S2)
    a('v_add_f32 v%d, %s, v%d' % (S2, f32(1e-5), S2))
    rnd(S2, S2)
    a('v_sqrt_f32 v%d, v%d' % (S2, S2))
    for k in range(8): a('v_sub_f32 v%d, v%d, v%d' % (x + k, x + k, S1))
    rnd(S2, S2)
    a('v_rcp_f32 v%d, v%d' % (S2, S2))
    for k in range(8): rnd(x + k, x + k)
    for k in range(8): a('v_mul_f32 v%d, v%d, v%d' % (x + k, x + k, S2))
    for k in range(8): a('v_cvt_pk_bf16_f32 v%d, v%d, v%d' % (x + k, x + k, x + k))
    a('ds_write_b128 v13, %s offset:%d' % (vr(x), L_XN))
    a('ds_write_b128 v13, %s offset:%d' % (vr(x + 4), L_XN + 16))
    a('s_waitcnt lgkmcnt(0)')
    for z in range(3): a('ds_read2_b32 %s, v14 offset0:%d offset1:%d' % (vr(vXN + 2 * z, 2), 2 * z, 2 * z + 1))
    a('ds_read_b32 v%d, v14 offset:24' % (vXN + 6))
    mktag()
    qc = vA + 16
    a('v_mov_b32 v%d, s6' % (vA + 22))
    a('v_mov_b32 v%d, s6' % (vA + 23))
    xpub(1)
    a('s_waitcnt lgkmcnt(0)')
    def qand(n):
        for r in range(4): a('v_and_b32 v%d, v%d, v%d' % (vA + 4 * (n & 1) + r, vXN + n, vM + r))
    qand(0)
    for n in range(7):
        if n < 6: qand(n + 1)
        a('s_waitcnt vmcnt(%d)' % (6 + qx - n))
        mfma(qc, vA + 4 * (n & 1), vWQ + 4 * n, n)
    for r in range(4): a('v_mov_b32_dpp v%d, v%d row_ror:8 row_mask:0xc bank_mask:0xf' % (qc + r, qc + r))
    a('v_permlane32_swap_b32 v%d, v%d' % (qc, qc + 2))
    a('v_permlane32_swap_b32 v%d, v%d' % (qc + 1, qc + 3))
    pkadd(qc, qc, qc + 2)
    a('ds_write_b64 v15, %s offset:%d' % (vr(qc, 2), L_T))
    gate_open(6)
    xpub(2)
    gate_wait(6, 217)
    a('ds_read_b128 %s, v13 offset:%d' % (vr(vA), L_T))
    a('ds_read_b128 %s, v13 offset:%d' % (vr(vA + 4), L_T + 16))
    a('s_waitcnt lgkmcnt(0)')
    stamp(5)
    pkadd(vA, vA, vA + 2); pkadd(vA + 4, vA + 4, vA + 6)
    pkadd(vA + 20, vA, vA + 4)
    a('s_mov_b64 exec, s[58:59]')
    a('buffer_store_dwordx4 %s, v9, s[20:23], s57 offen' % vr(vA + 20))
    a('s_add_u32 s%d, s57, 0x%x' % (100 if c['qb'] == 2 else 57, WS_QB - WS_Q))
    if c['qb'] == 1: a('buffer_store_dwordx4 %s, v9, s[20:23], s57 offen sc1' % vr(vA + 20) + nt('s'))
    gate_open(8)
    a('s_mov_b64 exec, -1')
    if c['qb'] == 2:
        a('s_mov_b64 s[98:99], s[58:59]')
        a('v_mov_b32 v%d, v9' % (vA + 19))
    a('s_branch L_v3')

    a.section('end')

    a.label('L_exit')
    if c['probe'] and c['probe'][0] == 'skew':
        _, gsel, mult = c['probe']
        a('s_waitcnt lgkmcnt(0)')
        a('s_cmp_eq_u32 s5, 0')
        a('s_cbranch_scc0 L_end')
        a('s_mov_b64 exec, -1')
        a('s_lshl_b32 s7, s3, 5')
        a('s_add_u32 s7, s7, s4')
        a('s_lshl_b32 s7, s7, 7')
        a('s_add_u32 s7, s7, 0x%x' % WS_ST)
        a('v_mov_b32 v16, s64')
        a('buffer_store_dword v16, off, s[20:23], s7 sc1')
        a('s_cmp_eq_u32 s2, 113')
        a('s_cbranch_scc0 L_end')
        a.label('L_spin0')
        a('s_sleep 4')
        a('s_memrealtime s[94:95]')
        a('s_waitcnt lgkmcnt(0)')
        a('s_sub_u32 s44, s94, s64')
        a('s_cmp_lt_u32 s44, 2000')
        a('s_cbranch_scc1 L_spin0')
        a('v_and_b32 v10, 31, v1')
        a('v_lshlrev_b32 v10, 7, v10')
        a('s_mov_b32 s7, 0x%x' % WS_ST)
        for g in range(8):
            a('buffer_load_dword v%d, v10, s[20:23], s7 offen sc1' % (16 + g))
            a('s_add_u32 s7, s7, 4096')
        a('s_waitcnt vmcnt(0)')
        for g in range(8):
            a('v_subrev_u32 v%d, s64, v%d' % (16 + g, 16 + g))
            allred32('v_min_i32', 16 + g, 30)
        a('v_mov_b32 v24, v16'); a('v_mov_b32 v25, v16')
        for g in range(1, 8):
            a('v_min_i32 v24, v24, v%d' % (16 + g))
            a('v_max_i32 v25, v25, v%d' % (16 + g))
        a('v_sub_u32 v26, v%d, v24' % (16 + gsel if gsel < 8 else 25))
        a('v_readfirstlane_b32 s7, v26')
        a('v_readfirstlane_b32 s45, v24')
        a('s_min_u32 s7, s7, 400')
        a('s_mul_i32 s7, s7, %d' % mult)
        a('s_add_u32 s7, s7, s45')
        a('s_add_u32 s7, s7, 3000')
        a.label('L_spin')
        a('s_sleep 4')
        a('s_memrealtime s[94:95]')
        a('s_waitcnt lgkmcnt(0)')
        a('s_sub_u32 s44, s94, s64')
        a('s_cmp_lt_i32 s44, s7')
        a('s_cbranch_scc1 L_spin')
    elif c['probe'] and c['probe'][0] == 'gmax':
        _, k, wmask, gsel, mult = c['probe']
        stamp(14)
        a('s_load_dwordx2 s[96:97], s[0:1], 80')
        a('s_mov_b64 exec, 1')
        a('s_and_b32 s3, s2, 7')
        a('s_lshl_b32 s7, 1, s5')
        a('s_and_b32 s7, s7, 0x%x' % wmask)
        a('s_waitcnt lgkmcnt(0)')
        a('s_cselect_b32 s7, s%d, 0' % (64 + 2 * k))
        a('v_mov_b32 v11, s7')
        a('v_lshlrev_b32_e64 v10, 2, s3')
        a.label('L_spin1')
        a('s_sleep 16')
        a('s_memrealtime s[94:95]')
        a('s_waitcnt lgkmcnt(0)')
        a('s_sub_u32 s44, s94, s64')
        a('s_cmp_lt_u32 s44, 1600')
        a('s_cbranch_scc1 L_spin1')
        a('s_cmp_eq_u32 s7, 0')
        a('s_cbranch_scc1 L_gm1')
        if gsel == 8: a('v_mov_b32 v10, 32')
        a('global_atomic_umax v10, v11, s[96:97] sc1')
        a.label('L_gm1')
        a('s_and_b32 s7, s5, 3')
        a('s_cbranch_scc1 L_end')
        a('v_not_b32 v11, s64')
        a('v_mov_b32 v10, 36')
        a('global_atomic_umax v10, v11, s[96:97] sc1')
        a('s_waitcnt vmcnt(0)')
        a('s_cmp_eq_u32 s5, 0')
        a('s_cbranch_scc0 L_end')
        a('s_cmp_eq_u32 s2, 113')
        a('s_cbranch_scc0 L_end')
        a.label('L_spin0')
        a('s_sleep 4')
        a('s_memrealtime s[94:95]')
        a('s_waitcnt lgkmcnt(0)')
        a('s_sub_u32 s44, s94, s64')
        a('s_cmp_lt_u32 s44, 5000')
        a('s_cbranch_scc1 L_spin0')
        a('v_mov_b32 v10, 0')
        a('global_load_dwordx4 v[20:23], v10, s[96:97] sc1')
        a('global_load_dwordx4 v[24:27], v10, s[96:97] offset:16 sc1')
        a('global_load_dwordx2 v[28:29], v10, s[96:97] offset:32 sc1')
        a('s_waitcnt vmcnt(0)')
        a('v_not_b32 v17, v29')
        for g in range(9): a('v_sub_u32 v%d, v%d, v17' % (20 + g, 20 + g))
        if isinstance(gsel, int):
            a('v_mov_b32 v16, v%d' % (20 + gsel))
        else:
            g0 = int(gsel[1:] or 0)
            oth = [20 + g for g in range(8) if g != g0 or gsel[0] in 'cd']
            a('v_mov_b32 v30, 0'); a('v_mov_b32 v31, 0')
            for r in oth:
                a('v_max_u32 v30, v30, v%d' % r)
                a('v_add_u32 v31, v31, v%d' % r)
            a('v_mul_u32_u24 v31, %d, v31' % (65536 // len(oth)))
            a('v_lshrrev_b32 v31, 16, v31')
            x, y = {'a': (20 + g0, 30), 'b': (20 + g0, 31), 'c': (30, 31), 'd': (31, 10), 'z': (31, 31)}[gsel[0]]
            a('v_sub_u32 v16, v%d, v%d' % (x, y))
            if gsel[0] != 'd': a('v_add_u32 v16, 300, v16')
        a('s_nop 1')
        a('v_readfirstlane_b32 s7, v16')
        a('v_readfirstlane_b32 s45, v17')
        a('s_min_u32 s7, s7, 2000')
        a('s_mul_i32 s7, s7, %d' % mult)
        a('s_add_u32 s7, s7, 1000')
        a.label('L_spin')
        a('s_sleep 4')
        a('s_memrealtime s[94:95]')
        a('s_waitcnt lgkmcnt(0)')
        a('s_sub_u32 s44, s94, s45')
        a('s_cmp_lt_u32 s44, s7')
        a('s_cbranch_scc1 L_spin')
    elif c['probe'] and c['probe'][0] == 'gdiff':
        _, ka, ma, kb, mb, mult = c['probe']
        stamp(14)
        a('s_load_dwordx2 s[96:97], s[0:1], 80')
        a('s_mov_b64 exec, 1')
        a('s_lshl_b32 s3, 1, s5')
        a.label('L_spin1')
        a('s_sleep 16')
        a('s_memrealtime s[94:95]')
        a('s_waitcnt lgkmcnt(0)')
        a('s_sub_u32 s44, s94, s64')
        a('s_cmp_lt_u32 s44, 1600')
        a('s_cbranch_scc1 L_spin1')
        a('s_not_b32 s65, s64')
        for i, (r, m) in enumerate(((64 + 2 * ka, ma), (64 + 2 * kb, mb), (65, 0x11))):
            a('s_and_b32 s7, s3, 0x%x' % m)
            a('s_cselect_b32 s7, s%d, 0' % r)
            a('s_cmp_eq_u32 s7, 0')
            a('s_cbranch_scc1 L_gd%d' % i)
            a('v_mov_b32 v10, %d' % (4 * i))
            a('v_mov_b32 v11, s7')
            a('global_atomic_umax v10, v11, s[96:97] sc1')
            a('s_waitcnt vmcnt(0)')
            a.label('L_gd%d' % i)
        a('s_cmp_eq_u32 s5, 0')
        a('s_cbranch_scc0 L_end')
        a('s_cmp_eq_u32 s2, 113')
        a('s_cbranch_scc0 L_end')
        a.label('L_spin0')
        a('s_sleep 4')
        a('s_memrealtime s[94:95]')
        a('s_waitcnt lgkmcnt(0)')
        a('s_sub_u32 s44, s94, s64')
        a('s_cmp_lt_u32 s44, 5000')
        a('s_cbranch_scc1 L_spin0')
        a('v_mov_b32 v10, 0')
        a('global_load_dwordx4 v[20:23], v10, s[96:97] sc1')
        a('s_waitcnt vmcnt(0)')
        a('v_not_b32 v17, v22')
        a('v_sub_u32 v16, v20, v%d' % (21 if mb else 17))
        a('s_nop 1')
        a('v_readfirstlane_b32 s7, v16')
        a('v_readfirstlane_b32 s45, v17')
        a('s_min_u32 s7, s7, 2000')
        a('s_mul_i32 s7, s7, %d' % mult)
        a('s_add_u32 s7, s7, 6000')
        a.label('L_spin')
        a('s_sleep 4')
        a('s_memrealtime s[94:95]')
        a('s_waitcnt lgkmcnt(0)')
        a('s_sub_u32 s44, s94, s45')
        a('s_cmp_lt_u32 s44, s7')
        a('s_cbranch_scc1 L_spin')
    elif c['probe'] and c['probe'][0] == 'dirty':
        _, nkb, sc, base = c['probe']
        a('s_mov_b64 exec, -1')
        a('s_lshl3_add_u32 s7, s2, s5')
        a('s_lshl_b32 s7, s7, 13')
        a('s_add_u32 s7, s7, 0x1000000')
        a('v_lshlrev_b32 v8, 4, v1')
        for k in range(nkb):
            a('buffer_store_dwordx4 v[16:19], v8, s[20:23], s7 offen' + sc)
            a('s_add_u32 s7, s7, 1024')
        a('s_waitcnt lgkmcnt(0)')
        a.label('L_spin')
        a('s_sleep 4')
        a('s_memrealtime s[94:95]')
        a('s_waitcnt lgkmcnt(0)')
        a('s_sub_u32 s44, s94, s64')
        a('s_cmp_lt_u32 s44, %d' % base)
        a('s_cbranch_scc1 L_spin')
    elif c['probe']:
        k, base, mult = c['probe']
        stamp(14)
        a('s_waitcnt lgkmcnt(0)')
        a('s_cmp_eq_u32 s%d, 0' % (64 + 2 * k))
        a('s_cbranch_scc1 L_end')
        a('s_sub_u32 s7, s%d, s64' % (64 + 2 * k))
        a('s_min_u32 s7, s7, 10000')
        a('s_mul_i32 s7, s7, %d' % mult)
        a('s_add_u32 s7, s7, %d' % base)
        a.label('L_spin')
        a('s_sleep 4')
        a('s_memrealtime s[94:95]')
        a('s_waitcnt lgkmcnt(0)')
        a('s_sub_u32 s44, s94, s64')
        a('s_cmp_lt_u32 s44, s7')
        a('s_cbranch_scc1 L_spin')
    elif diag:
        stamp(14)
        a('s_sleep 127')
        a('s_mov_b64 exec, 1')
        a('s_lshl3_add_u32 s7, s2, s5')
        a('s_lshl_b32 s7, s7, 6')
        a('s_add_u32 s7, s7, 0x%x' % WS_ST)
        a('s_waitcnt lgkmcnt(0)')
        for k in range(15): a('v_mov_b32 v%d, s%d' % (16 + k, 64 + 2 * k))
        a('s_add_u32 s47, s47, 2')
        a('v_mov_b32 v31, s47')
        for k in range(4): a('buffer_store_dwordx4 %s, off, s[20:23], s7 offset:%d' % (vr(16 + 4 * k), 16 * k))
    a.label('L_end')
    a('s_endpgm')

    ref = open(os.path.join(os.path.dirname(os.path.abspath(__file__)), 'header.txt')).read()
    head = ref + '; @launch grid=(256,1,1) block=(512,1,1) lds=%d\n' % LDS_BYTES
    head += '.amdgcn_target "amdgcn-amd-amdhsa--gfx950"\n.text\n.globl {N}_kernel\n.p2align %d\n.p2align 8\n.type {N}_kernel,@function\n{N}_kernel:\n'.replace('{N}', NAME) % c['align']
    foot = """.section .rodata,"a"
.p2align 6
.amdhsa_kernel {N}_kernel
  .amdhsa_next_free_vgpr 224
  .amdhsa_next_free_sgpr 102
  .amdhsa_accum_offset 224
  .amdhsa_group_segment_fixed_size 0
  .amdhsa_kernarg_size 96
  .amdhsa_float_denorm_mode_32 3
  .amdhsa_user_sgpr_count 2
  .amdhsa_user_sgpr_kernarg_segment_ptr 1
  .amdhsa_system_sgpr_workgroup_id_x 1
.end_amdhsa_kernel
""".replace('{N}', NAME)
    return head + a.text(('main', 'q', 'k', 'v', 'end')) + foot

if __name__ == '__main__':
    out = sys.argv[1] if len(sys.argv) > 1 else 'cdna_kernels/%s.s' % NAME
    kw = eval('dict(%s)' % sys.argv[2]) if len(sys.argv) > 2 else {}
    open(out, 'w').write(gen(**kw))
```
